```python
import torch

def _softmax(x, axis=-1):
    return torch.softmax(x, dim=axis)
def _gelu(x):
    return torch.nn.functional.gelu(x, approximate="tanh")
def _silu(x):
    return torch.nn.functional.silu(x)
def _sigmoid(x):
    return torch.sigmoid(x)
def _layernorm(x, axis=-1, eps=1e-5):
    m = x.mean(dim=axis, keepdim=True)
    v = x.var(dim=axis, keepdim=True, unbiased=False)
    return (x - m) / torch.sqrt(v + eps)
def _scatter_add(tgt, idx, src, axis=0):
    return tgt.clone().index_add_(axis, idx, src)
def _segment_sum(src, seg, n):
    out = torch.zeros((n,) + src.shape[1:], dtype=src.dtype)
    return out.index_add_(0, seg, src)
def _pad(x, pw):
    flat = tuple(v for pair in reversed(pw) for v in pair)
    return torch.nn.functional.pad(x, flat)

kernel_name = 'recurrent_scan__mha_block_cached__mixer_token_mlp__prompt'

def setup_inputs():

    _w = (lambda a: (lambda t: t.to(torch.bfloat16) if t.is_floating_point() else t)(torch.as_tensor(a)))
    def _A_setup():
        B, Sq, D = 1, 2048, 1024
        H, Sk, Dh = 32, 2048, 128
        return {
            "x": _w((lambda *s: torch.randn(*s, dtype=torch.bfloat16) * 0.05)(B, Sq, D)),
            "k_cache": _w((lambda *s: torch.randn(*s, dtype=torch.bfloat16) * 3.2)(B, H, Sk, Dh)),
            "v_cache": _w((lambda *s: torch.randn(*s, dtype=torch.bfloat16) * 3.2)(B, H, Sk, Dh)),
            "wq": _w((lambda *s: torch.randn(*s, dtype=torch.bfloat16) * 3.2)(D, H * Dh) * (D ** -0.5)),
            "wo": _w((lambda *s: torch.randn(*s, dtype=torch.bfloat16) * 3.2)(H * Dh, D) * ((H * Dh) ** -0.5)),
        }
    _A_in = _A_setup()

    def _B_setup():
        B, S, D, F = 1, 2048, 1024, 3584
        return {
            "x": _w((lambda *s: torch.randn(*s, dtype=torch.bfloat16) * 0.05)(B, S, D)),
            "w1": _w((lambda *s: torch.randn(*s, dtype=torch.bfloat16) * 3.2)(S, F) * (S ** -0.5)),
            "b1": _w((lambda *s: torch.randn(*s, dtype=torch.bfloat16) * 3.2)(F) * 0.02),
            "w2": _w((lambda *s: torch.randn(*s, dtype=torch.bfloat16) * 0.4)(F, S) * (F ** -0.5)),
            "b2": _w((lambda *s: torch.randn(*s, dtype=torch.bfloat16) * 0.4)(S) * 0.02),
        }
    _B_in = _B_setup()

    return {
        "A_x": _A_in["x"],
        "A_k_cache": _A_in["k_cache"],
        "A_v_cache": _A_in["v_cache"],
        "A_wq": _A_in["wq"],
        "A_wo": _A_in["wo"],
        "B_x": _B_in["x"],
        "B_w1": _B_in["w1"],
        "B_b1": _B_in["b1"],
        "B_w2": _B_in["w2"],
        "B_b2": _B_in["b2"],
    }

def reference(A_x, A_k_cache, A_v_cache, A_wq, A_wo, B_x, B_w1, B_b1, B_w2, B_b2):
    def _A_ref(x, k_cache, v_cache, wq, wo):
        B, Sq, D = x.shape
        H, Dh = 32, 128
        q = (lambda x, *d: x.permute(*d))((x @ wq).reshape(B, Sq, H, Dh), 0, 2, 1, 3)
        scores = torch.einsum("bhqd,bhkd->bhqk", q, k_cache) * (Dh ** -0.5)
        p = _softmax(scores, axis=-1)
        o = torch.einsum("bhqk,bhkd->bhqd", p, v_cache)
        return (lambda x, *d: x.permute(*d))(o, 0, 2, 1, 3).reshape(B, Sq, H * Dh) @ wo

    def _B_ref(x, w1, b1, w2, b2):
        B, S, D = x.shape
        h = _layernorm(x, axis=-1)
        u = torch.einsum("bsd,sf->bdf", h, w1) + b1
        u = _gelu(u)
        y = torch.einsum("bdf,fs->bds", u, w2) + b2
        return (lambda x, *d: x.permute(*d))(y, 0, 2, 1)

    x = A_x
    xn = _layernorm(x, axis=-1)
    s = _A_ref(xn, A_k_cache, A_v_cache, A_wq, A_wo)
    g = _silu(_B_ref(xn, B_w1, B_b1, B_w2, B_b2))
    return x + s * g
```

```python
import re
import struct


def v(i, n=1):
    return f"v{i}" if n == 1 else f"v[{i}:{i + n - 1}]"


def a(i, n=1):
    return f"a{i}" if n == 1 else f"a[{i}:{i + n - 1}]"


def s(i, n=1):
    return f"s{i}" if n == 1 else f"s[{i}:{i + n - 1}]"


def R(reg, n=1, off=0):
    k, i = reg
    return (v if k == "v" else a)(i + off, n)


def f32(x):
    return "0x%08x" % struct.unpack("<I", struct.pack("<f", x))[0]


class Asm:
    def __init__(self):
        self.lines = []

    def __call__(self, *txt):
        for t in txt:
            for ln in t.split("\n"):
                ln = ln.strip()
                if ln:
                    self.lines.append(ln)

    def label(self, name):
        self.lines.append(name + ":")

    def nop(self, n):
        while n > 0:
            k = min(n, 16)
            self.lines.append(f"s_nop {k - 1}")
            n -= k

    def text(self):
        out = []
        for ln in self.lines:
            if ln.endswith(":") or ln.startswith(".") or ln.startswith(";"):
                out.append(ln)
            else:
                out.append("    " + ln)
        return "\n".join(out) + "\n"


def weave(A, mfmas, pre, valu):
    for i, m in enumerate(mfmas):
        A(m)
        for x in pre.get(i, []):
            A(x)
        for x in valu.get(i, []):
            A(x)


_REG = re.compile(r"\b([vas])(?:(\d+)\b|\[(\d+):(\d+)\])")
TRANS = ("v_exp_f32", "v_log_f32", "v_rcp_f32", "v_rsq_f32", "v_sqrt_f32", "v_sin_f32", "v_cos_f32")


def regs(op):
    out = set()
    for m in _REG.finditer(op):
        k = m.group(1)
        if m.group(2) is not None:
            out.add((k, int(m.group(2))))
        else:
            for i in range(int(m.group(3)), int(m.group(4)) + 1):
                out.add((k, i))
    if re.search(r"\bvcc\b", op):
        out.add(("s", "vcc"))
    if re.search(r"\bm0\b", op):
        out.add(("s", "m0"))
    if re.search(r"\bexec\b", op):
        out.add(("s", "exec"))
    return out


class I:
    def __init__(self, text):
        self.text = text
        t = text.split(";")[0].strip()
        parts = t.split(None, 1)
        self.op = parts[0]
        opnds = [x.strip() for x in parts[1].split(",")] if len(parts) > 1 else []
        self.opnds = opnds
        op = self.op
        self.is_mfma = op.startswith("v_mfma")
        self.is_valu = op.startswith("v_") and not self.is_mfma
        self.is_trans = any(op.startswith(x) for x in TRANS)
        self.is_ds = op.startswith("ds_")
        self.is_vmem = op.startswith("buffer_") or op.startswith("global_")
        self.is_salu = op.startswith("s_")
        self.is_dma = self.is_vmem and bool(re.search(r"\blds\b", t))
        self.is_dpp = bool(re.search(r"quad_perm|row_|dpp", t))
        self.is_perml = op.startswith("v_permlane")
        self.ws = 1
        if op == "s_nop":
            self.ws = int(opnds[0], 0) + 1
        w, r = set(), set()
        self.srcc = set()
        self.srcab = set()
        self.stdata = set()
        if self.is_mfma:
            w = regs(opnds[0])
            self.srcab = regs(opnds[1]) | regs(opnds[2])
            self.srcc = regs(opnds[3])
            r = self.srcab | self.srcc
            self.passes = 4 if "16x16x32" in op else 8
        elif self.is_valu:
            if self.is_perml and "swap" in op:
                w = regs(opnds[0]) | regs(opnds[1])
                r = set(w)
            else:
                w = regs(opnds[0])
                rest = opnds[1:]
                if op.startswith(("v_add_co", "v_addc_co", "v_sub_co", "v_subb_co")):
                    w |= regs(opnds[1])
                    rest = opnds[2:]
                for x in rest:
                    r |= regs(x)
                if op.startswith(("v_fmac", "v_dot2c", "v_writelane")) or self.is_dpp:
                    r |= regs(opnds[0])
                if op.startswith("v_cmpx"):
                    w.add(("s", "exec"))
        elif self.is_ds:
            if op.startswith(("ds_read", "ds_bpermute", "ds_swizzle", "ds_permute")):
                w = regs(opnds[0])
                for x in opnds[1:]:
                    r |= regs(x)
            else:
                for x in opnds:
                    r |= regs(x)
        elif self.is_vmem:
            if op in ("buffer_wbl2", "buffer_inv"):
                pass
            elif "load" in op and not self.is_dma:
                w = regs(opnds[0])
                for x in opnds[1:]:
                    r |= regs(x)
            else:
                for x in opnds:
                    r |= regs(x)
                if self.is_dma:
                    r.add(("s", "m0"))
                elif re.search(r"x[34]$", op):
                    self.stdata = regs(opnds[0] if op.startswith("buffer") else opnds[1])
                if "atomic" in op and re.search(r"\bsc0\b", t):
                    w = regs(opnds[0])
        elif self.is_salu:
            if op.startswith(("s_cmp", "s_cbranch", "s_branch", "s_waitcnt", "s_nop", "s_barrier", "s_endpgm",
                              "s_bitcmp", "s_setprio", "s_sleep")):
                for x in opnds:
                    r |= regs(x)
            else:
                w = regs(opnds[0])
                for x in opnds[1:]:
                    r |= regs(x)
                if "saveexec" in op:
                    w.add(("s", "exec"))
        self.w, self.r = w, r


def need(p, c):
    n = 0
    vw = {x for x in p.w if x[0] in "va"}
    sw = {x for x in p.w if x[0] == "s"}
    if p.is_valu:
        if c.is_mfma and vw & c.r:
            n = max(n, 2)
        if p.is_trans and c.is_valu and not c.is_trans and vw & c.r:
            n = max(n, 1)
        if c.is_perml and vw & c.r:
            n = max(n, 2)
        if c.is_dpp and vw & c.r:
            n = max(n, 2)
        if c.op.startswith(("v_readfirstlane", "v_readlane")) and vw & c.r:
            n = max(n, 1)
        if c.is_vmem and sw & c.r:
            n = max(n, 5)
        if c.is_valu and sw & c.r:
            n = max(n, 2)
        if c.is_salu and sw & c.r:
            n = max(n, 1)
        if ("s", "exec") in sw and (c.is_mfma or c.is_perml or c.op.startswith("v_read")):
            n = max(n, 4)
        if ("s", "exec") in sw and c.is_dpp:
            n = max(n, 5)
    if p.is_salu and ("s", "m0") in p.w and c.is_dma:
        n = max(n, 1)
    if p.is_mfma:
        far = {4: 8, 8: 12}[p.passes]
        if c.is_mfma:
            if p.w & c.srcab:
                n = max(n, far)
            if p.w & c.srcc and not (p.w == c.srcc and p.passes == c.passes):
                n = max(n, {4: 6, 8: 10}[p.passes])
        elif (c.is_valu or c.is_ds or c.is_vmem) and p.w & (c.r | c.w):
            n = max(n, far)
        if c.is_valu and p.srcc & c.w:
            n = max(n, {4: 3, 8: 7}[p.passes])
    if p.stdata and p.stdata & c.w:
        n = max(n, 2)
    return n


def check_hazards(lines, window=14):
    ins = []
    labels = {}
    for ln in lines:
        t = ln.split(";")[0].strip()
        if not t or t.startswith("."):
            continue
        if t.endswith(":"):
            labels[t[:-1]] = len(ins)
            continue
        ins.append(I(t))
    problems = []

    def succ(i):
        x = ins[i]
        if x.op == "s_endpgm":
            return []
        if x.op == "s_branch":
            return [labels[x.opnds[0]]]
        if x.op.startswith("s_cbranch"):
            return [i + 1, labels[x.opnds[0]]]
        return [i + 1]

    for i, p in enumerate(ins):
        if not (p.is_valu or p.is_mfma or p.stdata or (p.is_salu and ("s", "m0") in p.w)):
            continue
        stack = [(j, 0) for j in succ(i)]
        seen = set()
        while stack:
            j, d = stack.pop()
            if j >= len(ins) or d >= window or (j, d) in seen:
                continue
            seen.add((j, d))
            c = ins[j]
            n = need(p, c)
            if n > d:
                problems.append(f"need {n} have {d}: [{p.text}] -> [{c.text}]")
            for k in succ(j):
                stack.append((k, d + c.ws))
    return problems
```

```python
import math
import sys
from asmlib import Asm, v, a, s, R, f32, weave, check_hazards

NAME = "recurrent_scan__mha_block_cached__mixer_token_mlp__prompt"
OPT = dict(diag=0, bias=64.0, thresh=2.0 ** 60, force_fb=0)
for arg in sys.argv[2:]:
    k_, v_ = arg.split("=")
    OPT[k_] = float(v_) if "." in v_ else int(v_)

MB = 1 << 20
WS_XF, WS_HF, WS_OF, WS_UF, WS_G, WS_DIAG = 0, 4 * MB, 8 * MB, 24 * MB, 32 * MB, 64 * MB
KA_X, KA_K, KA_V, KA_WQ, KA_WO, KA_W1, KA_B1, KA_W2, KA_B2, KA_OUT, KA_DBG, KA_WS = (
    0, 8, 16, 24, 32, 48, 56, 64, 72, 80, 88, 96)
LOG2E = 1.4426950408889634
QSCALE = LOG2E / math.sqrt(128.0)
MF = "v_mfma_f32_16x16x32_bf16"


def mfma(d, x, y, c):
    return f"{MF} {d}, {x}, {y}, {c}"


def srd(A, sr, ptr, off, size):
    A(f"s_add_u32 {s(sr)}, {s(ptr)}, {off}")
    A(f"s_addc_u32 {s(sr + 1)}, {s(ptr + 1)}, 0")
    A(f"s_mov_b32 {s(sr + 2)}, {size}")
    A(f"s_mov_b32 {s(sr + 3)}, 0x20000")


def wave_sum(A, regs, tmp, op="v_add_f32", dpp=True):
    if dpp:
        for mod in ("quad_perm:[1,0,3,2]", "quad_perm:[2,3,0,1]", "row_half_mirror", "row_mirror"):
            A.nop(max(0, 3 - len(regs)))
            for r in regs:
                A(f"{op}_dpp {v(r)}, {v(r)}, {v(r)} {mod} row_mask:0xf bank_mask:0xf")
    for sw in ("v_permlane16_swap_b32", "v_permlane32_swap_b32"):
        for r, t in zip(regs, tmp):
            A(f"v_mov_b32 {v(t)}, {v(r)}")
        A.nop(max(0, 3 - len(regs)))
        for r, t in zip(regs, tmp):
            A(f"{sw} {v(r)}, {v(t)}")
        for r, t in zip(regs, tmp):
            A(f"{op} {v(r)}, {v(r)}, {v(t)}")


class Diag:
    def __init__(self, A, base_sgpr, slot):
        self.A, self.b, self.n, self.slot = A, base_sgpr, 0, slot

    def stamp(self):
        if not OPT["diag"]:
            return
        A = self.A
        A(f"s_memtime {s(96, 2)}")
        A(f"s_memrealtime {s(98, 2)}")
        A("s_waitcnt lgkmcnt(0)")
        A(f"s_mov_b32 {s(self.b + 2 * self.n)}, s96")
        A(f"s_mov_b32 {s(self.b + 2 * self.n + 1)}, s98")
        self.n += 1

    def flush(self, nmax):
        if not OPT["diag"]:
            return
        A = self.A
        A(f"s_load_dwordx2 {s(96, 2)}, s[0:1], {KA_WS}")
        A("s_waitcnt lgkmcnt(0)")
        A("s_lshl_b32 s98, s2, 7")
        A(f"s_add_u32 s98, s98, {WS_DIAG + self.slot * 65536}")
        srd(A, 92, 96, "s98", 128)
        A("v_mov_b32 v1, 0")
        for i in range(2 * nmax):
            A(f"v_mov_b32 v2, {s(self.b + i)}")
            A(f"buffer_store_dword v2, v1, s[92:95], 0 offen offset:{4 * i}")
        A("s_waitcnt vmcnt(0)")


LN_RS = 2080
LN_LDS = 16 * LN_RS


def gen_ln(A):
    A.label("ln_kernel")
    A("s_cmp_ge_u32 s2, 256")
    A("s_cbranch_scc1 L_ln_end")
    A(f"s_load_dwordx2 s[4:5], s[0:1], {KA_X}")
    A(f"s_load_dwordx2 s[6:7], s[0:1], {KA_WS}")
    A("v_and_b32 v1, 63, v0")
    A("v_lshrrev_b32 v2, 6, v0")
    A("v_lshlrev_b32 v3, 4, v1")
    A("v_lshl_add_u32 v4, v2, 11, v3")
    A("s_lshl_b32 s3, s2, 14")
    A("s_waitcnt lgkmcnt(0)")
    srd(A, 8, 4, "s3", 16384)
    A("buffer_load_dwordx4 v[8:11], v4, s[8:11], 0 offen")
    A("buffer_load_dwordx4 v[12:15], v4, s[8:11], 0 offen offset:1024")
    srd(A, 12, 6, 0, 8 * MB)
    A(f"v_mul_u32_u24 v5, {LN_RS}, v2")
    A("v_add_u32 v5, v5, v3")
    A("v_and_b32 v6, 7, v0")
    A("v_lshrrev_b32 v7, 3, v0")
    A(f"v_mul_u32_u24 v40, {LN_RS}, v6")
    A("v_lshl_add_u32 v40, v7, 4, v40")
    A("v_lshrrev_b32 v41, 2, v7")
    A("v_lshlrev_b32 v41, 12, v41")
    A("v_and_b32 v42, 3, v7")
    A("v_lshl_add_u32 v41, v42, 8, v41")
    A("v_lshl_add_u32 v41, v6, 4, v41")
    A("s_lshr_b32 s16, s2, 3")
    A("s_lshl_b32 s16, s16, 17")
    A("s_bfe_u32 s17, s2, 0x20001")
    A("s_lshl_b32 s17, s17, 10")
    A("s_add_u32 s16, s16, s17")
    A("s_and_b32 s17, s2, 1")
    A("s_lshl_b32 s17, s17, 7")
    A("s_add_u32 s16, s16, s17")
    A("s_add_u32 s17, s16, 65536")
    A("v_bfe_u32 v42, v0, 2, 2")
    A(f"v_mul_u32_u24 v42, {LN_RS}, v42")
    A("v_lshrrev_b32 v43, 4, v0")
    A("v_lshl_add_u32 v42, v43, 5, v42")
    A("v_and_b32 v44, 3, v0")
    A("v_lshl_add_u32 v42, v44, 3, v42")
    A("v_lshrrev_b32 v44, 1, v43")
    A("v_lshlrev_b32 v44, 17, v44")
    A("v_and_b32 v43, 1, v43")
    A("v_lshl_add_u32 v44, v43, 10, v44")
    A("v_and_b32 v43, 15, v0")
    A("v_lshl_add_u32 v44, v43, 4, v44")
    A("s_lshr_b32 s18, s2, 2")
    A("s_lshl_b32 s18, s18, 11")
    A("s_and_b32 s19, s2, 3")
    A("s_lshl_b32 s19, s19, 8")
    A("s_add_u32 s18, s18, s19")
    A(f"s_add_u32 s18, s18, {WS_HF}")
    A(f"s_add_u32 s19, s18, {2 * MB}")
    A(f"s_mov_b32 s20, {f32(1.0 / 1024)}")
    A(f"s_mov_b32 s21, {f32(1e-5)}")
    A(f"s_mov_b32 s22, {f32(QSCALE)}")
    X = 16
    A("s_waitcnt vmcnt(0)")
    for i in range(8):
        A(f"v_lshlrev_b32 {v(X + 2 * i)}, 16, {v(8 + i)}")
        A(f"v_and_b32 {v(X + 2 * i + 1)}, 0xffff0000, {v(8 + i)}")
    A(f"v_add_f32 v32, {v(X)}, {v(X + 1)}")
    A(f"v_add_f32 v33, {v(X + 2)}, {v(X + 3)}")
    for i in range(4, 16, 2):
        A(f"v_add_f32 v32, v32, {v(X + i)}")
        A(f"v_add_f32 v33, v33, {v(X + i + 1)}")
    A("v_add_f32 v32, v32, v33")
    wave_sum(A, [32], [34])
    A("v_mul_f32 v32, s20, v32")
    for i in range(16):
        A(f"v_sub_f32 {v(X + i)}, {v(X + i)}, v32")
    A(f"v_mul_f32 v32, {v(X)}, {v(X)}")
    A(f"v_mul_f32 v33, {v(X + 1)}, {v(X + 1)}")
    for i in range(2, 16, 2):
        A(f"v_fmac_f32 v32, {v(X + i)}, {v(X + i)}")
        A(f"v_fmac_f32 v33, {v(X + i + 1)}, {v(X + i + 1)}")
    A("v_add_f32 v32, v32, v33")
    wave_sum(A, [32], [34])
    A("v_mov_b32 v33, s21")
    A("v_fmac_f32 v33, s20, v32")
    A("v_rsq_f32 v33, v33")
    A.nop(1)
    for i in range(16):
        A(f"v_mul_f32 {v(X + i)}, {v(X + i)}, v33")
    A(f"v_add_f32 v32, {v(X)}, {v(X + 1)}")
    A(f"v_mul_f32 v33, {v(X)}, {v(X)}")
    A(f"v_fmac_f32 v33, {v(X + 1)}, {v(X + 1)}")
    for i in range(2, 16):
        A(f"v_add_f32 v32, v32, {v(X + i)}")
        A(f"v_fmac_f32 v33, {v(X + i)}, {v(X + i)}")
    for i in range(8):
        A(f"v_mul_f32 v36, s22, {v(X + 2 * i)}")
        A(f"v_mul_f32 v37, s22, {v(X + 2 * i + 1)}")
        A(f"v_cvt_pk_bf16_f32 {v(8 + i)}, v36, v37")
    A("ds_write_b128 v5, v[8:11]")
    A("ds_write_b128 v5, v[12:15] offset:1024")
    wave_sum(A, [32, 33], [34, 35])
    A("v_mul_f32 v32, s20, v32")
    A("v_mul_f32 v33, s20, v33")
    A("v_fma_f32 v33, -v32, v32, v33")
    A("v_max_f32 v33, 0, v33")
    A("v_add_f32 v33, s21, v33")
    A("v_rsq_f32 v33, v33")
    for i in range(16):
        A(f"v_sub_f32 {v(X + i)}, {v(X + i)}, v32")
    for i in range(8):
        A(f"v_mul_f32 v36, v33, {v(X + 2 * i)}")
        A(f"v_mul_f32 v37, v33, {v(X + 2 * i + 1)}")
        A(f"v_cvt_pk_bf16_f32 {v(48 + i)}, v36, v37")
    HB = 8 * LN_RS
    A(f"ds_write_b128 v5, v[48:51] offset:{HB}")
    A(f"ds_write_b128 v5, v[52:55] offset:{HB + 1024}")
    A("s_waitcnt lgkmcnt(0)")
    A("s_barrier")
    A("ds_read_b128 v[8:11], v40")
    A("ds_read_b128 v[12:15], v40 offset:1024")
    A(f"ds_read_b64_tr_b16 v[16:17], v42 offset:{HB}")
    A(f"ds_read_b64_tr_b16 v[18:19], v42 offset:{HB + 4 * LN_RS}")
    A(f"ds_read_b64_tr_b16 v[20:21], v42 offset:{HB + 1024}")
    A(f"ds_read_b64_tr_b16 v[22:23], v42 offset:{HB + 4 * LN_RS + 1024}")
    A("s_waitcnt lgkmcnt(5)")
    A("buffer_store_dwordx4 v[8:11], v41, s[12:15], s16 offen")
    A("s_waitcnt lgkmcnt(4)")
    A("buffer_store_dwordx4 v[12:15], v41, s[12:15], s17 offen")
    A("s_waitcnt lgkmcnt(2)")
    A("buffer_store_dwordx4 v[16:19], v44, s[12:15], s18 offen")
    A("s_waitcnt lgkmcnt(0)")
    A("buffer_store_dwordx4 v[20:23], v44, s[12:15], s19 offen")
    A.label("L_ln_end")
    A("s_endpgm")


V_KA, V_VA, V_WA0, V_WA1 = 4, 8, 16, 44
V_OK, V_OV, V_LANE16, V_OW = 24, 28, 30, 32
V_L, V_NEGM, V_Q = 36, 44, 64
V_S, V_P, V_ACC = (128, 160), (192, 208), 128
A_O, A_KF, A_VF = 0, 128, 160
A_WF = (128, 160)
S_W = 3
SR_ACT, SR_W, SR_K, SR_V, SR_ST = 4, 8, 12, 16, 20
S_SA, S_SW, S_SK, S_SV, S_CNT, S_FB = 40, 41, 42, 43, 44, 45
VBASE = 65536


def ring(idx):
    idx %= 32
    return ("a", 192 + 4 * idx) if idx < 16 else ("v", 64 + 4 * (idx - 16))


def lane_setup(A):
    A("v_and_b32 v1, 63, v0")
    A("v_lshrrev_b32 v2, 6, v0")
    A(f"v_lshlrev_b32 {v(V_LANE16)}, 4, v1")
    A(f"v_readfirstlane_b32 {s(S_W)}, v2")
    A("v_and_b32 v2, 15, v1")
    A("v_lshrrev_b32 v3, 4, v1")
    A(f"s_lshl_b32 {s(S_W)}, {s(S_W)}, 12")


def w_read_addrs(A, dst, base, natural, t0):
    A(f"v_lshrrev_b32 {v(t0)}, 2, v2")
    A(f"v_and_b32 {v(t0 + 1)}, 1, v3")
    A(f"v_lshl_add_u32 {v(t0 + 1)}, {v(t0 + 1)}, 2, {v(t0)}")
    A(f"v_lshl_add_u32 {v(t0)}, v3, {3 if natural else 2}, {v(t0)}")
    A(f"v_lshlrev_b32 {v(t0)}, 8, {v(t0)}")
    A(f"v_lshl_add_u32 {v(t0)}, {v(t0 + 1)}, 5, {v(t0)}")
    A(f"v_and_b32 {v(t0 + 1)}, 3, v2")
    A(f"v_lshl_add_u32 {v(t0)}, {v(t0 + 1)}, 3, {v(t0)}")
    if base:
        A(f"v_add_u32 {v(t0)}, {base}, {v(t0)}")
    for b in range(8):
        A(f"v_xor_b32 {v(dst + b)}, {b * 32}, {v(t0)}")


def w_dma_offsets(A, dst, ldw, natural, t0, st):
    A(f"s_lshr_b32 {s(st)}, {s(S_W)}, 8")
    A(f"v_add_u32 {v(t0)}, {s(st)}, v3")
    A(f"v_mul_u32_u24 {v(t0)}, {ldw}, {v(t0)}")
    for i in range(4):
        hi = ((i >> 1) & 1) if natural else (i & 1)
        A(f"v_lshlrev_b32 {v(t0 + 1)}, 1, v3")
        A(f"v_xor_b32 {v(t0 + 1)}, {v(t0 + 1)}, v2")
        if hi:
            A(f"v_xor_b32 {v(t0 + 1)}, 8, {v(t0 + 1)}")
        A(f"v_lshl_add_u32 {v(dst + i)}, {v(t0 + 1)}, 4, {v(t0)}")
        if i:
            A(f"v_add_u32 {v(dst + i)}, {4 * i * ldw - i * 1024}, {v(dst + i)}")


def dma(voff, sr, soff, i):
    return f"buffer_load_dwordx4 {v(voff)}, {s(sr, 4)}, {s(soff)} offen offset:{i * 1024} lds"


def set_m0(off):
    return f"s_add_u32 m0, {s(S_W)}, {off}"


def tr_read(dst, addr, off):
    return f"ds_read_b64_tr_b16 {dst}, {v(addr)} offset:{off}"


def add(d, k, x):
    d.setdefault(k, []).append(x)


def n_act_load(j, q):
    return (f"buffer_load_dwordx4 {R(ring(2 * j + q), 4)}, {v(V_LANE16)}, {s(SR_ACT, 4)}, {s(S_SA)} offen "
            f"offset:{(j & 1) * 2048 + q * 1024}")


def n_reads(j, natural):
    sig = j >> 1
    wa = V_WA1 if sig & 1 else V_WA0
    base = ((sig >> 1) & 3) * 16384 + (j & 1) * 8192
    return [tr_read(a(A_WF[j & 1] + 2 * m, 2), wa + (m >> 1), base + (m & 1) * (1024 if natural else 4096))
            for m in range(16)]


def n_m0(sig):
    return (sig & 1) * VBASE + ((sig >> 1) & 3) * 16384


def gemm_n_prologue_loads(A, wstep):
    def W(sig, parts):
        A(set_m0(n_m0(sig)))
        A(f"s_mov_b32 {s(S_SW)}, {sig * wstep}")
        for i in parts:
            A(dma(V_OW + i, SR_W, S_SW, i))

    def X(j):
        if j % 2 == 0:
            A(f"s_mov_b32 {s(S_SA)}, {j * 2048}")
        A(n_act_load(j, 0))
        A(n_act_load(j, 1))
    W(0, range(4)); X(0); X(1); W(1, range(4)); X(2)
    for j in range(3, 7):
        X(j)
    W(2, range(4)); W(3, range(4)); W(4, range(4)); W(5, (0, 1))
    for j in range(7, 15):
        X(j)


def gemm_n_loop(A, name, trips, wstep, natural, act_is_a, extra_wait=0):
    A(f"s_waitcnt vmcnt({38 + extra_wait})")
    A("s_barrier")
    for x in n_reads(0, natural):
        A(x)
    A(f"s_mov_b32 {s(S_CNT)}, {trips}")
    A("s_waitcnt lgkmcnt(8)")
    A(".p2align 6")
    A.label(f"L_{name}_loop")
    for j in range(16):
        mf, pre = [], {}
        for m in range(16):
            b, q = m >> 1, m & 1
            wf = a(A_WF[j & 1] + 4 * b, 4)
            xf = R(ring(2 * j + q), 4)
            acc = v(V_ACC + (b * 2 + q) * 4, 4)
            mf.append(mfma(acc, xf, wf, acc) if act_is_a else mfma(acc, wf, xf, acc))
        for m, x in enumerate(n_reads(j + 1, natural)):
            add(pre, m, x)
        sig = (j + 11) // 2
        if j & 1:
            add(pre, 0, f"s_add_u32 {s(S_SA)}, {s(S_SA)}, 4096")
            add(pre, 2, set_m0(n_m0(sig)))
            add(pre, 3, f"s_add_u32 {s(S_SW)}, {s(S_SW)}, {wstep}")
        add(pre, 1, n_act_load(j + 15, 0))
        add(pre, 9, n_act_load(j + 15, 1))
        i0 = 0 if j & 1 else 2
        add(pre, 5, dma(V_OW + i0, SR_W, S_SW, i0))
        add(pre, 13, dma(V_OW + i0 + 1, SR_W, S_SW, i0 + 1))
        add(pre, 7, "s_waitcnt lgkmcnt(8)")
        if j & 3 == 2:
            add(pre, 15, "s_waitcnt vmcnt(24) lgkmcnt(8)")
            add(pre, 15, "s_barrier")
        else:
            add(pre, 15, "s_waitcnt lgkmcnt(8)")
        if j == 15:
            add(pre, 10, f"s_sub_u32 {s(S_CNT)}, {s(S_CNT)}, 1")
            add(pre, 11, f"s_cmp_lg_u32 {s(S_CNT)}, 0")
            add(pre, 15, f"s_cbranch_scc1 L_{name}_loop")
        weave(A, mf, pre, {})


def q_act_load(j, q):
    return (f"buffer_load_dwordx4 {R(ring(4 * j + q), 4)}, {v(V_LANE16)}, {s(SR_ACT, 4)}, {s(S_SA)} offen "
            f"offset:{q * 1024}")


def q_reads(j):
    base = ((j >> 1) & 3) * 16384 + (j & 1) * 8192
    return [tr_read(a(A_WF[j & 1] + 2 * m, 2), V_WA0 + (m >> 1), base + (m & 1) * 1024) for m in range(16)]


def k_reads(u, dst):
    base = ((u >> 1) & 3) * 16384 + (u & 1) * 8192
    return [f"ds_read_b128 {a(dst + (kb * 4 + ks) * 4, 4)}, {v(V_KA + ks)} offset:{base + kb * 4096}"
            for kb in range(2) for ks in range(4)]


def v_reads(u, dst):
    base = ((u >> 1) & 3) * 16384 + (u & 1) * 8192
    return [tr_read(a(dst + 2 * m, 2), V_VA + (m >> 1), base + (m & 1) * 4096) for m in range(16)]


def k_dma(t):
    return ([set_m0((t & 3) * 16384)] + [dma(V_OK + i, SR_K, S_SK, i) for i in range(4)]
            + [f"s_add_u32 {s(S_SK)}, {s(S_SK)}, 16384"])


def v_dma(t):
    return ([set_m0(VBASE + (t & 3) * 16384)] + [dma(V_OV + (i & 1), SR_V, S_SV, i) for i in range(4)]
            + [f"s_add_u32 {s(S_SV)}, {s(S_SV)}, 16384"])


WQSTEP = 64 * 8192
VM_GAPS6 = (2, 7, 12, 17, 22, 27)
T_GAPS = [g for g in range(32) if g not in VM_GAPS6][:16]


def q_step(A, j, reads, vm, end):
    mf, pre = [], {}
    for m in range(32):
        b, q = m >> 2, m & 3
        acc = v(V_ACC + (b * 4 + q) * 4, 4)
        mf.append(mfma(acc, a(A_WF[j & 1] + 4 * b, 4), R(ring(4 * j + q), 4), acc))
    for g, x in zip(T_GAPS, reads):
        add(pre, g, x)
    for g, x in vm:
        add(pre, g, x)
    for x in end:
        add(pre, 31, x)
    weave(A, mf, pre, {})


def q_vm_regular(j):
    vm = [(0, f"s_add_u32 {s(S_SA)}, {s(S_SA)}, 4096")]
    e = j >> 1
    if j & 1:
        vm += [(3, set_m0(VBASE + (e & 3) * 16384)), (4, f"s_add_u32 {s(S_SW)}, {s(S_SW)}, {WQSTEP}")]
    i0 = 0 if j & 1 else 2
    ops = [q_act_load(j + 7, 0), dma(V_OW + i0, SR_W, S_SW, i0), q_act_load(j + 7, 1), q_act_load(j + 7, 2),
           dma(V_OW + i0 + 1, SR_W, S_SW, i0 + 1), q_act_load(j + 7, 3)]
    return vm + list(zip(VM_GAPS6, ops))


def spread_dma(ops, gaps):
    return [(gaps[0] - 1, ops[0])] + list(zip(gaps, ops[1:5])) + [(gaps[3] + 1, ops[5])]


def sm_ops(u):
    S, P = V_S[u & 1], V_P[u & 1]
    out = []
    for q in range(4):
        for pr in range(4):
            kb, jj = pr >> 1, (pr & 1) * 2
            r0 = S + (kb * 4 + q) * 4 + jj
            out.append([f"v_exp_f32 {v(r0)}, {v(r0)}"])
            out.append([f"v_exp_f32 {v(r0 + 1)}, {v(r0 + 1)}"])
            out.append([f"v_add_f32 {v(V_L + 2 * q)}, {v(V_L + 2 * q)}, {v(r0)}",
                        f"v_add_f32 {v(V_L + 2 * q + 1)}, {v(V_L + 2 * q + 1)}, {v(r0 + 1)}"])
            out.append([f"v_cvt_pk_bf16_f32 {v(P + q * 4 + pr)}, {v(r0)}, {v(r0 + 1)}"])
    return out


def qk_mfmas(u, kf, zero_c=False):
    out = []
    for kb in range(2):
        for q in range(4):
            d = v(V_S[u & 1] + (kb * 4 + q) * 4, 4)
            for ks in range(4):
                c = d if ks else ("0" if zero_c else v(V_NEGM + 4 * q, 4))
                out.append(mfma(d, a(kf + (kb * 4 + ks) * 4, 4), v(V_Q + (q * 4 + ks) * 4, 4), c))
    return out


def pv_mfmas(u, vf):
    out = []
    for db in range(8):
        for q in range(4):
            d = a(A_O + (db * 4 + q) * 4, 4)
            out.append(mfma(d, a(vf + 4 * db, 4), v(V_P[u & 1] + 4 * q, 4), d))
    return out


def phase_a(A, i, end):
    pre = {}
    for g, x in enumerate(v_reads(i, A_VF)):
        add(pre, g + 1, x)
    for x in end:
        add(pre, x[0], x[1])
    valu = dict(enumerate(sm_ops(i + 1)[:32]))
    weave(A, qk_mfmas(i + 2, A_KF), pre, valu)


def phase_b(A, i, end=()):
    pre = {}
    for g, x in enumerate(k_reads(i + 3, A_KF)):
        add(pre, g + 1, x)
    ops = k_dma((i + 1) // 2 + 4) if i & 1 else v_dma(i // 2 + 3)
    for g, x in spread_dma(ops, (11, 16, 21, 26)):
        add(pre, g, x)
    add(pre, 31, "s_waitcnt lgkmcnt(0)")
    for x in end:
        add(pre, x[0], x[1])
    valu = dict(enumerate(sm_ops(i + 1)[32:]))
    weave(A, pv_mfmas(i, A_VF), pre, valu)


def max_over_s(A, u, first):
    S = V_S[u & 1]
    for q in range(4):
        r = [S + (kb * 4 + q) * 4 + j for kb in range(2) for j in range(4)]
        m = v(V_NEGM + 4 * q)
        if first:
            A(f"v_max_f32 {m}, {v(r[0])}, {v(r[1])}")
        else:
            A(f"v_max3_f32 {m}, {v(r[0])}, {v(r[1])}, {m}")
        for k in (2, 4, 6):
            A(f"v_max3_f32 {m}, {v(r[k])}, {v(r[k + 1])}, {m}")


def finish_negm(A):
    wave_sum(A, [V_NEGM + 4 * q for q in range(4)], [V_NEGM + 4 * q + 1 for q in range(4)], op="v_max_f32",
             dpp=False)
    for q in range(4):
        A(f"v_sub_f32 {v(V_NEGM + 4 * q)}, {f32(-OPT['bias'])}, {v(V_NEGM + 4 * q)}")
    for q in range(4):
        for j in range(1, 4):
            A(f"v_mov_b32 {v(V_NEGM + 4 * q + j)}, {v(V_NEGM + 4 * q)}")


def gen_attn(A):
    D = Diag(A, 60, 0)
    A.label("attn_kernel")
    A("s_cmp_ge_u32 s2, 256")
    A("s_cbranch_scc1 L_attn_end")
    D.stamp()
    A(f"s_load_dwordx4 s[24:27], s[0:1], {KA_K}")
    A(f"s_load_dwordx2 s[28:29], s[0:1], {KA_WQ}")
    A(f"s_load_dwordx4 s[32:35], s[0:1], {KA_W1}")
    A(f"s_load_dwordx2 s[30:31], s[0:1], {KA_WS}")
    lane_setup(A)
    A("s_and_b32 s46, s2, 31")
    A("s_lshr_b32 s47, s2, 5")
    A("s_lshl_b32 s47, s47, 2")
    A(f"s_lshr_b32 s48, {s(S_W)}, 12")
    A("s_add_u32 s47, s47, s48")
    w_dma_offsets(A, V_OW, 8192, True, 60, 48)
    A("s_lshl_b32 s48, s46, 8")
    A(f"s_sub_u32 s49, {8 * MB}, s48")
    A("s_lshl_b32 s50, s47, 17")
    A("s_waitcnt lgkmcnt(0)")
    srd(A, SR_W, 28, "s48", "s49")
    srd(A, SR_ACT, 30, "s50", 131072)

    def W(e, parts):
        A(set_m0(VBASE + e * 16384))
        A(f"s_mov_b32 {s(S_SW)}, {e * WQSTEP}")
        for i in parts:
            A(dma(V_OW + i, SR_W, S_SW, i))

    def X(j):
        A(f"s_mov_b32 {s(S_SA)}, {j * 4096}")
        for q in range(4):
            A(q_act_load(j, q))
    W(0, range(4)); X(0); W(1, range(4)); X(1); X(2); W(2, range(4)); X(3); X(4); W(3, (0, 1)); X(5); X(6)
    A("s_lshl_b32 s48, s46, 19")
    srd(A, SR_K, 24, "s48", 524288)
    srd(A, SR_V, 26, "s48", 524288)
    A("s_lshl_b32 s48, s47, 19")
    A("s_lshl_b32 s49, s46, 13")
    A("s_add_u32 s48, s48, s49")
    A(f"s_add_u32 s48, s48, {WS_OF}")
    srd(A, SR_ST, 30, "s48", 262144 + 8192)
    w_read_addrs(A, V_WA0, VBASE, True, 60)
    w_read_addrs(A, V_VA, VBASE, False, 60)
    A("v_xor_b32 v60, v2, v3")
    A("v_lshlrev_b32 v60, 4, v60")
    A("v_lshl_add_u32 v60, v2, 8, v60")
    for ks in range(4):
        A(f"v_xor_b32 {v(V_KA + ks)}, {ks * 64}, v60")
    A(f"v_lshlrev_b32 v60, 8, v3")
    A(f"v_add_u32 v60, {s(S_W)}, v60")
    A("v_xor_b32 v61, v2, v3")
    for i in range(4):
        A(f"v_xor_b32 v62, {4 * i}, v61")
        A(f"v_lshl_add_u32 {v(V_OK + i)}, v62, 4, v60")
    A("v_lshlrev_b32 v61, 1, v3")
    A("v_xor_b32 v61, v61, v2")
    for i in range(2):
        A(f"v_xor_b32 v62, {8 * i}, v61")
        A(f"v_lshl_add_u32 {v(V_OV + i)}, v62, 4, v60")
    for i in range(128):
        A(f"v_mov_b32 {v(V_ACC + i)}, 0")
    for i in range(128):
        A(f"v_accvgpr_write_b32 {a(A_O + i)}, 0")
    for i in range(8):
        A(f"v_mov_b32 {v(V_L + i)}, 0")
    A(f"s_mov_b32 {s(S_SK)}, 0")
    A(f"s_mov_b32 {s(S_SV)}, 0")
    A(f"s_mov_b32 {s(S_FB)}, 0")
    A(f"s_mov_b32 {s(S_CNT)}, 3")
    A("s_waitcnt vmcnt(34)")
    A("s_barrier")
    for x in q_reads(0):
        A(x)
    A("s_waitcnt lgkmcnt(0)")
    D.stamp()
    A(".p2align 6")
    A.label("L_q_loop")
    for j in range(8):
        vm = q_vm_regular(j)
        end = ["s_waitcnt lgkmcnt(0)"] if j & 1 else ["s_waitcnt vmcnt(24) lgkmcnt(0)", "s_barrier"]
        if j == 7:
            vm += [(28, f"s_sub_u32 {s(S_CNT)}, {s(S_CNT)}, 1"), (29, f"s_cmp_lg_u32 {s(S_CNT)}, 0")]
            end.append("s_cbranch_scc1 L_q_loop")
        q_step(A, j, q_reads(j + 1), vm, end)
    tail = {25: k_dma(0), 26: k_dma(1), 27: v_dma(0), 28: k_dma(2), 29: v_dma(1), 30: k_dma(3), 31: v_dma(2)}
    waits = {24: 24, 26: 20, 28: 16, 30: 20}
    for j in range(24, 32):
        vm = q_vm_regular(j) if j == 24 else spread_dma(tail[j], (2, 12, 22, 27))
        end = ["s_waitcnt lgkmcnt(0)"] if j & 1 else [f"s_waitcnt vmcnt({waits[j]}) lgkmcnt(0)", "s_barrier"]
        if j == 31:
            end = []
        q_step(A, j, q_reads(j + 1) if j < 31 else k_reads(0, A_KF), vm, end)
    D.stamp()
    for x in k_reads(1, A_VF):
        A(x)
    for q in range(4):
        for ks in range(4):
            F = V_Q + (q * 4 + ks) * 4
            for half in range(2):
                src = V_ACC + ((2 * ks + half) * 4 + q) * 4
                for i in range(2):
                    A(f"v_cvt_pk_bf16_f32 {v(F + 2 * half + i)}, {v(src + 2 * i)}, {v(src + 2 * i + 1)}")
    for sw in ("v_permlane32_swap_b32", "v_permlane16_swap_b32"):
        for f in range(16):
            for i in range(2):
                A(f"{sw} {v(V_Q + 4 * f + i)}, {v(V_Q + 4 * f + 2 + i)}")
    A.label("L_attn_start")
    A("s_waitcnt vmcnt(16) lgkmcnt(0)")
    A("s_barrier")
    weave(A, qk_mfmas(0, A_KF, True), {}, {})
    pre = {}
    for g, x in enumerate(k_reads(2, A_KF)):
        add(pre, g + 1, x)
    for g, x in spread_dma(k_dma(4), (11, 16, 21, 26)):
        add(pre, g, x)
    weave(A, qk_mfmas(1, A_VF, True), pre, {})
    A(f"s_cmp_lg_u32 {s(S_FB)}, 0")
    A("s_cbranch_scc1 L_have_max")
    max_over_s(A, 0, True)
    max_over_s(A, 1, False)
    finish_negm(A)
    A.label("L_have_max")
    A.nop(8)
    for u in range(2):
        for kb in range(2):
            for q in range(4):
                for j in range(4):
                    r = v(V_S[u] + (kb * 4 + q) * 4 + j)
                    A(f"v_add_f32 {r}, {r}, {v(V_NEGM + 4 * q)}")
    ops = sm_ops(0)
    for g in range(0, 64, 8):
        for k in (0, 1, 4, 5, 2, 3, 6, 7):
            A(*ops[g + k])
    A(f"s_mov_b32 {s(S_CNT)}, 8")
    A("s_waitcnt lgkmcnt(0)")
    D.stamp()
    A("s_branch L_attn_entry")
    A(".p2align 6")
    A.label("L_attn_loop")
    for n in range(4):
        phase_b(A, 2 * n + 7)
        if n == 0:
            A.label("L_attn_entry")
        phase_a(A, 2 * n, [(31, "s_waitcnt lgkmcnt(0)")])
        phase_b(A, 2 * n)
        end = [(31, "s_waitcnt vmcnt(16) lgkmcnt(0)"), (31, "s_barrier")]
        if n == 2:
            end = [(28, f"s_sub_u32 {s(S_CNT)}, {s(S_CNT)}, 1"), (29, f"s_cmp_eq_u32 {s(S_CNT)}, 0")] + end
        phase_a(A, 2 * n + 1, end)
        if n == 2:
            A("s_cbranch_scc1 L_attn_tail")
        if n == 3:
            A("s_branch L_attn_loop")
    A.label("L_attn_tail")
    pre = {}
    for g, x in enumerate(v_reads(62, A_KF)):
        add(pre, g + 1, x)
    add(pre, 31, "s_waitcnt lgkmcnt(0)")
    weave(A, pv_mfmas(61, A_VF), pre, dict(enumerate(sm_ops(62)[32:])))
    pre = {}
    for g, x in enumerate(v_reads(63, A_VF)):
        add(pre, g + 1, x)
    add(pre, 31, "s_waitcnt lgkmcnt(0)")
    ops = sm_ops(63)
    valu = {}
    for g in range(0, 32, 2):
        valu[g] = ops[2 * g] + ops[2 * g + 1]
        valu[g + 1] = ops[2 * g + 2] + ops[2 * g + 3]
    A.nop(1)
    weave(A, pv_mfmas(62, A_KF), pre, valu)
    A.nop(2)
    weave(A, pv_mfmas(63, A_VF), {}, {})
    D.stamp()
    for q in range(4):
        A(f"v_add_f32 {v(V_L + 2 * q)}, {v(V_L + 2 * q)}, {v(V_L + 2 * q + 1)}")
    wave_sum(A, [V_L + 2 * q for q in range(4)], [V_L + 2 * q + 1 for q in range(4)], dpp=False)
    A(f"s_mov_b32 s48, {f32(OPT['thresh'])}")
    A("s_mov_b64 s[50:51], 0")
    for q in range(4):
        A(f"v_cmp_nge_f32 vcc, s48, {v(V_L + 2 * q)}")
        A.nop(1)
        A("s_or_b64 s[50:51], s[50:51], vcc")
    A("s_cmp_lg_u64 s[50:51], 0")
    A(f"s_cselect_b32 s48, 1, {OPT['force_fb']}")
    A("v_mov_b32 v60, s48")
    A(f"v_mov_b32 v61, {s(S_W)}")
    A("v_lshrrev_b32 v61, 10, v61")
    A("v_add_u32 v61, 0x20000, v61")
    A("ds_write_b32 v61, v60")
    A("v_mov_b32 v61, 0x20000")
    A("s_waitcnt vmcnt(0) lgkmcnt(0)")
    A("s_barrier")
    A("ds_read_b128 v[60:63], v61")
    for q in range(4):
        A(f"v_rcp_f32 {v(V_L + 2 * q)}, {v(V_L + 2 * q)}")
    A("s_waitcnt lgkmcnt(0)")
    A("v_or3_b32 v60, v60, v61, v62")
    A("v_or_b32 v60, v60, v63")
    A.nop(1)
    A("v_readfirstlane_b32 s48, v60")
    A.nop(1)
    A(f"s_andn2_b32 s48, s48, {s(S_FB)}")
    A("s_cmp_lg_u32 s48, 0")
    A("s_cbranch_scc1 L_fallback")
    A("s_lshr_b32 s48, s2, 3")
    A("s_cmp_ge_u32 s48, 28")
    A("s_cselect_b32 s56, 0, 1")
    A("s_cbranch_scc1 L_store_o")
    A("s_and_b32 s49, s2, 1")
    A("s_lshl_b32 s49, s49, 2")
    A("s_and_b32 s50, s48, 3")
    A("s_add_u32 s49, s49, s50")
    A("s_bfe_u32 s50, s2, 0x20001")
    A("s_mul_i32 s50, s50, 7")
    A("s_lshr_b32 s48, s48, 2")
    A("s_add_u32 s50, s50, s48")
    A("s_lshl_b32 s49, s49, 2")
    A(f"s_lshr_b32 s48, {s(S_W)}, 12")
    A("s_add_u32 s49, s49, s48")
    A("s_lshl_b32 s48, s49, 17")
    A(f"s_add_u32 s48, s48, {WS_HF}")
    srd(A, SR_ACT, 30, "s48", 131072)
    A("s_lshl_b32 s48, s50, 8")
    A(f"s_sub_u32 s51, {2048 * 7168}, s48")
    srd(A, SR_W, 32, "s48", "s51")
    srd(A, SR_K, 34, "s48", 256)
    A("s_mul_i32 s48, s49, 229376")
    A("s_lshl_b32 s51, s50, 13")
    A("s_add_u32 s48, s48, s51")
    A(f"s_add_u32 s48, s48, {WS_UF}")
    srd(A, SR_V, 30, "s48", 8192)
    w_dma_offsets(A, V_OW, 7168, True, 60, 48)
    A("v_lshlrev_b32 v60, 3, v3")
    for b in range(8):
        A(f"buffer_load_dwordx2 {v(224 + 2 * b, 2)}, v60, {s(SR_K, 4)}, 0 offen offset:{32 * b}")
    gemm_n_prologue_loads(A, 64 * 7168)
    A.label("L_store_o")
    T = 192
    A("s_mov_b32 s52, 0")
    A("s_mov_b32 s53, 4096")
    A("s_mov_b32 s54, 262144")
    A(f"s_mov_b32 s55, {262144 + 4096}")
    n = 0
    for q in range(4):
        for p in range(4):
            t = T + (n & 1) * 12
            for i in range(8):
                A(f"v_accvgpr_read_b32 {v(t + i)}, {a(A_O + ((2 * p + (i >> 2)) * 4 + q) * 4 + (i & 3))}")
            for i in range(8):
                A(f"v_mul_f32 {v(t + i)}, {v(t + i)}, {v(V_L + 2 * q)}")
            for i in range(4):
                A(f"v_cvt_pk_bf16_f32 {v(t + 8 + i)}, {v(t + 2 * i)}, {v(t + 2 * i + 1)}")
            if n >= 3:
                A("s_waitcnt vmcnt(62)")
            A(f"buffer_store_dwordx4 {v(t + 8, 4)}, {v(V_LANE16)}, {s(SR_ST, 4)}, "
              f"{s(52 + (q >> 1) * 2 + (p >> 1))} offen offset:{(p & 1) * 2048 + (q & 1) * 1024}")
            n += 1
    D.stamp()
    A("s_cmp_eq_u32 s56, 0")
    A("s_cbranch_scc1 L_attn_done")
    w_read_addrs(A, V_WA0, 0, True, 60)
    w_read_addrs(A, V_WA1, VBASE, True, 60)
    A("s_waitcnt vmcnt(54)")
    for b in range(8):
        for q in range(2):
            d = V_ACC + (b * 2 + q) * 4
            for i in range(2):
                A(f"v_lshlrev_b32 {v(d + 2 * i)}, 16, {v(224 + 2 * b + i)}")
                A(f"v_and_b32 {v(d + 2 * i + 1)}, 0xffff0000, {v(224 + 2 * b + i)}")
    gemm_n_loop(A, "mlp1", 4, 64 * 7168, True, False, extra_wait=16)
    D.stamp()
    C0 = -2.0 * math.sqrt(2.0 / math.pi) * LOG2E
    A(f"s_mov_b32 s48, {f32(C0 * 0.044715)}")
    A(f"v_mov_b32 v60, {f32(C0)}")
    A("s_mov_b32 s52, 0")
    A("s_mov_b32 s53, 4096")
    A.nop(6)
    n = 0
    for q in range(2):
        for p in range(4):
            t = T + (n & 1) * 12
            src = [V_ACC + ((2 * p + (i >> 2)) * 2 + q) * 4 + (i & 3) for i in range(8)]
            for i in range(8):
                A(f"v_mul_f32 {v(t + i)}, {v(src[i])}, {v(src[i])}")
            for i in range(8):
                A(f"v_fma_f32 {v(t + i)}, {v(t + i)}, s48, v60")
            for i in range(8):
                A(f"v_mul_f32 {v(t + i)}, {v(t + i)}, {v(src[i])}")
            for i in range(8):
                A(f"v_exp_f32 {v(t + i)}, {v(t + i)}")
            for i in range(8):
                A(f"v_add_f32 {v(t + i)}, 1.0, {v(t + i)}")
            for i in range(8):
                A(f"v_rcp_f32 {v(t + i)}, {v(t + i)}")
            for i in range(8):
                A(f"v_mul_f32 {v(t + i)}, {v(t + i)}, {v(src[i])}")
            for i in range(4):
                A(f"v_cvt_pk_bf16_f32 {v(t + 8 + i)}, {v(t + 2 * i)}, {v(t + 2 * i + 1)}")
            A(f"buffer_store_dwordx4 {v(t + 8, 4)}, {v(V_LANE16)}, {s(SR_V, 4)}, {s(52 + (p >> 1))} offen "
              f"offset:{(p & 1) * 2048 + q * 1024}")
            n += 1
    A.label("L_attn_done")
    A("s_waitcnt vmcnt(0) lgkmcnt(0)")
    D.stamp()
    D.flush(8)
    A.label("L_attn_end")
    A("s_endpgm")
    A.label("L_fallback")
    A(f"s_mov_b32 {s(S_FB)}, 1")
    A(f"s_mov_b32 {s(S_SK)}, 0")
    A(f"s_mov_b32 {s(S_CNT)}, 32")
    for q in range(4):
        A(f"v_mov_b32 {v(V_NEGM + 4 * q)}, 0xff800000")
    A.label("L_fb_loop")
    A("s_barrier")
    ops = k_dma(0)
    A(ops[0])
    A.nop(1)
    A(*ops[1:])
    A("s_waitcnt vmcnt(0)")
    A("s_barrier")
    A(*k_reads(0, A_KF))
    A(*k_reads(1, A_VF))
    A("s_waitcnt lgkmcnt(0)")
    weave(A, qk_mfmas(0, A_KF, True), {}, {})
    weave(A, qk_mfmas(1, A_VF, True), {}, {})
    A.nop(8)
    max_over_s(A, 0, False)
    max_over_s(A, 1, False)
    A(f"s_sub_u32 {s(S_CNT)}, {s(S_CNT)}, 1")
    A(f"s_cmp_lg_u32 {s(S_CNT)}, 0")
    A("s_cbranch_scc1 L_fb_loop")
    finish_negm(A)
    for i in range(128):
        A(f"v_accvgpr_write_b32 {a(A_O + i)}, 0")
    for i in range(8):
        A(f"v_mov_b32 {v(V_L + i)}, 0")
    A(f"s_mov_b32 {s(S_SK)}, 0")
    A(f"s_mov_b32 {s(S_SV)}, 0")
    A("s_barrier")
    for ops in (k_dma(0), k_dma(1), v_dma(0), k_dma(2), v_dma(1), k_dma(3), v_dma(2)):
        A(ops[0])
        A.nop(1)
        A(*ops[1:])
    A("s_waitcnt vmcnt(0)")
    A("s_barrier")
    A(*k_reads(0, A_KF))
    A(*k_reads(1, A_VF))
    A("s_branch L_attn_start")


def gen_final(A):
    D = Diag(A, 60, 1)
    A.label("final_kernel")
    A("s_cmp_ge_u32 s2, 256")
    A("s_cbranch_scc1 L_fin_end")
    D.stamp()
    A(f"s_load_dwordx2 s[24:25], s[0:1], {KA_X}")
    A(f"s_load_dwordx2 s[26:27], s[0:1], {KA_WO}")
    A(f"s_load_dwordx4 s[28:31], s[0:1], {KA_W2}")
    A(f"s_load_dwordx4 s[32:35], s[0:1], {KA_OUT}")
    A(f"s_load_dwordx2 s[36:37], s[0:1], {KA_WS}")
    lane_setup(A)
    A("s_lshr_b32 s50, s2, 3")
    A("s_bfe_u32 s46, s2, 0x10001")
    A("s_lshl_b32 s46, s46, 3")
    A("s_lshr_b32 s51, s50, 2")
    A("s_add_u32 s46, s46, s51")
    A("s_and_b32 s47, s2, 1")
    A("s_lshl_b32 s47, s47, 2")
    A("s_and_b32 s51, s50, 3")
    A("s_add_u32 s47, s47, s51")
    A(f"s_lshr_b32 s48, {s(S_W)}, 12")
    A("s_lshl_b32 s49, s46, 3")
    A("s_add_u32 s49, s49, s47")
    A("s_waitcnt lgkmcnt(0)")
    A("s_lshl_b32 s50, s49, 15")
    A(f"s_add_u32 s50, s50, {WS_G}")
    srd(A, SR_V, 36, "s50", 32768)
    srd(A, 52, 34, 0, 256)
    A("s_lshr_b32 s50, s49, 1")
    A("s_lshl_b32 s56, s50, 2")
    A("s_and_b32 s50, s49, 1")
    A("s_lshl_b32 s57, s50, 4")
    A("s_bitcmp1_b32 s2, 2")
    A("s_cbranch_scc1 L_mlp2")
    w_dma_offsets(A, V_OW, 2048, False, 60, 50)
    A("s_lshl_b32 s50, s46, 2")
    A("s_add_u32 s50, s50, s48")
    A("s_lshl_b32 s51, s50, 18")
    A(f"s_add_u32 s51, s51, {WS_OF}")
    srd(A, SR_ACT, 36, "s51", 262144)
    A("s_lshl_b32 s51, s47, 8")
    A(f"s_sub_u32 s58, {8 * MB}, s51")
    srd(A, SR_W, 26, "s51", "s58")
    gemm_n_prologue_loads(A, 64 * 2048)
    A("s_lshl_b32 s50, s50, 16")
    A("s_add_u32 s50, s50, s51")
    A(f"s_sub_u32 s58, {4 * MB}, s50")
    srd(A, SR_K, 24, "s50", "s58")
    srd(A, SR_ST, 32, "s50", "s58")
    w_read_addrs(A, V_WA0, 0, False, 60)
    w_read_addrs(A, V_WA1, VBASE, False, 60)
    for i in range(64):
        A(f"v_mov_b32 {v(V_ACC + i)}, 0")
    D.stamp()
    gemm_n_loop(A, "oproj", 8, 64 * 2048, False, False)
    D.stamp()
    XR, GR, T = 192, 64, 96
    A("v_lshlrev_b32 v60, 11, v2")
    A("v_lshl_add_u32 v61, v3, 3, v60")
    A("v_lshl_add_u32 v62, v3, 4, v60")
    A("s_mov_b32 s50, 0")
    A("s_mov_b32 s51, 32768")
    A("s_waitcnt vmcnt(0)")
    for sb in range(2):
        for b in range(8):
            A(f"buffer_load_dwordx2 {v(XR + (sb * 8 + b) * 2, 2)}, v61, {s(SR_K, 4)}, {s(50 + sb)} offen "
              f"offset:{32 * b}")
    A(f"s_cmp_lg_u32 {s(S_W)}, 0")
    A("s_cbranch_scc1 L_flag_ok")
    A("v_mov_b32 v59, s56")
    A("s_mov_b32 s59, 0x100000")
    A.label("L_poll")
    A("s_sub_u32 s59, s59, 1")
    A("s_cbranch_scc1 L_flag_ok")
    A("buffer_load_dword v58, v59, s[52:55], 0 offen sc1")
    A("s_waitcnt vmcnt(0)")
    A("v_readfirstlane_b32 s58, v58")
    A.nop(1)
    A("s_lshr_b32 s58, s58, s57")
    A("s_and_b32 s58, s58, 0xffff")
    A("s_cmp_eq_u32 s58, 0")
    A("s_cbranch_scc1 L_poll")
    A.label("L_flag_ok")
    A("s_barrier")
    A(f"s_lshl_b32 s58, {s(S_W)}, 1")
    A("s_add_u32 s59, s58, 4096")
    for sb in range(2):
        for p in range(4):
            A(f"buffer_load_dwordx4 {v(GR + (sb * 4 + p) * 4, 4)}, {v(V_LANE16)}, {s(SR_V, 4)}, {s(58 + sb)} offen "
              f"offset:{1024 * p} sc1")
    n = 0
    for sb in range(2):
        for p in range(4):
            t = T + (n & 1) * 12
            A("s_waitcnt vmcnt(7)")
            g = GR + (sb * 4 + p) * 4
            for i in range(4):
                b = 2 * p + (i >> 1)
                acc = V_ACC + (b * 2 + sb) * 4 + (i & 1) * 2
                xr = XR + (sb * 8 + b) * 2 + (i & 1)
                A(f"v_lshlrev_b32 {v(t + 2 * i)}, 16, {v(xr)}")
                A(f"v_and_b32 {v(t + 2 * i + 1)}, 0xffff0000, {v(xr)}")
                A(f"v_lshlrev_b32 v56, 16, {v(g + i)}")
                A(f"v_and_b32 v57, 0xffff0000, {v(g + i)}")
                A(f"v_fmac_f32 {v(t + 2 * i)}, v56, {v(acc)}")
                A(f"v_fmac_f32 {v(t + 2 * i + 1)}, v57, {v(acc + 1)}")
            for i in range(4):
                A(f"v_cvt_pk_bf16_f32 {v(t + 8 + i)}, {v(t + 2 * i)}, {v(t + 2 * i + 1)}")
            A.nop(1)
            for sw in ("v_permlane32_swap_b32", "v_permlane16_swap_b32"):
                for i in range(2):
                    A(f"{sw} {v(t + 8 + i)}, {v(t + 10 + i)}")
                A.nop(1)
            A(f"buffer_store_dwordx4 {v(t + 8, 4)}, v62, {s(SR_ST, 4)}, {s(50 + sb)} offen offset:{64 * p}")
            n += 1
    A("s_branch L_fin_done")
    A.label("L_mlp2")
    w_dma_offsets(A, V_OW, 4096, False, 60, 50)
    A("s_lshl_b32 s50, s47, 2")
    A("s_add_u32 s50, s50, s48")
    A("s_mul_i32 s51, s50, 229376")
    A(f"s_add_u32 s51, s51, {WS_UF}")
    srd(A, SR_ACT, 36, "s51", 229376)
    A("s_lshl_b32 s51, s46, 8")
    A(f"s_sub_u32 s58, {3584 * 4096}, s51")
    srd(A, SR_W, 28, "s51", "s58")
    srd(A, SR_K, 30, "s51", 256)
    A("v_lshlrev_b32 v60, 1, v2")
    for b in range(8):
        A(f"buffer_load_ushort {v(224 + b)}, v60, {s(SR_K, 4)}, 0 offen offset:{32 * b}")
    gemm_n_prologue_loads(A, 64 * 4096)
    w_read_addrs(A, V_WA0, 0, False, 60)
    w_read_addrs(A, V_WA1, VBASE, False, 60)
    A("s_waitcnt vmcnt(52)")
    for b in range(8):
        for i in range(8):
            A(f"v_lshlrev_b32 {v(V_ACC + b * 8 + i)}, 16, {v(224 + b)}")
    D.n = 1
    D.stamp()
    gemm_n_loop(A, "mlp2", 7, 64 * 4096, False, True)
    D.stamp()
    A(f"s_mov_b32 s50, {f32(-LOG2E)}")
    A(f"s_lshr_b32 s51, {s(S_W)}, 2")
    A.nop(6)
    T = 192
    for b in range(8):
        t = T + (b & 1) * 12
        src = [V_ACC + b * 8 + i for i in range(8)]
        for i in range(8):
            A(f"v_mul_f32 {v(t + i)}, s50, {v(src[i])}")
        for i in range(8):
            A(f"v_exp_f32 {v(t + i)}, {v(t + i)}")
        for i in range(8):
            A(f"v_add_f32 {v(t + i)}, 1.0, {v(t + i)}")
        for i in range(8):
            A(f"v_rcp_f32 {v(t + i)}, {v(t + i)}")
        for i in range(8):
            A(f"v_mul_f32 {v(t + i)}, {v(t + i)}, {v(src[i])}")
        for i in range(4):
            A(f"v_cvt_pk_bf16_f32 {v(t + 8 + i)}, {v(t + 2 * i)}, {v(t + 2 * i + 1)}")
        A(f"buffer_store_dwordx4 {v(t + 8, 4)}, {v(V_LANE16)}, {s(SR_V, 4)}, s51 offen sc1")
        A("s_add_u32 s51, s51, 4096")
    A("s_waitcnt vmcnt(0)")
    A("s_barrier")
    A(f"s_cmp_lg_u32 {s(S_W)}, 0")
    A("s_cbranch_scc1 L_fin_done")
    A("v_mov_b32 v59, s56")
    A("s_lshl_b32 s58, 1, s57")
    A("v_mov_b32 v58, s58")
    A("s_mov_b64 exec, 1")
    A("buffer_atomic_add v58, v59, s[52:55], 0 offen sc1")
    A("s_mov_b64 exec, -1")
    A.label("L_fin_done")
    A("s_waitcnt vmcnt(0) lgkmcnt(0)")
    D.n = 3
    D.stamp()
    D.flush(4)
    A.label("L_fin_end")
    A("s_endpgm")


def kd(name, nfv, acc):
    return f""".p2align 6
.amdhsa_kernel {name}
  .amdhsa_next_free_vgpr {nfv}
  .amdhsa_next_free_sgpr 102
  .amdhsa_accum_offset {acc}
  .amdhsa_group_segment_fixed_size 0
  .amdhsa_kernarg_size 104
  .amdhsa_user_sgpr_count 2
  .amdhsa_user_sgpr_kernarg_segment_ptr 1
  .amdhsa_system_sgpr_workgroup_id_x 1
.end_amdhsa_kernel
"""


def main():
    head = [l for l in open(f"cdna_kernels/{NAME}.s.ref").read().split("\n") if l.startswith(";")]
    head = [l for l in head if "@launch" not in l and "Override launch" not in l and "grid=ceil" not in l]
    out = "\n".join(head) + "\n"
    out += f"; @launch kernel=ln_kernel grid=(256,1,1) block=(512,1,1) lds={LN_LDS}\n"
    out += f"; @launch kernel=attn_kernel grid=(256,1,1) block=(256,1,1) lds={131072 + 64}\n"
    out += "; @launch kernel=final_kernel grid=(256,1,1) block=(256,1,1) lds=131072\n"
    out += '.amdgcn_target "amdgcn-amd-amdhsa--gfx950"\n.text\n'
    bad = 0
    for name, g in (("ln_kernel", gen_ln), ("attn_kernel", gen_attn), ("final_kernel", gen_final)):
        A = Asm()
        g(A)
        pr = check_hazards(A.lines)
        for p in pr[:40]:
            print("HAZARD", name, p, file=sys.stderr)
        bad += len(pr)
        out += f".globl {name}\n.p2align 8\n.type {name},@function\n" + A.text()
    out += '.section .rodata,"a"\n' + kd("ln_kernel", 64, 64) + kd("attn_kernel", 512, 256) + kd("final_kernel", 512, 256)
    open(sys.argv[1], "w").write(out)
    print("hazards:", bad, file=sys.stderr)


main()
```

```python
import math
import sys
from asmlib import Asm, v, a, s, R, f32, weave, check_hazards

NAME = "recurrent_scan__mha_block_cached__mixer_token_mlp__prompt"
OPT = dict(diag=0, bias=64.0, thresh=2.0 ** 60, force_fb=0, pf=1)
for arg in sys.argv[2:]:
    k_, v_ = arg.split("=")
    OPT[k_] = float(v_) if "." in v_ else int(v_)

MB = 1 << 20
WS_XF, WS_HF, WS_OF, WS_UF, WS_G, WS_DIAG = 0, 4 * MB, 8 * MB, 24 * MB, 32 * MB, 64 * MB
KA_X, KA_K, KA_V, KA_WQ, KA_WO, KA_W1, KA_B1, KA_W2, KA_B2, KA_OUT, KA_DBG, KA_WS = (
    0, 8, 16, 24, 32, 48, 56, 64, 72, 80, 88, 96)
LOG2E = 1.4426950408889634
QSCALE = LOG2E / math.sqrt(128.0)
MF = "v_mfma_f32_16x16x32_bf16"


def mfma(d, x, y, c):
    return f"{MF} {d}, {x}, {y}, {c}"


def srd(A, sr, ptr, off, size):
    A(f"s_add_u32 {s(sr)}, {s(ptr)}, {off}")
    A(f"s_addc_u32 {s(sr + 1)}, {s(ptr + 1)}, 0")
    A(f"s_mov_b32 {s(sr + 2)}, {size}")
    A(f"s_mov_b32 {s(sr + 3)}, 0x20000")


def wave_sum(A, regs, tmp, op="v_add_f32", dpp=True):
    if dpp:
        for mod in ("quad_perm:[1,0,3,2]", "quad_perm:[2,3,0,1]", "row_half_mirror", "row_mirror"):
            A.nop(max(0, 3 - len(regs)))
            for r in regs:
                A(f"{op}_dpp {v(r)}, {v(r)}, {v(r)} {mod} row_mask:0xf bank_mask:0xf")
    for sw in ("v_permlane16_swap_b32", "v_permlane32_swap_b32"):
        for r, t in zip(regs, tmp):
            A(f"v_mov_b32 {v(t)}, {v(r)}")
        A.nop(max(0, 3 - len(regs)))
        for r, t in zip(regs, tmp):
            A(f"{sw} {v(r)}, {v(t)}")
        for r, t in zip(regs, tmp):
            A(f"{op} {v(r)}, {v(r)}, {v(t)}")


class Diag:
    def __init__(self, A, base_sgpr, slot):
        self.A, self.b, self.n, self.slot = A, base_sgpr, 0, slot

    def stamp(self):
        if not OPT["diag"]:
            return
        A = self.A
        A(f"s_memtime {s(96, 2)}")
        A(f"s_memrealtime {s(98, 2)}")
        A("s_waitcnt lgkmcnt(0)")
        A(f"s_mov_b32 {s(self.b + 2 * self.n)}, s96")
        A(f"s_mov_b32 {s(self.b + 2 * self.n + 1)}, s98")
        self.n += 1

    def flush(self, nmax):
        if not OPT["diag"]:
            return
        A = self.A
        A(f"s_load_dwordx2 {s(96, 2)}, s[0:1], {KA_WS}")
        A("s_waitcnt lgkmcnt(0)")
        A("s_lshl_b32 s98, s2, 7")
        A(f"s_add_u32 s98, s98, {WS_DIAG + self.slot * 65536}")
        srd(A, 92, 96, "s98", 128)
        A("v_mov_b32 v1, 0")
        for i in range(2 * nmax):
            A(f"v_mov_b32 v2, {s(self.b + i)}")
            A(f"buffer_store_dword v2, v1, s[92:95], 0 offen offset:{4 * i}")
        A("s_waitcnt vmcnt(0)")


LN_RS = 2080
LN_LDS = 16 * LN_RS


def gen_ln(A):
    D = Diag(A, 60, 2)
    A.label("ln_kernel")
    A("s_cmp_ge_u32 s2, 256")
    A("s_cbranch_scc1 L_ln_end")
    D.stamp()
    A(f"s_load_dwordx2 s[24:25], s[0:1], {KA_WQ}")
    A(f"s_load_dwordx2 s[4:5], s[0:1], {KA_X}")
    A(f"s_load_dwordx2 s[6:7], s[0:1], {KA_WS}")
    A("v_and_b32 v1, 63, v0")
    A("v_lshrrev_b32 v2, 6, v0")
    A("v_lshlrev_b32 v3, 4, v1")
    A("v_lshl_add_u32 v4, v2, 11, v3")
    A("s_lshl_b32 s3, s2, 14")
    A("s_waitcnt lgkmcnt(0)")
    srd(A, 8, 4, "s3", 16384)
    A("buffer_load_dwordx4 v[8:11], v4, s[8:11], 0 offen")
    A("buffer_load_dwordx4 v[12:15], v4, s[8:11], 0 offen offset:1024")
    srd(A, 12, 6, 0, 8 * MB)
    if OPT["pf"]:
        A("s_lshl_b32 s3, s2, 15")
        srd(A, 28, 24, "s3", 32768)
        A("v_lshlrev_b32 v56, 5, v0")
        A("s_movk_i32 s3, 0x4000")
        A("buffer_load_dword v57, v56, s[28:31], 0 offen")
        A("buffer_load_dword v58, v56, s[28:31], s3 offen")
    A(f"v_mul_u32_u24 v5, {LN_RS}, v2")
    A("v_add_u32 v5, v5, v3")
    A("v_and_b32 v6, 7, v0")
    A("v_lshrrev_b32 v7, 3, v0")
    A(f"v_mul_u32_u24 v40, {LN_RS}, v6")
    A("v_lshl_add_u32 v40, v7, 4, v40")
    A("v_lshrrev_b32 v41, 2, v7")
    A("v_lshlrev_b32 v41, 12, v41")
    A("v_and_b32 v42, 3, v7")
    A("v_lshl_add_u32 v41, v42, 8, v41")
    A("v_lshl_add_u32 v41, v6, 4, v41")
    A("s_lshr_b32 s16, s2, 3")
    A("s_lshl_b32 s16, s16, 17")
    A("s_bfe_u32 s17, s2, 0x20001")
    A("s_lshl_b32 s17, s17, 10")
    A("s_add_u32 s16, s16, s17")
    A("s_and_b32 s17, s2, 1")
    A("s_lshl_b32 s17, s17, 7")
    A("s_add_u32 s16, s16, s17")
    A("s_add_u32 s17, s16, 65536")
    A("v_bfe_u32 v42, v0, 2, 2")
    A(f"v_mul_u32_u24 v42, {LN_RS}, v42")
    A("v_lshrrev_b32 v43, 4, v0")
    A("v_lshl_add_u32 v42, v43, 5, v42")
    A("v_and_b32 v44, 3, v0")
    A("v_lshl_add_u32 v42, v44, 3, v42")
    A("v_lshrrev_b32 v44, 1, v43")
    A("v_lshlrev_b32 v44, 17, v44")
    A("v_and_b32 v43, 1, v43")
    A("v_lshl_add_u32 v44, v43, 10, v44")
    A("v_and_b32 v43, 15, v0")
    A("v_lshl_add_u32 v44, v43, 4, v44")
    A("s_lshr_b32 s18, s2, 2")
    A("s_lshl_b32 s18, s18, 11")
    A("s_and_b32 s19, s2, 3")
    A("s_lshl_b32 s19, s19, 8")
    A("s_add_u32 s18, s18, s19")
    A(f"s_add_u32 s18, s18, {WS_HF}")
    A(f"s_add_u32 s19, s18, {2 * MB}")
    A(f"s_mov_b32 s20, {f32(1.0 / 1024)}")
    A(f"s_mov_b32 s21, {f32(1e-5)}")
    A(f"s_mov_b32 s22, {f32(QSCALE)}")
    X = 16
    A(f"s_waitcnt vmcnt({2 if OPT['pf'] else 0})")
    for i in range(8):
        A(f"v_lshlrev_b32 {v(X + 2 * i)}, 16, {v(8 + i)}")
        A(f"v_and_b32 {v(X + 2 * i + 1)}, 0xffff0000, {v(8 + i)}")
    A(f"v_add_f32 v32, {v(X)}, {v(X + 1)}")
    A(f"v_add_f32 v33, {v(X + 2)}, {v(X + 3)}")
    for i in range(4, 16, 2):
        A(f"v_add_f32 v32, v32, {v(X + i)}")
        A(f"v_add_f32 v33, v33, {v(X + i + 1)}")
    A("v_add_f32 v32, v32, v33")
    wave_sum(A, [32], [34])
    A("v_mul_f32 v32, s20, v32")
    for i in range(16):
        A(f"v_sub_f32 {v(X + i)}, {v(X + i)}, v32")
    A(f"v_mul_f32 v32, {v(X)}, {v(X)}")
    A(f"v_mul_f32 v33, {v(X + 1)}, {v(X + 1)}")
    for i in range(2, 16, 2):
        A(f"v_fmac_f32 v32, {v(X + i)}, {v(X + i)}")
        A(f"v_fmac_f32 v33, {v(X + i + 1)}, {v(X + i + 1)}")
    A("v_add_f32 v32, v32, v33")
    wave_sum(A, [32], [34])
    A("v_mov_b32 v33, s21")
    A("v_fmac_f32 v33, s20, v32")
    A("v_rsq_f32 v33, v33")
    A.nop(1)
    for i in range(16):
        A(f"v_mul_f32 {v(X + i)}, {v(X + i)}, v33")
    A(f"v_add_f32 v32, {v(X)}, {v(X + 1)}")
    A(f"v_mul_f32 v33, {v(X)}, {v(X)}")
    A(f"v_fmac_f32 v33, {v(X + 1)}, {v(X + 1)}")
    for i in range(2, 16):
        A(f"v_add_f32 v32, v32, {v(X + i)}")
        A(f"v_fmac_f32 v33, {v(X + i)}, {v(X + i)}")
    for i in range(8):
        A(f"v_mul_f32 v36, s22, {v(X + 2 * i)}")
        A(f"v_mul_f32 v37, s22, {v(X + 2 * i + 1)}")
        A(f"v_cvt_pk_bf16_f32 {v(8 + i)}, v36, v37")
    A("ds_write_b128 v5, v[8:11]")
    A("ds_write_b128 v5, v[12:15] offset:1024")
    wave_sum(A, [32, 33], [34, 35])
    A("v_mul_f32 v32, s20, v32")
    A("v_mul_f32 v33, s20, v33")
    A("v_fma_f32 v33, -v32, v32, v33")
    A("v_max_f32 v33, 0, v33")
    A("v_add_f32 v33, s21, v33")
    A("v_rsq_f32 v33, v33")
    for i in range(16):
        A(f"v_sub_f32 {v(X + i)}, {v(X + i)}, v32")
    for i in range(8):
        A(f"v_mul_f32 v36, v33, {v(X + 2 * i)}")
        A(f"v_mul_f32 v37, v33, {v(X + 2 * i + 1)}")
        A(f"v_cvt_pk_bf16_f32 {v(48 + i)}, v36, v37")
    HB = 8 * LN_RS
    A(f"ds_write_b128 v5, v[48:51] offset:{HB}")
    A(f"ds_write_b128 v5, v[52:55] offset:{HB + 1024}")
    A("s_waitcnt lgkmcnt(0)")
    A("s_barrier")
    A("ds_read_b128 v[8:11], v40")
    A("ds_read_b128 v[12:15], v40 offset:1024")
    A(f"ds_read_b64_tr_b16 v[16:17], v42 offset:{HB}")
    A(f"ds_read_b64_tr_b16 v[18:19], v42 offset:{HB + 4 * LN_RS}")
    A(f"ds_read_b64_tr_b16 v[20:21], v42 offset:{HB + 1024}")
    A(f"ds_read_b64_tr_b16 v[22:23], v42 offset:{HB + 4 * LN_RS + 1024}")
    A("s_waitcnt lgkmcnt(5)")
    A("buffer_store_dwordx4 v[8:11], v41, s[12:15], s16 offen")
    A("s_waitcnt lgkmcnt(4)")
    A("buffer_store_dwordx4 v[12:15], v41, s[12:15], s17 offen")
    A("s_waitcnt lgkmcnt(2)")
    A("buffer_store_dwordx4 v[16:19], v44, s[12:15], s18 offen")
    A("s_waitcnt lgkmcnt(0)")
    A("buffer_store_dwordx4 v[20:23], v44, s[12:15], s19 offen")
    if OPT["diag"]:
        A("s_waitcnt vmcnt(0)")
    D.stamp()
    D.flush(2)
    A.label("L_ln_end")
    A("s_endpgm")


V_KA, V_VA, V_WA0, V_WA1 = 4, 8, 16, 44
V_OK, V_OV, V_LANE16, V_OW = 24, 28, 30, 32
V_L, V_NEGM, V_Q = 36, 44, 64
V_S, V_P, V_ACC = (128, 160), (192, 208), 128
A_O, A_KF, A_VF = 0, 128, 160
A_WF = (128, 160)
S_W = 3
SR_ACT, SR_W, SR_K, SR_V, SR_ST = 4, 8, 12, 16, 20
S_SA, S_SW, S_SK, S_SV, S_CNT, S_FB = 40, 41, 42, 43, 44, 45
VBASE = 65536
V_PF, SR_PF, S_PF = 31, 76, 88


def ring(idx):
    idx %= 32
    return ("a", 192 + 4 * idx) if idx < 16 else ("v", 64 + 4 * (idx - 16))


def lane_setup(A):
    A("v_and_b32 v1, 63, v0")
    A("v_lshrrev_b32 v2, 6, v0")
    A(f"v_lshlrev_b32 {v(V_LANE16)}, 4, v1")
    A(f"v_readfirstlane_b32 {s(S_W)}, v2")
    A("v_and_b32 v2, 15, v1")
    A("v_lshrrev_b32 v3, 4, v1")
    A(f"s_lshl_b32 {s(S_W)}, {s(S_W)}, 12")


def w_read_addrs(A, dst, base, natural, t0):
    A(f"v_lshrrev_b32 {v(t0)}, 2, v2")
    A(f"v_and_b32 {v(t0 + 1)}, 1, v3")
    A(f"v_lshl_add_u32 {v(t0 + 1)}, {v(t0 + 1)}, 2, {v(t0)}")
    A(f"v_lshl_add_u32 {v(t0)}, v3, {3 if natural else 2}, {v(t0)}")
    A(f"v_lshlrev_b32 {v(t0)}, 8, {v(t0)}")
    A(f"v_lshl_add_u32 {v(t0)}, {v(t0 + 1)}, 5, {v(t0)}")
    A(f"v_and_b32 {v(t0 + 1)}, 3, v2")
    A(f"v_lshl_add_u32 {v(t0)}, {v(t0 + 1)}, 3, {v(t0)}")
    if base:
        A(f"v_add_u32 {v(t0)}, {base}, {v(t0)}")
    for b in range(8):
        A(f"v_xor_b32 {v(dst + b)}, {b * 32}, {v(t0)}")


def w_dma_offsets(A, dst, ldw, natural, t0, st):
    A(f"s_lshr_b32 {s(st)}, {s(S_W)}, 8")
    A(f"v_add_u32 {v(t0)}, {s(st)}, v3")
    A(f"v_mul_u32_u24 {v(t0)}, {ldw}, {v(t0)}")
    for i in range(4):
        hi = ((i >> 1) & 1) if natural else (i & 1)
        A(f"v_lshlrev_b32 {v(t0 + 1)}, 1, v3")
        A(f"v_xor_b32 {v(t0 + 1)}, {v(t0 + 1)}, v2")
        if hi:
            A(f"v_xor_b32 {v(t0 + 1)}, 8, {v(t0 + 1)}")
        A(f"v_lshl_add_u32 {v(dst + i)}, {v(t0 + 1)}, 4, {v(t0)}")
        if i:
            A(f"v_add_u32 {v(dst + i)}, {4 * i * ldw - i * 1024}, {v(dst + i)}")


def dma(voff, sr, soff, i):
    return f"buffer_load_dwordx4 {v(voff)}, {s(sr, 4)}, {s(soff)} offen offset:{i * 1024} lds"


def set_m0(off):
    return f"s_add_u32 m0, {s(S_W)}, {off}"


def tr_read(dst, addr, off):
    return f"ds_read_b64_tr_b16 {dst}, {v(addr)} offset:{off}"


def add(d, k, x):
    d.setdefault(k, []).append(x)


def n_act_load(j, q):
    return (f"buffer_load_dwordx4 {R(ring(2 * j + q), 4)}, {v(V_LANE16)}, {s(SR_ACT, 4)}, {s(S_SA)} offen "
            f"offset:{(j & 1) * 2048 + q * 1024}")


def n_reads(j, natural):
    sig = j >> 1
    wa = V_WA1 if sig & 1 else V_WA0
    base = ((sig >> 1) & 3) * 16384 + (j & 1) * 8192
    return [tr_read(a(A_WF[j & 1] + 2 * m, 2), wa + (m >> 1), base + (m & 1) * (1024 if natural else 4096))
            for m in range(16)]


def n_m0(sig):
    return (sig & 1) * VBASE + ((sig >> 1) & 3) * 16384


def gemm_n_prologue_loads(A, wstep):
    def W(sig, parts):
        A(set_m0(n_m0(sig)))
        A(f"s_mov_b32 {s(S_SW)}, {sig * wstep}")
        for i in parts:
            A(dma(V_OW + i, SR_W, S_SW, i))

    def X(j):
        if j % 2 == 0:
            A(f"s_mov_b32 {s(S_SA)}, {j * 2048}")
        A(n_act_load(j, 0))
        A(n_act_load(j, 1))
    W(0, range(4)); X(0); X(1); W(1, range(4)); X(2)
    for j in range(3, 7):
        X(j)
    W(2, range(4)); W(3, range(4)); W(4, range(4)); W(5, (0, 1))
    for j in range(7, 15):
        X(j)


def gemm_n_loop(A, name, trips, wstep, natural, act_is_a, extra_wait=0):
    A(f"s_waitcnt vmcnt({38 + extra_wait})")
    A("s_barrier")
    for x in n_reads(0, natural):
        A(x)
    A(f"s_mov_b32 {s(S_CNT)}, {trips}")
    A("s_waitcnt lgkmcnt(8)")
    A(".p2align 6")
    A.label(f"L_{name}_loop")
    for j in range(16):
        mf, pre = [], {}
        for m in range(16):
            b, q = m >> 1, m & 1
            wf = a(A_WF[j & 1] + 4 * b, 4)
            xf = R(ring(2 * j + q), 4)
            acc = v(V_ACC + (b * 2 + q) * 4, 4)
            mf.append(mfma(acc, xf, wf, acc) if act_is_a else mfma(acc, wf, xf, acc))
        for m, x in enumerate(n_reads(j + 1, natural)):
            add(pre, m, x)
        sig = (j + 11) // 2
        if j & 1:
            add(pre, 0, f"s_add_u32 {s(S_SA)}, {s(S_SA)}, 4096")
            add(pre, 2, set_m0(n_m0(sig)))
            add(pre, 3, f"s_add_u32 {s(S_SW)}, {s(S_SW)}, {wstep}")
        add(pre, 1, n_act_load(j + 15, 0))
        add(pre, 9, n_act_load(j + 15, 1))
        i0 = 0 if j & 1 else 2
        add(pre, 5, dma(V_OW + i0, SR_W, S_SW, i0))
        add(pre, 13, dma(V_OW + i0 + 1, SR_W, S_SW, i0 + 1))
        add(pre, 7, "s_waitcnt lgkmcnt(8)")
        if j & 3 == 2:
            add(pre, 15, "s_waitcnt vmcnt(24) lgkmcnt(8)")
            add(pre, 15, "s_barrier")
        else:
            add(pre, 15, "s_waitcnt lgkmcnt(8)")
        if j == 15:
            add(pre, 10, f"s_sub_u32 {s(S_CNT)}, {s(S_CNT)}, 1")
            add(pre, 11, f"s_cmp_lg_u32 {s(S_CNT)}, 0")
            add(pre, 15, f"s_cbranch_scc1 L_{name}_loop")
        weave(A, mf, pre, {})


def q_act_load(j, q):
    return (f"buffer_load_dwordx4 {R(ring(4 * j + q), 4)}, {v(V_LANE16)}, {s(SR_ACT, 4)}, {s(S_SA)} offen "
            f"offset:{q * 1024}")


def q_reads(j):
    base = ((j >> 1) & 3) * 16384 + (j & 1) * 8192
    return [tr_read(a(A_WF[j & 1] + 2 * m, 2), V_WA0 + (m >> 1), base + (m & 1) * 1024) for m in range(16)]


def k_reads(u, dst):
    base = ((u >> 1) & 3) * 16384 + (u & 1) * 8192
    return [f"ds_read_b128 {a(dst + (kb * 4 + ks) * 4, 4)}, {v(V_KA + ks)} offset:{base + kb * 4096}"
            for kb in range(2) for ks in range(4)]


def v_reads(u, dst):
    base = ((u >> 1) & 3) * 16384 + (u & 1) * 8192
    return [tr_read(a(dst + 2 * m, 2), V_VA + (m >> 1), base + (m & 1) * 4096) for m in range(16)]


def k_dma(t):
    return ([set_m0((t & 3) * 16384)] + [dma(V_OK + i, SR_K, S_SK, i) for i in range(4)]
            + [f"s_add_u32 {s(S_SK)}, {s(S_SK)}, 16384"])


def v_dma(t):
    return ([set_m0(VBASE + (t & 3) * 16384)] + [dma(V_OV + (i & 1), SR_V, S_SV, i) for i in range(4)]
            + [f"s_add_u32 {s(S_SV)}, {s(S_SV)}, 16384"])


WQSTEP = 64 * 8192
VM_GAPS6 = (2, 7, 12, 17, 22, 27)
T_GAPS = [g for g in range(32) if g not in VM_GAPS6][:16]


def q_step(A, j, reads, vm, end):
    mf, pre = [], {}
    for m in range(32):
        b, q = m >> 2, m & 3
        acc = v(V_ACC + (b * 4 + q) * 4, 4)
        mf.append(mfma(acc, a(A_WF[j & 1] + 4 * b, 4), R(ring(4 * j + q), 4), acc))
    for g, x in zip(T_GAPS, reads):
        add(pre, g, x)
    for g, x in vm:
        add(pre, g, x)
    for x in end:
        add(pre, 31, x)
    weave(A, mf, pre, {})


def q_vm_regular(j):
    vm = [(0, f"s_add_u32 {s(S_SA)}, {s(S_SA)}, 4096")]
    e = j >> 1
    if j & 1:
        vm += [(3, set_m0(VBASE + (e & 3) * 16384)), (4, f"s_add_u32 {s(S_SW)}, {s(S_SW)}, {WQSTEP}")]
    i0 = 0 if j & 1 else 2
    ops = [q_act_load(j + 7, 0), dma(V_OW + i0, SR_W, S_SW, i0), q_act_load(j + 7, 1), q_act_load(j + 7, 2),
           dma(V_OW + i0 + 1, SR_W, S_SW, i0 + 1), q_act_load(j + 7, 3)]
    return vm + list(zip(VM_GAPS6, ops))


def spread_dma(ops, gaps):
    return [(gaps[0] - 1, ops[0])] + list(zip(gaps, ops[1:5])) + [(gaps[3] + 1, ops[5])]


def sm_ops(u):
    S, P = V_S[u & 1], V_P[u & 1]
    out = []
    for q in range(4):
        for pr in range(4):
            kb, jj = pr >> 1, (pr & 1) * 2
            r0 = S + (kb * 4 + q) * 4 + jj
            out.append([f"v_exp_f32 {v(r0)}, {v(r0)}"])
            out.append([f"v_exp_f32 {v(r0 + 1)}, {v(r0 + 1)}"])
            out.append([f"v_add_f32 {v(V_L + 2 * q)}, {v(V_L + 2 * q)}, {v(r0)}",
                        f"v_add_f32 {v(V_L + 2 * q + 1)}, {v(V_L + 2 * q + 1)}, {v(r0 + 1)}"])
            out.append([f"v_cvt_pk_bf16_f32 {v(P + q * 4 + pr)}, {v(r0)}, {v(r0 + 1)}"])
    return out


def qk_mfmas(u, kf, zero_c=False):
    out = []
    for kb in range(2):
        for q in range(4):
            d = v(V_S[u & 1] + (kb * 4 + q) * 4, 4)
            for ks in range(4):
                c = d if ks else ("0" if zero_c else v(V_NEGM + 4 * q, 4))
                out.append(mfma(d, a(kf + (kb * 4 + ks) * 4, 4), v(V_Q + (q * 4 + ks) * 4, 4), c))
    return out


def pv_mfmas(u, vf):
    out = []
    for db in range(8):
        for q in range(4):
            d = a(A_O + (db * 4 + q) * 4, 4)
            out.append(mfma(d, a(vf + 4 * db, 4), v(V_P[u & 1] + 4 * q, 4), d))
    return out


def phase_a(A, i, end):
    pre = {}
    for g, x in enumerate(v_reads(i, A_VF)):
        add(pre, g + 1, x)
    for x in end:
        add(pre, x[0], x[1])
    valu = dict(enumerate(sm_ops(i + 1)[:32]))
    weave(A, qk_mfmas(i + 2, A_KF), pre, valu)


def phase_b(A, i, end=()):
    pre = {}
    for g, x in enumerate(k_reads(i + 3, A_KF)):
        add(pre, g + 1, x)
    ops = k_dma((i + 1) // 2 + 4) if i & 1 else v_dma(i // 2 + 3)
    for g, x in spread_dma(ops, (11, 16, 21, 26)):
        add(pre, g, x)
    add(pre, 31, "s_waitcnt lgkmcnt(0)")
    for x in end:
        add(pre, x[0], x[1])
    valu = dict(enumerate(sm_ops(i + 1)[32:]))
    weave(A, pv_mfmas(i, A_VF), pre, valu)


def max_over_s(A, u, first):
    S = V_S[u & 1]
    for q in range(4):
        r = [S + (kb * 4 + q) * 4 + j for kb in range(2) for j in range(4)]
        m = v(V_NEGM + 4 * q)
        if first:
            A(f"v_max_f32 {m}, {v(r[0])}, {v(r[1])}")
        else:
            A(f"v_max3_f32 {m}, {v(r[0])}, {v(r[1])}, {m}")
        for k in (2, 4, 6):
            A(f"v_max3_f32 {m}, {v(r[k])}, {v(r[k + 1])}, {m}")


def finish_negm(A):
    wave_sum(A, [V_NEGM + 4 * q for q in range(4)], [V_NEGM + 4 * q + 1 for q in range(4)], op="v_max_f32",
             dpp=False)
    for q in range(4):
        A(f"v_sub_f32 {v(V_NEGM + 4 * q)}, {f32(-OPT['bias'])}, {v(V_NEGM + 4 * q)}")
    for q in range(4):
        for j in range(1, 4):
            A(f"v_mov_b32 {v(V_NEGM + 4 * q + j)}, {v(V_NEGM + 4 * q)}")


def gen_attn(A):
    D = Diag(A, 60, 0)
    A.label("attn_kernel")
    A("s_cmp_ge_u32 s2, 256")
    A("s_cbranch_scc1 L_attn_end")
    D.stamp()
    A(f"s_load_dwordx4 s[24:27], s[0:1], {KA_K}")
    A(f"s_load_dwordx2 s[28:29], s[0:1], {KA_WQ}")
    A(f"s_load_dwordx4 s[32:35], s[0:1], {KA_W1}")
    A(f"s_load_dwordx2 s[30:31], s[0:1], {KA_WS}")
    A(f"s_load_dwordx2 s[36:37], s[0:1], {KA_WO}")
    A(f"s_load_dwordx2 s[38:39], s[0:1], {KA_W2}")
    lane_setup(A)
    A("s_and_b32 s46, s2, 31")
    A("s_lshr_b32 s47, s2, 5")
    A("s_lshl_b32 s47, s47, 2")
    A(f"s_lshr_b32 s48, {s(S_W)}, 12")
    A("s_add_u32 s47, s47, s48")
    w_dma_offsets(A, V_OW, 8192, True, 60, 48)
    A("s_lshl_b32 s48, s46, 8")
    A(f"s_sub_u32 s49, {8 * MB}, s48")
    A("s_lshl_b32 s50, s47, 17")
    A("s_waitcnt lgkmcnt(0)")
    srd(A, SR_W, 28, "s48", "s49")
    srd(A, SR_ACT, 30, "s50", 131072)

    def W(e, parts):
        A(set_m0(VBASE + e * 16384))
        A(f"s_mov_b32 {s(S_SW)}, {e * WQSTEP}")
        for i in parts:
            A(dma(V_OW + i, SR_W, S_SW, i))

    def X(j):
        A(f"s_mov_b32 {s(S_SA)}, {j * 4096}")
        for q in range(4):
            A(q_act_load(j, q))
    W(0, range(4)); X(0); W(1, range(4)); X(1); X(2); W(2, range(4)); X(3); X(4); W(3, (0, 1)); X(5); X(6)
    A("s_lshl_b32 s48, s46, 19")
    srd(A, SR_K, 24, "s48", 524288)
    srd(A, SR_V, 26, "s48", 524288)
    A("s_lshl_b32 s48, s47, 19")
    A("s_lshl_b32 s49, s46, 13")
    A("s_add_u32 s48, s48, s49")
    A(f"s_add_u32 s48, s48, {WS_OF}")
    srd(A, SR_ST, 30, "s48", 262144 + 8192)
    srd(A, SR_PF, 32, 0, 2048 * 7168)
    srd(A, SR_PF + 4, 36, 0, 8 * MB)
    srd(A, SR_PF + 8, 38, 0, 3584 * 4096)
    A(f"s_lshl_b32 {s(S_PF)}, s2, 13")
    A(f"v_lshlrev_b32 {v(V_PF)}, 5, v0")
    w_read_addrs(A, V_WA0, VBASE, True, 60)
    w_read_addrs(A, V_VA, VBASE, False, 60)
    A("v_xor_b32 v60, v2, v3")
    A("v_lshlrev_b32 v60, 4, v60")
    A("v_lshl_add_u32 v60, v2, 8, v60")
    for ks in range(4):
        A(f"v_xor_b32 {v(V_KA + ks)}, {ks * 64}, v60")
    A(f"v_lshlrev_b32 v60, 8, v3")
    A(f"v_add_u32 v60, {s(S_W)}, v60")
    A("v_xor_b32 v61, v2, v3")
    for i in range(4):
        A(f"v_xor_b32 v62, {4 * i}, v61")
        A(f"v_lshl_add_u32 {v(V_OK + i)}, v62, 4, v60")
    A("v_lshlrev_b32 v61, 1, v3")
    A("v_xor_b32 v61, v61, v2")
    for i in range(2):
        A(f"v_xor_b32 v62, {8 * i}, v61")
        A(f"v_lshl_add_u32 {v(V_OV + i)}, v62, 4, v60")
    for i in range(128):
        A(f"v_mov_b32 {v(V_ACC + i)}, 0")
    for i in range(128):
        A(f"v_accvgpr_write_b32 {a(A_O + i)}, 0")
    for i in range(8):
        A(f"v_mov_b32 {v(V_L + i)}, 0")
    A(f"s_mov_b32 {s(S_SK)}, 0")
    A(f"s_mov_b32 {s(S_SV)}, 0")
    A(f"s_mov_b32 {s(S_FB)}, 0")
    A(f"s_mov_b32 {s(S_CNT)}, 3")
    A("s_waitcnt vmcnt(34)")
    A("s_barrier")
    for x in q_reads(0):
        A(x)
    A("s_waitcnt lgkmcnt(0)")
    D.stamp()
    A(".p2align 6")
    A.label("L_q_loop")
    for j in range(8):
        vm = q_vm_regular(j)
        end = ["s_waitcnt lgkmcnt(0)"] if j & 1 else ["s_waitcnt vmcnt(24) lgkmcnt(0)", "s_barrier"]
        if j == 7:
            vm += [(28, f"s_sub_u32 {s(S_CNT)}, {s(S_CNT)}, 1"), (29, f"s_cmp_lg_u32 {s(S_CNT)}, 0")]
            end.append("s_cbranch_scc1 L_q_loop")
        q_step(A, j, q_reads(j + 1), vm, end)
    tail = {25: k_dma(0), 26: k_dma(1), 27: v_dma(0), 28: k_dma(2), 29: v_dma(1), 30: k_dma(3), 31: v_dma(2)}
    waits = {24: 24, 26: 20, 28: 16, 30: 20}
    for j in range(24, 32):
        vm = q_vm_regular(j) if j == 24 else spread_dma(tail[j], (2, 12, 22, 27))
        end = ["s_waitcnt lgkmcnt(0)"] if j & 1 else [f"s_waitcnt vmcnt({waits[j]}) lgkmcnt(0)", "s_barrier"]
        if j == 31:
            end = []
        q_step(A, j, q_reads(j + 1) if j < 31 else k_reads(0, A_KF), vm, end)
    D.stamp()
    for x in k_reads(1, A_VF):
        A(x)
    for q in range(4):
        for ks in range(4):
            F = V_Q + (q * 4 + ks) * 4
            for half in range(2):
                src = V_ACC + ((2 * ks + half) * 4 + q) * 4
                for i in range(2):
                    A(f"v_cvt_pk_bf16_f32 {v(F + 2 * half + i)}, {v(src + 2 * i)}, {v(src + 2 * i + 1)}")
    for sw in ("v_permlane32_swap_b32", "v_permlane16_swap_b32"):
        for f in range(16):
            for i in range(2):
                A(f"{sw} {v(V_Q + 4 * f + i)}, {v(V_Q + 4 * f + 2 + i)}")
    A.label("L_attn_start")
    A("s_waitcnt vmcnt(16) lgkmcnt(0)")
    A("s_barrier")
    weave(A, qk_mfmas(0, A_KF, True), {}, {})
    pre = {}
    for g, x in enumerate(k_reads(2, A_KF)):
        add(pre, g + 1, x)
    for g, x in spread_dma(k_dma(4), (11, 16, 21, 26)):
        add(pre, g, x)
    weave(A, qk_mfmas(1, A_VF, True), pre, {})
    A(f"s_cmp_lg_u32 {s(S_FB)}, 0")
    A("s_cbranch_scc1 L_have_max")
    max_over_s(A, 0, True)
    max_over_s(A, 1, False)
    finish_negm(A)
    A.label("L_have_max")
    A.nop(8)
    for u in range(2):
        for kb in range(2):
            for q in range(4):
                for j in range(4):
                    r = v(V_S[u] + (kb * 4 + q) * 4 + j)
                    A(f"v_add_f32 {r}, {r}, {v(V_NEGM + 4 * q)}")
    ops = sm_ops(0)
    for g in range(0, 64, 8):
        for k in (0, 1, 4, 5, 2, 3, 6, 7):
            A(*ops[g + k])
    A(f"s_mov_b32 {s(S_CNT)}, 8")
    A("s_waitcnt lgkmcnt(0)")
    D.stamp()
    A("s_branch L_attn_entry")
    A(".p2align 6")
    A.label("L_attn_loop")
    for n in range(4):
        phase_b(A, 2 * n + 7)
        if n == 0:
            A.label("L_attn_entry")
        end = [(31, "s_waitcnt lgkmcnt(0)")]
        if OPT["pf"] and n < 3:
            end.append((22, f"buffer_load_dword v255, {v(V_PF)}, {s(SR_PF + 4 * n, 4)}, {s(S_PF)} offen"))
            if n == 2:
                end.append((24, f"s_add_u32 {s(S_PF)}, {s(S_PF)}, {2 * MB}"))
        phase_a(A, 2 * n, end)
        phase_b(A, 2 * n)
        end = [(31, "s_waitcnt vmcnt(16) lgkmcnt(0)"), (31, "s_barrier")]
        if n == 2:
            end = [(28, f"s_sub_u32 {s(S_CNT)}, {s(S_CNT)}, 1"), (29, f"s_cmp_eq_u32 {s(S_CNT)}, 0")] + end
        phase_a(A, 2 * n + 1, end)
        if n == 2:
            A("s_cbranch_scc1 L_attn_tail")
        if n == 3:
            A("s_branch L_attn_loop")
    A.label("L_attn_tail")
    pre = {}
    for g, x in enumerate(v_reads(62, A_KF)):
        add(pre, g + 1, x)
    add(pre, 31, "s_waitcnt lgkmcnt(0)")
    weave(A, pv_mfmas(61, A_VF), pre, dict(enumerate(sm_ops(62)[32:])))
    pre = {}
    for g, x in enumerate(v_reads(63, A_VF)):
        add(pre, g + 1, x)
    add(pre, 31, "s_waitcnt lgkmcnt(0)")
    ops = sm_ops(63)
    valu = {}
    for g in range(0, 32, 2):
        valu[g] = ops[2 * g] + ops[2 * g + 1]
        valu[g + 1] = ops[2 * g + 2] + ops[2 * g + 3]
    A.nop(1)
    weave(A, pv_mfmas(62, A_KF), pre, valu)
    A.nop(2)
    weave(A, pv_mfmas(63, A_VF), {}, {})
    D.stamp()
    for q in range(4):
        A(f"v_add_f32 {v(V_L + 2 * q)}, {v(V_L + 2 * q)}, {v(V_L + 2 * q + 1)}")
    wave_sum(A, [V_L + 2 * q for q in range(4)], [V_L + 2 * q + 1 for q in range(4)], dpp=False)
    A(f"s_mov_b32 s48, {f32(OPT['thresh'])}")
    A("s_mov_b64 s[50:51], 0")
    for q in range(4):
        A(f"v_cmp_nge_f32 vcc, s48, {v(V_L + 2 * q)}")
        A.nop(1)
        A("s_or_b64 s[50:51], s[50:51], vcc")
    A("s_cmp_lg_u64 s[50:51], 0")
    A(f"s_cselect_b32 s48, 1, {OPT['force_fb']}")
    A("v_mov_b32 v60, s48")
    A(f"v_mov_b32 v61, {s(S_W)}")
    A("v_lshrrev_b32 v61, 10, v61")
    A("v_add_u32 v61, 0x20000, v61")
    A("ds_write_b32 v61, v60")
    A("v_mov_b32 v61, 0x20000")
    A("s_waitcnt vmcnt(0) lgkmcnt(0)")
    A("s_barrier")
    A("ds_read_b128 v[60:63], v61")
    for q in range(4):
        A(f"v_rcp_f32 {v(V_L + 2 * q)}, {v(V_L + 2 * q)}")
    A("s_waitcnt lgkmcnt(0)")
    A("v_or3_b32 v60, v60, v61, v62")
    A("v_or_b32 v60, v60, v63")
    A.nop(1)
    A("v_readfirstlane_b32 s48, v60")
    A.nop(1)
    A(f"s_andn2_b32 s48, s48, {s(S_FB)}")
    A("s_cmp_lg_u32 s48, 0")
    A("s_cbranch_scc1 L_fallback")
    A("s_lshr_b32 s48, s2, 3")
    A("s_cmp_ge_u32 s48, 28")
    A("s_cselect_b32 s56, 0, 1")
    A("s_cbranch_scc1 L_store_o")
    A("s_and_b32 s49, s2, 1")
    A("s_lshl_b32 s49, s49, 2")
    A("s_and_b32 s50, s48, 3")
    A("s_add_u32 s49, s49, s50")
    A("s_bfe_u32 s50, s2, 0x20001")
    A("s_mul_i32 s50, s50, 7")
    A("s_lshr_b32 s48, s48, 2")
    A("s_add_u32 s50, s50, s48")
    A("s_lshl_b32 s49, s49, 2")
    A(f"s_lshr_b32 s48, {s(S_W)}, 12")
    A("s_add_u32 s49, s49, s48")
    A("s_lshl_b32 s48, s49, 17")
    A(f"s_add_u32 s48, s48, {WS_HF}")
    srd(A, SR_ACT, 30, "s48", 131072)
    A("s_lshl_b32 s48, s50, 8")
    A(f"s_sub_u32 s51, {2048 * 7168}, s48")
    srd(A, SR_W, 32, "s48", "s51")
    srd(A, SR_K, 34, "s48", 256)
    A("s_mul_i32 s48, s49, 229376")
    A("s_lshl_b32 s51, s50, 13")
    A("s_add_u32 s48, s48, s51")
    A(f"s_add_u32 s48, s48, {WS_UF}")
    srd(A, SR_V, 30, "s48", 8192)
    w_dma_offsets(A, V_OW, 7168, True, 60, 48)
    A("v_lshlrev_b32 v60, 3, v3")
    for b in range(8):
        A(f"buffer_load_dwordx2 {v(224 + 2 * b, 2)}, v60, {s(SR_K, 4)}, 0 offen offset:{32 * b}")
    gemm_n_prologue_loads(A, 64 * 7168)
    A.label("L_store_o")
    T = 192
    A("s_mov_b32 s52, 0")
    A("s_mov_b32 s53, 4096")
    A("s_mov_b32 s54, 262144")
    A(f"s_mov_b32 s55, {262144 + 4096}")
    n = 0
    for q in range(4):
        for p in range(4):
            t = T + (n & 1) * 12
            for i in range(8):
                A(f"v_accvgpr_read_b32 {v(t + i)}, {a(A_O + ((2 * p + (i >> 2)) * 4 + q) * 4 + (i & 3))}")
            for i in range(8):
                A(f"v_mul_f32 {v(t + i)}, {v(t + i)}, {v(V_L + 2 * q)}")
            for i in range(4):
                A(f"v_cvt_pk_bf16_f32 {v(t + 8 + i)}, {v(t + 2 * i)}, {v(t + 2 * i + 1)}")
            if n >= 3:
                A("s_waitcnt vmcnt(62)")
            A(f"buffer_store_dwordx4 {v(t + 8, 4)}, {v(V_LANE16)}, {s(SR_ST, 4)}, "
              f"{s(52 + (q >> 1) * 2 + (p >> 1))} offen offset:{(p & 1) * 2048 + (q & 1) * 1024}")
            n += 1
    D.stamp()
    A("s_cmp_eq_u32 s56, 0")
    A("s_cbranch_scc1 L_attn_done")
    w_read_addrs(A, V_WA0, 0, True, 60)
    w_read_addrs(A, V_WA1, VBASE, True, 60)
    A("s_waitcnt vmcnt(54)")
    for b in range(8):
        for q in range(2):
            d = V_ACC + (b * 2 + q) * 4
            for i in range(2):
                A(f"v_lshlrev_b32 {v(d + 2 * i)}, 16, {v(224 + 2 * b + i)}")
                A(f"v_and_b32 {v(d + 2 * i + 1)}, 0xffff0000, {v(224 + 2 * b + i)}")
    gemm_n_loop(A, "mlp1", 4, 64 * 7168, True, False, extra_wait=16)
    D.stamp()
    C0 = -2.0 * math.sqrt(2.0 / math.pi) * LOG2E
    A(f"s_mov_b32 s48, {f32(C0 * 0.044715)}")
    A(f"v_mov_b32 v60, {f32(C0)}")
    A("s_mov_b32 s52, 0")
    A("s_mov_b32 s53, 4096")
    A.nop(6)
    n = 0
    for q in range(2):
        for p in range(4):
            t = T + (n & 1) * 12
            src = [V_ACC + ((2 * p + (i >> 2)) * 2 + q) * 4 + (i & 3) for i in range(8)]
            for i in range(8):
                A(f"v_mul_f32 {v(t + i)}, {v(src[i])}, {v(src[i])}")
            for i in range(8):
                A(f"v_fma_f32 {v(t + i)}, {v(t + i)}, s48, v60")
            for i in range(8):
                A(f"v_mul_f32 {v(t + i)}, {v(t + i)}, {v(src[i])}")
            for i in range(8):
                A(f"v_exp_f32 {v(t + i)}, {v(t + i)}")
            for i in range(8):
                A(f"v_add_f32 {v(t + i)}, 1.0, {v(t + i)}")
            for i in range(8):
                A(f"v_rcp_f32 {v(t + i)}, {v(t + i)}")
            for i in range(8):
                A(f"v_mul_f32 {v(t + i)}, {v(t + i)}, {v(src[i])}")
            for i in range(4):
                A(f"v_cvt_pk_bf16_f32 {v(t + 8 + i)}, {v(t + 2 * i)}, {v(t + 2 * i + 1)}")
            A(f"buffer_store_dwordx4 {v(t + 8, 4)}, {v(V_LANE16)}, {s(SR_V, 4)}, {s(52 + (p >> 1))} offen "
              f"offset:{(p & 1) * 2048 + q * 1024}")
            n += 1
    A.label("L_attn_done")
    A("s_waitcnt vmcnt(0) lgkmcnt(0)")
    D.stamp()
    D.flush(8)
    A.label("L_attn_end")
    A("s_endpgm")
    A.label("L_fallback")
    A(f"s_mov_b32 {s(S_FB)}, 1")
    A(f"s_mov_b32 {s(S_SK)}, 0")
    A(f"s_mov_b32 {s(S_CNT)}, 32")
    for q in range(4):
        A(f"v_mov_b32 {v(V_NEGM + 4 * q)}, 0xff800000")
    A.label("L_fb_loop")
    A("s_barrier")
    ops = k_dma(0)
    A(ops[0])
    A.nop(1)
    A(*ops[1:])
    A("s_waitcnt vmcnt(0)")
    A("s_barrier")
    A(*k_reads(0, A_KF))
    A(*k_reads(1, A_VF))
    A("s_waitcnt lgkmcnt(0)")
    weave(A, qk_mfmas(0, A_KF, True), {}, {})
    weave(A, qk_mfmas(1, A_VF, True), {}, {})
    A.nop(8)
    max_over_s(A, 0, False)
    max_over_s(A, 1, False)
    A(f"s_sub_u32 {s(S_CNT)}, {s(S_CNT)}, 1")
    A(f"s_cmp_lg_u32 {s(S_CNT)}, 0")
    A("s_cbranch_scc1 L_fb_loop")
    finish_negm(A)
    for i in range(128):
        A(f"v_accvgpr_write_b32 {a(A_O + i)}, 0")
    for i in range(8):
        A(f"v_mov_b32 {v(V_L + i)}, 0")
    A(f"s_mov_b32 {s(S_SK)}, 0")
    A(f"s_mov_b32 {s(S_SV)}, 0")
    A("s_barrier")
    for ops in (k_dma(0), k_dma(1), v_dma(0), k_dma(2), v_dma(1), k_dma(3), v_dma(2)):
        A(ops[0])
        A.nop(1)
        A(*ops[1:])
    A("s_waitcnt vmcnt(0)")
    A("s_barrier")
    A(*k_reads(0, A_KF))
    A(*k_reads(1, A_VF))
    A("s_branch L_attn_start")


def gen_final(A):
    D = Diag(A, 60, 1)
    A.label("final_kernel")
    A("s_cmp_ge_u32 s2, 256")
    A("s_cbranch_scc1 L_fin_end")
    D.stamp()
    A(f"s_load_dwordx2 s[24:25], s[0:1], {KA_X}")
    A(f"s_load_dwordx2 s[26:27], s[0:1], {KA_WO}")
    A(f"s_load_dwordx4 s[28:31], s[0:1], {KA_W2}")
    A(f"s_load_dwordx4 s[32:35], s[0:1], {KA_OUT}")
    A(f"s_load_dwordx2 s[36:37], s[0:1], {KA_WS}")
    lane_setup(A)
    A("s_lshr_b32 s50, s2, 3")
    A("s_bfe_u32 s46, s2, 0x10001")
    A("s_lshl_b32 s46, s46, 3")
    A("s_lshr_b32 s51, s50, 2")
    A("s_add_u32 s46, s46, s51")
    A("s_and_b32 s47, s2, 1")
    A("s_lshl_b32 s47, s47, 2")
    A("s_and_b32 s51, s50, 3")
    A("s_add_u32 s47, s47, s51")
    A(f"s_lshr_b32 s48, {s(S_W)}, 12")
    A("s_lshl_b32 s49, s46, 3")
    A("s_add_u32 s49, s49, s47")
    A("s_waitcnt lgkmcnt(0)")
    A("s_lshl_b32 s50, s49, 15")
    A(f"s_add_u32 s50, s50, {WS_G}")
    srd(A, SR_V, 36, "s50", 32768)
    srd(A, 52, 34, 0, 256)
    A("s_lshr_b32 s50, s49, 1")
    A("s_lshl_b32 s56, s50, 2")
    A("s_and_b32 s50, s49, 1")
    A("s_lshl_b32 s57, s50, 4")
    A("s_bitcmp1_b32 s2, 2")
    A("s_cbranch_scc1 L_mlp2")
    w_dma_offsets(A, V_OW, 2048, False, 60, 50)
    A("s_lshl_b32 s50, s46, 2")
    A("s_add_u32 s50, s50, s48")
    A("s_lshl_b32 s51, s50, 18")
    A(f"s_add_u32 s51, s51, {WS_OF}")
    srd(A, SR_ACT, 36, "s51", 262144)
    A("s_lshl_b32 s51, s47, 8")
    A(f"s_sub_u32 s58, {8 * MB}, s51")
    srd(A, SR_W, 26, "s51", "s58")
    gemm_n_prologue_loads(A, 64 * 2048)
    A("s_lshl_b32 s50, s50, 16")
    A("s_add_u32 s50, s50, s51")
    A(f"s_sub_u32 s58, {4 * MB}, s50")
    srd(A, SR_K, 24, "s50", "s58")
    srd(A, SR_ST, 32, "s50", "s58")
    w_read_addrs(A, V_WA0, 0, False, 60)
    w_read_addrs(A, V_WA1, VBASE, False, 60)
    for i in range(64):
        A(f"v_mov_b32 {v(V_ACC + i)}, 0")
    D.stamp()
    gemm_n_loop(A, "oproj", 8, 64 * 2048, False, False)
    D.stamp()
    XR, GR, T = 192, 64, 96
    A("v_lshlrev_b32 v60, 11, v2")
    A("v_lshl_add_u32 v61, v3, 3, v60")
    A("v_lshl_add_u32 v62, v3, 4, v60")
    A("s_mov_b32 s50, 0")
    A("s_mov_b32 s51, 32768")
    A("s_waitcnt vmcnt(0)")
    for sb in range(2):
        for b in range(8):
            A(f"buffer_load_dwordx2 {v(XR + (sb * 8 + b) * 2, 2)}, v61, {s(SR_K, 4)}, {s(50 + sb)} offen "
              f"offset:{32 * b}")
    A(f"s_cmp_lg_u32 {s(S_W)}, 0")
    A("s_cbranch_scc1 L_flag_ok")
    A("v_mov_b32 v59, s56")
    A("s_mov_b32 s59, 0x100000")
    A.label("L_poll")
    A("s_sub_u32 s59, s59, 1")
    A("s_cbranch_scc1 L_flag_ok")
    A("buffer_load_dword v58, v59, s[52:55], 0 offen sc1")
    A("s_waitcnt vmcnt(0)")
    A("v_readfirstlane_b32 s58, v58")
    A.nop(1)
    A("s_lshr_b32 s58, s58, s57")
    A("s_and_b32 s58, s58, 0xffff")
    A("s_cmp_eq_u32 s58, 0")
    A("s_cbranch_scc1 L_poll")
    A.label("L_flag_ok")
    A("s_barrier")
    A(f"s_lshl_b32 s58, {s(S_W)}, 1")
    A("s_add_u32 s59, s58, 4096")
    for sb in range(2):
        for p in range(4):
            A(f"buffer_load_dwordx4 {v(GR + (sb * 4 + p) * 4, 4)}, {v(V_LANE16)}, {s(SR_V, 4)}, {s(58 + sb)} offen "
              f"offset:{1024 * p} sc1")
    n = 0
    for sb in range(2):
        for p in range(4):
            t = T + (n & 1) * 12
            A("s_waitcnt vmcnt(7)")
            g = GR + (sb * 4 + p) * 4
            for i in range(4):
                b = 2 * p + (i >> 1)
                acc = V_ACC + (b * 2 + sb) * 4 + (i & 1) * 2
                xr = XR + (sb * 8 + b) * 2 + (i & 1)
                A(f"v_lshlrev_b32 {v(t + 2 * i)}, 16, {v(xr)}")
                A(f"v_and_b32 {v(t + 2 * i + 1)}, 0xffff0000, {v(xr)}")
                A(f"v_lshlrev_b32 v56, 16, {v(g + i)}")
                A(f"v_and_b32 v57, 0xffff0000, {v(g + i)}")
                A(f"v_fmac_f32 {v(t + 2 * i)}, v56, {v(acc)}")
                A(f"v_fmac_f32 {v(t + 2 * i + 1)}, v57, {v(acc + 1)}")
            for i in range(4):
                A(f"v_cvt_pk_bf16_f32 {v(t + 8 + i)}, {v(t + 2 * i)}, {v(t + 2 * i + 1)}")
            A.nop(1)
            for sw in ("v_permlane32_swap_b32", "v_permlane16_swap_b32"):
                for i in range(2):
                    A(f"{sw} {v(t + 8 + i)}, {v(t + 10 + i)}")
                A.nop(1)
            A(f"buffer_store_dwordx4 {v(t + 8, 4)}, v62, {s(SR_ST, 4)}, {s(50 + sb)} offen offset:{64 * p}")
            n += 1
    A("s_branch L_fin_done")
    A.label("L_mlp2")
    w_dma_offsets(A, V_OW, 4096, False, 60, 50)
    A("s_lshl_b32 s50, s47, 2")
    A("s_add_u32 s50, s50, s48")
    A("s_mul_i32 s51, s50, 229376")
    A(f"s_add_u32 s51, s51, {WS_UF}")
    srd(A, SR_ACT, 36, "s51", 229376)
    A("s_lshl_b32 s51, s46, 8")
    A(f"s_sub_u32 s58, {3584 * 4096}, s51")
    srd(A, SR_W, 28, "s51", "s58")
    srd(A, SR_K, 30, "s51", 256)
    A("v_lshlrev_b32 v60, 1, v2")
    for b in range(8):
        A(f"buffer_load_ushort {v(224 + b)}, v60, {s(SR_K, 4)}, 0 offen offset:{32 * b}")
    gemm_n_prologue_loads(A, 64 * 4096)
    w_read_addrs(A, V_WA0, 0, False, 60)
    w_read_addrs(A, V_WA1, VBASE, False, 60)
    A("s_waitcnt vmcnt(52)")
    for b in range(8):
        for i in range(8):
            A(f"v_lshlrev_b32 {v(V_ACC + b * 8 + i)}, 16, {v(224 + b)}")
    D.n = 1
    D.stamp()
    gemm_n_loop(A, "mlp2", 7, 64 * 4096, False, True)
    D.stamp()
    A(f"s_mov_b32 s50, {f32(-LOG2E)}")
    A(f"s_lshr_b32 s51, {s(S_W)}, 2")
    A.nop(6)
    T = 192
    for b in range(8):
        t = T + (b & 1) * 12
        src = [V_ACC + b * 8 + i for i in range(8)]
        for i in range(8):
            A(f"v_mul_f32 {v(t + i)}, s50, {v(src[i])}")
        for i in range(8):
            A(f"v_exp_f32 {v(t + i)}, {v(t + i)}")
        for i in range(8):
            A(f"v_add_f32 {v(t + i)}, 1.0, {v(t + i)}")
        for i in range(8):
            A(f"v_rcp_f32 {v(t + i)}, {v(t + i)}")
        for i in range(8):
            A(f"v_mul_f32 {v(t + i)}, {v(t + i)}, {v(src[i])}")
        for i in range(4):
            A(f"v_cvt_pk_bf16_f32 {v(t + 8 + i)}, {v(t + 2 * i)}, {v(t + 2 * i + 1)}")
        A(f"buffer_store_dwordx4 {v(t + 8, 4)}, {v(V_LANE16)}, {s(SR_V, 4)}, s51 offen sc1")
        A("s_add_u32 s51, s51, 4096")
    A("s_waitcnt vmcnt(0)")
    A("s_barrier")
    A(f"s_cmp_lg_u32 {s(S_W)}, 0")
    A("s_cbranch_scc1 L_fin_done")
    A("v_mov_b32 v59, s56")
    A("s_lshl_b32 s58, 1, s57")
    A("v_mov_b32 v58, s58")
    A("s_mov_b64 exec, 1")
    A("buffer_atomic_add v58, v59, s[52:55], 0 offen sc1")
    A("s_mov_b64 exec, -1")
    A.label("L_fin_done")
    A("s_waitcnt vmcnt(0) lgkmcnt(0)")
    D.n = 3
    D.stamp()
    D.flush(4)
    A.label("L_fin_end")
    A("s_endpgm")


def kd(name, nfv, acc):
    return f""".p2align 6
.amdhsa_kernel {name}
  .amdhsa_next_free_vgpr {nfv}
  .amdhsa_next_free_sgpr 102
  .amdhsa_accum_offset {acc}
  .amdhsa_group_segment_fixed_size 0
  .amdhsa_kernarg_size 104
  .amdhsa_user_sgpr_count 2
  .amdhsa_user_sgpr_kernarg_segment_ptr 1
  .amdhsa_system_sgpr_workgroup_id_x 1
.end_amdhsa_kernel
"""


def main():
    head = [l for l in open(f"cdna_kernels/{NAME}.s.ref").read().split("\n") if l.startswith(";")]
    head = [l for l in head if "@launch" not in l and "Override launch" not in l and "grid=ceil" not in l]
    out = "\n".join(head) + "\n"
    out += f"; @launch kernel=ln_kernel grid=(256,1,1) block=(512,1,1) lds={LN_LDS}\n"
    out += f"; @launch kernel=attn_kernel grid=(256,1,1) block=(256,1,1) lds={131072 + 64}\n"
    out += "; @launch kernel=final_kernel grid=(256,1,1) block=(256,1,1) lds=131072\n"
    out += '.amdgcn_target "amdgcn-amd-amdhsa--gfx950"\n.text\n'
    bad = 0
    for name, g in (("ln_kernel", gen_ln), ("attn_kernel", gen_attn), ("final_kernel", gen_final)):
        A = Asm()
        g(A)
        pr = check_hazards(A.lines)
        for p in pr[:40]:
            print("HAZARD", name, p, file=sys.stderr)
        bad += len(pr)
        out += f".globl {name}\n.p2align 8\n.type {name},@function\n" + A.text()
    out += '.section .rodata,"a"\n' + kd("ln_kernel", 64, 64) + kd("attn_kernel", 512, 256) + kd("final_kernel", 512, 256)
    open(sys.argv[1], "w").write(out)
    print("hazards:", bad, file=sys.stderr)


main()
```

```python
import re
import struct


def v(i, n=1):
    return f"v{i}" if n == 1 else f"v[{i}:{i + n - 1}]"


def a(i, n=1):
    return f"a{i}" if n == 1 else f"a[{i}:{i + n - 1}]"


def s(i, n=1):
    return f"s{i}" if n == 1 else f"s[{i}:{i + n - 1}]"


def R(reg, n=1, off=0):
    k, i = reg
    return (v if k == "v" else a)(i + off, n)


def f32(x):
    return "0x%08x" % struct.unpack("<I", struct.pack("<f", x))[0]


class Asm:
    def __init__(self):
        self.lines = []

    def __call__(self, *txt):
        for t in txt:
            for ln in t.split("\n"):
                ln = ln.strip()
                if ln:
                    self.lines.append(ln)

    def label(self, name):
        self.lines.append(name + ":")

    def nop(self, n):
        while n > 0:
            k = min(n, 16)
            self.lines.append(f"s_nop {k - 1}")
            n -= k

    def text(self):
        out = []
        for ln in self.lines:
            if ln.endswith(":") or ln.startswith(".") or ln.startswith(";"):
                out.append(ln)
            else:
                out.append("    " + ln)
        return "\n".join(out) + "\n"


def weave(A, mfmas, pre, valu):
    for i, m in enumerate(mfmas):
        A(m)
        for x in pre.get(i, []):
            A(x)
        for x in valu.get(i, []):
            A(x)


_REG = re.compile(r"\b([vas])(?:(\d+)\b|\[(\d+):(\d+)\])")
TRANS = ("v_exp_f32", "v_log_f32", "v_rcp_f32", "v_rsq_f32", "v_sqrt_f32", "v_sin_f32", "v_cos_f32")


def regs(op):
    out = set()
    for m in _REG.finditer(op):
        k = m.group(1)
        if m.group(2) is not None:
            out.add((k, int(m.group(2))))
        else:
            for i in range(int(m.group(3)), int(m.group(4)) + 1):
                out.add((k, i))
    if re.search(r"\bvcc(_lo|_hi)?\b", op):
        out.add(("s", "vcc"))
    if re.search(r"\bm0\b", op):
        out.add(("s", "m0"))
    if re.search(r"\bexec\b", op):
        out.add(("s", "exec"))
    return out


class I:
    def __init__(self, text):
        self.text = text
        t = text.split(";")[0].strip()
        parts = t.split(None, 1)
        self.op = parts[0]
        opnds = [x.strip() for x in parts[1].split(",")] if len(parts) > 1 else []
        self.opnds = opnds
        op = self.op
        self.is_mfma = op.startswith(("v_mfma", "v_smfmac"))
        self.is_valu = op.startswith("v_") and not self.is_mfma
        self.is_trans = any(op.startswith(x) for x in TRANS)
        self.is_ds = op.startswith("ds_")
        self.is_vmem = op.startswith("buffer_") or op.startswith("global_")
        self.is_salu = op.startswith("s_")
        self.is_dma = self.is_vmem and bool(re.search(r"\blds\b", t))
        self.is_dpp = bool(re.search(r"quad_perm|row_|dpp", t))
        self.is_perml = op.startswith("v_permlane")
        self.ws = 1
        if op == "s_nop":
            self.ws = int(opnds[0], 0) + 1
        w, r = set(), set()
        self.srcc = set()
        self.srcab = set()
        self.stdata = set()
        if self.is_mfma:
            w = regs(opnds[0])
            self.srcab = regs(opnds[1]) | regs(opnds[2])
            self.srcc = regs(opnds[3])
            if op.startswith("v_smfmac"):
                self.srcab |= self.srcc
                self.srcc = set(w)
            r = self.srcab | self.srcc
            self.passes = 4 if "16x16x32" in op else 8
        elif self.is_valu:
            if self.is_perml and "swap" in op:
                w = regs(opnds[0]) | regs(opnds[1])
                r = set(w)
            else:
                w = regs(opnds[0])
                rest = opnds[1:]
                if op.startswith(("v_add_co", "v_addc_co", "v_sub_co", "v_subb_co")):
                    w |= regs(opnds[1])
                    rest = opnds[2:]
                for x in rest:
                    r |= regs(x)
                if op.startswith(("v_fmac", "v_dot2c", "v_writelane")) or self.is_dpp:
                    r |= regs(opnds[0])
                if op.startswith("v_cmpx"):
                    w.add(("s", "exec"))
        elif self.is_ds:
            if op.startswith(("ds_read", "ds_bpermute", "ds_swizzle", "ds_permute")):
                w = regs(opnds[0])
                for x in opnds[1:]:
                    r |= regs(x)
            else:
                for x in opnds:
                    r |= regs(x)
        elif self.is_vmem:
            if op in ("buffer_wbl2", "buffer_inv"):
                pass
            elif "load" in op and not self.is_dma:
                w = regs(opnds[0])
                for x in opnds[1:]:
                    r |= regs(x)
            else:
                for x in opnds:
                    r |= regs(x)
                if self.is_dma:
                    r.add(("s", "m0"))
                elif re.search(r"x[34]$", op):
                    self.stdata = regs(opnds[0] if op.startswith("buffer") else opnds[1])
                if "atomic" in op and re.search(r"\bsc0\b", t):
                    w = regs(opnds[0])
        elif self.is_salu:
            if op.startswith(("s_cmp", "s_cbranch", "s_branch", "s_waitcnt", "s_nop", "s_barrier", "s_endpgm",
                              "s_bitcmp", "s_setprio", "s_sleep")):
                for x in opnds:
                    r |= regs(x)
            else:
                w = regs(opnds[0])
                for x in opnds[1:]:
                    r |= regs(x)
                if "saveexec" in op:
                    w.add(("s", "exec"))
        self.w, self.r = w, r


def need(p, c):
    n = 0
    vw = {x for x in p.w if x[0] in "va"}
    sw = {x for x in p.w if x[0] == "s"}
    if p.is_valu:
        if c.is_mfma and vw & c.r:
            n = max(n, 2)
        if p.is_trans and c.is_valu and not c.is_trans and vw & c.r:
            n = max(n, 1)
        if c.is_perml and vw & c.r:
            n = max(n, 2)
        if c.is_dpp and vw & c.r:
            n = max(n, 2)
        if c.op.startswith(("v_readfirstlane", "v_readlane")) and vw & c.r:
            n = max(n, 1)
        if c.is_vmem and sw & c.r:
            n = max(n, 5)
        if c.is_valu and sw & c.r:
            n = max(n, 2)
        if c.is_salu and sw & c.r:
            n = max(n, 1)
        if ("s", "exec") in sw and (c.is_mfma or c.is_perml or c.op.startswith("v_read")):
            n = max(n, 4)
        if ("s", "exec") in sw and c.is_dpp:
            n = max(n, 5)
    if p.is_salu and ("s", "m0") in p.w and c.is_dma:
        n = max(n, 1)
    if p.is_mfma:
        far = {4: 8, 8: 12}[p.passes]
        if c.is_mfma:
            if p.w & c.srcab:
                n = max(n, far)
            if p.w & c.srcc and not (p.w == c.srcc and p.passes == c.passes):
                n = max(n, {4: 6, 8: 10}[p.passes])
        elif (c.is_valu or c.is_ds or c.is_vmem) and p.w & (c.r | c.w):
            n = max(n, far)
        if c.is_valu and p.srcc & c.w:
            n = max(n, {4: 3, 8: 7}[p.passes])
    if p.stdata and p.stdata & c.w:
        n = max(n, 2)
    return n


def check_hazards(lines, window=14):
    ins = []
    labels = {}
    for ln in lines:
        t = ln.split(";")[0].strip()
        if not t or t.startswith("."):
            continue
        if t.endswith(":"):
            labels[t[:-1]] = len(ins)
            continue
        ins.append(I(t))
    problems = []

    def succ(i):
        x = ins[i]
        if x.op == "s_endpgm":
            return []
        if x.op == "s_branch":
            return [labels[x.opnds[0]]]
        if x.op.startswith("s_cbranch"):
            return [i + 1, labels[x.opnds[0]]]
        return [i + 1]

    for i, p in enumerate(ins):
        if not (p.is_valu or p.is_mfma or p.stdata or (p.is_salu and ("s", "m0") in p.w)):
            continue
        stack = [(j, 0) for j in succ(i)]
        seen = set()
        while stack:
            j, d = stack.pop()
            if j >= len(ins) or d >= window or (j, d) in seen:
                continue
            seen.add((j, d))
            c = ins[j]
            n = need(p, c)
            if n > d:
                problems.append(f"need {n} have {d}: [{p.text}] -> [{c.text}]")
            for k in succ(j):
                stack.append((k, d + c.ws))
    return problems


class Op:
    def __init__(self, text, tag=None):
        self.text, self.tag = text, tag


class Wait:
    def __init__(self, vm=(), lg=(), key=None):
        self.vm, self.lg, self.key = tuple(vm), tuple(lg), key


def text_of(x):
    return x.text if isinstance(x, Op) else x


def kind(x):
    if isinstance(x, Wait):
        return "s"
    if isinstance(x, list):
        return kind(x[0])
    t = text_of(x)
    if t.startswith(("ds_", "buffer_", "global_")):
        return "m"
    if t.startswith(("v_mfma", "v_smfmac")):
        return "x"
    if t.startswith("v_"):
        return "v"
    return "s"


def cost(x):
    if isinstance(x, list):
        return sum(cost(y) for y in x)
    if isinstance(x, Wait):
        return 1
    t = text_of(x)
    if t.endswith(":"):
        return 0
    return 2 if t.startswith(TRANS + ("v_permlane",)) else 1


class Ctx:
    def __init__(self, A):
        self.A, self.vm, self.lg = A, [], []
        self.fixed = None
        self.record = None

    def clone_dry(self):
        c = Ctx(Asm())
        c.vm, c.lg = list(self.vm), list(self.lg)
        return c

    @staticmethod
    def _after(seq, tags, cap):
        if not tags:
            return None
        if "*" in tags:
            return 0
        best = -1
        for t in tags:
            idx = [i for i, y in enumerate(seq) if y == t]
            assert idx, f"wait on tag never issued: {t}"
            best = max(best, idx[-1])
        return min(len(seq) - best - 1, cap)

    def __call__(self, *xs):
        for x in xs:
            if isinstance(x, list):
                self(*x)
            elif isinstance(x, Wait):
                if self.fixed is not None and x.key is not None:
                    nv, nl = self.fixed[x.key]
                else:
                    nv, nl = self._after(self.vm, x.vm, 63), self._after(self.lg, x.lg, 15)
                if self.record is not None and x.key is not None:
                    ov, ol = self.record.get(x.key, (nv, nl))
                    mn = lambda p, q_: q_ if p is None else (p if q_ is None else min(p, q_))
                    self.record[x.key] = (mn(ov, nv), mn(ol, nl))
                parts = ([f"vmcnt({nv})"] if nv is not None else []) + ([f"lgkmcnt({nl})"] if nl is not None else [])
                self.A("s_waitcnt " + " ".join(parts))
            else:
                t = text_of(x)
                tag = x.tag if isinstance(x, Op) else None
                if t.startswith("ds_"):
                    self.lg.append(tag)
                elif t.startswith(("buffer_", "global_")):
                    self.vm.append(tag)
                self.A(t)

    def label(self, n):
        self.A.label(n)

    def nop(self, n):
        self.A.nop(n)

    def weave(self, mfmas, pre=None, valu=None, bg=None, cap=2):
        pre, valu = pre or {}, valu or {}
        for g, m in enumerate(mfmas):
            self(m)
            px, vx = pre.get(g, []), valu.get(g, [])
            lim = cap(g) if callable(cap) else cap
            ns = sum(1 for x in px if kind(x) == "s")
            used = sum(cost(x) for x in px if kind(x) != "s") + sum(cost(x) for x in vx) + max(0, ns - 1)
            has_vm = any(kind(x) == "m" and not text_of(x).startswith("ds_") for x in px)
            has_ds = any(kind(x) == "m" and text_of(x).startswith("ds_") for x in px)
            blocked = any(isinstance(x, str) and x.startswith(("s_barrier", "s_cbranch", "s_branch")) for x in px)
            head = []
            while bg and isinstance(bg[0], tuple) and bg[0][1] <= g:
                bg.pop(0)
            if bg and bg[0] is None:
                bg.pop(0)
            if bg and not isinstance(bg[0], tuple) and bg[0] is not None and kind(bg[0]) == "s" and ns == 0:
                x = bg.pop(0)
                head.append(x)
                used += cost(x) - 1
            self(*head)
            self(*px)
            if (bg and not isinstance(bg[0], tuple) and bg[0] is not None and kind(bg[0]) == "m" and used < lim
                    and not blocked):
                isds = text_of(bg[0]).startswith("ds_")
                if isds or not has_vm:
                    self(bg.pop(0))
                    used += 2 if isds and has_ds else 1
            self(*vx)
            while bg and not blocked:
                x = bg[0]
                if x is None or isinstance(x, tuple) or kind(x) == "m" or used + cost(x) > lim:
                    break
                self(bg.pop(0))
                used += cost(x)

    def drain(self, bg):
        while bg:
            x = bg.pop(0)
            if x is not None and not isinstance(x, tuple):
                self(x)
```

```python
import math
import sys
from asmlib import Asm, Ctx, Op, Wait, v, a, s, R, f32, check_hazards

NAME = "recurrent_scan__mha_block_cached__mixer_token_mlp__prompt"
OPT = dict(diag=0, bias=96.0, thresh=2.0 ** 60, force_fb=0, pf=1, qpro=24, qrate=8, spin=0x10000)
for arg in sys.argv[2:]:
    k_, v_ = arg.split("=")
    OPT[k_] = float(v_) if "." in v_ else int(v_)

MB = 1 << 20
WS_XF, WS_HF, WS_OF, WS_UF, WS_S, WS_FLAG, WS_DIAG = 0, 4 * MB, 8 * MB, 24 * MB, 32 * MB, 40 * MB, 64 * MB
FL_O, FL_U, FL_S = 0, 4096, 8192
KA_X, KA_K, KA_V, KA_WQ, KA_WO, KA_W1, KA_B1, KA_W2, KA_B2, KA_OUT, KA_DBG, KA_WS = (
    0, 8, 16, 24, 32, 48, 56, 64, 72, 80, 88, 96)
LOG2E = 1.4426950408889634
QSCALE = LOG2E / math.sqrt(128.0)
MF = "v_mfma_f32_16x16x32_bf16"
SPIN = OPT["spin"]


def mfma(d, x, y, c):
    return f"{MF} {d}, {x}, {y}, {c}"


def srd(sr, ptr, off, size):
    return [[f"s_add_u32 {s(sr)}, {s(ptr)}, {off}", f"s_addc_u32 {s(sr + 1)}, {s(ptr + 1)}, 0"],
            f"s_mov_b32 {s(sr + 2)}, {size}", f"s_mov_b32 {s(sr + 3)}, 0x20000"]


def code_srd(sr, start, end, tag):
    return [[f"s_getpc_b64 {s(sr, 2)}", f"L_pc_{tag}:", f"s_add_u32 {s(sr)}, {s(sr)}, {start}-L_pc_{tag}",
             f"s_addc_u32 {s(sr + 1)}, {s(sr + 1)}, 0"],
            f"s_mov_b32 {s(sr + 2)}, {end}-{start}", f"s_mov_b32 {s(sr + 3)}, 0x20000"]


def nops(n):
    return [f"s_nop {n - 1}"] if n > 0 else []


def wave_red(regs, tmp, op="v_add_f32", dpp=True):
    out = []
    if dpp:
        for mod in ("quad_perm:[1,0,3,2]", "quad_perm:[2,3,0,1]", "row_half_mirror", "row_mirror"):
            out += nops(3 - len(regs))
            out += [f"{op}_dpp {v(r)}, {v(r)}, {v(r)} {mod} row_mask:0xf bank_mask:0xf" for r in regs]
    for sw in ("v_permlane16_swap_b32", "v_permlane32_swap_b32"):
        out += [f"v_mov_b32 {v(t)}, {v(r)}" for r, t in zip(regs, tmp)]
        out += nops(3 - len(regs))
        out += [f"{sw} {v(r)}, {v(t)}" for r, t in zip(regs, tmp)]
        out += [f"{op} {v(r)}, {v(r)}, {v(t)}" for r, t in zip(regs, tmp)]
    return out


class Diag:
    def __init__(self, C, slot):
        self.C, self.slot = C, slot

    def stamp(self, n):
        if OPT["diag"]:
            self.C("s_memtime s[98:99]", "s_memrealtime s[100:101]", "s_waitcnt lgkmcnt(0)",
                   f"s_mov_b32 {s(78 + 2 * n)}, s98", f"s_mov_b32 {s(79 + 2 * n)}, s100")

    def flush(self, nmax):
        if not OPT["diag"]:
            return
        C = self.C
        C(f"s_load_dwordx2 s[98:99], s[0:1], {KA_WS}", "s_waitcnt lgkmcnt(0)", "s_lshl_b32 s100, s2, 7",
          f"s_add_u32 s100, s100, {WS_DIAG + self.slot * 65536}")
        C(srd(4, 98, "s100", 128))
        C("v_mov_b32 v1, 0")
        for i in range(2 * nmax):
            C(f"v_mov_b32 v2, {s(78 + i)}", f"buffer_store_dword v2, v1, s[4:7], 0 offen offset:{4 * i}")
        C("s_waitcnt vmcnt(0)")


LN_RS = 2080
LN_LDS = 16 * LN_RS


def gen_ln(C):
    D = Diag(C, 2)
    C.label("ln_kernel")
    C("s_cmp_ge_u32 s2, 256", "s_cbranch_scc1 L_ln_end")
    D.stamp(0)
    C(f"s_load_dwordx2 s[4:5], s[0:1], {KA_X}", f"s_load_dwordx2 s[6:7], s[0:1], {KA_WS}",
      f"s_load_dwordx2 s[24:25], s[0:1], {KA_WQ}")
    C("v_and_b32 v1, 63, v0", "v_lshrrev_b32 v2, 6, v0", "v_lshlrev_b32 v3, 4, v1")
    C("v_lshrrev_b32 v4, 2, v2", "v_lshlrev_b32 v4, 4, v4", "v_and_b32 v5, 3, v2", "v_add_u32 v4, v4, v5",
      "v_lshl_add_u32 v4, v4, 11, v3")
    C("s_lshr_b32 s16, s2, 2", "s_and_b32 s17, s2, 3", "s_lshl_b32 s3, s16, 3", "s_add_u32 s3, s3, s17",
      "s_lshl_b32 s3, s3, 13")
    C("s_waitcnt lgkmcnt(0)")
    C(srd(8, 4, "s3", 40960))
    C(Op("buffer_load_dwordx4 v[8:11], v4, s[8:11], 0 offen", "x"),
      Op("buffer_load_dwordx4 v[12:15], v4, s[8:11], 0 offen offset:1024", "x"))
    C(srd(12, 6, 0, 8 * MB))
    C("v_lshlrev_b32 v56, 5, v0")
    if OPT["pf"]:
        C("s_lshl_b32 s3, s2, 15")
        C(srd(28, 24, "s3", 32768))
        C("s_movk_i32 s3, 0x4000", "buffer_load_dword v57, v56, s[28:31], 0 offen",
          "buffer_load_dword v58, v56, s[28:31], s3 offen")
        C(code_srd(32, "main_kernel", "L_code_end", "ln"))
        C("s_lshl_b32 s3, s2, 14", "buffer_load_dword v59, v56, s[32:35], s3 offen")
    C("s_lshl_b32 s3, s2, 6", f"s_add_u32 s3, s3, {WS_FLAG}")
    C(srd(36, 6, "s3", 64))
    C("v_lshlrev_b32 v60, 2, v0", "v_mov_b32 v61, 0", "buffer_store_dword v61, v60, s[36:39], 0 offen")
    C(f"v_mul_u32_u24 v5, {LN_RS}, v2", "v_add_u32 v5, v5, v3")
    C("v_and_b32 v6, 7, v0", "v_lshrrev_b32 v7, 5, v0", "v_bfe_u32 v43, v0, 3, 2")
    C(f"v_mul_u32_u24 v40, {LN_RS}, v6", "v_lshl_add_u32 v40, v7, 6, v40", "v_lshl_add_u32 v40, v43, 3, v40")
    C("v_lshlrev_b32 v41, 12, v7", "v_lshl_add_u32 v41, v43, 8, v41", "v_lshrrev_b32 v43, 2, v6",
      "v_lshl_add_u32 v41, v43, 10, v41", "v_and_b32 v43, 3, v6", "v_lshl_add_u32 v41, v43, 4, v41")
    C("s_lshr_b32 s18, s16, 1", "s_lshl_b32 s18, s18, 17", "s_and_b32 s19, s16, 1", "s_lshl_b32 s19, s19, 11",
      "s_add_u32 s18, s18, s19", "s_lshl_b32 s19, s17, 6", "s_add_u32 s18, s18, s19", "s_add_u32 s19, s18, 65536")
    C("v_bfe_u32 v42, v0, 2, 2", f"v_mul_u32_u24 v42, {LN_RS}, v42", "v_lshl_add_u32 v42, v7, 6, v42",
      "v_bfe_u32 v43, v0, 4, 1", "v_lshl_add_u32 v42, v43, 3, v42", "v_and_b32 v44, 3, v0",
      "v_lshl_add_u32 v42, v44, 4, v42")
    C("v_lshlrev_b32 v44, 17, v7", "v_lshl_add_u32 v44, v43, 10, v44", "v_and_b32 v43, 15, v0",
      "v_lshl_add_u32 v44, v43, 4, v44")
    C("s_lshl_b32 s16, s16, 11", "s_lshl_b32 s17, s17, 8", "s_add_u32 s16, s16, s17",
      f"s_add_u32 s16, s16, {WS_HF}", f"s_add_u32 s17, s16, {2 * MB}")
    C(f"s_mov_b32 s20, {f32(1.0 / 1024)}", f"s_mov_b32 s21, {f32(1e-5)}", f"s_mov_b32 s22, {f32(QSCALE)}")
    X = 16
    C(Wait(vm=["x"]))
    for i in range(8):
        C(f"v_lshlrev_b32 {v(X + 2 * i)}, 16, {v(8 + i)}", f"v_and_b32 {v(X + 2 * i + 1)}, 0xffff0000, {v(8 + i)}")
    C(f"v_add_f32 v32, {v(X)}, {v(X + 1)}", f"v_add_f32 v33, {v(X + 2)}, {v(X + 3)}")
    for i in range(4, 16, 2):
        C(f"v_add_f32 v32, v32, {v(X + i)}", f"v_add_f32 v33, v33, {v(X + i + 1)}")
    C("v_add_f32 v32, v32, v33")
    C(wave_red([32], [34]))
    C("v_mul_f32 v32, s20, v32")
    for i in range(16):
        C(f"v_sub_f32 {v(X + i)}, {v(X + i)}, v32")
    C(f"v_mul_f32 v32, {v(X)}, {v(X)}", f"v_mul_f32 v33, {v(X + 1)}, {v(X + 1)}")
    for i in range(2, 16, 2):
        C(f"v_fmac_f32 v32, {v(X + i)}, {v(X + i)}", f"v_fmac_f32 v33, {v(X + i + 1)}, {v(X + i + 1)}")
    C("v_add_f32 v32, v32, v33")
    C(wave_red([32], [34]))
    C("v_mov_b32 v33, s21", "v_fmac_f32 v33, s20, v32", "v_rsq_f32 v33, v33", "s_nop 0")
    for i in range(16):
        C(f"v_mul_f32 {v(X + i)}, {v(X + i)}, v33")
    C(f"v_add_f32 v32, {v(X)}, {v(X + 1)}", f"v_mul_f32 v33, {v(X)}, {v(X)}",
      f"v_fmac_f32 v33, {v(X + 1)}, {v(X + 1)}")
    for i in range(2, 16):
        C(f"v_add_f32 v32, v32, {v(X + i)}", f"v_fmac_f32 v33, {v(X + i)}, {v(X + i)}")
    for i in range(8):
        C(f"v_mul_f32 v36, s22, {v(X + 2 * i)}", f"v_mul_f32 v37, s22, {v(X + 2 * i + 1)}",
          f"v_cvt_pk_bf16_f32 {v(8 + i)}, v36, v37")
    C("ds_write_b128 v5, v[8:11]", "ds_write_b128 v5, v[12:15] offset:1024")
    C(wave_red([32, 33], [34, 35]))
    C("v_mul_f32 v32, s20, v32", "v_mul_f32 v33, s20, v33", "v_fma_f32 v33, -v32, v32, v33",
      "v_max_f32 v33, 0, v33", "v_add_f32 v33, s21, v33", "v_rsq_f32 v33, v33")
    for i in range(16):
        C(f"v_sub_f32 {v(X + i)}, {v(X + i)}, v32")
    for i in range(8):
        C(f"v_mul_f32 v36, v33, {v(X + 2 * i)}", f"v_mul_f32 v37, v33, {v(X + 2 * i + 1)}",
          f"v_cvt_pk_bf16_f32 {v(48 + i)}, v36, v37")
    HB = 8 * LN_RS
    C(f"ds_write_b128 v5, v[48:51] offset:{HB}", f"ds_write_b128 v5, v[52:55] offset:{HB + 1024}")
    C("s_waitcnt lgkmcnt(0)", "s_barrier")
    C(Op("ds_read2_b64 v[8:11], v40 offset0:0 offset1:4", 0), Op("ds_read2_b64 v[12:15], v40 offset0:128 offset1:132", 1))
    C(f"ds_read_b64_tr_b16 v[16:17], v42 offset:{HB}",
      Op(f"ds_read_b64_tr_b16 v[18:19], v42 offset:{HB + 4 * LN_RS}", 2),
      f"ds_read_b64_tr_b16 v[20:21], v42 offset:{HB + 1024}",
      Op(f"ds_read_b64_tr_b16 v[22:23], v42 offset:{HB + 4 * LN_RS + 1024}", 3))
    C(Wait(lg=[0]), "buffer_store_dwordx4 v[8:11], v41, s[12:15], s18 offen")
    C(Wait(lg=[1]), "buffer_store_dwordx4 v[12:15], v41, s[12:15], s19 offen")
    C(Wait(lg=[2]), "buffer_store_dwordx4 v[16:19], v44, s[12:15], s16 offen")
    C(Wait(lg=[3]), "buffer_store_dwordx4 v[20:23], v44, s[12:15], s17 offen")
    if OPT["diag"]:
        C("s_waitcnt vmcnt(0)")
    D.stamp(1)
    D.flush(2)
    C.label("L_ln_end")
    C("s_endpgm")


V_LANE16 = 1
V_KA, V_VA, V_QA, V_ONE, V_OK, V_OV, V_OW = 4, 8, 16, 20, 24, 28, 32
V_L, V_NEGM, V_WA0, V_IDX, V_PF = 36, 44, 44, 60, 61
V_Q, V_S, V_P, V_ACC = 64, (128, 160), (192, 208), 128
V_B1, V_T, V_L0, V_FLG, V_FOFF, V_ONEI = 232, 240, 52, 53, 54, 55
A_O, A_KF, A_VF = 0, 128, 160
A_WF = (128, 160)
S_W = 3
SR_ACT, SR_W, SR_K, SR_V, SR_ST = 4, 8, 12, 16, 20
P_K, P_V, P_WQ, P_WS, P_W1, P_B1, P_WO, P_W2, P_X, P_B2, P_OUT = 24, 26, 28, 30, 32, 34, 36, 38, 52, 54, 56
S_SA, S_SW, S_SK, S_SV, S_CNT, S_FB = 40, 41, 42, 43, 44, 45
S_KSTEP, S_VSTEP = 58, 59
SR_PF, S_PF, S_PFC = 60, 76, 77
SR_ACT2, SR_UST, SR_FLAG, SR_X = 60, 64, 68, 72
S_WSTEP, S_ROLE, S_FO, S_FU, S_FS = 58, 42, 76, 77, 59
VBASE, VOTE, MXB = 65536, 131072, 131072 + 64
MAIN_LDS = 131072 + 64 + 4096
WQSTEP, W1STEP = 64 * 8192, 64 * 7168


def ring(idx):
    idx %= 32
    return ("a", 192 + 4 * idx) if idx < 16 else ("v", 64 + 4 * (idx - 16))


def add(d, k, *x):
    d.setdefault(k, []).extend(x)


def v_read_addrs(dst, t0):
    out = [f"v_lshrrev_b32 {v(t0)}, 2, v2", f"v_and_b32 {v(t0 + 1)}, 1, v3",
           f"v_lshl_add_u32 {v(t0 + 1)}, {v(t0 + 1)}, 2, {v(t0)}", f"v_lshl_add_u32 {v(t0)}, v3, 2, {v(t0)}",
           f"v_lshlrev_b32 {v(t0)}, 8, {v(t0)}", f"v_lshl_add_u32 {v(t0)}, {v(t0 + 1)}, 5, {v(t0)}",
           f"v_and_b32 {v(t0 + 1)}, 3, v2", f"v_lshl_add_u32 {v(t0)}, {v(t0 + 1)}, 3, {v(t0)}",
           f"v_add_u32 {v(t0)}, {VBASE}, {v(t0)}"]
    return out + [f"v_xor_b32 {v(dst + b)}, {b * 32}, {v(t0)}" for b in range(8)]


def q_read_addrs(dst, t0):
    out = [f"v_lshrrev_b32 {v(t0)}, 2, v2", f"v_and_b32 {v(t0 + 1)}, 1, v3",
           f"v_lshl_add_u32 {v(t0 + 1)}, {v(t0 + 1)}, 2, {v(t0)}", f"v_lshl_add_u32 {v(t0)}, v3, 2, {v(t0)}",
           f"v_lshlrev_b32 {v(t0)}, 8, {v(t0)}", f"v_lshlrev_b32 {v(t0 + 1)}, 1, {v(t0 + 1)}",
           f"v_and_b32 {v(t0 + 2)}, 3, v2", f"v_xor_b32 {v(t0 + 1)}, {v(t0 + 1)}, {v(t0 + 2)}",
           f"v_lshl_add_u32 {v(t0)}, {v(t0 + 1)}, 4, {v(t0)}", f"v_add_u32 {v(t0)}, {VBASE}, {v(t0)}"]
    return out + [f"v_xor_b32 {v(dst + x)}, {x * 64}, {v(t0)}" for x in range(4)]


def w_dma_offsets(dst, ldw, t0, st):
    out = [f"s_lshr_b32 {s(st)}, {s(S_W)}, 8", f"v_add_u32 {v(t0)}, {s(st)}, v3",
           f"v_mul_u32_u24 {v(t0)}, {ldw}, {v(t0)}", f"v_lshlrev_b32 {v(t0 + 1)}, 1, v3",
           f"v_xor_b32 {v(t0 + 1)}, {v(t0 + 1)}, v2", f"v_lshl_add_u32 {v(dst)}, {v(t0 + 1)}, 4, {v(t0)}",
           f"v_xor_b32 {v(t0 + 1)}, 8, {v(t0 + 1)}", f"v_lshl_add_u32 {v(dst + 1)}, {v(t0 + 1)}, 4, {v(t0)}"]
    if isinstance(ldw, int):
        one, two = 4 * ldw - 1024, 8 * ldw - 2048
    else:
        out += [f"s_lshl_b32 {s(st)}, {ldw}, 2", f"s_sub_u32 {s(st)}, {s(st)}, 1024",
                f"s_lshl_b32 {s(st + 1)}, {s(st)}, 1"]
        one, two = s(st), s(st + 1)
    out += [f"v_add_u32 {v(dst + 1)}, {one}, {v(dst + 1)}", f"v_add_u32 {v(dst + 2)}, {two}, {v(dst)}",
            f"v_add_u32 {v(dst + 3)}, {two}, {v(dst + 1)}"]
    return out


def dma(voff, sr, soff, i, tag):
    return Op(f"buffer_load_dwordx4 {v(voff)}, {s(sr, 4)}, {s(soff)} offen offset:{i * 1024} lds", tag)


def set_m0(off):
    return f"s_add_u32 m0, {s(S_W)}, {off}"


def tr_read(dst, addr, off, tag):
    return Op(f"ds_read_b64_tr_b16 {dst}, {v(addr)} offset:{off}", tag)


def q_act(j, q):
    return Op(f"buffer_load_dwordx4 {R(ring(4 * j + q + 16), 4)}, {v(V_LANE16)}, {s(SR_ACT, 4)}, {s(S_SA)} offen "
              f"offset:{q * 1024}", ("QX", j))


def q_reads(j):
    base = ((j >> 1) & 3) * 16384 + (j & 1) * 8192
    return [tr_read(a(A_WF[j & 1] + 2 * m, 2), V_QA + (m >> 2), base + (m & 1) * 4096 + ((m >> 1) & 1) * 8, ("QT", j))
            for m in range(16)]


def q_mfmas(j, q_outer=False):
    out = []
    for m in range(32):
        b, q = (m & 7, m >> 3) if q_outer else (m >> 2, m & 3)
        acc = v(V_ACC + (b * 4 + q) * 4, 4)
        out.append(mfma(acc, a(A_WF[j & 1] + 4 * b, 4), R(ring(4 * j + q + 16), 4), acc if j else "0"))
    return out


def k_reads(u, dst):
    base = ((u >> 1) & 3) * 16384 + (u & 1) * 8192
    return [Op(f"ds_read_b128 {a(dst + (kb * 4 + ks) * 4, 4)}, {v(V_KA + ks)} offset:{base + kb * 4096}", ("KR", u))
            for kb in range(2) for ks in range(4)]


def v_reads(u, dst):
    base = ((u >> 1) & 3) * 16384 + (u & 1) * 8192
    return [tr_read(a(dst + 2 * m, 2), V_VA + (m >> 1), base + (m & 1) * 4096, ("VR", u)) for m in range(16)]


def k_dma(t):
    tag = ("K", t) if t < 32 else ("W", 2 * (t - 32))
    return ([set_m0((t & 3) * 16384)] + [dma(V_OK + i, SR_K, S_SK, i, tag) for i in range(4)]
            + [f"s_add_u32 {s(S_SK)}, {s(S_SK)}, {s(S_KSTEP)}"])


def v_dma(t):
    tag = ("V", t) if t < 32 else ("W", 2 * (t - 32) + 1)
    return ([set_m0(VBASE + (t & 3) * 16384)] + [dma(V_OV + i, SR_V, S_SV, i, tag) for i in range(4)]
            + [f"s_add_u32 {s(S_SV)}, {s(S_SV)}, {s(S_VSTEP)}"])


def sm_ops(u):
    S, P = V_S[u & 1], V_P[u & 1]
    out = []
    for q in range(4):
        for pr in range(4):
            r0 = S + ((pr >> 1) * 4 + q) * 4 + (pr & 1) * 2
            out += [[f"v_exp_f32 {v(r0)}, {v(r0)}"], [], [f"v_exp_f32 {v(r0 + 1)}, {v(r0 + 1)}"],
                    [f"v_cvt_pk_bf16_f32 {v(P + q * 4 + pr)}, {v(r0)}, {v(r0 + 1)}"]]
    return out


def sm_seq(u, q0, q1):
    ops = sm_ops(u)[16 * q0:16 * q1]
    out, pend = [], None
    for g in range(0, len(ops), 4):
        out += ops[g] + ops[g + 2]
        if pend:
            out += pend
        pend = ops[g + 3]
    return out + [None] + pend


def qk_mfmas(u, kf, zero_c=False, q_outer=False):
    out = []
    order = [(kb, q) for q in range(4) for kb in range(2)] if q_outer else [(kb, q) for kb in range(2) for q in range(4)]
    for kb, q in order:
        d = v(V_S[u & 1] + (kb * 4 + q) * 4, 4)
        for ks in range(4):
            c = d if ks else ("0" if zero_c else v(V_NEGM + 4 * q, 4))
            out.append(mfma(d, a(kf + (kb * 4 + ks) * 4, 4), v(V_Q + (q * 4 + ks) * 4, 4), c))
    return out


def pv_mfmas(u, vf, q_outer=False):
    out = []
    for m in range(32):
        db, q = (m & 7, m >> 3) if q_outer else (m >> 2, m & 3)
        d = a(A_O + (db * 4 + q) * 4, 4)
        out.append(mfma(d, a(vf + 4 * db, 4), v(V_P[u & 1] + 4 * q, 4), d))
    return out


def l_mfma(u, h):
    return f"v_smfmac_f32_16x16x64_bf16 {v(V_L + 4 * h, 4)}, {v(V_ONE, 4)}, {v(V_P[u & 1] + 8 * h, 8)}, {v(V_IDX)}"


def tile_dma(i):
    return k_dma((i + 1) // 2 + 4) if i & 1 else v_dma(i // 2 + 3)


def phase_a(C, i, extra):
    pre = {}
    for g, x in enumerate(v_reads(i, A_VF)[4:]):
        add(pre, 2 * g + 1, x)
    ops = tile_dma(i - 1)
    add(pre, 25, ops[3])
    add(pre, 29, ops[4])
    add(pre, 30, ops[5])
    for g, x in extra:
        add(pre, g, x)
    C.weave(qk_mfmas(i + 2, A_KF), pre, dict(enumerate(sm_ops(i + 1)[:32])))


def phase_b(C, i, extra):
    pre = {}
    for g, x in enumerate(k_reads(i + 3, A_KF)):
        add(pre, 2 * g + 1, x)
    ops = tile_dma(i)
    vr = v_reads(i + 1, A_VF)
    add(pre, 16, ops[0])
    for g, x in zip((17, 19, 21, 25, 27, 29), (ops[1], vr[0], vr[1], ops[2], vr[2], vr[3])):
        add(pre, g, x)
    add(pre, 31, Wait(lg=[("KR", i + 3)], key=("b", i & 7)))
    for g, x in extra:
        add(pre, g, x)
    valu = dict(enumerate(sm_ops(i + 1)[32:]))
    valu[7] = valu[7] + [l_mfma(i, 0)]
    valu[23] = valu[23] + [l_mfma(i, 1)]
    C.weave(pv_mfmas(i, A_VF), pre, valu)


def epoch(C, n, real, skip_first=False):
    p = n & 3
    if not skip_first:
        extra = []
        if OPT["pf"]:
            so = S_PFC if p == 0 else S_PF
            extra.append((23, f"buffer_load_dword v255, {v(V_PF)}, {s(SR_PF + 4 * p, 4)}, {s(so)} offen"))
            if p == 3:
                extra.append((24, f"s_add_u32 {s(S_PF)}, {s(S_PF)}, 8192"))
        if p < 2 and real:
            extra += [(2, f"s_cmp_eq_u32 {s(S_CNT)}, 1"), (4, f"s_cbranch_scc1 L_hook{p}"), (4, f"L_hook{p}_ret:")]
        phase_b(C, 2 * n - 1, extra)
    if p == 0 and real:
        C.label("L_attn_entry")
    phase_a(C, 2 * n, [(31, Wait(lg=[("VR", 2 * n)], key=("a", 2 * p)))])
    phase_b(C, 2 * n, [])
    need = [("K", n + 2)] * (n + 2 < 32) + [("V", n + 1)]
    extra = [(31, Wait(vm=need, lg=["*"], key=("a", 2 * p + 1))), (31, "s_barrier")]
    if p == 2:
        extra = [(26, f"s_sub_u32 {s(S_CNT)}, {s(S_CNT)}, 1")] + extra + [(31, f"s_cmp_eq_u32 {s(S_CNT)}, 0")]
    phase_a(C, 2 * n + 1, extra)
    if real and p == 2:
        C("s_cbranch_scc1 L_attn_tail")
    if real and p == 3:
        C("s_branch L_attn_loop")


def max_ops(u, q, first):
    r = [V_S[u & 1] + (kb * 4 + q) * 4 + j for kb in range(2) for j in range(4)]
    m = v(V_NEGM + 4 * q)
    out = [f"v_max_f32 {m}, {v(r[0])}, {v(r[1])}" if first else f"v_max3_f32 {m}, {v(r[0])}, {v(r[1])}, {m}"]
    return out + [f"v_max3_f32 {m}, {v(r[k])}, {v(r[k + 1])}, {m}" for k in (2, 4, 6)]


def n_act(j, q, sr, sc=""):
    return Op(f"buffer_load_dwordx4 {R(ring(2 * j + q), 4)}, {v(V_LANE16)}, {s(sr, 4)}, {s(S_SA)} offen "
              f"offset:{(j & 1) * 2048 + q * 1024}{sc}", ("X", j))


def n_reads(j):
    sig = j >> 1
    wa = V_VA if sig & 1 else V_WA0
    base = ((sig >> 1) & 3) * 16384 + (j & 1) * 8192
    return [tr_read(a(A_WF[j & 1] + 2 * m, 2), wa + (m >> 1), base + (m & 1) * 4096, ("T", j, m >> 3))
            for m in range(16)]


def n_m0(sig):
    return (sig & 1) * VBASE + ((sig >> 1) & 3) * 16384


def n_step(C, j, act_is_a, loop, extra=(), bg=None, cap=2, more_vm=()):
    mf, pre = [], {}
    for m in range(16):
        b, q = m >> 1, m & 1
        wf, xf = a(A_WF[j & 1] + 4 * b, 4), R(ring(2 * j + q), 4)
        acc = v(V_ACC + (b * 2 + q) * 4, 4)
        c = acc if j else v(V_ACC + (b * 2 + 1) * 4, 4)
        mf.append(mfma(acc, xf, wf, c) if act_is_a else mfma(acc, wf, xf, c))
    sig, jx = (j + 11) // 2, j + 15
    if j & 1:
        if loop:
            add(pre, 0, f"s_add_u32 {s(S_SA)}, {s(S_SA)}, 4096")
        else:
            add(pre, 0, f"s_mov_b32 {s(S_SA)}, {(jx % 64) * 2048}")
        add(pre, 2, set_m0(n_m0(sig)))
        add(pre, 3, f"s_mov_b32 {s(S_SW)}, {(sig % 32) * W1STEP}" if sig <= 32
            else f"s_add_u32 {s(S_SW)}, {s(S_SW)}, {s(S_WSTEP)}")
    for m, x in enumerate(n_reads(j + 1)):
        add(pre, m, x)
    sra, sc = (SR_ACT, "") if jx < 64 else (SR_ACT2, " sc1")
    ow, srw = (V_OK, SR_K) if sig < 32 else (V_OW, SR_W)
    i0 = 0 if j & 1 else 2
    add(pre, 1, n_act(jx, 0, sra, sc))
    add(pre, 5, dma(ow + i0, srw, S_SW, i0, ("W", sig)))
    add(pre, 9, n_act(jx, 1, sra, sc))
    add(pre, 13, dma(ow + i0 + 1, srw, S_SW, i0 + 1, ("W", sig)))
    kk = (lambda x: (x, j & 15)) if loop else (lambda x: None)
    add(pre, 7, Wait(lg=[("T", j, 1)], key=kk("h")))
    if j & 3 == 2:
        need = [("W", (j >> 1) + 1), ("W", (j >> 1) + 2)] + [("X", j + k) for k in range(1, 5)] + list(more_vm)
        add(pre, 15, Wait(vm=need, lg=[("T", j + 1, 0)], key=kk("e")), "s_barrier")
    else:
        add(pre, 15, Wait(lg=[("T", j + 1, 0)], key=kk("e")))
    for g, x in extra:
        add(pre, g, x)
    C.weave(mf, pre, {}, bg, cap)


def n_loop(C, name, trips, act_is_a):
    sim = C.clone_dry()
    sim.record = {}
    for j in range(64, 64 + 16 * trips):
        n_step(sim, j, act_is_a, True)
    C(f"s_mov_b32 {s(S_CNT)}, {trips}", ".p2align 6")
    C.label(f"L_{name}_loop")
    C.fixed = sim.record
    for j in range(80, 96):
        extra = []
        if j == 95:
            extra = [(10, f"s_sub_u32 {s(S_CNT)}, {s(S_CNT)}, 1"), (11, f"s_cmp_lg_u32 {s(S_CNT)}, 0"),
                     (15, f"s_cbranch_scc1 L_{name}_loop")]
        n_step(C, j, act_is_a, True, extra)
    C.fixed = None
    C.vm, C.lg = sim.vm, sim.lg


def poll(C, name, soff):
    C(f"s_mov_b32 s46, {SPIN}")
    C.label(f"L_poll_{name}")
    C(f"buffer_load_dword {v(V_FLG)}, {v(V_FOFF)}, {s(SR_FLAG, 4)}, {s(soff)} offen sc1",
      "s_sub_u32 s46, s46, 1", f"s_cbranch_scc1 L_poll_{name}_out", "s_waitcnt vmcnt(0)",
      f"v_cmp_eq_u32 vcc, 0, {v(V_FLG)}", "s_nop 1", "s_cmp_lg_u64 vcc, 0", f"s_cbranch_scc1 L_poll_{name}")
    C.label(f"L_poll_{name}_out")


def flag_store(soff):
    return f"buffer_store_dword {v(V_ONEI)}, {v(V_L0)}, {s(SR_FLAG, 4)}, {s(soff)} offen sc1"


def pk(op, d, *src):
    return f"v_pk_{op}_f32 {v(d, 2)}, " + ", ".join(x if isinstance(x, str) else v(x, 2) for x in src)


def mlp1_ids():
    return ["s_lshr_b32 s48, s2, 3", ["s_cmp_lt_u32 s48, 28", "s_cselect_b32 s51, -1, 0"],
            "s_and_b32 s49, s2, 1", "s_lshl_b32 s49, s49, 2", "s_and_b32 s50, s48, 3", "s_add_u32 s49, s49, s50",
            "s_bfe_u32 s50, s2, 0x20001", "s_mul_i32 s50, s50, 7", "s_lshr_b32 s48, s48, 2",
            "s_add_u32 s50, s50, s48", "s_and_b32 s50, s50, s51", "s_lshl_b32 s49, s49, 2",
            f"s_lshr_b32 s48, {s(S_W)}, 12", "s_add_u32 s49, s49, s48"]


def gen_main(C):
    D = Diag(C, 0)
    C.label("main_kernel")
    C("s_cmp_ge_u32 s2, 256", "s_cbranch_scc1 L_end")
    D.stamp(0)
    C(f"s_load_dwordx2 {s(P_WQ, 2)}, s[0:1], {KA_WQ}", f"s_load_dwordx2 {s(P_WS, 2)}, s[0:1], {KA_WS}",
      f"s_load_dwordx4 {s(P_K, 4)}, s[0:1], {KA_K}", f"s_load_dwordx4 {s(P_W1, 4)}, s[0:1], {KA_W1}",
      f"s_load_dwordx2 {s(P_WO, 2)}, s[0:1], {KA_WO}", f"s_load_dwordx2 {s(P_W2, 2)}, s[0:1], {KA_W2}",
      f"s_load_dwordx2 {s(P_X, 2)}, s[0:1], {KA_X}", f"s_load_dwordx2 {s(P_B2, 2)}, s[0:1], {KA_B2}",
      f"s_load_dwordx2 {s(P_OUT, 2)}, s[0:1], {KA_OUT}")
    C(f"s_mov_b32 {s(S_FB)}, 0")
    C.label("L_restart")
    C("v_and_b32 v1, 63, v0", "v_lshrrev_b32 v2, 6, v0", "v_lshrrev_b32 v3, 4, v1",
      f"v_readfirstlane_b32 {s(S_W)}, v2", "v_and_b32 v2, 15, v1", "v_lshlrev_b32 v1, 4, v1",
      f"s_lshl_b32 {s(S_W)}, {s(S_W)}, 12")
    C("s_and_b32 s46, s2, 31", "s_lshr_b32 s47, s2, 5", "s_lshl_b32 s47, s47, 2", f"s_lshr_b32 s48, {s(S_W)}, 12",
      "s_add_u32 s47, s47, s48")
    C(w_dma_offsets(V_OW, 8192, 62, 48))
    C("s_lshl_b32 s48, s46, 8", f"s_sub_u32 s49, {8 * MB}, s48", "s_lshl_b32 s50, s47, 17")
    C(f"v_lshlrev_b32 {v(V_PF)}, 5, v0")
    C(code_srd(SR_PF, "L_q_code", "L_attn_tail", "a"))
    C(f"s_bfe_u32 {s(S_PFC)}, s2, 0x20003", f"s_lshl_b32 {s(S_PFC)}, {s(S_PFC)}, 13")
    C("s_waitcnt lgkmcnt(0)")
    C(srd(SR_W, P_WQ, "s48", "s49"), srd(SR_ACT, P_WS, "s50", 131072))

    st = []

    def grp(setup, ops, earliest, post=None):
        for i, o in enumerate(ops):
            st.append((setup if i == 0 else [], o, earliest, post if i == len(ops) - 1 else None))

    def gW(e):
        grp([set_m0(VBASE + (e & 3) * 16384), f"s_mov_b32 {s(S_SW)}, {e * WQSTEP}"],
            [dma(V_OW + i, SR_W, S_SW, i, ("QW", e)) for i in range(4)], 2 * e - 7)

    def gX(j):
        grp([f"s_mov_b32 {s(S_SA)}, {j * 4096}"], [q_act(j, q) for q in range(4)], j - 7)

    def gT(ops, earliest):
        grp([ops[0]], ops[1:5], earliest, ops[5])
    gW(0); gX(0)
    if OPT["pf"]:
        grp([], [f"buffer_load_dword v63, {v(V_PF)}, {s(SR_PF, 4)}, {s(S_PFC)} offen"], -9)
    for e in range(1, 16):
        gW(e); gX(2 * e - 1); gX(2 * e)
    gX(31)
    for ops, t in ((k_dma(0), 25), (k_dma(1), 26), (v_dma(0), 27), (k_dma(2), 28), (v_dma(1), 29), (k_dma(3), 30),
                   (v_dma(2), 31)):
        gT(ops, t)
    qa = q_read_addrs(V_QA, V_NEGM)
    for n in range(OPT["qpro"]):
        setup, o, _, _ = st.pop(0)
        C(setup, o)
        if n == 8:
            C(qa)
    C(Wait(vm=[("QW", 0), ("QX", 0)]), "s_barrier")
    C(q_reads(0))
    bg = ["s_lshl_b32 s48, s46, 19"] + srd(SR_K, P_K, "s48", 524288) + srd(SR_V, P_V, "s48", 524288)
    bg += ["s_lshl_b32 s48, s47, 19", "s_lshl_b32 s49, s46, 13", "s_add_u32 s48, s48, s49",
           f"s_add_u32 s48, s48, {WS_OF}"] + srd(SR_ST, P_WS, "s48", 262144 + 8192)
    bg += code_srd(SR_PF, "L_attn_tail", "L_code_end", "b")
    bg += [f"s_bfe_u32 {s(S_PFC)}, s2, 0x30003", f"s_lshl_b32 {s(S_PFC)}, {s(S_PFC)}, 13", "s_mul_i32 s48, s2, 57344"]
    bg += srd(SR_PF + 4, P_W1, "s48", 57344) + srd(SR_PF + 8, P_W2, "s48", 57344)
    bg += ["s_lshl_b32 s48, s2, 15"] + srd(SR_PF + 12, P_WO, "s48", 32768)
    bg += [f"s_mov_b32 {s(x)}, 0" for x in (S_PF, S_SK, S_SV)]
    bg += [f"s_movk_i32 {s(S_KSTEP)}, 0x4000", f"s_movk_i32 {s(S_VSTEP)}, 0x4000", f"s_mov_b32 {s(S_CNT)}, 8"]
    t0 = V_NEGM
    bg += v_read_addrs(V_VA, t0)
    bg += [f"v_xor_b32 {v(t0)}, v2, v3", f"v_lshlrev_b32 {v(t0)}, 4, {v(t0)}", f"v_lshl_add_u32 {v(t0)}, v2, 8, {v(t0)}"]
    bg += [f"v_xor_b32 {v(V_KA + ks)}, {ks * 64}, {v(t0)}" for ks in range(4)]
    bg += [f"v_lshlrev_b32 {v(t0)}, 8, v3", f"v_add_u32 {v(t0)}, {s(S_W)}, {v(t0)}", f"v_xor_b32 {v(t0 + 1)}, v2, v3"]
    for i in range(4):
        bg += [f"v_xor_b32 {v(t0 + 2)}, {4 * i}, {v(t0 + 1)}", f"v_lshl_add_u32 {v(V_OK + i)}, {v(t0 + 2)}, 4, {v(t0)}"]
    bg += [f"v_lshlrev_b32 {v(t0 + 1)}, 1, v3", f"v_xor_b32 {v(t0 + 1)}, {v(t0 + 1)}, v2"]
    for i in range(4):
        bg += [f"v_xor_b32 {v(t0 + 2)}, {8 * (i & 1)}, {v(t0 + 1)}",
               f"v_lshl_add_u32 {v(V_OV + i)}, {v(t0 + 2)}, 4, {v(t0)}"]
    bg += [f"v_lshrrev_b32 {v(t0)}, 1, v2", f"v_lshrrev_b32 {v(t0 + 1)}, 1, v3",
           f"v_cmp_eq_u32 vcc, {v(t0)}, {v(t0 + 1)}", f"v_mov_b32 {v(t0)}, 0x3f803f80", f"v_and_b32 {v(t0 + 1)}, 1, v2"]
    bg += [f"v_cndmask_b32 {v(V_ONE + i)}, 0, {v(t0)}, vcc" for i in range(4)]
    bg += [f"v_mul_u32_u24 {v(t0 + 1)}, 0xaaaa, {v(t0 + 1)}", f"v_add_u32 {v(V_IDX)}, 0x4444, {v(t0 + 1)}"]
    bg += [f"v_mov_b32 {v(V_L + i)}, 0" for i in range(8)]
    bg += [f"v_accvgpr_write_b32 {a(A_O + i)}, 0" for i in range(128)]
    bg2 = mlp1_ids() + ["s_lshl_b32 s48, s49, 17", f"s_add_u32 s48, s48, {WS_HF}", "s_and_b32 s49, s51, 131072"]
    bg2 += srd(SR_ACT, P_WS, "s48", "s49")
    bg2 += ["s_lshl_b32 s48, s50, 8", "s_and_b32 s49, s51, 256"] + srd(SR_W, P_B1, "s48", "s49")
    bg2 += ["v_lshlrev_b32 v62, 3, v3"]
    C(Wait(lg=[("QT", 0)]))
    D.stamp(1)
    C.label("L_q_code")
    tg = [g for g in range(24) if g % 3 != 2]
    for j in range(32):
        pre = {}
        reads = q_reads(j + 1) if j < 31 else k_reads(0, A_KF)
        for g, x in zip(tg, reads):
            add(pre, g, x)
        mine = []
        while st and st[0][2] <= j and len(mine) < OPT["qrate"]:
            mine.append(st.pop(0))
        for n, (setup, o, _, post) in enumerate(mine):
            g = 2 + (n * 30) // max(len(mine), 1)
            for k, x in enumerate(setup):
                pre.setdefault(g - len(setup) + k, []).insert(0, x)
            add(pre, g, o)
            if post:
                pre.setdefault(g + 1, []).insert(0, post)
        if j == 31:
            break
        if j & 1:
            add(pre, 31, Wait(lg=[("QT", j + 1)]))
        else:
            need = [("QW", j // 2 + 1), ("QX", j + 1), ("QX", j + 2)] if j < 30 else [("QX", 31), ("K", 0)]
            add(pre, 31, Wait(vm=need, lg=[("QT", j + 1)]), "s_barrier")
        if j == 26:
            assert not bg
            bg = bg2
        C.weave(q_mfmas(j), pre, {}, bg)
    assert not bg and not st
    D.stamp(2)
    add(pre, 31, Wait(lg=[("KR", 0)]))
    for g, x in enumerate(k_reads(1, A_VF)):
        add(pre, 32 + g, x)
    add(pre, 48, Wait(vm=[("K", 1), ("V", 0)], lg=[("KR", 1)]), "s_barrier")
    kd = k_dma(4)
    g = 50
    for j in range(8):
        if j & 1 == 0:
            add(pre, g - 1, f"s_mov_b32 {s(S_SA)}, {j * 2048}")
        add(pre, g, n_act(j, 0, SR_ACT))
        add(pre, g + 2, n_act(j, 1, SR_ACT))
        g += 4
    for b in range(8):
        add(pre, 82 + b, Op(f"buffer_load_dwordx2 {v(V_B1 + 2 * b, 2)}, v62, {s(SR_W, 4)}, 0 offen offset:{32 * b}", "b1"))
    add(pre, 90, kd[0])
    add(pre, 91, kd[1])
    add(pre, 94, kd[2])
    for g, x in enumerate(k_reads(2, A_KF)):
        add(pre, 65 + 2 * g, x)
    bg = []
    for q in range(4):
        bg.append(("at", 8 * q + 6))
        for b in range(8):
            src, F = V_ACC + (b * 4 + q) * 4, V_Q + (q * 4 + (b >> 1)) * 4 + 2 * (b & 1)
            bg.append(("at", 8 * q + b + 5))
            bg += [f"v_cvt_pk_bf16_f32 {v(F + i)}, {v(src + 2 * i)}, {v(src + 2 * i + 1)}" for i in range(2)]
    for u in range(2):
        for q in range(4):
            bg.append(("at", 32 + 32 * u + 8 * q + 14))
            bg += max_ops(u, q, u == 0)
    C.weave(q_mfmas(31, True) + qk_mfmas(0, A_KF, True, True) + qk_mfmas(1, A_VF, True, True), pre, {}, bg)
    C(v_reads(0, A_VF)[:4])
    C(nops(4))
    C.drain(bg)
    C(wave_red([V_NEGM + 4 * q for q in range(4)], [V_NEGM + 4 * q + 1 for q in range(4)], "v_max_f32", False))
    C(f"s_cmp_lg_u32 {s(S_FB)}, 0", "s_cbranch_scc1 L_fb_hook")
    C.label("L_fb_ret")
    for q in range(4):
        C(f"v_sub_f32 {v(V_NEGM + 4 * q)}, {f32(-OPT['bias'])}, {v(V_NEGM + 4 * q)}")
    for q in range(4):
        C(f"v_mov_b32 {v(V_NEGM + 4 * q + 1)}, {v(V_NEGM + 4 * q)}")
    for q in range(4):
        C(f"v_mov_b64 {v(V_NEGM + 4 * q + 2, 2)}, {v(V_NEGM + 4 * q, 2)}")
    for u in range(2):
        for k in range(16):
            C(pk("add", V_S[u] + 2 * k, V_S[u] + 2 * k, V_NEGM + 4 * ((k >> 1) & 3)))
    C([x if x else "s_nop 0" for x in sm_seq(0, 0, 4)])
    C(Wait(lg=[("KR", 2)]))
    D.stamp(3)
    C("s_branch L_attn_entry")
    sim = C.clone_dry()
    sim.record = {}
    for n in range(31):
        epoch(sim, n, False, n == 0)
    C(".p2align 6")
    C.label("L_attn_loop")
    C.fixed = sim.record
    for n in range(4, 8):
        epoch(C, n, True)
    C.fixed = None
    C.vm, C.lg = sim.vm, sim.lg
    C.label("L_hook0")
    C(mlp1_ids(), "s_lshl_b32 s48, s50, 8", f"s_sub_u32 s49, {2048 * 7168}, s48", "s_and_b32 s49, s49, s51")
    C(srd(SR_K, P_W1, "s48", "s49"), w_dma_offsets(V_OK, 7168, 250, 48))
    C(f"s_mov_b32 {s(S_SK)}, 0", f"s_mov_b32 {s(S_KSTEP)}, {2 * W1STEP}", "s_branch L_hook0_ret")
    C.label("L_hook1")
    C(f"s_mov_b64 {s(SR_V, 2)}, {s(SR_K, 2)}", f"s_mov_b32 {s(SR_V + 2)}, {s(SR_K + 2)}")
    C([f"v_mov_b32 {v(V_OV + i)}, {v(V_OK + i)}" for i in range(4)])
    C(f"s_mov_b32 {s(S_SV)}, {W1STEP}", f"s_mov_b32 {s(S_VSTEP)}, {2 * W1STEP}", "s_branch L_hook1_ret")
    C(".p2align 6")
    C.label("L_attn_tail")
    D.stamp(4)
    mf = pv_mfmas(61, A_VF, True)
    mf = mf[:4] + [l_mfma(61, 0)] + mf[4:12] + [l_mfma(61, 1)] + mf[12:]
    m2 = pv_mfmas(62, A_KF, True)
    mf += m2[:16] + [l_mfma(62, 0)] + m2[16:] + [l_mfma(62, 1)]
    m3 = pv_mfmas(63, A_VF, True)
    mf += m3[:16] + [l_mfma(63, 0)] + m3[16:24] + [l_mfma(63, 1)] + m3[24:]
    pre = {}
    for g, x in enumerate(v_reads(62, A_KF)):
        add(pre, (3 * g) // 2 + 2, x)
    add(pre, 33, Wait(lg=[("VR", 62)]))
    for g, x in enumerate(v_reads(63, A_VF)):
        add(pre, 36 + (3 * g) // 2, x)
    add(pre, 67, Wait(vm=[("W", 0), ("W", 1), ("X", 2), "b1"], lg=[("VR", 63)]), "s_barrier")
    g = 3
    for j in range(8, 15):
        if j & 1 == 0:
            pre.setdefault(g - 1, []).insert(0, f"s_mov_b32 {s(S_SA)}, {j * 2048}")
        add(pre, g, n_act(j, 0, SR_ACT))
        add(pre, g + 3, n_act(j, 1, SR_ACT))
        g += 6 if j != 11 else 16
    add(pre, 70, set_m0(n_m0(5)))
    add(pre, 71, f"s_mov_b32 {s(S_SW)}, {5 * W1STEP}")
    add(pre, 72, dma(V_OK, SR_K, S_SW, 0, ("W", 5)))
    add(pre, 76, dma(V_OK + 1, SR_K, S_SW, 1, ("W", 5)))
    for g, x in enumerate(n_reads(0)):
        add(pre, 84 + g, x)
    add(pre, 101, Wait(lg=[("T", 0, 0)]))
    bg = sm_seq(62, 2, 4) + sm_seq(63, 0, 4)
    bg += [f"v_subrev_u32 {v(V_WA0 + b)}, {VBASE}, {v(V_VA + b)}" for b in range(8)]
    bg.append(("at", 68))
    for b in range(8):
        d = V_ACC + (b * 2 + 1) * 4
        for i in range(2):
            bg += [f"v_lshlrev_b32 {v(d + 2 * i)}, 16, {v(V_B1 + 2 * b + i)}",
                   f"v_and_b32 {v(d + 2 * i + 1)}, 0xffff0000, {v(V_B1 + 2 * b + i)}"]
    n0 = len(C.A.lines)
    C.weave(mf, pre, {}, bg, cap=3)
    assert not bg, len(bg)
    check_order(C.A.lines[n0:])
    D.stamp(5)
    T = 192
    bg = [("at", 2)] + [f"v_add_f32 {v(V_L + 2 * q)}, {v(V_L + 2 * q)}, {v(V_L + 2 * q + 1)}" for q in range(4)]
    bg += wave_red([V_L + 2 * q for q in range(4)], [V_L + 2 * q + 1 for q in range(4)], dpp=False)
    bg += [f"s_mov_b32 s48, {f32(OPT['thresh'])}",
           f"v_add_f32 v63, {v(V_L)}, {v(V_L + 2)}", f"v_add_f32 v62, {v(V_L + 4)}, {v(V_L + 6)}",
           "v_add_f32 v62, v62, v63", "v_cmp_nge_f32 vcc, s48, v62", f"v_mov_b32 v63, {s(S_W)}",
           "v_lshrrev_b32 v63, 10, v63", f"v_add_u32 v63, {VOTE}, v63",
           ["s_cmp_lg_u64 vcc, 0", f"s_cselect_b32 s48, 1, {OPT['force_fb']}"], "v_mov_b32 v62, s48",
           Op("ds_write_b32 v63, v62", "vote")]
    bg += [f"v_rcp_f32 {v(V_L + 2 * q)}, {v(V_L + 2 * q)}" for q in range(4)]
    bg += [f"v_mov_b32 v63, {VOTE}"]
    n = 0
    for q in range(4):
        for p in range(4):
            t = T + (n & 1) * 12
            bg += [f"v_accvgpr_read_b32 {v(t + i)}, {a(A_O + ((2 * p + (i >> 2)) * 4 + q) * 4 + (i & 3))}"
                   for i in range(8)]
            bg += [f"v_mul_f32 {v(t + i)}, {v(t + i)}, {v(V_L + 2 * q)}" for i in range(8)]
            bg += [f"v_cvt_pk_bf16_f32 {v(t + 8 + i)}, {v(t + 2 * i)}, {v(t + 2 * i + 1)}" for i in range(4)]
            bg += [f"s_mov_b32 s49, {(q >> 1) * 262144 + (p >> 1) * 4096}",
                   Op(f"buffer_store_dwordx4 {v(t + 8, 4)}, {v(V_LANE16)}, {s(SR_ST, 4)}, s49 offen "
                      f"offset:{(p & 1) * 2048 + (q & 1) * 1024} sc1", "O")]
            n += 1
    bg += srd(SR_FLAG, P_WS, WS_FLAG, 16384)
    bg += [f"v_lshlrev_b32 {v(V_L0)}, 16, {v(V_LANE16)}", f"v_mov_b32 {v(V_ONEI)}, 1",
           f"s_lshl_b32 {s(S_FO)}, s47, 5", f"s_add_u32 {s(S_FO)}, {s(S_FO)}, s46", f"s_lshl_b32 {s(S_FO)}, {s(S_FO)}, 2"]
    fin = mlp1_ids() + ["s_mul_i32 s48, s49, 229376", "s_lshl_b32 s46, s50, 13", "s_add_u32 s48, s48, s46",
                        f"s_add_u32 s48, s48, {WS_UF}", "s_and_b32 s46, s51, 8192"] + srd(SR_UST, P_WS, "s48", "s46")
    fin += [f"s_lshl_b32 {s(S_FU)}, s49, 5", f"s_add_u32 {s(S_FU)}, {s(S_FU)}, s50", f"s_lshl_b32 {s(S_FU)}, {s(S_FU)}, 2",
            f"s_add_u32 {s(S_FU)}, {s(S_FU)}, {FL_U}", "s_andn2_b32 s48, 0x100000, s51",
            f"s_or_b32 {s(S_FU)}, {s(S_FU)}, s48"]
    fin += ["s_lshr_b32 s50, s2, 3", "s_bfe_u32 s46, s2, 0x10001", "s_lshl_b32 s46, s46, 3", "s_lshr_b32 s51, s50, 2",
            "s_add_u32 s46, s46, s51", "s_and_b32 s47, s2, 1", "s_lshl_b32 s47, s47, 2", "s_and_b32 s51, s50, 3",
            "s_add_u32 s47, s47, s51",
            ["s_bitcmp1_b32 s2, 2", f"s_cselect_b64 {s(S_ROLE, 2)}, -1, 0"],
            ["s_bitcmp1_b32 s2, 2", f"s_cselect_b64 {s(SR_W, 2)}, {s(P_W2, 2)}, {s(P_WO, 2)}"],
            ["s_bitcmp1_b32 s2, 2", "s_cselect_b32 s48, s46, s47"], "s_lshl_b32 s48, s48, 8",
            f"s_mov_b32 s50, {8 * MB}", ["s_bitcmp1_b32 s2, 2", f"s_cselect_b32 s49, {3584 * 4096}, s50"],
            "s_sub_u32 s49, s49, s48"] + srd(SR_W, SR_W, "s48", "s49")
    fin += ["s_movk_i32 s50, 0x800", ["s_bitcmp1_b32 s2, 2", "s_cselect_b32 s50, 4096, s50"],
            f"s_lshl_b32 {s(S_WSTEP)}, s50, 6"] + w_dma_offsets(V_OW, "s50", 62, 48)
    fin += ["s_lshl_b32 s50, s46, 2", f"s_lshr_b32 s48, {s(S_W)}, 12", "s_add_u32 s50, s50, s48",
            "s_lshl_b32 s48, s50, 18", f"s_add_u32 s48, s48, {WS_OF}", f"s_andn2_b32 s49, 262144, {s(S_ROLE)}"]
    fin += srd(SR_ACT2, P_WS, "s48", "s49")
    fin += [f"s_lshr_b32 {s(S_FO)}, s50, 1", f"s_lshl_b32 {s(S_FO)}, {s(S_FO)}, 7",
            f"v_bfe_u32 {v(V_FOFF)}, {v(V_LANE16)}, 2, 7",
            "s_lshl_b32 s50, s46, 3", "s_add_u32 s50, s50, s47", f"s_lshl_b32 {s(S_FS)}, s50, 6",
            f"s_add_u32 {s(S_FS)}, {s(S_FS)}, {FL_S}", "s_lshl_b32 s50, s50, 15", f"s_add_u32 s50, s50, {WS_S}"]
    fin += srd(SR_ST, P_WS, "s50", 32768)
    o_flagged = False
    for j in range(64):
        extra, more = [], []
        if j == 2:
            extra = [(14, Wait(lg=["vote"]))]
        if j == 3:
            extra = [(3, Op("ds_read_b128 v[248:251], v63", "voter"))]
        if j == 4:
            extra = [(2, Wait(lg=["voter"])), (3, "v_or3_b32 v248, v248, v249, v250"), (4, "v_or_b32 v248, v248, v251"),
                     (6, "v_readfirstlane_b32 s48, v248"),
                     (8, [f"s_andn2_b32 s48, s48, {s(S_FB)}", "s_cbranch_scc1 L_fallback"])]
        if not bg and not o_flagged and j & 3 == 2 and "O" not in C.vm[-20:]:
            more, o_flagged, fl_at = ["O"], True, j + 1
        if o_flagged and j == fl_at:
            extra = [(3, flag_store(S_FO))]
        if o_flagged and j == fl_at + 1:
            bg = fin
        if j == 40:
            assert o_flagged and not fin
            extra = [(3, Op(f"buffer_load_dword {v(V_FLG)}, {v(V_FOFF)}, {s(SR_FLAG, 4)}, {s(S_FO)} offen sc1", "fo"))]
        if j == 46:
            more = ["fo"]
        if j == 48:
            extra = [(2, f"v_cmp_eq_u32 vcc, 0, {v(V_FLG)}"),
                     (6, [f"s_andn2_b64 vcc, vcc, {s(S_ROLE, 2)}", "s_cbranch_scc1 L_spin_o", "L_spin_o_ret:"])]
        n_step(C, j, False, False, extra, bg, 3 if j < 20 else 2, more)
    print("O flag stored in step", fl_at, file=sys.stderr)
    D.stamp(6)
    C0 = -2.0 * math.sqrt(2.0 / math.pi) * LOG2E
    C(f"s_mov_b32 s48, {f32(C0 * 0.044715)}", "s_mov_b32 s49, s48", "s_mov_b32 s50, 1.0", "s_mov_b32 s51, 1.0",
      f"v_mov_b32 v62, {f32(C0)}", f"v_mov_b32 v63, {f32(C0)}", "s_movk_i32 s44, 0x1000")
    n = 0
    for p in range(4):
        for q in range(2):
            t = T + (n & 1) * 12
            src = [V_ACC + ((2 * p + (i >> 1)) * 2 + q) * 4 + (i & 1) * 2 for i in range(4)]
            C([pk("mul", t + 2 * i, src[i], src[i]) for i in range(4)])
            C([pk("fma", t + 2 * i, t + 2 * i, "s[48:49]", 62) for i in range(4)])
            C([pk("mul", t + 2 * i, t + 2 * i, src[i]) for i in range(4)])
            C([f"v_exp_f32 {v(t + i)}, {v(t + i)}" for i in range(8)])
            C([pk("add", t + 2 * i, t + 2 * i, "s[50:51]") for i in range(4)])
            C([f"v_rcp_f32 {v(t + i)}, {v(t + i)}" for i in range(8)])
            C([pk("mul", t + 2 * i, t + 2 * i, src[i]) for i in range(4)])
            C([f"v_cvt_pk_bf16_f32 {v(t + 8 + i)}, {v(t + 2 * i)}, {v(t + 2 * i + 1)}" for i in range(4)])
            C(Op(f"buffer_store_dwordx4 {v(t + 8, 4)}, {v(V_LANE16)}, {s(SR_UST, 4)}, {'s44' if p >> 1 else '0'} offen "
                 f"offset:{(p & 1) * 2048 + q * 1024} sc1", "U"))
            n += 1
    C("s_bitcmp1_b32 s2, 2", "s_cbranch_scc1 L_mlp2")
    vm0, lg0 = list(C.vm), list(C.lg)
    C([f"v_mov_b64 {v(V_ACC + 2 * i, 2)}, 0" for i in range(32)])
    C(Wait(vm=["U"]), flag_store(S_FU))
    D.stamp(7)
    n_loop(C, "oproj", 8, False)
    D.stamp(8)
    C(f"s_lshl_b32 s48, {s(S_W)}, 1", "s_add_u32 s49, s48, 4096", f"s_lshr_b32 s50, {s(S_W)}, 10",
      f"s_add_u32 {s(S_FS)}, {s(S_FS)}, s50")
    for p in range(4):
        for sb in range(2):
            t = T + 4 * (p * 2 + sb)
            C([f"v_cvt_pk_bf16_f32 {v(t + i)}, {v(V_ACC + ((2 * p + (i >> 1)) * 2 + sb) * 4 + (i & 1) * 2)}, "
               f"{v(V_ACC + ((2 * p + (i >> 1)) * 2 + sb) * 4 + (i & 1) * 2 + 1)}" for i in range(4)])
        for sw in ("v_permlane32_swap_b32", "v_permlane16_swap_b32"):
            C([f"{sw} {v(T + 8 * p + 4 * sb + i)}, {v(T + 8 * p + 4 * sb + 2 + i)}" for sb in range(2) for i in range(2)])
        for sb in range(2):
            C(f"buffer_store_dwordx4 {v(T + 8 * p + 4 * sb, 4)}, {v(V_LANE16)}, {s(SR_ST, 4)}, {s(48 + sb)} offen "
              f"offset:{1024 * p} sc1")
    C("s_waitcnt vmcnt(0)", flag_store(S_FS), "s_branch L_done")
    C.vm, C.lg = vm0, lg0
    C.label("L_mlp2")
    C("s_lshl_b32 s48, s46, 8")
    C(srd(SR_K, P_B2, "s48", 256))
    C("v_lshlrev_b32 v62, 1, v2")
    C([Op(f"buffer_load_ushort {v(224 + b)}, v62, {s(SR_K, 4)}, 0 offen offset:{32 * b}", "b2") for b in range(8)])
    C("s_lshl_b32 s50, s47, 2", f"s_lshr_b32 s48, {s(S_W)}, 12", "s_add_u32 s50, s50, s48",
      "s_mul_i32 s48, s50, 229376", f"s_add_u32 s48, s48, {WS_UF}")
    C(srd(SR_ACT2, P_WS, "s48", 229376))
    C("s_lshl_b32 s48, s46, 18", "s_lshl_b32 s49, s50, 6", "s_add_u32 s48, s48, s49", f"s_sub_u32 s49, {4 * MB}, s48")
    C(srd(SR_X, P_X, "s48", "s49"), srd(SR_V, P_OUT, "s48", "s49"))
    C(Wait(vm=["U"]), flag_store(S_FU))
    C(f"s_lshl_b32 {s(S_FU)}, s50, 7", f"s_add_u32 {s(S_FU)}, {s(S_FU)}, {FL_U}",
      f"v_min_u32 {v(V_FOFF)}, 108, {v(V_FOFF)}", Wait(vm=["b2"]))
    for b in range(8):
        C([f"v_lshlrev_b32 {v(V_ACC + b * 8 + i)}, 16, {v(224 + b)}" for i in range(2)])
        C([f"v_mov_b64 {v(V_ACC + b * 8 + 2 * i, 2)}, {v(V_ACC + b * 8, 2)}" for i in range(1, 4)])
    poll(C, "u", S_FU)
    for j in range(64, 79):
        if j & 1 == 0:
            C(f"s_mov_b32 {s(S_SA)}, {(j - 64) * 2048}")
        C(n_act(j, 0, SR_ACT2, " sc1"), n_act(j, 1, SR_ACT2, " sc1"))
    C(Wait(vm=[("X", 66)]))
    D.stamp(7)
    n_loop(C, "mlp2", 7, True)
    D.stamp(8)
    XR, SRG = 192, 224
    C(f"v_and_b32 {v(V_FOFF)}, 12, {v(V_FOFF)}", "v_lshlrev_b32 v62, 11, v2", "v_lshl_add_u32 v62, v3, 4, v62")
    C(Op(f"buffer_load_dword {v(V_FLG)}, {v(V_FOFF)}, {s(SR_FLAG, 4)}, {s(S_FS)} offen sc1", "fs"))
    for b in range(8):
        C(f"s_mov_b32 s48, {b * 32768}",
          Op(f"buffer_load_dwordx4 {v(XR + 4 * b, 4)}, v62, {s(SR_X, 4)}, s48 offen", ("x", b)))
    C(f"s_mov_b32 s48, {f32(-LOG2E)}", "s_mov_b32 s49, s48", "s_mov_b32 s50, 1.0", "s_mov_b32 s51, 1.0")

    def silu(b):
        t, src = 8, V_ACC + 8 * b
        C([pk("mul", t + 2 * i, src + 2 * i, "s[48:49]") for i in range(4)])
        C([f"v_exp_f32 {v(t + i)}, {v(t + i)}" for i in range(8)])
        C([pk("add", t + 2 * i, t + 2 * i, "s[50:51]") for i in range(4)])
        C([f"v_rcp_f32 {v(t + i)}, {v(t + i)}" for i in range(8)])
        C([pk("mul", src + 2 * i, t + 2 * i, src + 2 * i) for i in range(4)])
    for b in range(3):
        silu(b)
    C(Wait(vm=["fs"]), f"v_cmp_eq_u32 vcc, 0, {v(V_FLG)}", f"s_lshr_b32 s47, {s(S_W)}, 2", "s_nop 0",
      "s_cmp_lg_u64 vcc, 0", "s_cbranch_scc1 L_s_late")

    def s_loads():
        for b in range(8):
            C(Op(f"buffer_load_dwordx4 {v(SRG + 4 * b, 4)}, {v(V_LANE16)}, {s(SR_ST, 4)}, s47 offen sc1", ("s", b)),
              "s_add_u32 s47, s47, 4096")
    s_loads()
    for b in range(3, 8):
        silu(b)
    C.label("L_combine")
    for b in range(8):
        t, src = 8 + (b & 1) * 20, V_ACC + 8 * b
        C(Wait(vm=[("s", b)]), f"s_mov_b32 s48, {b * 32768}")
        for i in range(4):
            C(f"v_lshlrev_b32 {v(t + 2 * i)}, 16, {v(SRG + 4 * b + i)}",
              f"v_and_b32 {v(t + 2 * i + 1)}, 0xffff0000, {v(SRG + 4 * b + i)}",
              f"v_lshlrev_b32 {v(t + 8 + 2 * i)}, 16, {v(XR + 4 * b + i)}",
              f"v_and_b32 {v(t + 9 + 2 * i)}, 0xffff0000, {v(XR + 4 * b + i)}")
        C([pk("fma", t + 2 * i, t + 2 * i, src + 2 * i, t + 8 + 2 * i) for i in range(4)])
        C([f"v_cvt_pk_bf16_f32 {v(t + 16 + i)}, {v(t + 2 * i)}, {v(t + 2 * i + 1)}" for i in range(4)])
        C(f"buffer_store_dwordx4 {v(t + 16, 4)}, v62, {s(SR_V, 4)}, s48 offen")
    C.label("L_done")
    C("s_waitcnt vmcnt(0) lgkmcnt(0)")
    D.stamp(9)
    D.flush(10)
    C.label("L_end")
    C("s_endpgm")
    C.label("L_s_late")
    for b in range(3, 8):
        silu(b)
    poll(C, "s", S_FS)
    s_loads()
    C("s_branch L_combine")
    C.label("L_spin_o")
    C("s_mov_b32 s48, s46")
    poll(C, "o", S_FO)
    C("s_mov_b32 s46, s48", "s_branch L_spin_o_ret")
    C.label("L_fallback")
    C(f"s_mov_b32 {s(S_FB)}, 1", "s_waitcnt vmcnt(0) lgkmcnt(0)", "s_barrier", "s_nop 7", "s_branch L_restart")
    C.label("L_fb_hook")
    C(f"v_lshl_add_u32 v62, v0, 4, 0", f"v_add_u32 v62, {MXB}, v62", f"s_cmp_eq_u32 {s(S_FB)}, 1",
      "s_cbranch_scc1 L_fb_scan")
    C("ds_read_b128 v[248:251], v62", "s_waitcnt lgkmcnt(0)")
    C([f"v_mov_b32 {v(V_NEGM + 4 * q)}, {v(248 + q)}" for q in range(4)])
    C("s_branch L_fb_ret")
    C.label("L_fb_scan")
    C(f"s_mov_b32 {s(S_SK)}, 0", f"s_mov_b32 {s(S_CNT)}, 32")
    C.label("L_fb_loop")
    C("s_waitcnt vmcnt(0) lgkmcnt(0)", "s_barrier")
    ops = k_dma(0)
    C(ops[0], "s_nop 0", ops[1:], "s_waitcnt vmcnt(0)", "s_barrier")
    C(k_reads(0, A_KF), "s_waitcnt lgkmcnt(0)", k_reads(1, A_VF), "s_waitcnt lgkmcnt(0)")
    C(qk_mfmas(0, A_KF, True), qk_mfmas(1, A_VF, True), "s_nop 7")
    for u in range(2):
        for q in range(4):
            C(max_ops(u, q, False))
    C(f"s_sub_u32 {s(S_CNT)}, {s(S_CNT)}, 1", f"s_cmp_lg_u32 {s(S_CNT)}, 0", "s_cbranch_scc1 L_fb_loop")
    C(wave_red([V_NEGM + 4 * q for q in range(4)], [V_NEGM + 4 * q + 1 for q in range(4)], "v_max_f32", False))
    C([f"v_mov_b32 {v(248 + q)}, {v(V_NEGM + 4 * q)}" for q in range(4)])
    C("ds_write_b128 v62, v[248:251]", f"s_mov_b32 {s(S_FB)}, 3", "s_waitcnt lgkmcnt(0)", "s_barrier",
      "s_branch L_restart")
    C.label("L_code_end")


def check_order(lines):
    from asmlib import I
    ins = [I(x) for x in lines if not x.endswith(":") and not x.startswith(".")]
    mf = [i for i, x in enumerate(ins) if x.is_mfma]
    for i, x in enumerate(ins):
        if x.op.startswith("v_cvt_pk"):
            r = next(iter(x.w))
            g = sum(1 for m in mf if m < i) - 1
            q = ((r[1] - 192) & 15) >> 2
            if r[1] < 208:
                assert g < 34 + 8 * q + (q >= 2), ("P62 late", x.text, g)
            else:
                assert g < 68 + 8 * q + (q >= 2), ("P63 late", x.text, g)
                last61 = max(k for k, m in enumerate(mf[:34]) if r in ins[m].r)
                assert g >= last61, ("P63 early", x.text, g, last61)
        if x.op == "v_subrev_u32":
            assert sum(1 for m in mf if m < i) - 1 < 84


def kd(name, nfv, acc):
    return f""".p2align 6
.amdhsa_kernel {name}
  .amdhsa_next_free_vgpr {nfv}
  .amdhsa_next_free_sgpr 102
  .amdhsa_accum_offset {acc}
  .amdhsa_group_segment_fixed_size 0
  .amdhsa_kernarg_size 104
  .amdhsa_user_sgpr_count 2
  .amdhsa_user_sgpr_kernarg_segment_ptr 1
  .amdhsa_system_sgpr_workgroup_id_x 1
.end_amdhsa_kernel
"""


def main():
    head = [l for l in open(f"cdna_kernels/{NAME}.s.ref").read().split("\n") if l.startswith(";")]
    head = [l for l in head if "@launch" not in l and "Override launch" not in l and "grid=ceil" not in l]
    out = "\n".join(head) + "\n"
    out += f"; @launch kernel=ln_kernel grid=(256,1,1) block=(512,1,1) lds={LN_LDS}\n"
    out += f"; @launch kernel=main_kernel grid=(256,1,1) block=(256,1,1) lds={MAIN_LDS}\n"
    out += '.amdgcn_target "amdgcn-amd-amdhsa--gfx950"\n.text\n'
    bad = 0
    for name, g in (("ln_kernel", gen_ln), ("main_kernel", gen_main)):
        C = Ctx(Asm())
        g(C)
        pr = check_hazards(C.A.lines)
        for p in pr[:40]:
            print("HAZARD", name, p, file=sys.stderr)
        bad += len(pr)
        out += f".globl {name}\n.p2align 8\n.type {name},@function\n" + C.A.text()
    out += '.section .rodata,"a"\n' + kd("ln_kernel", 64, 64) + kd("main_kernel", 512, 256)
    open(sys.argv[1], "w").write(out)
    print("hazards:", bad, file=sys.stderr)


main()
```

```python
import math
import sys
from asmlib import Asm, Ctx, Op, Wait, v, a, s, R, f32, check_hazards

NAME = "recurrent_scan__mha_block_cached__mixer_token_mlp__prompt"
OPT = dict(diag=0, bias=96.0, thresh=2.0 ** 60, force_fb=0, pf=1, qpro=16, earlyw=1, tpos=1, qrate=8, spin=0x10000, ocap=3)
for arg in sys.argv[2:]:
    k_, v_ = arg.split("=")
    OPT[k_] = float(v_) if "." in v_ else int(v_)

MB = 1 << 20
WS_XF, WS_HF, WS_OF, WS_UF, WS_S, WS_FLAG, WS_DIAG = 0, 4 * MB, 8 * MB, 24 * MB, 32 * MB, 40 * MB, 64 * MB
FL_O, FL_U, FL_S, FL_X, FL_H, FL_SIZE = 0, 4096, 8192, 16384, 20480, 24576
KA_X, KA_K, KA_V, KA_WQ, KA_WO, KA_W1, KA_B1, KA_W2, KA_B2, KA_OUT, KA_DBG, KA_WS = (
    0, 8, 16, 24, 32, 48, 56, 64, 72, 80, 88, 96)
LOG2E = 1.4426950408889634
QSCALE = LOG2E / math.sqrt(128.0)
MF = "v_mfma_f32_16x16x32_bf16"
SPIN = OPT["spin"]


def mfma(d, x, y, c):
    return f"{MF} {d}, {x}, {y}, {c}"


def srd(sr, ptr, off, size):
    return [[f"s_add_u32 {s(sr)}, {s(ptr)}, {off}", f"s_addc_u32 {s(sr + 1)}, {s(ptr + 1)}, 0"],
            f"s_mov_b32 {s(sr + 2)}, {size}", f"s_mov_b32 {s(sr + 3)}, 0x20000"]


def code_srd(sr, start, end, tag):
    return [[f"s_getpc_b64 {s(sr, 2)}", f"L_pc_{tag}:", f"s_add_u32 {s(sr)}, {s(sr)}, {start}-L_pc_{tag}",
             f"s_addc_u32 {s(sr + 1)}, {s(sr + 1)}, 0"],
            f"s_mov_b32 {s(sr + 2)}, {end}-{start}", f"s_mov_b32 {s(sr + 3)}, 0x20000"]


def nops(n):
    return [f"s_nop {n - 1}"] if n > 0 else []


def wave_red(regs, tmp, op="v_add_f32", dpp=True, swaps=("v_permlane16_swap_b32", "v_permlane32_swap_b32")):
    out = []
    if dpp:
        for mod in ("quad_perm:[1,0,3,2]", "quad_perm:[2,3,0,1]", "row_half_mirror", "row_mirror"):
            out += nops(3 - len(regs))
            out += [f"{op}_dpp {v(r)}, {v(r)}, {v(r)} {mod} row_mask:0xf bank_mask:0xf" for r in regs]
    for sw in swaps:
        out += [f"v_mov_b32 {v(t)}, {v(r)}" for r, t in zip(regs, tmp)]
        out += nops(3 - len(regs))
        out += [f"{sw} {v(r)}, {v(t)}" for r, t in zip(regs, tmp)]
        out += [f"{op} {v(r)}, {v(r)}, {v(t)}" for r, t in zip(regs, tmp)]
    return out


class Diag:
    def __init__(self, C, slot):
        self.C, self.slot = C, slot

    def stamp(self, n, mode=1):
        if OPT["diag"] == mode or (OPT["diag"] and self.slot == 2):
            self.C("s_memtime s[98:99]", "s_waitcnt lgkmcnt(0)", f"s_mov_b32 {s(78 + 2 * n)}, s98",
                   "s_memrealtime s[98:99]", "s_waitcnt lgkmcnt(0)", f"s_mov_b32 {s(79 + 2 * n)}, s98")

    def flush(self, nmax):
        if not OPT["diag"]:
            return
        C = self.C
        C(f"s_load_dwordx2 s[98:99], s[0:1], {KA_WS}", "s_waitcnt lgkmcnt(0)", "s_lshl_b32 s100, s2, 7",
          f"s_add_u32 s100, s100, {WS_DIAG + self.slot * 65536}")
        C(srd(4, 98, "s100", 128))
        C("v_mov_b32 v1, 0")
        for i in range(2 * nmax):
            C(f"v_mov_b32 v2, {s(78 + i)}", f"buffer_store_dword v2, v1, s[4:7], 0 offen offset:{4 * i}")
        C("s_waitcnt vmcnt(0)")


V_LANE16 = 1
V_KA, V_VA, V_QA, V_ONE, V_OK, V_OV, V_OW = 4, 8, 16, 20, 24, 28, 32
V_L, V_NEGM, V_WA0, V_IDX, V_PF = 36, 44, 44, 60, 61
V_Q, V_S, V_P, V_ACC = 64, (128, 160), (192, 208), 128
V_B1, V_T, V_L0, V_FLG, V_FOFF, V_ONEI = 232, 240, 52, 53, 54, 55
A_O, A_KF, A_VF = 0, 128, 160
A_WF = (128, 160)
S_W = 3
SR_ACT, SR_W, SR_K, SR_V, SR_ST = 4, 8, 12, 16, 20
P_K, P_V, P_WQ, P_WS, P_W1, P_B1, P_WO, P_W2, P_X, P_B2, P_OUT = 24, 26, 28, 30, 32, 34, 36, 38, 52, 54, 56
S_SA, S_SW, S_SK, S_SV, S_CNT, S_FB = 40, 41, 42, 43, 44, 45
S_KSTEP, S_VSTEP, S_SPIN = 58, 59, 101
SR_PF, S_PF, S_PFC = 60, 76, 77
SR_ACT2, SR_UST, SR_FLAG, SR_X = 60, 64, 68, 72
S_WSTEP, S_ROLE, S_FO, S_FU, S_FS = 58, 42, 76, 77, 59
VBASE, VOTE, MXB = 65536, 131072, 131072 + 64
MAIN_LDS = 131072 + 64 + 4096
WQSTEP, W1STEP = 64 * 8192, 64 * 7168


def ring(idx):
    idx %= 32
    return ("a", 192 + 4 * idx) if idx < 16 else ("v", 64 + 4 * (idx - 16))


def add(d, k, *x):
    d.setdefault(k, []).extend(x)


def v_read_addrs(dst, t0):
    out = [f"v_lshrrev_b32 {v(t0)}, 2, v2", f"v_and_b32 {v(t0 + 1)}, 1, v3",
           f"v_lshl_add_u32 {v(t0 + 1)}, {v(t0 + 1)}, 2, {v(t0)}", f"v_lshl_add_u32 {v(t0)}, v3, 2, {v(t0)}",
           f"v_lshlrev_b32 {v(t0)}, 8, {v(t0)}", f"v_lshl_add_u32 {v(t0)}, {v(t0 + 1)}, 5, {v(t0)}",
           f"v_and_b32 {v(t0 + 1)}, 3, v2", f"v_lshl_add_u32 {v(t0)}, {v(t0 + 1)}, 3, {v(t0)}",
           f"v_add_u32 {v(t0)}, {VBASE}, {v(t0)}"]
    return out + [f"v_xor_b32 {v(dst + b)}, {b * 32}, {v(t0)}" for b in range(8)]


def q_read_addrs(dst, t0):
    out = [f"v_lshrrev_b32 {v(t0)}, 2, v2", f"v_and_b32 {v(t0 + 1)}, 1, v3",
           f"v_lshl_add_u32 {v(t0 + 1)}, {v(t0 + 1)}, 2, {v(t0)}", f"v_lshl_add_u32 {v(t0)}, v3, 2, {v(t0)}",
           f"v_lshlrev_b32 {v(t0)}, 8, {v(t0)}", f"v_lshlrev_b32 {v(t0 + 1)}, 1, {v(t0 + 1)}",
           f"v_and_b32 {v(t0 + 2)}, 3, v2", f"v_xor_b32 {v(t0 + 1)}, {v(t0 + 1)}, {v(t0 + 2)}",
           f"v_lshl_add_u32 {v(t0)}, {v(t0 + 1)}, 4, {v(t0)}", f"v_add_u32 {v(t0)}, {VBASE}, {v(t0)}"]
    return out + [f"v_xor_b32 {v(dst + x)}, {x * 64}, {v(t0)}" for x in range(4)]


def w_dma_offsets(dst, ldw, t0, st):
    out = [f"s_lshr_b32 {s(st)}, {s(S_W)}, 8", f"v_add_u32 {v(t0)}, {s(st)}, v3",
           f"v_mul_u32_u24 {v(t0)}, {ldw}, {v(t0)}", f"v_lshlrev_b32 {v(t0 + 1)}, 1, v3",
           f"v_xor_b32 {v(t0 + 1)}, {v(t0 + 1)}, v2", f"v_lshl_add_u32 {v(dst)}, {v(t0 + 1)}, 4, {v(t0)}",
           f"v_xor_b32 {v(t0 + 1)}, 8, {v(t0 + 1)}", f"v_lshl_add_u32 {v(dst + 1)}, {v(t0 + 1)}, 4, {v(t0)}"]
    if isinstance(ldw, int):
        one, two = 4 * ldw - 1024, 8 * ldw - 2048
    else:
        out += [f"s_lshl_b32 {s(st)}, {ldw}, 2", f"s_sub_u32 {s(st)}, {s(st)}, 1024",
                f"s_lshl_b32 {s(st + 1)}, {s(st)}, 1"]
        one, two = s(st), s(st + 1)
    out += [f"v_add_u32 {v(dst + 1)}, {one}, {v(dst + 1)}", f"v_add_u32 {v(dst + 2)}, {two}, {v(dst)}",
            f"v_add_u32 {v(dst + 3)}, {two}, {v(dst + 1)}"]
    return out


def dma(voff, sr, soff, i, tag):
    return Op(f"buffer_load_dwordx4 {v(voff)}, {s(sr, 4)}, {s(soff)} offen offset:{i * 1024} lds", tag)


def set_m0(off):
    return f"s_add_u32 m0, {s(S_W)}, {off}"


def tr_read(dst, addr, off, tag):
    return Op(f"ds_read_b64_tr_b16 {dst}, {v(addr)} offset:{off}", tag)


def q_act(j, q):
    return Op(f"buffer_load_dwordx4 {R(ring(4 * j + q + 16), 4)}, {v(V_LANE16)}, {s(SR_ACT, 4)}, {s(S_SA)} offen "
              f"offset:{q * 1024} sc1", ("QX", j))


def q_reads(j):
    base = ((j >> 1) & 3) * 16384 + (j & 1) * 8192
    return [tr_read(a(A_WF[j & 1] + 2 * m, 2), V_QA + (m >> 2), base + (m & 1) * 4096 + ((m >> 1) & 1) * 8, ("QT", j))
            for m in range(16)]


def q_mfmas(j, q_outer=False):
    out = []
    for m in range(32):
        b, q = (m & 7, m >> 3) if q_outer else (m >> 2, m & 3)
        acc = v(V_ACC + (b * 4 + q) * 4, 4)
        out.append(mfma(acc, a(A_WF[j & 1] + 4 * b, 4), R(ring(4 * j + q + 16), 4), acc if j else "0"))
    return out


def k_reads(u, dst):
    base = ((u >> 1) & 3) * 16384 + (u & 1) * 8192
    return [Op(f"ds_read_b128 {a(dst + (kb * 4 + ks) * 4, 4)}, {v(V_KA + ks)} offset:{base + kb * 4096}", ("KR", u))
            for kb in range(2) for ks in range(4)]


def v_reads(u, dst):
    base = ((u >> 1) & 3) * 16384 + (u & 1) * 8192
    return [tr_read(a(dst + 2 * m, 2), V_VA + (m >> 1), base + (m & 1) * 4096, ("VR", u)) for m in range(16)]


def k_dma(t):
    tag = ("K", t) if t < 32 else ("W", 2 * (t - 32))
    return ([set_m0((t & 3) * 16384)] + [dma(V_OK + i, SR_K, S_SK, i, tag) for i in range(4)]
            + [f"s_add_u32 {s(S_SK)}, {s(S_SK)}, {s(S_KSTEP)}"])


def v_dma(t):
    tag = ("V", t) if t < 32 else ("W", 2 * (t - 32) + 1)
    return ([set_m0(VBASE + (t & 3) * 16384)] + [dma(V_OV + i, SR_V, S_SV, i, tag) for i in range(4)]
            + [f"s_add_u32 {s(S_SV)}, {s(S_SV)}, {s(S_VSTEP)}"])


def sm_ops(u):
    S, P = V_S[u & 1], V_P[u & 1]
    out = []
    for q in range(4):
        for pr in range(4):
            r0 = S + ((pr >> 1) * 4 + q) * 4 + (pr & 1) * 2
            out += [[f"v_exp_f32 {v(r0)}, {v(r0)}"], [], [f"v_exp_f32 {v(r0 + 1)}, {v(r0 + 1)}"],
                    [f"v_cvt_pk_bf16_f32 {v(P + q * 4 + pr)}, {v(r0)}, {v(r0 + 1)}"]]
    return out


def sm_seq(u, q0, q1):
    ops = sm_ops(u)[16 * q0:16 * q1]
    out, pend = [], None
    for g in range(0, len(ops), 4):
        out += ops[g] + ops[g + 2]
        if pend:
            out += pend
        pend = ops[g + 3]
    return out + [None] + pend


def qk_mfmas(u, kf, zero_c=False, q_outer=False):
    out = []
    order = [(kb, q) for q in range(4) for kb in range(2)] if q_outer else [(kb, q) for kb in range(2) for q in range(4)]
    for kb, q in order:
        d = v(V_S[u & 1] + (kb * 4 + q) * 4, 4)
        for ks in range(4):
            c = d if ks else ("0" if zero_c else v(V_NEGM + 4 * q, 4))
            out.append(mfma(d, a(kf + (kb * 4 + ks) * 4, 4), v(V_Q + (q * 4 + ks) * 4, 4), c))
    return out


def pv_mfmas(u, vf, q_outer=False):
    out = []
    for m in range(32):
        db, q = (m & 7, m >> 3) if q_outer else (m >> 2, m & 3)
        d = a(A_O + (db * 4 + q) * 4, 4)
        out.append(mfma(d, a(vf + 4 * db, 4), v(V_P[u & 1] + 4 * q, 4), d))
    return out


def l_mfma(u, h):
    return f"v_smfmac_f32_16x16x64_bf16 {v(V_L + 4 * h, 4)}, {v(V_ONE, 4)}, {v(V_P[u & 1] + 8 * h, 8)}, {v(V_IDX)}"


def tile_dma(i):
    return k_dma((i + 1) // 2 + 4) if i & 1 else v_dma(i // 2 + 3)


def phase_a(C, i, extra):
    pre = {}
    for g, x in enumerate(v_reads(i, A_VF)[4:]):
        add(pre, 2 * g + 1, x)
    ops = tile_dma(i - 1)
    add(pre, 25, ops[3])
    add(pre, 29, ops[4])
    add(pre, 30, ops[5])
    for g, x in extra:
        add(pre, g, x)
    C.weave(qk_mfmas(i + 2, A_KF), pre, dict(enumerate(sm_ops(i + 1)[:32])))


def phase_b(C, i, extra):
    pre = {}
    for g, x in enumerate(k_reads(i + 3, A_KF)):
        add(pre, 2 * g + 1, x)
    ops = tile_dma(i)
    vr = v_reads(i + 1, A_VF)
    add(pre, 16, ops[0])
    for g, x in zip((17, 19, 21, 25, 27, 29), (ops[1], vr[0], vr[1], ops[2], vr[2], vr[3])):
        add(pre, g, x)
    add(pre, 31, Wait(lg=[("KR", i + 3)], key=("b", i & 7)))
    for g, x in extra:
        add(pre, g, x)
    valu = dict(enumerate(sm_ops(i + 1)[32:]))
    valu[7] = valu[7] + [l_mfma(i, 0)]
    valu[23] = valu[23] + [l_mfma(i, 1)]
    C.weave(pv_mfmas(i, A_VF), pre, valu)


def epoch(C, n, real, skip_first=False):
    p = n & 3
    if not skip_first:
        extra = []
        if OPT["pf"]:
            so = S_PFC if p == 0 else S_PF
            extra.append((23, f"buffer_load_dword v255, {v(V_PF)}, {s(SR_PF + 4 * p, 4)}, {s(so)} offen"))
            if p == 3:
                extra.append((24, f"s_add_u32 {s(S_PF)}, {s(S_PF)}, 8192"))
        if p < 2 and real:
            extra += [(2, f"s_cmp_eq_u32 {s(S_CNT)}, 1"), (4, f"s_cbranch_scc1 L_hook{p}"), (4, f"L_hook{p}_ret:")]
        phase_b(C, 2 * n - 1, extra)
    if p == 0 and real:
        C.label("L_attn_entry")
    phase_a(C, 2 * n, [(31, Wait(lg=[("VR", 2 * n)], key=("a", 2 * p)))])
    phase_b(C, 2 * n, [])
    need = [("K", n + 2)] * (n + 2 < 32) + [("V", n + 1)]
    extra = [(31, Wait(vm=need, lg=["*"], key=("a", 2 * p + 1))), (31, "s_barrier")]
    if p == 2:
        extra = [(26, f"s_sub_u32 {s(S_CNT)}, {s(S_CNT)}, 1")] + extra + [(31, f"s_cmp_eq_u32 {s(S_CNT)}, 0")]
    phase_a(C, 2 * n + 1, extra)
    if real and p == 2:
        C("s_cbranch_scc1 L_attn_tail")
    if real and p == 3:
        C("s_branch L_attn_loop")


def max_ops(u, q, first):
    r = [V_S[u & 1] + (kb * 4 + q) * 4 + j for kb in range(2) for j in range(4)]
    m = v(V_NEGM + 4 * q)
    out = [f"v_max_f32 {m}, {v(r[0])}, {v(r[1])}" if first else f"v_max3_f32 {m}, {v(r[0])}, {v(r[1])}, {m}"]
    return out + [f"v_max3_f32 {m}, {v(r[k])}, {v(r[k + 1])}, {m}" for k in (2, 4, 6)]


def n_act(j, q, sr, sc=" sc1"):
    return Op(f"buffer_load_dwordx4 {R(ring(2 * j + q), 4)}, {v(V_LANE16)}, {s(sr, 4)}, {s(S_SA)} offen "
              f"offset:{(j & 1) * 2048 + q * 1024}{sc}", ("X", j))


def n_reads(j):
    sig = j >> 1
    wa = V_VA if sig & 1 else V_WA0
    base = ((sig >> 1) & 3) * 16384 + (j & 1) * 8192
    return [tr_read(a(A_WF[j & 1] + 2 * m, 2), wa + (m >> 1), base + (m & 1) * 4096, ("T", j, m >> 3))
            for m in range(16)]


def n_m0(sig):
    return (sig & 1) * VBASE + ((sig >> 1) & 3) * 16384


def n_step(C, j, act_is_a, loop, extra=(), bg=None, cap=2, more_vm=()):
    mf, pre = [], {}
    for m in range(16):
        b, q = m >> 1, m & 1
        wf, xf = a(A_WF[j & 1] + 4 * b, 4), R(ring(2 * j + q), 4)
        acc = v(V_ACC + (b * 2 + q) * 4, 4)
        c = acc if j else v(V_ACC + (b * 2 + 1) * 4, 4)
        mf.append(mfma(acc, xf, wf, c) if act_is_a else mfma(acc, wf, xf, c))
    sig, jx = (j + 11) // 2, j + 15
    if j & 1:
        if loop:
            add(pre, 0, f"s_add_u32 {s(S_SA)}, {s(S_SA)}, 4096")
        else:
            add(pre, 0, f"s_mov_b32 {s(S_SA)}, {(jx % 64) * 2048}")
        add(pre, 2, set_m0(n_m0(sig)))
        add(pre, 3, f"s_mov_b32 {s(S_SW)}, {(sig % 32) * W1STEP}" if sig <= 32
            else f"s_add_u32 {s(S_SW)}, {s(S_SW)}, {s(S_WSTEP)}")
    for m, x in enumerate(n_reads(j + 1)):
        add(pre, m, x)
    sra, sc = (SR_ACT, " sc1") if jx < 64 else (SR_ACT2, " sc1")
    ow, srw = (V_OK, SR_K) if sig < 32 else (V_OW, SR_W)
    i0 = 0 if j & 1 else 2
    add(pre, 1, n_act(jx, 0, sra, sc))
    add(pre, 5, dma(ow + i0, srw, S_SW, i0, ("W", sig)))
    add(pre, 9, n_act(jx, 1, sra, sc))
    add(pre, 13, dma(ow + i0 + 1, srw, S_SW, i0 + 1, ("W", sig)))
    kk = (lambda x: (x, j & 15)) if loop else (lambda x: None)
    add(pre, 7, Wait(lg=[("T", j, 1)], key=kk("h")))
    if j & 3 == 2:
        need = [("W", (j >> 1) + 1), ("W", (j >> 1) + 2)] + [("X", j + k) for k in range(1, 5)] + list(more_vm)
        add(pre, 15, Wait(vm=need, lg=[("T", j + 1, 0)], key=kk("e")), "s_barrier")
    else:
        add(pre, 15, Wait(lg=[("T", j + 1, 0)], key=kk("e")))
    for g, x in extra:
        add(pre, g, x)
    C.weave(mf, pre, {}, bg, cap)


def n_loop(C, name, trips, act_is_a):
    sim = C.clone_dry()
    sim.record = {}
    for j in range(64, 64 + 16 * trips):
        n_step(sim, j, act_is_a, True)
    C(f"s_mov_b32 {s(S_CNT)}, {trips}", ".p2align 6")
    C.label(f"L_{name}_loop")
    C.fixed = sim.record
    for j in range(80, 96):
        extra = []
        if j == 95:
            extra = [(10, f"s_sub_u32 {s(S_CNT)}, {s(S_CNT)}, 1"), (11, f"s_cmp_lg_u32 {s(S_CNT)}, 0"),
                     (15, f"s_cbranch_scc1 L_{name}_loop")]
        n_step(C, j, act_is_a, True, extra)
    C.fixed = None
    C.vm, C.lg = sim.vm, sim.lg


def poll(C, name, soff, sr=None, wide=False):
    sr = SR_FLAG if sr is None else sr
    so = s(soff) if soff is not None else "0"
    C(f"s_mov_b32 {s(S_SPIN)}, {SPIN}")
    C.label(f"L_poll_{name}")
    if wide:
        C(f"buffer_load_dwordx4 v[56:59], {v(V_LANE16)}, {s(sr, 4)}, {so} offen sc1")
    else:
        C(f"buffer_load_dword {v(V_FLG)}, {v(V_FOFF)}, {s(sr, 4)}, {so} offen sc1")
    C(f"s_sub_u32 {s(S_SPIN)}, {s(S_SPIN)}, 1", f"s_cbranch_scc1 L_poll_{name}_out", "s_waitcnt vmcnt(0)")
    if wide:
        C("v_min3_u32 v56, v56, v57, v58", f"v_min_u32 {v(V_FLG)}, v56, v59")
    C(f"v_cmp_eq_u32 vcc, 0, {v(V_FLG)}", "s_nop 1", "s_cmp_lg_u64 vcc, 0", f"s_cbranch_scc1 L_poll_{name}")
    C.label(f"L_poll_{name}_out")


def flag_store(soff):
    return f"buffer_store_dword {v(V_ONEI)}, {v(V_L0)}, {s(SR_FLAG, 4)}, {s(soff)} offen sc1"


def pk(op, d, *src):
    return f"v_pk_{op}_f32 {v(d, 2)}, " + ", ".join(x if isinstance(x, str) else v(x, 2) for x in src)


def mlp1_ids():
    return ["s_lshr_b32 s48, s2, 3", ["s_cmp_lt_u32 s48, 28", "s_cselect_b32 s51, -1, 0"],
            "s_and_b32 s49, s2, 1", "s_lshl_b32 s49, s49, 2", "s_and_b32 s50, s48, 3", "s_add_u32 s49, s49, s50",
            "s_bfe_u32 s50, s2, 0x20001", "s_mul_i32 s50, s50, 7", "s_lshr_b32 s48, s48, 2",
            "s_add_u32 s50, s50, s48", "s_and_b32 s50, s50, s51", "s_lshl_b32 s49, s49, 2",
            f"s_lshr_b32 s48, {s(S_W)}, 12", "s_add_u32 s49, s49, s48"]


LN_RS = 2080
SR_LX, SR_LO, SR_DBG = 12, 16, 20
P_DBG = 50


def ln_addr(C):
    C("v_lshrrev_b32 v132, 5, v0", "v_lshrrev_b32 v133, 2, v132", "v_lshlrev_b32 v133, 4, v133",
      "v_and_b32 v134, 3, v132", "v_add_u32 v133, v133, v134", "v_and_b32 v134, 31, v0",
      "v_lshlrev_b32 v134, 4, v134", "v_lshl_add_u32 v133, v133, 11, v134")
    C("v_mov_b64 v[128:129], 0", "v_mov_b64 v[130:131], 0")
    C("s_lshr_b32 s48, s2, 2", "s_and_b32 s49, s2, 3", "s_lshl_b32 s48, s48, 3", "s_add_u32 s48, s48, s49",
      "s_lshl_b32 s49, s48, 13")


def ln_loads(C):
    C(srd(SR_LX, P_X, "s49", 40960))
    C(f"s_or_b32 s48, s2, {s(S_W)}", "s_cbranch_scc0 L_clear")
    C.label("L_clear_ret")
    for t in range(4):
        C(Op(f"buffer_load_dwordx4 {v(144 + 4 * t, 4)}, v133, {s(SR_LX, 4)}, 0 offen offset:{512 * t}", "x"))
    C(srd(SR_DBG, P_DBG, 0, 256))
    C(f"s_or_b32 s48, s2, {s(S_W)}", "s_cbranch_scc1 L_no_go")
    C.A("s_waitcnt vmcnt(4)", f"buffer_store_dword {v(V_ONEI)}, {v(V_L0)}, {s(SR_DBG, 4)}, 0 offen sc1")
    C.label("L_no_go")


def ln_clear(C):
    C.label("L_clear")
    C(srd(SR_FLAG, P_WS, WS_FLAG, FL_SIZE))
    for i in range(5):
        C(f"s_movk_i32 s48, {FL_X + 4096 * (i >> 2)}",
          f"buffer_store_dwordx4 v[128:131], {v(V_LANE16)}, {s(SR_FLAG, 4)}, s48 offen offset:{1024 * (i & 3)} sc1")
    C("s_branch L_clear_ret")


def ln_compute(C, D, touch, early):
    X, RAW, HB = 160, 144, 8 * LN_RS
    half = ("v_permlane16_swap_b32",)
    C(srd(SR_LO, P_WS, 0, 8 * MB))
    C("v_lshlrev_b32 v135, 2, v0", "v_lshrrev_b32 v136, 4, v0", "v_lshl_add_u32 v135, v136, 20, v135",
      "s_lshl_b32 s48, s2, 6", f"buffer_store_dword v128, v135, {s(SR_FLAG, 4)}, s48 offen sc1")
    C(f"v_mul_u32_u24 v135, {LN_RS}, v132", "v_add_u32 v135, v135, v134")
    C("v_and_b32 v140, 7, v0", "v_bfe_u32 v141, v0, 3, 2")
    C(f"v_mul_u32_u24 v136, {LN_RS}, v140", "v_lshl_add_u32 v136, v132, 6, v136", "v_lshl_add_u32 v136, v141, 3, v136")
    C("v_lshlrev_b32 v137, 12, v132", "v_lshl_add_u32 v137, v141, 8, v137", "v_lshrrev_b32 v141, 2, v140",
      "v_lshl_add_u32 v137, v141, 10, v137", "v_and_b32 v141, 3, v140", "v_lshl_add_u32 v137, v141, 4, v137")
    C("v_bfe_u32 v138, v0, 2, 2", f"v_mul_u32_u24 v138, {LN_RS}, v138", "v_lshl_add_u32 v138, v132, 6, v138",
      "v_bfe_u32 v141, v0, 4, 1", "v_lshl_add_u32 v138, v141, 3, v138", "v_and_b32 v140, 3, v0",
      "v_lshl_add_u32 v138, v140, 4, v138")
    C("v_lshlrev_b32 v139, 17, v132", "v_lshl_add_u32 v139, v141, 10, v139", "v_lshl_add_u32 v139, v2, 4, v139")
    C("s_lshr_b32 s42, s2, 3", "s_lshl_b32 s42, s42, 17", "s_bfe_u32 s48, s2, 0x10002", "s_lshl_b32 s48, s48, 11",
      "s_add_u32 s42, s42, s48", "s_and_b32 s49, s2, 3", "s_lshl_b32 s48, s49, 6", "s_add_u32 s42, s42, s48")
    C("s_lshr_b32 s43, s2, 2", "s_lshl_b32 s43, s43, 11", "s_lshl_b32 s48, s49, 8", "s_add_u32 s43, s43, s48",
      f"s_add_u32 s43, s43, {WS_HF}")
    C("s_lshr_b32 s58, s2, 3", "s_lshl_b32 s58, s58, 7", "s_and_b32 s48, s2, 7", "s_lshl_b32 s48, s48, 2",
      "s_add_u32 s58, s58, s48", f"s_lshl_b32 s48, {s(S_W)}, 8", "s_add_u32 s58, s58, s48",
      f"s_add_u32 s58, s58, {FL_X}")
    C(f"s_mov_b32 s48, {f32(-1.0 / 1024)}", f"s_mov_b32 s49, {f32(1e-5)}", f"s_mov_b32 s50, {f32(QSCALE)}",
      f"v_mov_b32 {v(V_FOFF)}, 0")
    if OPT["tpos"] == 0:
        C(touch)
    D.stamp(1, 3)
    C(Wait(vm=["x"]))
    D.stamp(2, 3)
    D.stamp(1, 4)
    C(Op(f"buffer_load_dword {v(V_FLG)}, {v(V_FOFF)}, {s(SR_DBG, 4)}, 0 offen sc1", "go"))
    for i in range(16):
        if OPT["tpos"] == 1 and i % 3 == 0 and touch:
            C(touch.pop(0))
        C(f"v_lshlrev_b32 {v(X + 2 * i)}, 16, {v(RAW + i)}", f"v_and_b32 {v(X + 2 * i + 1)}, 0xffff0000, {v(RAW + i)}")
    D.stamp(2, 4)
    C(pk("add", 192, X, X + 2), pk("add", 194, X + 4, X + 6))
    for i in range(4, 16, 2):
        C(pk("add", 192, 192, X + 2 * i), pk("add", 194, 194, X + 2 * i + 2))
    C(pk("add", 192, 192, 194), "v_add_f32 v192, v192, v193")
    C(wave_red([192], [194], swaps=half))
    C("v_mul_f32 v192, s48, v192", "v_mov_b32 v193, v192")
    C([pk("add", X + 2 * i, X + 2 * i, 192) for i in range(16)])
    C(pk("mul", 192, X, X), pk("mul", 194, X + 2, X + 2))
    for i in range(2, 16, 2):
        C(pk("fma", 192, X + 2 * i, X + 2 * i, 192), pk("fma", 194, X + 2 * i + 2, X + 2 * i + 2, 194))
    C(pk("add", 192, 192, 194), "v_add_f32 v192, v192, v193")
    C(wave_red([192], [194], swaps=half))
    C("v_mov_b32 v196, s49", "v_fma_f32 v196, -v192, s48, v196", "v_rsq_f32 v196, v196", "s_nop 0",
      "v_mul_f32 v198, s50, v196", "v_mov_b32 v197, v196", "v_mov_b32 v199, v198")
    for t in range(4):
        C([pk("mul", 200 + 2 * i, X + 8 * t + 2 * i, 198) for i in range(4)])
        C([f"v_cvt_pk_bf16_f32 {v(RAW + 4 * t + i)}, {v(200 + 2 * i)}, {v(201 + 2 * i)}" for i in range(4)])
        C(f"ds_write_b128 v135, {v(RAW + 4 * t, 4)} offset:{512 * t}")
    D.stamp(3, 4)
    C("s_waitcnt lgkmcnt(0)", "s_barrier")
    D.stamp(4, 4)
    for t in range(4):
        C(Op(f"ds_read2_b64 {v(208 + 4 * t, 4)}, v136 offset0:{64 * t} offset1:{64 * t + 4}", ("xr", t)))
    for t in range(4):
        C(Wait(lg=[("xr", t)]), Op(f"buffer_store_dwordx4 {v(208 + 4 * t, 4)}, v137, {s(SR_LO, 4)}, s42 offen sc1", "xs"),
          "s_add_u32 s42, s42, 32768")
    D.stamp(5, 4)
    if OPT["tpos"] == 2:
        C(touch)
    D.stamp(6, 4)
    C(early)
    D.stamp(7, 4)
    D.stamp(3, 3)
    C([pk("mul", X + 2 * i, X + 2 * i, 196) for i in range(16)])
    C(pk("add", 192, X, X + 2), pk("mul", 194, X, X), pk("fma", 194, X + 2, X + 2, 194))
    for i in range(2, 16):
        C(pk("add", 192, 192, X + 2 * i), pk("fma", 194, X + 2 * i, X + 2 * i, 194))
    C("v_add_f32 v192, v192, v193", "v_add_f32 v193, v194, v195")
    C(wave_red([192, 193], [194, 195], swaps=half))
    C("v_mul_f32 v192, s48, v192", "v_mul_f32 v193, s48, v193", "v_fma_f32 v193, -v192, v192, -v193",
      "v_max_f32 v193, 0, v193", "v_add_f32 v193, s49, v193", "v_rsq_f32 v196, v193", "s_nop 0",
      "v_mul_f32 v198, v192, v196", "v_mov_b32 v197, v196", "v_mov_b32 v199, v198")
    for t in range(4):
        C([pk("fma", 200 + 2 * i, X + 8 * t + 2 * i, 196, 198) for i in range(4)])
        C([f"v_cvt_pk_bf16_f32 {v(RAW + 4 * t + i)}, {v(200 + 2 * i)}, {v(201 + 2 * i)}" for i in range(4)])
        C(f"ds_write_b128 v135, {v(RAW + 4 * t, 4)} offset:{HB + 512 * t}")
    D.stamp(4, 3)
    C(Wait(vm=["xs"]), f"v_cmp_eq_u32 vcc, 0, {v(V_FLG)}", "s_nop 1", "s_cmp_lg_u64 vcc, 0", "s_cbranch_scc1 L_spin_go")
    C.label("L_spin_go_ret")
    D.stamp(5, 3)
    D.stamp(8, 4)
    C("s_waitcnt lgkmcnt(0)", "s_barrier")
    C(flag_store(58), f"v_bfe_u32 {v(V_FOFF)}, {v(V_LANE16)}, 2, 5", "s_lshl_b32 s58, s47, 7",
      f"s_add_u32 s58, s58, {FL_X}")
    for t in range(4):
        C(f"ds_read_b64_tr_b16 {v(224 + 4 * t, 2)}, v138 offset:{HB + 512 * t}",
          Op(f"ds_read_b64_tr_b16 {v(226 + 4 * t, 2)}, v138 offset:{HB + 4 * LN_RS + 512 * t}", ("hr", t)))
    poll(C, "x", 58)


def ln_h_stores():
    out = []
    for t in range(4):
        out += [Wait(lg=[("hr", t)]),
                Op(f"buffer_store_dwordx4 {v(224 + 4 * t, 4)}, v139, {s(SR_LO, 4)}, s43 offen sc1", "hs"),
                f"s_add_u32 s43, s43, {MB}"]
    return out


def gen_main(C):
    D = Diag(C, 0)
    C.label(NAME + "_kernel")
    C("s_cmp_ge_u32 s2, 256", "s_cbranch_scc1 L_end")
    D.stamp(0)
    D.stamp(0, 3)
    D.stamp(0, 4)
    C(f"s_load_dwordx2 {s(P_X, 2)}, s[0:1], {KA_X}",
      f"s_load_dwordx2 {s(P_WQ, 2)}, s[0:1], {KA_WQ}", f"s_load_dwordx2 {s(P_WS, 2)}, s[0:1], {KA_WS}",
      f"s_load_dwordx4 {s(P_K, 4)}, s[0:1], {KA_K}", f"s_load_dwordx4 {s(P_W1, 4)}, s[0:1], {KA_W1}",
      f"s_load_dwordx2 {s(P_WO, 2)}, s[0:1], {KA_WO}", f"s_load_dwordx2 {s(P_W2, 2)}, s[0:1], {KA_W2}",
      f"s_load_dwordx2 {s(P_B2, 2)}, s[0:1], {KA_B2}",
      f"s_load_dwordx2 {s(P_OUT, 2)}, s[0:1], {KA_OUT}", f"s_load_dwordx2 {s(P_DBG, 2)}, s[0:1], {KA_DBG}")
    C(f"s_mov_b32 {s(S_FB)}, 0")
    C.label("L_restart")
    C(f"v_lshlrev_b32 {v(V_PF)}, 5, v0")
    C(code_srd(SR_PF, "L_early_code", "L_attn_tail", "a"))
    if OPT["pf"]:
        C(f"buffer_load_dword v60, {v(V_PF)}, {s(SR_PF, 4)}, 0 offen")
    C.label("L_early_code")
    C("v_and_b32 v1, 63, v0", "v_lshrrev_b32 v2, 6, v0", "v_lshrrev_b32 v3, 4, v1",
      f"v_readfirstlane_b32 {s(S_W)}, v2", "v_and_b32 v2, 15, v1", "v_lshlrev_b32 v1, 4, v1",
      f"s_lshl_b32 {s(S_W)}, {s(S_W)}, 12")
    C(f"v_lshlrev_b32 {v(V_L0)}, 16, {v(V_LANE16)}", f"v_mov_b32 {v(V_ONEI)}, 1")
    ln_addr(C)
    C(f"s_cmp_lg_u32 {s(S_FB)}, 0", "s_cbranch_scc1 L_skip_ln0", "s_waitcnt lgkmcnt(0)")
    ln_loads(C)
    C.label("L_skip_ln0")
    C("s_and_b32 s46, s2, 31", "s_lshr_b32 s47, s2, 5", "s_lshl_b32 s47, s47, 2", f"s_lshr_b32 s48, {s(S_W)}, 12",
      "s_add_u32 s47, s47, s48")
    C(w_dma_offsets(V_OW, 8192, 62, 48))
    C(f"s_bfe_u32 {s(S_PFC)}, s2, 0x20003", f"s_add_u32 {s(S_PFC)}, {s(S_PFC)}, 1",
      f"s_lshl_b32 {s(S_PFC)}, {s(S_PFC)}, 13")
    C("s_lshl_b32 s59, s2, 2", f"s_add_u32 s59, s59, {FL_H}", f"s_lshl_b32 s48, {s(S_W)}, 8", "s_add_u32 s59, s59, s48")
    C(srd(SR_FLAG, P_WS, WS_FLAG, FL_SIZE))
    C("s_lshl_b32 s48, s46, 8", f"s_sub_u32 s49, {8 * MB}, s48", "s_lshl_b32 s50, s47, 17")
    C(srd(SR_W, P_WQ, "s48", "s49"), srd(SR_ACT, P_WS, "s50", 131072))
    C("s_lshl_b32 s48, s2, 15", srd(SR_PF + 4, P_WQ, "s48", 32768))
    C(q_read_addrs(V_QA, V_NEGM))

    st = []

    def grp(setup, ops, earliest, post=None):
        for i, o in enumerate(ops):
            st.append((setup if i == 0 else [], o, earliest, post if i == len(ops) - 1 else None))

    def gW(e):
        grp([set_m0(VBASE + (e & 3) * 16384), f"s_mov_b32 {s(S_SW)}, {e * WQSTEP}"],
            [dma(V_OW + i, SR_W, S_SW, i, ("QW", e)) for i in range(4)], 2 * e - 7)

    def gX(j):
        grp([f"s_mov_b32 {s(S_SA)}, {j * 4096}"], [q_act(j, q) for q in range(4)], j - 7)

    def gT(ops, earliest):
        grp([ops[0]], ops[1:5], earliest, ops[5])
    nw = OPT["earlyw"]
    for e in range(nw):
        gW(e)
    early = [[setup, o] for setup, o, _, _ in st]
    st.clear()
    touch = []
    if OPT["pf"]:
        touch = [[f"s_movk_i32 s51, {8192 * i}", f"buffer_load_dword v60, {v(V_PF)}, {s(SR_PF + 4, 4)}, s51 offen"]
                 for i in range(4)]
        touch.append([f"buffer_load_dword v60, {v(V_PF)}, {s(SR_PF, 4)}, {s(S_PFC)} offen"])
    C(f"s_cmp_lg_u32 {s(S_FB)}, 0", "s_cbranch_scc1 L_skip_ln1")
    ln_compute(C, D, touch, early)
    C.label("L_skip_ln1_ret")
    D.stamp(6, 3)
    D.stamp(9, 4)
    gX(0)
    for e in range(1, 16):
        if e >= nw:
            gW(e)
        gX(2 * e - 1); gX(2 * e)
    gX(31)
    for ops, t in ((k_dma(0), 25), (k_dma(1), 26), (v_dma(0), 27), (k_dma(2), 28), (v_dma(1), 29), (k_dma(3), 30),
                   (v_dma(2), 31)):
        gT(ops, t)
    for n in range(OPT["qpro"]):
        setup, o, _, _ = st.pop(0)
        C(setup, o)
    C(f"s_cmp_lg_u32 {s(S_FB)}, 0", "s_cbranch_scc1 L_skip_ln2")
    C(ln_h_stores())
    C.label("L_skip_ln2_ret")
    C(Wait(vm=[("QW", 0)]), "s_barrier")
    C(q_reads(0))
    bg = ["s_lshl_b32 s48, s46, 19"] + srd(SR_K, P_K, "s48", 524288) + srd(SR_V, P_V, "s48", 524288)
    bg += ["s_lshl_b32 s48, s47, 19", "s_lshl_b32 s49, s46, 13", "s_add_u32 s48, s48, s49",
           f"s_add_u32 s48, s48, {WS_OF}"] + srd(SR_ST, P_WS, "s48", 262144 + 8192)
    bg += code_srd(SR_PF, "L_attn_tail", "L_code_end", "b")
    bg += [f"s_bfe_u32 {s(S_PFC)}, s2, 0x30003", f"s_lshl_b32 {s(S_PFC)}, {s(S_PFC)}, 13", "s_mul_i32 s48, s2, 57344"]
    bg += srd(SR_PF + 4, P_W1, "s48", 57344)
    bg += ["s_lshl_b32 s48, s2, 15"] + srd(SR_PF + 12, P_WO, "s48", 32768)
    bg += [f"s_mov_b32 {s(x)}, 0" for x in (S_PF, S_SK, S_SV)]
    bg += [f"s_movk_i32 {s(S_KSTEP)}, 0x4000", f"s_mov_b32 {s(S_CNT)}, 8"]
    bg1 = ["s_mul_i32 s48, s2, 57344"] + srd(SR_PF + 8, P_W2, "s48", 57344) + [f"s_movk_i32 {s(S_VSTEP)}, 0x4000"]
    t0 = V_NEGM
    bg += v_read_addrs(V_VA, t0)
    bg += [f"v_xor_b32 {v(t0)}, v2, v3", f"v_lshlrev_b32 {v(t0)}, 4, {v(t0)}", f"v_lshl_add_u32 {v(t0)}, v2, 8, {v(t0)}"]
    bg += [f"v_xor_b32 {v(V_KA + ks)}, {ks * 64}, {v(t0)}" for ks in range(4)]
    bg += [f"v_lshlrev_b32 {v(t0)}, 8, v3", f"v_add_u32 {v(t0)}, {s(S_W)}, {v(t0)}", f"v_xor_b32 {v(t0 + 1)}, v2, v3"]
    for i in range(4):
        bg += [f"v_xor_b32 {v(t0 + 2)}, {4 * i}, {v(t0 + 1)}", f"v_lshl_add_u32 {v(V_OK + i)}, {v(t0 + 2)}, 4, {v(t0)}"]
    bg += [f"v_lshlrev_b32 {v(t0 + 1)}, 1, v3", f"v_xor_b32 {v(t0 + 1)}, {v(t0 + 1)}, v2"]
    for i in range(4):
        bg += [f"v_xor_b32 {v(t0 + 2)}, {8 * (i & 1)}, {v(t0 + 1)}",
               f"v_lshl_add_u32 {v(V_OV + i)}, {v(t0 + 2)}, 4, {v(t0)}"]
    bg += [f"v_lshrrev_b32 {v(t0)}, 1, v2", f"v_lshrrev_b32 {v(t0 + 1)}, 1, v3",
           f"v_cmp_eq_u32 vcc, {v(t0)}, {v(t0 + 1)}", f"v_mov_b32 {v(t0)}, 0x3f803f80", f"v_and_b32 {v(t0 + 1)}, 1, v2"]
    bg += [f"v_cndmask_b32 {v(V_ONE + i)}, 0, {v(t0)}, vcc" for i in range(4)]
    bg += [f"v_mul_u32_u24 {v(t0 + 1)}, 0xaaaa, {v(t0 + 1)}", f"v_add_u32 {v(V_IDX)}, 0x4444, {v(t0 + 1)}"]
    bg += [f"v_mov_b32 {v(V_L + i)}, 0" for i in range(8)]
    bg += [f"v_accvgpr_write_b32 {a(A_O + i)}, 0" for i in range(128)]
    bg2 = mlp1_ids() + ["s_lshl_b32 s48, s49, 17", f"s_add_u32 s48, s48, {WS_HF}", "s_and_b32 s49, s51, 131072"]
    bg2 += srd(SR_ACT, P_WS, "s48", "s49")
    bg2 += ["s_lshl_b32 s48, s50, 8", "s_and_b32 s49, s51, 256"] + srd(SR_W, P_B1, "s48", "s49")
    bg2 += ["v_lshlrev_b32 v62, 3, v3"]
    C(Wait(vm=[("QX", 0)], lg=[("QT", 0)]))
    D.stamp(1)
    D.stamp(7, 3)
    C.label("L_q_code")
    tg = [g for g in range(24) if g % 3 != 2]
    for j in range(32):
        pre = {}
        reads = q_reads(j + 1) if j < 31 else k_reads(0, A_KF)
        for g, x in zip(tg, reads):
            add(pre, g, x)
        mine = []
        while st and st[0][2] <= j and len(mine) < OPT["qrate"]:
            mine.append(st.pop(0))
        for n, (setup, o, _, post) in enumerate(mine):
            g = 2 + (n * 30) // max(len(mine), 1)
            for k, x in enumerate(setup):
                pre.setdefault(g - len(setup) + k, []).insert(0, x)
            add(pre, g, o)
            if post:
                pre.setdefault(g + 1, []).insert(0, post)
        if j == 31:
            break
        if j & 1:
            add(pre, 31, Wait(lg=[("QT", j + 1)]))
        else:
            need = [("QW", j // 2 + 1), ("QX", j + 1), ("QX", j + 2)] if j < 30 else [("QX", 31), ("K", 0)]
            need += {4: ["hs"], 18: ["fh"]}.get(j, [])
            add(pre, 31, Wait(vm=need, lg=[("QT", j + 1)]), "s_barrier")
        if j == 5:
            add(pre, 0, flag_store(59))
            add(pre, 30, f"s_movk_i32 s59, {FL_H}")
        if j == 13:
            add(pre, 0, Op(f"buffer_load_dwordx4 v[56:59], {v(V_LANE16)}, {s(SR_FLAG, 4)}, s59 offen sc1", "fh"))
        if j == 19:
            assert not bg
            bg = ["v_min3_u32 v56, v56, v57, v58", f"v_min_u32 {v(V_FLG)}, v56, v59", f"v_cmp_eq_u32 vcc, 0, {v(V_FLG)}",
                  None, None, ["s_cmp_lg_u64 vcc, 0", "s_cbranch_scc1 L_spin_h", "L_spin_h_ret:"]] + bg1
        if j == 26:
            assert not bg
            bg = bg2
        C.weave(q_mfmas(j), pre, {}, bg)
    assert not bg and not st
    D.stamp(2)
    D.stamp(8, 3)
    add(pre, 31, Wait(lg=[("KR", 0)]))
    for g, x in enumerate(k_reads(1, A_VF)):
        add(pre, 32 + g, x)
    add(pre, 48, Wait(vm=[("K", 1), ("V", 0)], lg=[("KR", 1)]), "s_barrier")
    kd = k_dma(4)
    g = 50
    for j in range(8):
        if j & 1 == 0:
            add(pre, g - 1, f"s_mov_b32 {s(S_SA)}, {j * 2048}")
        add(pre, g, n_act(j, 0, SR_ACT))
        add(pre, g + 2, n_act(j, 1, SR_ACT))
        g += 4
    for b in range(8):
        add(pre, 82 + b, Op(f"buffer_load_dwordx2 {v(V_B1 + 2 * b, 2)}, v62, {s(SR_W, 4)}, 0 offen offset:{32 * b}", "b1"))
    add(pre, 90, kd[0])
    add(pre, 91, kd[1])
    add(pre, 94, kd[2])
    for g, x in enumerate(k_reads(2, A_KF)):
        add(pre, 65 + 2 * g, x)
    bg = []
    for q in range(4):
        bg.append(("at", 8 * q + 6))
        for b in range(8):
            src, F = V_ACC + (b * 4 + q) * 4, V_Q + (q * 4 + (b >> 1)) * 4 + 2 * (b & 1)
            bg.append(("at", 8 * q + b + 5))
            bg += [f"v_cvt_pk_bf16_f32 {v(F + i)}, {v(src + 2 * i)}, {v(src + 2 * i + 1)}" for i in range(2)]
    for u in range(2):
        for q in range(4):
            bg.append(("at", 32 + 32 * u + 8 * q + 14))
            bg += max_ops(u, q, u == 0)
    C.weave(q_mfmas(31, True) + qk_mfmas(0, A_KF, True, True) + qk_mfmas(1, A_VF, True, True), pre, {}, bg)
    C(v_reads(0, A_VF)[:4])
    C(nops(4))
    C.drain(bg)
    C(wave_red([V_NEGM + 4 * q for q in range(4)], [V_NEGM + 4 * q + 1 for q in range(4)], "v_max_f32", False))
    C(f"s_cmp_lg_u32 {s(S_FB)}, 0", "s_cbranch_scc1 L_fb_hook")
    C.label("L_fb_ret")
    for q in range(4):
        C(f"v_sub_f32 {v(V_NEGM + 4 * q)}, {f32(-OPT['bias'])}, {v(V_NEGM + 4 * q)}")
    for q in range(4):
        C(f"v_mov_b32 {v(V_NEGM + 4 * q + 1)}, {v(V_NEGM + 4 * q)}")
    for q in range(4):
        C(f"v_mov_b64 {v(V_NEGM + 4 * q + 2, 2)}, {v(V_NEGM + 4 * q, 2)}")
    for u in range(2):
        for k in range(16):
            C(pk("add", V_S[u] + 2 * k, V_S[u] + 2 * k, V_NEGM + 4 * ((k >> 1) & 3)))
    C([x if x else "s_nop 0" for x in sm_seq(0, 0, 4)])
    C(Wait(lg=[("KR", 2)]))
    D.stamp(3)
    C("s_branch L_attn_entry")
    sim = C.clone_dry()
    sim.record = {}
    for n in range(31):
        epoch(sim, n, False, n == 0)
    C(".p2align 6")
    C.label("L_attn_loop")
    C.fixed = sim.record
    for n in range(4, 8):
        epoch(C, n, True)
    C.fixed = None
    C.vm, C.lg = sim.vm, sim.lg
    C.label("L_hook0")
    C(mlp1_ids(), "s_lshl_b32 s48, s50, 8", f"s_sub_u32 s49, {2048 * 7168}, s48", "s_and_b32 s49, s49, s51")
    C(srd(SR_K, P_W1, "s48", "s49"), w_dma_offsets(V_OK, 7168, 250, 48))
    C(f"s_mov_b32 {s(S_SK)}, 0", f"s_mov_b32 {s(S_KSTEP)}, {2 * W1STEP}", "s_branch L_hook0_ret")
    C.label("L_hook1")
    C(f"s_mov_b64 {s(SR_V, 2)}, {s(SR_K, 2)}", f"s_mov_b32 {s(SR_V + 2)}, {s(SR_K + 2)}")
    C([f"v_mov_b32 {v(V_OV + i)}, {v(V_OK + i)}" for i in range(4)])
    C(f"s_mov_b32 {s(S_SV)}, {W1STEP}", f"s_mov_b32 {s(S_VSTEP)}, {2 * W1STEP}", "s_branch L_hook1_ret")
    C(".p2align 6")
    C.label("L_attn_tail")
    D.stamp(4)
    mf = pv_mfmas(61, A_VF, True)
    mf = mf[:4] + [l_mfma(61, 0)] + mf[4:12] + [l_mfma(61, 1)] + mf[12:]
    m2 = pv_mfmas(62, A_KF, True)
    mf += m2[:16] + [l_mfma(62, 0)] + m2[16:] + [l_mfma(62, 1)]
    m3 = pv_mfmas(63, A_VF, True)
    mf += m3[:16] + [l_mfma(63, 0)] + m3[16:24] + [l_mfma(63, 1)] + m3[24:]
    pre = {}
    for g, x in enumerate(v_reads(62, A_KF)):
        add(pre, (3 * g) // 2 + 2, x)
    add(pre, 33, Wait(lg=[("VR", 62)]))
    for g, x in enumerate(v_reads(63, A_VF)):
        add(pre, 36 + (3 * g) // 2, x)
    add(pre, 67, Wait(vm=[("W", 0), ("W", 1), ("X", 2), "b1"], lg=[("VR", 63)]), "s_barrier")
    g = 3
    for j in range(8, 15):
        if j & 1 == 0:
            pre.setdefault(g - 1, []).insert(0, f"s_mov_b32 {s(S_SA)}, {j * 2048}")
        add(pre, g, n_act(j, 0, SR_ACT))
        add(pre, g + 3, n_act(j, 1, SR_ACT))
        g += 6 if j != 11 else 16
    add(pre, 70, set_m0(n_m0(5)))
    add(pre, 71, f"s_mov_b32 {s(S_SW)}, {5 * W1STEP}")
    add(pre, 72, dma(V_OK, SR_K, S_SW, 0, ("W", 5)))
    add(pre, 76, dma(V_OK + 1, SR_K, S_SW, 1, ("W", 5)))
    for g, x in enumerate(n_reads(0)):
        add(pre, 84 + g, x)
    add(pre, 101, Wait(lg=[("T", 0, 0)]))
    bg = sm_seq(62, 2, 4) + sm_seq(63, 0, 4)
    bg += [f"v_subrev_u32 {v(V_WA0 + b)}, {VBASE}, {v(V_VA + b)}" for b in range(8)]
    bg.append(("at", 68))
    for b in range(8):
        d = V_ACC + (b * 2 + 1) * 4
        for i in range(2):
            bg += [f"v_lshlrev_b32 {v(d + 2 * i)}, 16, {v(V_B1 + 2 * b + i)}",
                   f"v_and_b32 {v(d + 2 * i + 1)}, 0xffff0000, {v(V_B1 + 2 * b + i)}"]
    n0 = len(C.A.lines)
    C.weave(mf, pre, {}, bg, cap=3)
    assert not bg, len(bg)
    check_order(C.A.lines[n0:])
    D.stamp(5)
    T = 192
    bg = [("at", 2)] + [f"v_add_f32 {v(V_L + 2 * q)}, {v(V_L + 2 * q)}, {v(V_L + 2 * q + 1)}" for q in range(4)]
    bg += wave_red([V_L + 2 * q for q in range(4)], [V_L + 2 * q + 1 for q in range(4)], dpp=False)
    bg += [f"s_mov_b32 s48, {f32(OPT['thresh'])}",
           f"v_add_f32 v63, {v(V_L)}, {v(V_L + 2)}", f"v_add_f32 v62, {v(V_L + 4)}, {v(V_L + 6)}",
           "v_add_f32 v62, v62, v63", "v_cmp_nge_f32 vcc, s48, v62", f"v_mov_b32 v63, {s(S_W)}",
           "v_lshrrev_b32 v63, 10, v63", f"v_add_u32 v63, {VOTE}, v63",
           ["s_cmp_lg_u64 vcc, 0", f"s_cselect_b32 s48, 1, {OPT['force_fb']}"], "v_mov_b32 v62, s48",
           Op("ds_write_b32 v63, v62", "vote")]
    bg += [f"v_rcp_f32 {v(V_L + 2 * q)}, {v(V_L + 2 * q)}" for q in range(4)]
    bg += [f"v_mov_b32 v63, {VOTE}"]
    n = 0
    for q in range(4):
        for p in range(4):
            t = T + (n & 1) * 12
            bg += [f"v_accvgpr_read_b32 {v(t + i)}, {a(A_O + ((2 * p + (i >> 2)) * 4 + q) * 4 + (i & 3))}"
                   for i in range(8)]
            bg += [f"v_mul_f32 {v(t + i)}, {v(t + i)}, {v(V_L + 2 * q)}" for i in range(8)]
            bg += [f"v_cvt_pk_bf16_f32 {v(t + 8 + i)}, {v(t + 2 * i)}, {v(t + 2 * i + 1)}" for i in range(4)]
            bg += [f"s_mov_b32 s49, {(q >> 1) * 262144 + (p >> 1) * 4096}",
                   Op(f"buffer_store_dwordx4 {v(t + 8, 4)}, {v(V_LANE16)}, {s(SR_ST, 4)}, s49 offen "
                      f"offset:{(p & 1) * 2048 + (q & 1) * 1024} sc1", "O")]
            n += 1
    bg += srd(SR_FLAG, P_WS, WS_FLAG, FL_SIZE)
    bg += [f"v_lshlrev_b32 {v(V_L0)}, 16, {v(V_LANE16)}", f"v_mov_b32 {v(V_ONEI)}, 1",
           f"s_lshl_b32 {s(S_FO)}, s47, 5", f"s_add_u32 {s(S_FO)}, {s(S_FO)}, s46", f"s_lshl_b32 {s(S_FO)}, {s(S_FO)}, 2"]
    fin = mlp1_ids() + ["s_mul_i32 s48, s49, 229376", "s_lshl_b32 s46, s50, 13", "s_add_u32 s48, s48, s46",
                        f"s_add_u32 s48, s48, {WS_UF}", "s_and_b32 s46, s51, 8192"] + srd(SR_UST, P_WS, "s48", "s46")
    fin += [f"s_lshl_b32 {s(S_FU)}, s49, 5", f"s_add_u32 {s(S_FU)}, {s(S_FU)}, s50", f"s_lshl_b32 {s(S_FU)}, {s(S_FU)}, 2",
            f"s_add_u32 {s(S_FU)}, {s(S_FU)}, {FL_U}", "s_andn2_b32 s48, 0x100000, s51",
            f"s_or_b32 {s(S_FU)}, {s(S_FU)}, s48"]
    fin += ["s_lshr_b32 s50, s2, 3", "s_bfe_u32 s46, s2, 0x10001", "s_lshl_b32 s46, s46, 3", "s_lshr_b32 s51, s50, 2",
            "s_add_u32 s46, s46, s51", "s_and_b32 s47, s2, 1", "s_lshl_b32 s47, s47, 2", "s_and_b32 s51, s50, 3",
            "s_add_u32 s47, s47, s51",
            ["s_bitcmp1_b32 s2, 2", f"s_cselect_b64 {s(S_ROLE, 2)}, -1, 0"],
            ["s_bitcmp1_b32 s2, 2", f"s_cselect_b64 {s(SR_W, 2)}, {s(P_W2, 2)}, {s(P_WO, 2)}"],
            ["s_bitcmp1_b32 s2, 2", "s_cselect_b32 s48, s46, s47"], "s_lshl_b32 s48, s48, 8",
            f"s_mov_b32 s50, {8 * MB}", ["s_bitcmp1_b32 s2, 2", f"s_cselect_b32 s49, {3584 * 4096}, s50"],
            "s_sub_u32 s49, s49, s48"] + srd(SR_W, SR_W, "s48", "s49")
    fin += ["s_movk_i32 s50, 0x800", ["s_bitcmp1_b32 s2, 2", "s_cselect_b32 s50, 4096, s50"],
            f"s_lshl_b32 {s(S_WSTEP)}, s50, 6"] + w_dma_offsets(V_OW, "s50", 62, 48)
    fin += ["s_lshl_b32 s50, s46, 2", f"s_lshr_b32 s48, {s(S_W)}, 12", "s_add_u32 s50, s50, s48",
            "s_lshl_b32 s48, s50, 18", f"s_add_u32 s48, s48, {WS_OF}", f"s_andn2_b32 s49, 262144, {s(S_ROLE)}"]
    fin += srd(SR_ACT2, P_WS, "s48", "s49")
    fin += [f"s_lshr_b32 {s(S_FO)}, s50, 1", f"s_lshl_b32 {s(S_FO)}, {s(S_FO)}, 7",
            f"v_bfe_u32 {v(V_FOFF)}, {v(V_LANE16)}, 2, 7",
            "s_lshl_b32 s50, s46, 3", "s_add_u32 s50, s50, s47", f"s_lshl_b32 {s(S_FS)}, s50, 6",
            f"s_add_u32 {s(S_FS)}, {s(S_FS)}, {FL_S}", "s_lshl_b32 s50, s50, 15", f"s_add_u32 s50, s50, {WS_S}"]
    fin += srd(SR_ST, P_WS, "s50", 32768)
    o_flagged = False
    for j in range(64):
        extra, more = [], []
        if j == 2:
            extra = [(14, Wait(lg=["vote"]))]
        if j == 3:
            extra = [(3, Op("ds_read_b128 v[248:251], v63", "voter"))]
        if j == 4:
            extra = [(2, Wait(lg=["voter"])), (3, "v_or3_b32 v248, v248, v249, v250"), (4, "v_or_b32 v248, v248, v251"),
                     (6, "v_readfirstlane_b32 s48, v248"),
                     (8, [f"s_andn2_b32 s48, s48, {s(S_FB)}", "s_cbranch_scc1 L_fallback"])]
        if not bg and not o_flagged and j & 3 == 2 and "O" not in C.vm[-20:]:
            more, o_flagged, fl_at = ["O"], True, j + 1
        if o_flagged and j == fl_at:
            extra = [(3, flag_store(S_FO))]
        if o_flagged and j == fl_at + 1:
            bg = fin
        if j == 40:
            assert o_flagged and not fin
            extra = [(3, Op(f"buffer_load_dword {v(V_FLG)}, {v(V_FOFF)}, {s(SR_FLAG, 4)}, {s(S_FO)} offen sc1", "fo"))]
        if j == 46:
            more = ["fo"]
        if j == 48:
            extra = [(2, f"v_cmp_eq_u32 vcc, 0, {v(V_FLG)}"),
                     (6, [f"s_andn2_b64 vcc, vcc, {s(S_ROLE, 2)}", "s_cbranch_scc1 L_spin_o", "L_spin_o_ret:"])]
        if j % 8 == 0:
            D.stamp(j // 8, 2)
        n_step(C, j, False, False, extra, bg, OPT["ocap"] if j < 20 else 2, more)
    print("O flag stored in step", fl_at, file=sys.stderr)
    D.stamp(6)
    D.stamp(8, 2)
    C0 = -2.0 * math.sqrt(2.0 / math.pi) * LOG2E
    C(f"s_mov_b32 s48, {f32(C0 * 0.044715)}", "s_mov_b32 s49, s48", "s_mov_b32 s50, 1.0", "s_mov_b32 s51, 1.0",
      f"v_mov_b32 v62, {f32(C0)}", f"v_mov_b32 v63, {f32(C0)}", "s_movk_i32 s44, 0x1000")
    n = 0
    for p in range(4):
        for q in range(2):
            t = T + (n & 1) * 12
            src = [V_ACC + ((2 * p + (i >> 1)) * 2 + q) * 4 + (i & 1) * 2 for i in range(4)]
            C([pk("mul", t + 2 * i, src[i], src[i]) for i in range(4)])
            C([pk("fma", t + 2 * i, t + 2 * i, "s[48:49]", 62) for i in range(4)])
            C([pk("mul", t + 2 * i, t + 2 * i, src[i]) for i in range(4)])
            C([f"v_exp_f32 {v(t + i)}, {v(t + i)}" for i in range(8)])
            C([pk("add", t + 2 * i, t + 2 * i, "s[50:51]") for i in range(4)])
            C([f"v_rcp_f32 {v(t + i)}, {v(t + i)}" for i in range(8)])
            C([pk("mul", t + 2 * i, t + 2 * i, src[i]) for i in range(4)])
            C([f"v_cvt_pk_bf16_f32 {v(t + 8 + i)}, {v(t + 2 * i)}, {v(t + 2 * i + 1)}" for i in range(4)])
            C(Op(f"buffer_store_dwordx4 {v(t + 8, 4)}, {v(V_LANE16)}, {s(SR_UST, 4)}, {'s44' if p >> 1 else '0'} offen "
                 f"offset:{(p & 1) * 2048 + q * 1024} sc1", "U"))
            n += 1
    C("s_bitcmp1_b32 s2, 2", "s_cbranch_scc1 L_mlp2")
    vm0, lg0 = list(C.vm), list(C.lg)
    C([f"v_mov_b64 {v(V_ACC + 2 * i, 2)}, 0" for i in range(32)])
    C(Wait(vm=["U"]), flag_store(S_FU))
    D.stamp(7)
    n_loop(C, "oproj", 8, False)
    D.stamp(8)
    C(f"s_lshl_b32 s48, {s(S_W)}, 1", "s_add_u32 s49, s48, 4096", f"s_lshr_b32 s50, {s(S_W)}, 10",
      f"s_add_u32 {s(S_FS)}, {s(S_FS)}, s50")
    for p in range(4):
        for sb in range(2):
            t = T + 4 * (p * 2 + sb)
            C([f"v_cvt_pk_bf16_f32 {v(t + i)}, {v(V_ACC + ((2 * p + (i >> 1)) * 2 + sb) * 4 + (i & 1) * 2)}, "
               f"{v(V_ACC + ((2 * p + (i >> 1)) * 2 + sb) * 4 + (i & 1) * 2 + 1)}" for i in range(4)])
        for sw in ("v_permlane32_swap_b32", "v_permlane16_swap_b32"):
            C([f"{sw} {v(T + 8 * p + 4 * sb + i)}, {v(T + 8 * p + 4 * sb + 2 + i)}" for sb in range(2) for i in range(2)])
        for sb in range(2):
            C(f"buffer_store_dwordx4 {v(T + 8 * p + 4 * sb, 4)}, {v(V_LANE16)}, {s(SR_ST, 4)}, {s(48 + sb)} offen "
              f"offset:{1024 * p} sc1")
    C("s_waitcnt vmcnt(0)", flag_store(S_FS), "s_branch L_done")
    C.vm, C.lg = vm0, lg0
    C.label("L_mlp2")
    C("s_lshl_b32 s48, s46, 8")
    C(srd(SR_K, P_B2, "s48", 256))
    C("v_lshlrev_b32 v62, 1, v2")
    C([Op(f"buffer_load_ushort {v(224 + b)}, v62, {s(SR_K, 4)}, 0 offen offset:{32 * b}", "b2") for b in range(8)])
    C("s_lshl_b32 s50, s47, 2", f"s_lshr_b32 s48, {s(S_W)}, 12", "s_add_u32 s50, s50, s48",
      "s_mul_i32 s48, s50, 229376", f"s_add_u32 s48, s48, {WS_UF}")
    C(srd(SR_ACT2, P_WS, "s48", 229376))
    C("s_lshl_b32 s48, s46, 18", "s_lshl_b32 s49, s50, 6", "s_add_u32 s48, s48, s49", f"s_sub_u32 s49, {4 * MB}, s48")
    C(srd(SR_X, P_X, "s48", "s49"), srd(SR_V, P_OUT, "s48", "s49"))
    C(Wait(vm=["U"]), flag_store(S_FU))
    C(f"s_lshl_b32 {s(S_FU)}, s50, 7", f"s_add_u32 {s(S_FU)}, {s(S_FU)}, {FL_U}",
      f"v_min_u32 {v(V_FOFF)}, 108, {v(V_FOFF)}", Wait(vm=["b2"]))
    for b in range(8):
        C([f"v_lshlrev_b32 {v(V_ACC + b * 8 + i)}, 16, {v(224 + b)}" for i in range(2)])
        C([f"v_mov_b64 {v(V_ACC + b * 8 + 2 * i, 2)}, {v(V_ACC + b * 8, 2)}" for i in range(1, 4)])
    poll(C, "u", S_FU)
    for j in range(64, 79):
        if j & 1 == 0:
            C(f"s_mov_b32 {s(S_SA)}, {(j - 64) * 2048}")
        C(n_act(j, 0, SR_ACT2, " sc1"), n_act(j, 1, SR_ACT2, " sc1"))
    C(Wait(vm=[("X", 66)]))
    D.stamp(7)
    n_loop(C, "mlp2", 7, True)
    D.stamp(8)
    XR, SRG = 192, 224
    C(f"v_and_b32 {v(V_FOFF)}, 12, {v(V_FOFF)}", "v_lshlrev_b32 v62, 11, v2", "v_lshl_add_u32 v62, v3, 4, v62")
    C(Op(f"buffer_load_dword {v(V_FLG)}, {v(V_FOFF)}, {s(SR_FLAG, 4)}, {s(S_FS)} offen sc1", "fs"))
    for b in range(8):
        C(f"s_mov_b32 s48, {b * 32768}",
          Op(f"buffer_load_dwordx4 {v(XR + 4 * b, 4)}, v62, {s(SR_X, 4)}, s48 offen", ("x", b)))
    C(f"s_mov_b32 s48, {f32(-LOG2E)}", "s_mov_b32 s49, s48", "s_mov_b32 s50, 1.0", "s_mov_b32 s51, 1.0")

    def silu(b):
        t, src = 8, V_ACC + 8 * b
        C([pk("mul", t + 2 * i, src + 2 * i, "s[48:49]") for i in range(4)])
        C([f"v_exp_f32 {v(t + i)}, {v(t + i)}" for i in range(8)])
        C([pk("add", t + 2 * i, t + 2 * i, "s[50:51]") for i in range(4)])
        C([f"v_rcp_f32 {v(t + i)}, {v(t + i)}" for i in range(8)])
        C([pk("mul", src + 2 * i, t + 2 * i, src + 2 * i) for i in range(4)])
    for b in range(3):
        silu(b)
    C(Wait(vm=["fs"]), f"v_cmp_eq_u32 vcc, 0, {v(V_FLG)}", f"s_lshr_b32 s47, {s(S_W)}, 2", "s_nop 0",
      "s_cmp_lg_u64 vcc, 0", "s_cbranch_scc1 L_s_late")

    def s_loads():
        for b in range(8):
            C(Op(f"buffer_load_dwordx4 {v(SRG + 4 * b, 4)}, {v(V_LANE16)}, {s(SR_ST, 4)}, s47 offen sc1", ("s", b)),
              "s_add_u32 s47, s47, 4096")
    s_loads()
    for b in range(3, 8):
        silu(b)
    C.label("L_combine")
    for b in range(8):
        t, src = 8 + (b & 1) * 20, V_ACC + 8 * b
        C(Wait(vm=[("s", b)]), f"s_mov_b32 s48, {b * 32768}")
        for i in range(4):
            C(f"v_lshlrev_b32 {v(t + 2 * i)}, 16, {v(SRG + 4 * b + i)}",
              f"v_and_b32 {v(t + 2 * i + 1)}, 0xffff0000, {v(SRG + 4 * b + i)}",
              f"v_lshlrev_b32 {v(t + 8 + 2 * i)}, 16, {v(XR + 4 * b + i)}",
              f"v_and_b32 {v(t + 9 + 2 * i)}, 0xffff0000, {v(XR + 4 * b + i)}")
        C([pk("fma", t + 2 * i, t + 2 * i, src + 2 * i, t + 8 + 2 * i) for i in range(4)])
        C([f"v_cvt_pk_bf16_f32 {v(t + 16 + i)}, {v(t + 2 * i)}, {v(t + 2 * i + 1)}" for i in range(4)])
        C(f"buffer_store_dwordx4 {v(t + 16, 4)}, v62, {s(SR_V, 4)}, s48 offen")
    C.label("L_done")
    C("s_waitcnt vmcnt(0) lgkmcnt(0)")
    D.stamp(9)
    D.stamp(9, 2)
    D.stamp(9, 3)
    D.flush(10)
    C.label("L_end")
    C("s_endpgm")
    C.label("L_s_late")
    for b in range(3, 8):
        silu(b)
    poll(C, "s", S_FS)
    s_loads()
    C("s_branch L_combine")
    C.label("L_spin_o")
    poll(C, "o", S_FO)
    C("s_branch L_spin_o_ret")
    C.label("L_spin_go")
    poll(C, "go", None, SR_DBG)
    C("s_branch L_spin_go_ret")
    C.label("L_spin_h")
    poll(C, "h", 59, None, True)
    C("s_branch L_spin_h_ret")
    ln_clear(C)
    C.label("L_skip_ln1")
    C(early, "s_branch L_skip_ln1_ret")
    C.label("L_skip_ln2")
    C("s_waitcnt vmcnt(0)", "s_branch L_skip_ln2_ret")
    C.label("L_fallback")
    C(f"s_mov_b32 {s(S_FB)}, 1", "s_waitcnt vmcnt(0) lgkmcnt(0)", "s_barrier", "s_nop 7", "s_branch L_restart")
    C.label("L_fb_hook")
    C(f"v_lshl_add_u32 v62, v0, 4, 0", f"v_add_u32 v62, {MXB}, v62", f"s_cmp_eq_u32 {s(S_FB)}, 1",
      "s_cbranch_scc1 L_fb_scan")
    C("ds_read_b128 v[248:251], v62", "s_waitcnt lgkmcnt(0)")
    C([f"v_mov_b32 {v(V_NEGM + 4 * q)}, {v(248 + q)}" for q in range(4)])
    C("s_branch L_fb_ret")
    C.label("L_fb_scan")
    C(f"s_mov_b32 {s(S_SK)}, 0", f"s_mov_b32 {s(S_CNT)}, 32")
    C.label("L_fb_loop")
    C("s_waitcnt vmcnt(0) lgkmcnt(0)", "s_barrier")
    ops = k_dma(0)
    C(ops[0], "s_nop 0", ops[1:], "s_waitcnt vmcnt(0)", "s_barrier")
    C(k_reads(0, A_KF), "s_waitcnt lgkmcnt(0)", k_reads(1, A_VF), "s_waitcnt lgkmcnt(0)")
    C(qk_mfmas(0, A_KF, True), qk_mfmas(1, A_VF, True), "s_nop 7")
    for u in range(2):
        for q in range(4):
            C(max_ops(u, q, False))
    C(f"s_sub_u32 {s(S_CNT)}, {s(S_CNT)}, 1", f"s_cmp_lg_u32 {s(S_CNT)}, 0", "s_cbranch_scc1 L_fb_loop")
    C(wave_red([V_NEGM + 4 * q for q in range(4)], [V_NEGM + 4 * q + 1 for q in range(4)], "v_max_f32", False))
    C([f"v_mov_b32 {v(248 + q)}, {v(V_NEGM + 4 * q)}" for q in range(4)])
    C("ds_write_b128 v62, v[248:251]", f"s_mov_b32 {s(S_FB)}, 3", "s_waitcnt lgkmcnt(0)", "s_barrier",
      "s_branch L_restart")
    C.label("L_code_end")


def check_order(lines):
    from asmlib import I
    ins = [I(x) for x in lines if not x.endswith(":") and not x.startswith(".")]
    mf = [i for i, x in enumerate(ins) if x.is_mfma]
    for i, x in enumerate(ins):
        if x.op.startswith("v_cvt_pk"):
            r = next(iter(x.w))
            g = sum(1 for m in mf if m < i) - 1
            q = ((r[1] - 192) & 15) >> 2
            if r[1] < 208:
                assert g < 34 + 8 * q + (q >= 2), ("P62 late", x.text, g)
            else:
                assert g < 68 + 8 * q + (q >= 2), ("P63 late", x.text, g)
                last61 = max(k for k, m in enumerate(mf[:34]) if r in ins[m].r)
                assert g >= last61, ("P63 early", x.text, g, last61)
        if x.op == "v_subrev_u32":
            assert sum(1 for m in mf if m < i) - 1 < 84


def kd(name, nfv, acc):
    return f""".p2align 6
.amdhsa_kernel {name}
  .amdhsa_next_free_vgpr {nfv}
  .amdhsa_next_free_sgpr 102
  .amdhsa_accum_offset {acc}
  .amdhsa_group_segment_fixed_size 0
  .amdhsa_kernarg_size 104
  .amdhsa_user_sgpr_count 2
  .amdhsa_user_sgpr_kernarg_segment_ptr 1
  .amdhsa_system_sgpr_workgroup_id_x 1
.end_amdhsa_kernel
"""


def main():
    head = [l for l in open(f"cdna_kernels/{NAME}.s.ref").read().split("\n") if l.startswith(";")]
    head = [l for l in head if "@launch" not in l and "Override launch" not in l and "grid=ceil" not in l]
    out = "\n".join(head) + "\n"
    out += f"; @launch grid=(256,1,1) block=(256,1,1) lds={MAIN_LDS}\n"
    out += '.amdgcn_target "amdgcn-amd-amdhsa--gfx950"\n.text\n'
    name = NAME + "_kernel"
    C = Ctx(Asm())
    gen_main(C)
    pr = check_hazards(C.A.lines)
    for p in pr[:40]:
        print("HAZARD", p, file=sys.stderr)
    bad = len(pr)
    out += f".globl {name}\n.p2align 8\n.type {name},@function\n" + C.A.text()
    out += '.section .rodata,"a"\n' + kd(name, 512, 256)
    open(sys.argv[1], "w").write(out)
    print("hazards:", bad, file=sys.stderr)


main()
```

```python
import math
import sys
from asmlib import Asm, Ctx, Op, Wait, v, a, s, R, f32, check_hazards

NAME = "recurrent_scan__mha_block_cached__mixer_token_mlp__prompt"
OPT = dict(diag=0, bias=96.0, thresh=2.0 ** 60, force_fb=0, pf=1, qpro=16, earlyw=1, tpos=0, hack=0, rank=1, odelay=12, osc=0, qrate=8, spin=0x10000, ocap=3)
for arg in sys.argv[2:]:
    k_, v_ = arg.split("=")
    OPT[k_] = float(v_) if "." in v_ else int(v_)

MB = 1 << 20
WS_XF, WS_HF, WS_OF, WS_UF, WS_S, WS_FLAG, WS_DIAG = 0, 4 * MB, 8 * MB, 24 * MB, 32 * MB, 40 * MB, 64 * MB
FL_O, FL_U, FL_T, FL_X, FL_H, FL_SIZE = 0, 4096, 8192, 16384, 20480, 24576
KA_X, KA_K, KA_V, KA_WQ, KA_WO, KA_W1, KA_B1, KA_W2, KA_B2, KA_OUT, KA_DBG, KA_WS = (
    0, 8, 16, 24, 32, 48, 56, 64, 72, 80, 88, 96)
LOG2E = 1.4426950408889634
QSCALE = LOG2E / math.sqrt(128.0)
MF = "v_mfma_f32_16x16x32_bf16"
OSC = ('', ' sc1', ' nt', ' sc0 sc1')
SPIN = OPT["spin"]


def mfma(d, x, y, c):
    return f"{MF} {d}, {x}, {y}, {c}"


def srd(sr, ptr, off, size):
    return [[f"s_add_u32 {s(sr)}, {s(ptr)}, {off}", f"s_addc_u32 {s(sr + 1)}, {s(ptr + 1)}, 0"],
            f"s_mov_b32 {s(sr + 2)}, {size}", f"s_mov_b32 {s(sr + 3)}, 0x20000"]


def code_srd(sr, start, end, tag):
    return [[f"s_getpc_b64 {s(sr, 2)}", f"L_pc_{tag}:", f"s_add_u32 {s(sr)}, {s(sr)}, {start}-L_pc_{tag}",
             f"s_addc_u32 {s(sr + 1)}, {s(sr + 1)}, 0"],
            f"s_mov_b32 {s(sr + 2)}, {end}-{start}", f"s_mov_b32 {s(sr + 3)}, 0x20000"]


def nops(n):
    return [f"s_nop {n - 1}"] if n > 0 else []


def wave_red(regs, tmp, op="v_add_f32", dpp=True, swaps=("v_permlane16_swap_b32", "v_permlane32_swap_b32")):
    out = []
    if dpp:
        for mod in ("quad_perm:[1,0,3,2]", "quad_perm:[2,3,0,1]", "row_half_mirror", "row_mirror"):
            out += nops(3 - len(regs))
            out += [f"{op}_dpp {v(r)}, {v(r)}, {v(r)} {mod} row_mask:0xf bank_mask:0xf" for r in regs]
    for sw in swaps:
        out += [f"v_mov_b32 {v(t)}, {v(r)}" for r, t in zip(regs, tmp)]
        out += nops(3 - len(regs))
        out += [f"{sw} {v(r)}, {v(t)}" for r, t in zip(regs, tmp)]
        out += [f"{op} {v(r)}, {v(r)}, {v(t)}" for r, t in zip(regs, tmp)]
    return out


class Diag:
    def __init__(self, C, slot):
        self.C, self.slot = C, slot

    def stamp(self, n, mode=1):
        if OPT["diag"] == mode or (OPT["diag"] and self.slot == 2):
            self.C("s_memtime s[98:99]", "s_waitcnt lgkmcnt(0)", f"s_mov_b32 {s(78 + 2 * n)}, s98",
                   "s_memrealtime s[98:99]", "s_waitcnt lgkmcnt(0)", f"s_mov_b32 {s(79 + 2 * n)}, s98")

    def ops(self, n, mode):
        if OPT["diag"] != mode:
            return []
        return [["s_memtime s[98:99]", "s_waitcnt lgkmcnt(0)", f"s_mov_b32 {s(78 + 2 * n)}, s98",
                 "s_memrealtime s[98:99]", "s_waitcnt lgkmcnt(0)", f"s_mov_b32 {s(79 + 2 * n)}, s98"]]

    def flush(self, nmax):
        if not OPT["diag"]:
            return
        C = self.C
        C(f"s_load_dwordx2 s[98:99], s[0:1], {KA_WS}", "s_waitcnt lgkmcnt(0)", "s_lshl_b32 s101, s2, 7",
          f"s_add_u32 s101, s101, {WS_DIAG + self.slot * 65536}")
        C(srd(4, 98, "s101", 128))
        C("v_mov_b32 v1, 0")
        for i in range(2 * nmax):
            C(f"v_mov_b32 v2, {s(78 + i)}", f"buffer_store_dword v2, v1, s[4:7], 0 offen offset:{4 * i}")
        C("v_mov_b32 v2, s100", "buffer_store_dword v2, v1, s[4:7], 0 offen offset:96")
        C("s_waitcnt vmcnt(0)")


V_LANE16 = 1
V_KA, V_VA, V_QA, V_ONE, V_OK, V_OV, V_OW = 4, 8, 16, 20, 24, 28, 32
V_L, V_NEGM, V_WA0, V_IDX, V_PF = 36, 44, 44, 60, 61
V_Q, V_S, V_P, V_ACC = 64, (128, 160), (192, 208), 128
V_B1, V_L0, V_FLG, V_FOFF, V_ONEI, V_XO = 232, 52, 53, 54, 55, 56
A_O, A_KF, A_VF = 0, 128, 160
A_WF = (128, 160)
S_W = 3
SR_ACT, SR_W, SR_K, SR_V, SR_ST = 4, 8, 12, 16, 20
P_K, P_V, P_WQ, P_WS, P_W1, P_B1, P_WO, P_W2, P_X, P_B2, P_OUT = 24, 26, 28, 30, 32, 34, 36, 38, 52, 54, 56
S_SA, S_SW, S_SK, S_SV, S_CNT, S_FB = 40, 41, 42, 43, 44, 45
S_KSTEP, S_VSTEP, S_SPIN, S_RANK = 58, 59, 101, 100
SR_PF, S_PF, S_PFC = 60, 76, 77
SR_ACT2, SR_UST, SR_FLAG, SR_X = 60, 64, 68, 72
S_WSTEP, S_ROLE, S_W0, S_FO, S_FU, S_FS, S_C0 = 58, 42, 43, 76, 77, 59, 59
VBASE, VOTE, MXB = 65536, 131072, 131072 + 64
MAIN_LDS = 131072 + 64 + 4096
WQSTEP, W1STEP = 64 * 8192, 64 * 7168


def ring(idx):
    idx %= 32
    return ("a", 192 + 4 * idx) if idx < 16 else ("v", 64 + 4 * (idx - 16))


def add(d, k, *x):
    d.setdefault(k, []).extend(x)


def v_read_addrs(dst, t0):
    out = [f"v_lshrrev_b32 {v(t0)}, 2, v2", f"v_and_b32 {v(t0 + 1)}, 1, v3",
           f"v_lshl_add_u32 {v(t0 + 1)}, {v(t0 + 1)}, 2, {v(t0)}", f"v_lshl_add_u32 {v(t0)}, v3, 2, {v(t0)}",
           f"v_lshlrev_b32 {v(t0)}, 8, {v(t0)}", f"v_lshl_add_u32 {v(t0)}, {v(t0 + 1)}, 5, {v(t0)}",
           f"v_and_b32 {v(t0 + 1)}, 3, v2", f"v_lshl_add_u32 {v(t0)}, {v(t0 + 1)}, 3, {v(t0)}",
           f"v_add_u32 {v(t0)}, {VBASE}, {v(t0)}"]
    return out + [f"v_xor_b32 {v(dst + b)}, {b * 32}, {v(t0)}" for b in range(8)]


def q_read_addrs(dst, t0):
    out = [f"v_lshrrev_b32 {v(t0)}, 2, v2", f"v_and_b32 {v(t0 + 1)}, 1, v3",
           f"v_lshl_add_u32 {v(t0 + 1)}, {v(t0 + 1)}, 2, {v(t0)}", f"v_lshl_add_u32 {v(t0)}, v3, 2, {v(t0)}",
           f"v_lshlrev_b32 {v(t0)}, 8, {v(t0)}", f"v_lshlrev_b32 {v(t0 + 1)}, 1, {v(t0 + 1)}",
           f"v_and_b32 {v(t0 + 2)}, 3, v2", f"v_xor_b32 {v(t0 + 1)}, {v(t0 + 1)}, {v(t0 + 2)}",
           f"v_lshl_add_u32 {v(t0)}, {v(t0 + 1)}, 4, {v(t0)}", f"v_add_u32 {v(t0)}, {VBASE}, {v(t0)}"]
    return out + [f"v_xor_b32 {v(dst + x)}, {x * 64}, {v(t0)}" for x in range(4)]


def w_dma_offsets(dst, ldw, t0, st):
    out = [f"s_lshr_b32 {s(st)}, {s(S_W)}, 8", f"v_add_u32 {v(t0)}, {s(st)}, v3",
           f"v_mul_u32_u24 {v(t0)}, {ldw}, {v(t0)}", f"v_lshlrev_b32 {v(t0 + 1)}, 1, v3",
           f"v_xor_b32 {v(t0 + 1)}, {v(t0 + 1)}, v2", f"v_lshl_add_u32 {v(dst)}, {v(t0 + 1)}, 4, {v(t0)}",
           f"v_xor_b32 {v(t0 + 1)}, 8, {v(t0 + 1)}", f"v_lshl_add_u32 {v(dst + 1)}, {v(t0 + 1)}, 4, {v(t0)}"]
    if isinstance(ldw, int):
        one, two = 4 * ldw - 1024, 8 * ldw - 2048
    else:
        out += [f"s_lshl_b32 {s(st)}, {ldw}, 2", f"s_sub_u32 {s(st)}, {s(st)}, 1024",
                f"s_lshl_b32 {s(st + 1)}, {s(st)}, 1"]
        one, two = s(st), s(st + 1)
    out += [f"v_add_u32 {v(dst + 1)}, {one}, {v(dst + 1)}", f"v_add_u32 {v(dst + 2)}, {two}, {v(dst)}",
            f"v_add_u32 {v(dst + 3)}, {two}, {v(dst + 1)}"]
    return out


def dma(voff, sr, soff, i, tag):
    return Op(f"buffer_load_dwordx4 {v(voff)}, {s(sr, 4)}, {s(soff)} offen offset:{i * 1024} lds", tag)


def set_m0(off):
    return f"s_add_u32 m0, {s(S_W)}, {off}"


def tr_read(dst, addr, off, tag):
    return Op(f"ds_read_b64_tr_b16 {dst}, {v(addr)} offset:{off}", tag)


def q_act(j, q):
    return Op(f"buffer_load_dwordx4 {R(ring(4 * j + q + 16), 4)}, {v(V_LANE16)}, {s(SR_ACT, 4)}, {s(S_SA)} offen "
              f"offset:{q * 1024} sc1", ("QX", j))


def q_reads(j):
    base = ((j >> 1) & 3) * 16384 + (j & 1) * 8192
    return [tr_read(a(A_WF[j & 1] + 2 * m, 2), V_QA + (m >> 2), base + (m & 1) * 4096 + ((m >> 1) & 1) * 8, ("QT", j))
            for m in range(16)]


def q_mfmas(j, q_outer=False):
    out = []
    for m in range(32):
        b, q = (m & 7, m >> 3) if q_outer else (m >> 2, m & 3)
        acc = v(V_ACC + (b * 4 + q) * 4, 4)
        out.append(mfma(acc, a(A_WF[j & 1] + 4 * b, 4), R(ring(4 * j + q + 16), 4), acc if j else "0"))
    return out


def k_reads(u, dst):
    base = ((u >> 1) & 3) * 16384 + (u & 1) * 8192
    return [Op(f"ds_read_b128 {a(dst + (kb * 4 + ks) * 4, 4)}, {v(V_KA + ks)} offset:{base + kb * 4096}", ("KR", u))
            for kb in range(2) for ks in range(4)]


def v_reads(u, dst):
    base = ((u >> 1) & 3) * 16384 + (u & 1) * 8192
    return [tr_read(a(dst + 2 * m, 2), V_VA + (m >> 1), base + (m & 1) * 4096, ("VR", u)) for m in range(16)]


def k_dma(t):
    tag = ("K", t) if t < 32 else ("W", 2 * (t - 32))
    return ([set_m0((t & 3) * 16384)] + [dma(V_OK + i, SR_K, S_SK, i, tag) for i in range(4)]
            + [f"s_add_u32 {s(S_SK)}, {s(S_SK)}, {s(S_KSTEP)}"])


def v_dma(t):
    tag = ("V", t) if t < 32 else ("W", 2 * (t - 32) + 1)
    return ([set_m0(VBASE + (t & 3) * 16384)] + [dma(V_OV + i, SR_V, S_SV, i, tag) for i in range(4)]
            + [f"s_add_u32 {s(S_SV)}, {s(S_SV)}, {s(S_VSTEP)}"])


def sm_ops(u):
    S, P = V_S[u & 1], V_P[u & 1]
    out = []
    for q in range(4):
        for pr in range(4):
            r0 = S + ((pr >> 1) * 4 + q) * 4 + (pr & 1) * 2
            out += [[f"v_exp_f32 {v(r0)}, {v(r0)}"], [], [f"v_exp_f32 {v(r0 + 1)}, {v(r0 + 1)}"],
                    [f"v_cvt_pk_bf16_f32 {v(P + q * 4 + pr)}, {v(r0)}, {v(r0 + 1)}"]]
    return out


def sm_seq(u, q0, q1):
    ops = sm_ops(u)[16 * q0:16 * q1]
    out, pend = [], None
    for g in range(0, len(ops), 4):
        out += ops[g] + ops[g + 2]
        if pend:
            out += pend
        pend = ops[g + 3]
    return out + [None] + pend


def qk_mfmas(u, kf, zero_c=False, q_outer=False):
    out = []
    order = [(kb, q) for q in range(4) for kb in range(2)] if q_outer else [(kb, q) for kb in range(2) for q in range(4)]
    for kb, q in order:
        d = v(V_S[u & 1] + (kb * 4 + q) * 4, 4)
        for ks in range(4):
            c = d if ks else ("0" if zero_c else v(V_NEGM + 4 * q, 4))
            out.append(mfma(d, a(kf + (kb * 4 + ks) * 4, 4), v(V_Q + (q * 4 + ks) * 4, 4), c))
    return out


def pv_mfmas(u, vf, q_outer=False):
    out = []
    for m in range(32):
        db, q = (m & 7, m >> 3) if q_outer else (m >> 2, m & 3)
        d = a(A_O + (db * 4 + q) * 4, 4)
        out.append(mfma(d, a(vf + 4 * db, 4), v(V_P[u & 1] + 4 * q, 4), d))
    return out


def l_mfma(u, h):
    return f"v_smfmac_f32_16x16x64_bf16 {v(V_L + 4 * h, 4)}, {v(V_ONE, 4)}, {v(V_P[u & 1] + 8 * h, 8)}, {v(V_IDX)}"


def tile_dma(i):
    return k_dma((i + 1) // 2 + 4) if i & 1 else v_dma(i // 2 + 3)


def phase_a(C, i, extra):
    pre = {}
    for g, x in enumerate(v_reads(i, A_VF)[4:]):
        add(pre, 2 * g + 1, x)
    ops = tile_dma(i - 1)
    add(pre, 25, ops[3])
    add(pre, 29, ops[4])
    add(pre, 30, ops[5])
    for g, x in extra:
        add(pre, g, x)
    C.weave(qk_mfmas(i + 2, A_KF), pre, dict(enumerate(sm_ops(i + 1)[:32])))


def phase_b(C, i, extra):
    pre = {}
    for g, x in enumerate(k_reads(i + 3, A_KF)):
        add(pre, 2 * g + 1, x)
    ops = tile_dma(i)
    vr = v_reads(i + 1, A_VF)
    add(pre, 16, ops[0])
    for g, x in zip((17, 19, 21, 25, 27, 29), (ops[1], vr[0], vr[1], ops[2], vr[2], vr[3])):
        add(pre, g, x)
    add(pre, 31, Wait(lg=[("KR", i + 3)], key=("b", i & 7)))
    for g, x in extra:
        add(pre, g, x)
    valu = dict(enumerate(sm_ops(i + 1)[32:]))
    valu[7] = valu[7] + [l_mfma(i, 0)]
    valu[23] = valu[23] + [l_mfma(i, 1)]
    C.weave(pv_mfmas(i, A_VF), pre, valu)


def epoch(C, n, real, skip_first=False):
    p = n & 3
    if not skip_first:
        extra = []
        if OPT["pf"]:
            so = S_PFC if p == 0 else S_PF
            extra.append((23, f"buffer_load_dword v255, {v(V_PF)}, {s(SR_PF + 4 * p, 4)}, {s(so)} offen"))
            if p == 3:
                extra.append((24, f"s_add_u32 {s(S_PF)}, {s(S_PF)}, 8192"))
        if p < 2 and real:
            extra += [(2, f"s_cmp_eq_u32 {s(S_CNT)}, 1"), (4, f"s_cbranch_scc1 L_hook{p}"), (4, f"L_hook{p}_ret:")]
        phase_b(C, 2 * n - 1, extra)
    if p == 0 and real:
        C.label("L_attn_entry")
    phase_a(C, 2 * n, [(31, Wait(lg=[("VR", 2 * n)], key=("a", 2 * p)))])
    phase_b(C, 2 * n, [])
    need = [("K", n + 2)] * (n + 2 < 32) + [("V", n + 1)]
    extra = [(31, Wait(vm=need, lg=["*"], key=("a", 2 * p + 1))), (31, "s_barrier")]
    if p == 2:
        extra = [(26, f"s_sub_u32 {s(S_CNT)}, {s(S_CNT)}, 1")] + extra + [(31, f"s_cmp_eq_u32 {s(S_CNT)}, 0")]
    phase_a(C, 2 * n + 1, extra)
    if real and p == 2:
        C("s_cbranch_scc1 L_attn_tail")
    if real and p == 3:
        C("s_branch L_attn_loop")


def max_ops(u, q, first):
    r = [V_S[u & 1] + (kb * 4 + q) * 4 + j for kb in range(2) for j in range(4)]
    m = v(V_NEGM + 4 * q)
    out = [f"v_max_f32 {m}, {v(r[0])}, {v(r[1])}" if first else f"v_max3_f32 {m}, {v(r[0])}, {v(r[1])}, {m}"]
    return out + [f"v_max3_f32 {m}, {v(r[k])}, {v(r[k + 1])}, {m}" for k in (2, 4, 6)]


def n_act(j, q, sr, sc=" sc1"):
    return Op(f"buffer_load_dwordx4 {R(ring(2 * j + q), 4)}, {v(V_LANE16)}, {s(sr, 4)}, {s(S_SA)} offen "
              f"offset:{(j & 1) * 2048 + q * 1024}{sc}", ("X", j))


def n_reads(j):
    sig = j >> 1
    wa = V_VA if sig & 1 else V_WA0
    base = ((sig >> 1) & 3) * 16384 + (j & 1) * 8192
    return [tr_read(a(A_WF[j & 1] + 2 * m, 2), wa + (m >> 1), base + (m & 1) * 4096, ("T", j, m >> 3))
            for m in range(16)]


def n_m0(sig):
    return (sig & 1) * VBASE + ((sig >> 1) & 3) * 16384


LEAD = 7


def n_step(C, j, act_is_a, loop, extra=(), bg=None, cap=2, more_vm=(), wrap=False):
    mf, pre = [], {}
    for m in range(16):
        b, q = m >> 1, m & 1
        wf, xf = a(A_WF[j & 1] + 4 * b, 4), R(ring(2 * j + q), 4)
        acc = v(V_ACC + (b * 2 + q) * 4, 4)
        c = acc if j else v(V_ACC + (b * 2 + 1) * 4, 4)
        mf.append(mfma(acc, xf, wf, c) if act_is_a else mfma(acc, wf, xf, c))
    sig = (j + 11) // 2
    jx = j + 15 if j + 15 < 64 else (j + LEAD if j + LEAD >= 64 else None)
    if j & 1:
        if not loop and jx is not None:
            add(pre, 0, f"s_mov_b32 {s(S_SA)}, {(jx % 64) * 2048}")
        add(pre, 2, set_m0(n_m0(sig)))
        add(pre, 3, f"s_mov_b32 {s(S_SW)}, {sig * W1STEP}" if sig < 32 else
            f"s_mov_b32 {s(S_SW)}, {s(S_W0)}" if sig == 32 else f"s_add_u32 {s(S_SW)}, {s(S_SW)}, {s(S_WSTEP)}")
        if wrap:
            add(pre, 4, [f"s_cmp_eq_u32 {s(S_SW)}, {3584 * 4096}", f"s_cselect_b32 {s(S_SW)}, 0, {s(S_SW)}"])
    elif loop:
        add(pre, 10, f"s_add_u32 {s(S_SA)}, {s(S_SA)}, 4096")
        if wrap:
            add(pre, 11, [f"s_cmp_eq_u32 {s(S_SA)}, 229376", f"s_cselect_b32 {s(S_SA)}, 0, {s(S_SA)}"])
    if wrap and j & 15 in (4, 8):
        r = (SR_W if j & 15 == 4 else SR_ACT2) + 2
        add(pre, 14, [f"s_cmp_eq_u32 {s(S_CNT)}, 1", f"s_cselect_b32 {s(r)}, 0, {s(r)}"])
    for m, x in enumerate(n_reads(j + 1)):
        add(pre, m, x)
    ow, srw = (V_OK, SR_K) if sig < 32 else (V_OW, SR_W)
    i0 = 0 if j & 1 else 2
    if jx is not None:
        add(pre, 1, n_act(jx, 0, SR_ACT if jx < 64 else SR_ACT2))
        add(pre, 9, n_act(jx, 1, SR_ACT if jx < 64 else SR_ACT2))
    add(pre, 5, dma(ow + i0, srw, S_SW, i0, ("W", sig)))
    add(pre, 13, dma(ow + i0 + 1, srw, S_SW, i0 + 1, ("W", sig)))
    kk = (lambda x: (x, j & 15)) if loop else (lambda x: None)
    add(pre, 7, Wait(lg=[("T", j, 1)], key=kk("h")))
    need = list(more_vm) + ([("X", j + 1)] if j >= 63 else [])
    if j & 3 == 2:
        need += [("W", (j >> 1) + 1), ("W", (j >> 1) + 2)] + [("X", k) for k in range(j + 1, min(j + 5, 64))]
    add(pre, 15, Wait(vm=need, lg=[("T", j + 1, 0)], key=kk("e")))
    if j & 3 == 2:
        add(pre, 15, "s_barrier")
    for g, x in extra:
        add(pre, g, x)
    C.weave(mf, pre, {}, bg, cap)


def n_loop(C, name, trips, mlp2):
    def extras(j, real):
        e = []
        if mlp2 and j & 15 == 13:
            e.append((3, f"buffer_load_dword {v(V_FLG)}, {v(V_FOFF)}, {s(SR_FLAG, 4)}, {s(S_FO)} offen sc1"))
        if real and j & 15 == 3:
            e.append((6, [f"s_cmp_ge_u32 {s(S_CNT)}, {trips - mlp2}", f"s_cbranch_scc1 L_hook_{name}",
                          f"L_hook_{name}_ret:"]))
        if real and j & 15 == 15:
            e += [(10, f"s_sub_u32 {s(S_CNT)}, {s(S_CNT)}, 1"), (11, f"s_cmp_lg_u32 {s(S_CNT)}, 0"),
                  (15, f"s_cbranch_scc1 L_{name}_loop")]
        return e
    sim = C.clone_dry()
    sim.record = {}
    for j in range(64, 64 + 16 * trips):
        n_step(sim, j, mlp2, True, extras(j, False), wrap=mlp2)
    C(f"s_mov_b32 {s(S_CNT)}, {trips}", ".p2align 6")
    C.label(f"L_{name}_loop")
    C.fixed = sim.record
    for j in range(80, 96):
        n_step(C, j, mlp2, True, extras(j, True), wrap=mlp2)
    C.fixed = None
    C.vm, C.lg = sim.vm, sim.lg


def poll(C, name, soff, sr=None, wide=False):
    sr = SR_FLAG if sr is None else sr
    so = s(soff) if soff is not None else "0"
    C(f"s_mov_b32 {s(S_SPIN)}, {SPIN}")
    C.label(f"L_poll_{name}")
    if wide:
        C(f"buffer_load_dwordx4 v[56:59], {v(V_LANE16)}, {s(sr, 4)}, {so} offen sc1")
    else:
        C(f"buffer_load_dword {v(V_FLG)}, {v(V_FOFF)}, {s(sr, 4)}, {so} offen sc1")
    C(f"s_sub_u32 {s(S_SPIN)}, {s(S_SPIN)}, 1", f"s_cbranch_scc1 L_poll_{name}_out", "s_waitcnt vmcnt(0)")
    if wide:
        C("v_min3_u32 v56, v56, v57, v58", f"v_min_u32 {v(V_FLG)}, v56, v59")
    C(f"v_cmp_eq_u32 vcc, 0, {v(V_FLG)}", "s_nop 1", "s_cmp_lg_u64 vcc, 0", f"s_cbranch_scc1 L_poll_{name}")
    C.label(f"L_poll_{name}_out")


def flag_store(soff):
    return f"buffer_store_dword {v(V_ONEI)}, {v(V_L0)}, {s(SR_FLAG, 4)}, {s(soff)} offen sc1"


def pk(op, d, *src):
    return f"v_pk_{op}_f32 {v(d, 2)}, " + ", ".join(x if isinstance(x, str) else v(x, 2) for x in src)


def rank_test():
    return [["s_and_b32 s48, s2, 7", f"v_add_u32 v62, -1, {v(V_FLG)}"],
            ["v_cmp_gt_u32 vcc, 4, v62", f"v_readlane_b32 s49, {v(V_FLG)}, s48"],
            ["s_and_b32 s48, vcc_lo, 0xff", "s_bcnt1_i32_b32 s48, s48"],
            [f"s_sub_u32 {s(S_RANK)}, s49, 1" if OPT["rank"] else f"s_mov_b32 {s(S_RANK)}, s2",
             f"s_and_b32 {s(S_RANK)}, {s(S_RANK)}, 7"],
            [f"s_bitcmp1_b32 {s(S_RANK)}, 2", "s_cselect_b32 s48, s48, 4"],
            ["s_cmp_eq_u32 s48, 4", "s_cselect_b32 s49, s49, 0"]]


def mlp1_ids():
    return ["s_lshr_b32 s48, s2, 3", ["s_cmp_lt_u32 s48, 28", "s_cselect_b32 s51, -1, 0"],
            "s_and_b32 s49, s2, 4", "s_and_b32 s50, s48, 3", "s_add_u32 s49, s49, s50",
            "s_and_b32 s50, s2, 3", "s_mul_i32 s50, s50, 7", "s_lshr_b32 s48, s48, 2",
            "s_add_u32 s50, s50, s48", "s_and_b32 s50, s50, s51", "s_lshl_b32 s49, s49, 2",
            f"s_lshr_b32 s48, {s(S_W)}, 12", "s_add_u32 s49, s49, s48"]


LN_RS = 2080
SR_LX, SR_LO, SR_DBG = 12, 16, 20
P_DBG = 50


def ln_addr(C):
    C("v_lshrrev_b32 v132, 5, v0", "v_lshrrev_b32 v133, 2, v132", "v_lshlrev_b32 v133, 4, v133",
      "v_and_b32 v134, 3, v132", "v_add_u32 v133, v133, v134", "v_and_b32 v134, 31, v0",
      "v_lshlrev_b32 v134, 4, v134", "v_lshl_add_u32 v133, v133, 11, v134")
    C("v_mov_b64 v[128:129], 0", "v_mov_b64 v[130:131], 0")
    C("s_lshr_b32 s48, s2, 2", "s_and_b32 s49, s2, 3", "s_lshl_b32 s48, s48, 3", "s_add_u32 s48, s48, s49",
      "s_lshl_b32 s49, s48, 13")


def ln_loads(C):
    C(srd(SR_LX, P_X, "s49", 40960))
    C(f"s_or_b32 s48, s2, {s(S_W)}", "s_cbranch_scc0 L_clear")
    C.label("L_clear_ret")
    for t in range(4):
        C(Op(f"buffer_load_dwordx4 {v(144 + 4 * t, 4)}, v133, {s(SR_LX, 4)}, 0 offen offset:{512 * t}", "x"))
    C(srd(SR_DBG, P_DBG, 0, 256))
    C(f"s_or_b32 s48, s2, {s(S_W)}", "s_cbranch_scc1 L_no_go")
    C.A("s_waitcnt vmcnt(4)", f"buffer_store_dword {v(V_ONEI)}, {v(V_L0)}, {s(SR_DBG, 4)}, 0 offen sc1")
    C.label("L_no_go")


def ln_clear(C):
    C.label("L_clear")
    C(srd(SR_FLAG, P_WS, WS_FLAG, FL_SIZE))
    for i in range(5):
        C(f"s_movk_i32 s48, {FL_X + 4096 * (i >> 2)}",
          f"buffer_store_dwordx4 v[128:131], {v(V_LANE16)}, {s(SR_FLAG, 4)}, s48 offen offset:{1024 * (i & 3)} sc1")
    C("s_branch L_clear_ret")


def ln_compute(C, D, touch, early):
    X, RAW, HB = 160, 144, 8 * LN_RS
    half = ("v_permlane16_swap_b32",)
    C(srd(SR_LO, P_WS, 0, 8 * MB))
    C("v_lshlrev_b32 v135, 2, v0", "v_lshrrev_b32 v136, 4, v0", "v_lshl_add_u32 v135, v136, 20, v135",
      "s_lshl_b32 s48, s2, 6", f"buffer_store_dword v128, v135, {s(SR_FLAG, 4)}, s48 offen sc1")
    C(f"v_mul_u32_u24 v135, {LN_RS}, v132", "v_add_u32 v135, v135, v134")
    C("v_and_b32 v140, 7, v0", "v_bfe_u32 v141, v0, 3, 2")
    C(f"v_mul_u32_u24 v136, {LN_RS}, v140", "v_lshl_add_u32 v136, v132, 6, v136", "v_lshl_add_u32 v136, v141, 3, v136")
    C("v_lshlrev_b32 v137, 12, v132", "v_lshl_add_u32 v137, v141, 8, v137", "v_lshrrev_b32 v141, 2, v140",
      "v_lshl_add_u32 v137, v141, 10, v137", "v_and_b32 v141, 3, v140", "v_lshl_add_u32 v137, v141, 4, v137")
    C("v_bfe_u32 v138, v0, 2, 2", f"v_mul_u32_u24 v138, {LN_RS}, v138", "v_lshl_add_u32 v138, v132, 6, v138",
      "v_bfe_u32 v141, v0, 4, 1", "v_lshl_add_u32 v138, v141, 3, v138", "v_and_b32 v140, 3, v0",
      "v_lshl_add_u32 v138, v140, 4, v138")
    C("v_lshlrev_b32 v139, 17, v132", "v_lshl_add_u32 v139, v141, 10, v139", "v_lshl_add_u32 v139, v2, 4, v139")
    C("s_lshr_b32 s42, s2, 3", "s_lshl_b32 s42, s42, 17", "s_bfe_u32 s48, s2, 0x10002", "s_lshl_b32 s48, s48, 11",
      "s_add_u32 s42, s42, s48", "s_and_b32 s49, s2, 3", "s_lshl_b32 s48, s49, 6", "s_add_u32 s42, s42, s48")
    C("s_lshr_b32 s43, s2, 2", "s_lshl_b32 s43, s43, 11", "s_lshl_b32 s48, s49, 8", "s_add_u32 s43, s43, s48",
      f"s_add_u32 s43, s43, {WS_HF}")
    C("s_lshr_b32 s58, s2, 3", "s_lshl_b32 s58, s58, 7", "s_and_b32 s48, s2, 7", "s_lshl_b32 s48, s48, 2",
      "s_add_u32 s58, s58, s48", f"s_lshl_b32 s48, {s(S_W)}, 8", "s_add_u32 s58, s58, s48",
      f"s_add_u32 s58, s58, {FL_X}")
    C(f"s_mov_b32 s48, {f32(-1.0 / 1024)}", f"s_mov_b32 s49, {f32(1e-5)}", f"s_mov_b32 s50, {f32(QSCALE)}",
      f"v_mov_b32 {v(V_FOFF)}, 0")
    if OPT["tpos"] == 0:
        C(touch)
    D.stamp(1, 3)
    C(Wait(vm=["x"]))
    D.stamp(2, 3)
    D.stamp(1, 4)
    C(Op(f"buffer_load_dword {v(V_FLG)}, {v(V_FOFF)}, {s(SR_DBG, 4)}, 0 offen sc1", "go"))
    for i in range(16):
        if OPT["tpos"] == 1 and i % 3 == 0 and touch:
            C(touch.pop(0))
        C(f"v_lshlrev_b32 {v(X + 2 * i)}, 16, {v(RAW + i)}", f"v_and_b32 {v(X + 2 * i + 1)}, 0xffff0000, {v(RAW + i)}")
    D.stamp(2, 4)
    C(pk("add", 192, X, X + 2), pk("add", 194, X + 4, X + 6))
    for i in range(4, 16, 2):
        C(pk("add", 192, 192, X + 2 * i), pk("add", 194, 194, X + 2 * i + 2))
    C(pk("add", 192, 192, 194), "v_add_f32 v192, v192, v193")
    C(wave_red([192], [194], swaps=half))
    C("v_mul_f32 v192, s48, v192", "v_mov_b32 v193, v192")
    C([pk("add", X + 2 * i, X + 2 * i, 192) for i in range(16)])
    C(pk("mul", 192, X, X), pk("mul", 194, X + 2, X + 2))
    for i in range(2, 16, 2):
        C(pk("fma", 192, X + 2 * i, X + 2 * i, 192), pk("fma", 194, X + 2 * i + 2, X + 2 * i + 2, 194))
    C(pk("add", 192, 192, 194), "v_add_f32 v192, v192, v193")
    C(wave_red([192], [194], swaps=half))
    C("v_mov_b32 v196, s49", "v_fma_f32 v196, -v192, s48, v196", "v_rsq_f32 v196, v196", "s_nop 0",
      "v_mul_f32 v198, s50, v196", "v_mov_b32 v197, v196", "v_mov_b32 v199, v198")
    for t in range(4):
        C([pk("mul", 200 + 2 * i, X + 8 * t + 2 * i, 198) for i in range(4)])
        C([f"v_cvt_pk_bf16_f32 {v(RAW + 4 * t + i)}, {v(200 + 2 * i)}, {v(201 + 2 * i)}" for i in range(4)])
        C(f"ds_write_b128 v135, {v(RAW + 4 * t, 4)} offset:{512 * t}")
    D.stamp(3, 4)
    C("s_waitcnt lgkmcnt(0)", "s_barrier")
    D.stamp(4, 4)
    for t in range(4):
        C(Op(f"ds_read2_b64 {v(208 + 4 * t, 4)}, v136 offset0:{64 * t} offset1:{64 * t + 4}", ("xr", t)))
    for t in range(4):
        C(Wait(lg=[("xr", t)]), Op(f"buffer_store_dwordx4 {v(208 + 4 * t, 4)}, v137, {s(SR_LO, 4)}, s42 offen sc1", "xs"),
          "s_add_u32 s42, s42, 32768")
    D.stamp(5, 4)
    if OPT["tpos"] == 2:
        C(touch)
    D.stamp(6, 4)
    C(early)
    D.stamp(7, 4)
    D.stamp(3, 3)
    C([pk("mul", X + 2 * i, X + 2 * i, 196) for i in range(16)])
    C(pk("add", 192, X, X + 2), pk("mul", 194, X, X), pk("fma", 194, X + 2, X + 2, 194))
    for i in range(2, 16):
        C(pk("add", 192, 192, X + 2 * i), pk("fma", 194, X + 2 * i, X + 2 * i, 194))
    C("v_add_f32 v192, v192, v193", "v_add_f32 v193, v194, v195")
    C(wave_red([192, 193], [194, 195], swaps=half))
    C("v_mul_f32 v192, s48, v192", "v_mul_f32 v193, s48, v193", "v_fma_f32 v193, -v192, v192, -v193",
      "v_max_f32 v193, 0, v193", "v_add_f32 v193, s49, v193", "v_rsq_f32 v196, v193", "s_nop 0",
      "v_mul_f32 v198, v192, v196", "v_mov_b32 v197, v196", "v_mov_b32 v199, v198")
    for t in range(4):
        C([pk("fma", 200 + 2 * i, X + 8 * t + 2 * i, 196, 198) for i in range(4)])
        C([f"v_cvt_pk_bf16_f32 {v(RAW + 4 * t + i)}, {v(200 + 2 * i)}, {v(201 + 2 * i)}" for i in range(4)])
        C(f"ds_write_b128 v135, {v(RAW + 4 * t, 4)} offset:{HB + 512 * t}")
    D.stamp(4, 3)
    C(Wait(vm=["xs"]), f"v_cmp_eq_u32 vcc, 0, {v(V_FLG)}", "s_nop 1", "s_cmp_lg_u64 vcc, 0", "s_cbranch_scc1 L_spin_go")
    C.label("L_spin_go_ret")
    D.stamp(5, 3)
    D.stamp(8, 4)
    C("s_waitcnt lgkmcnt(0)", "s_barrier")
    C(flag_store(58), f"v_bfe_u32 {v(V_FOFF)}, {v(V_LANE16)}, 2, 5", "s_lshl_b32 s58, s47, 7",
      f"s_add_u32 s58, s58, {FL_X}")
    for t in range(4):
        C(f"ds_read_b64_tr_b16 {v(224 + 4 * t, 2)}, v138 offset:{HB + 512 * t}",
          Op(f"ds_read_b64_tr_b16 {v(226 + 4 * t, 2)}, v138 offset:{HB + 4 * LN_RS + 512 * t}", ("hr", t)))
    poll(C, "x", 58)


def ln_h_stores():
    out = []
    for t in range(4):
        out += [Wait(lg=[("hr", t)]),
                Op(f"buffer_store_dwordx4 {v(224 + 4 * t, 4)}, v139, {s(SR_LO, 4)}, s43 offen sc1", "hs"),
                f"s_add_u32 s43, s43, {MB}"]
    return out


def gen_main(C):
    D = Diag(C, 0)
    C.label(NAME + "_kernel")
    C("s_cmp_ge_u32 s2, 256", "s_cbranch_scc1 L_end")
    D.stamp(0)
    D.stamp(0, 3)
    D.stamp(0, 4)
    D.stamp(0, 5)
    C(f"s_load_dwordx2 {s(P_X, 2)}, s[0:1], {KA_X}",
      f"s_load_dwordx2 {s(P_WQ, 2)}, s[0:1], {KA_WQ}", f"s_load_dwordx2 {s(P_WS, 2)}, s[0:1], {KA_WS}",
      f"s_load_dwordx4 {s(P_K, 4)}, s[0:1], {KA_K}", f"s_load_dwordx4 {s(P_W1, 4)}, s[0:1], {KA_W1}",
      f"s_load_dwordx2 {s(P_WO, 2)}, s[0:1], {KA_WO}", f"s_load_dwordx2 {s(P_W2, 2)}, s[0:1], {KA_W2}",
      f"s_load_dwordx2 {s(P_B2, 2)}, s[0:1], {KA_B2}",
      f"s_load_dwordx2 {s(P_OUT, 2)}, s[0:1], {KA_OUT}", f"s_load_dwordx2 {s(P_DBG, 2)}, s[0:1], {KA_DBG}")
    C(f"s_mov_b32 {s(S_FB)}, 0")
    C.label("L_restart")
    C(f"v_lshlrev_b32 {v(V_PF)}, 5, v0")
    C(code_srd(SR_PF, "L_early_code", "L_attn_tail", "a"))
    if OPT["pf"]:
        C(f"buffer_load_dword v60, {v(V_PF)}, {s(SR_PF, 4)}, 0 offen")
    C.label("L_early_code")
    C("v_and_b32 v1, 63, v0", "v_lshrrev_b32 v2, 6, v0", "v_lshrrev_b32 v3, 4, v1",
      f"v_readfirstlane_b32 {s(S_W)}, v2", "v_and_b32 v2, 15, v1", "v_lshlrev_b32 v1, 4, v1",
      f"s_lshl_b32 {s(S_W)}, {s(S_W)}, 12")
    C(f"v_lshlrev_b32 {v(V_L0)}, 16, {v(V_LANE16)}", f"v_mov_b32 {v(V_ONEI)}, 1")
    ln_addr(C)
    C(f"s_cmp_lg_u32 {s(S_FB)}, 0", "s_cbranch_scc1 L_skip_ln0", "s_waitcnt lgkmcnt(0)")
    ln_loads(C)
    C.label("L_skip_ln0")
    C("s_and_b32 s46, s2, 31", "s_lshr_b32 s47, s2, 5", "s_lshl_b32 s47, s47, 2", f"s_lshr_b32 s48, {s(S_W)}, 12",
      "s_add_u32 s47, s47, s48")
    C(w_dma_offsets(V_OW, 8192, 62, 48))
    C(f"s_bfe_u32 {s(S_PFC)}, s2, 0x20003", f"s_add_u32 {s(S_PFC)}, {s(S_PFC)}, 1",
      f"s_lshl_b32 {s(S_PFC)}, {s(S_PFC)}, 13")
    C("s_lshl_b32 s59, s2, 2", f"s_add_u32 s59, s59, {FL_H}", f"s_lshl_b32 s48, {s(S_W)}, 8", "s_add_u32 s59, s59, s48")
    C(srd(SR_FLAG, P_WS, WS_FLAG, FL_SIZE))
    C("s_lshl_b32 s48, s46, 8", f"s_sub_u32 s49, {8 * MB}, s48", "s_lshl_b32 s50, s47, 17")
    C(srd(SR_W, P_WQ, "s48", "s49"), srd(SR_ACT, P_WS, "s50", 131072))
    C("s_lshl_b32 s48, s2, 15", srd(SR_PF + 4, P_WQ, "s48", 32768))
    C(q_read_addrs(V_QA, V_NEGM))

    st = []

    def grp(setup, ops, earliest, post=None):
        for i, o in enumerate(ops):
            st.append((setup if i == 0 else [], o, earliest, post if i == len(ops) - 1 else None))

    def gW(e):
        grp([set_m0(VBASE + (e & 3) * 16384), f"s_mov_b32 {s(S_SW)}, {e * WQSTEP}"],
            [dma(V_OW + i, SR_W, S_SW, i, ("QW", e)) for i in range(4)], 2 * e - 7)

    def gX(j):
        grp([f"s_mov_b32 {s(S_SA)}, {j * 4096}"], [q_act(j, q) for q in range(4)], j - 7)

    def gT(ops, earliest):
        grp([ops[0]], ops[1:5], earliest, ops[5])
    nw = OPT["earlyw"]
    for e in range(nw):
        gW(e)
    early = [[setup, o] for setup, o, _, _ in st]
    st.clear()
    touch = []
    if OPT["pf"]:
        touch = [[f"s_movk_i32 s51, {8192 * i}", f"buffer_load_dword v60, {v(V_PF)}, {s(SR_PF + 4, 4)}, s51 offen"]
                 for i in range(4)]
        touch.append([f"buffer_load_dword v60, {v(V_PF)}, {s(SR_PF, 4)}, {s(S_PFC)} offen"])
    C(f"s_cmp_lg_u32 {s(S_FB)}, 0", "s_cbranch_scc1 L_skip_ln1")
    if OPT["hack"]:
        C(early, "L_spin_go_ret:", "v_mov_b32 v139, 0", "s_mov_b32 s43, 0", srd(SR_LO, P_WS, 0, 0), f"v_mov_b32 {v(V_FOFF)}, 0")
        C.lg += [("hr", t) for t in range(4)]
        xt = [["s_lshl_b32 s48, s2, 14"] + srd(72, P_WS, "s48", 16384)] + [[f"s_movk_i32 s51, {8192 * i}", f"buffer_load_dword v60, {v(V_PF)}, s[72:75], s51 offen"] for i in range(2)]
        touch = xt + touch
    else:
        ln_compute(C, D, touch, early)
    C.label("L_skip_ln1_ret")
    D.stamp(6, 3)
    D.stamp(9, 4)
    gX(0)
    for e in range(1, 16):
        if e >= nw:
            gW(e)
        gX(2 * e - 1); gX(2 * e)
    gX(31)
    for ops, t in ((k_dma(0), 25), (k_dma(1), 26), (v_dma(0), 27), (k_dma(2), 28), (v_dma(1), 29), (k_dma(3), 30),
                   (v_dma(2), 31)):
        gT(ops, t)
    for n in range(OPT["qpro"]):
        setup, o, _, _ = st.pop(0)
        C(setup, o)
    if OPT["hack"] == 2:
        C(touch)
    C(f"s_cmp_lg_u32 {s(S_FB)}, 0", "s_cbranch_scc1 L_skip_ln2")
    C(ln_h_stores())
    C.label("L_skip_ln2_ret")
    C(Wait(vm=[("QW", 0)]), "s_barrier")
    C(q_reads(0))
    bg = ["s_lshl_b32 s48, s46, 19"] + srd(SR_K, P_K, "s48", 524288) + srd(SR_V, P_V, "s48", 524288)
    bg += ["s_lshl_b32 s48, s47, 19", "s_lshl_b32 s49, s46, 13", "s_add_u32 s48, s48, s49",
           f"s_add_u32 s48, s48, {WS_OF}"] + srd(SR_ST, P_WS, "s48", 262144 + 8192)
    bg += ["s_mul_i32 s48, s2, 57344"]
    bg += srd(SR_PF + 4, P_W1, "s48", 57344)
    bg += ["s_lshl_b32 s48, s2, 15"] + srd(SR_PF + 12, P_WO, "s48", 32768)
    bg += [f"s_mov_b32 {s(x)}, 0" for x in (S_PF, S_SK, S_SV)]
    bg += [f"s_movk_i32 {s(S_KSTEP)}, 0x4000", f"s_mov_b32 {s(S_CNT)}, 8"]
    bg1 = ["s_mul_i32 s48, s2, 57344"] + srd(SR_PF + 8, P_W2, "s48", 57344) + [f"s_movk_i32 {s(S_VSTEP)}, 0x4000"]
    t0 = V_NEGM
    bg += v_read_addrs(V_VA, t0)
    bg += [f"v_xor_b32 {v(t0)}, v2, v3", f"v_lshlrev_b32 {v(t0)}, 4, {v(t0)}", f"v_lshl_add_u32 {v(t0)}, v2, 8, {v(t0)}"]
    bg += [f"v_xor_b32 {v(V_KA + ks)}, {ks * 64}, {v(t0)}" for ks in range(4)]
    bg += [f"v_lshlrev_b32 {v(t0)}, 8, v3", f"v_add_u32 {v(t0)}, {s(S_W)}, {v(t0)}", f"v_xor_b32 {v(t0 + 1)}, v2, v3"]
    for i in range(4):
        bg += [f"v_xor_b32 {v(t0 + 2)}, {4 * i}, {v(t0 + 1)}", f"v_lshl_add_u32 {v(V_OK + i)}, {v(t0 + 2)}, 4, {v(t0)}"]
    bg += [f"v_lshlrev_b32 {v(t0 + 1)}, 1, v3", f"v_xor_b32 {v(t0 + 1)}, {v(t0 + 1)}, v2"]
    for i in range(4):
        bg += [f"v_xor_b32 {v(t0 + 2)}, {8 * (i & 1)}, {v(t0 + 1)}",
               f"v_lshl_add_u32 {v(V_OV + i)}, {v(t0 + 2)}, 4, {v(t0)}"]
    bg += [f"v_lshrrev_b32 {v(t0)}, 1, v2", f"v_lshrrev_b32 {v(t0 + 1)}, 1, v3",
           f"v_cmp_eq_u32 vcc, {v(t0)}, {v(t0 + 1)}", f"v_mov_b32 {v(t0)}, 0x3f803f80", f"v_and_b32 {v(t0 + 1)}, 1, v2"]
    bg += [f"v_cndmask_b32 {v(V_ONE + i)}, 0, {v(t0)}, vcc" for i in range(4)]
    bg += [f"v_mul_u32_u24 {v(t0 + 1)}, 0xaaaa, {v(t0 + 1)}", f"v_add_u32 {v(V_IDX)}, 0x4444, {v(t0 + 1)}"]
    bg += [f"v_mov_b32 {v(V_L + i)}, 0" for i in range(8)]
    bg += [f"v_accvgpr_write_b32 {a(A_O + i)}, 0" for i in range(128)]
    bg2 = mlp1_ids() + ["s_lshl_b32 s48, s49, 17", f"s_add_u32 s48, s48, {WS_HF}", "s_and_b32 s49, s51, 131072"]
    bg2 += srd(SR_ACT, P_WS, "s48", "s49")
    bg2 += ["s_lshl_b32 s48, s50, 8", "s_and_b32 s49, s51, 256"] + srd(SR_W, P_B1, "s48", "s49")
    bg2 += code_srd(SR_PF, "L_attn_tail", "L_code_end", "b")
    bg2 += [f"s_bfe_u32 {s(S_PFC)}, s2, 0x30003", f"s_lshl_b32 {s(S_PFC)}, {s(S_PFC)}, 13"]
    C(Wait(vm=[("QX", 0)], lg=[("QT", 0)]))
    D.stamp(1)
    D.stamp(7, 3)
    C.label("L_q_code")
    tg = [g for g in range(24) if g % 3 != 2]
    for j in range(32):
        pre = {}
        reads = q_reads(j + 1) if j < 31 else k_reads(0, A_KF)
        for g, x in zip(tg, reads):
            add(pre, g, x)
        mine = []
        while st and st[0][2] <= j and len(mine) < OPT["qrate"]:
            mine.append(st.pop(0))
        for n, (setup, o, _, post) in enumerate(mine):
            g = 2 + (n * 30) // max(len(mine), 1)
            for k, x in enumerate(setup):
                pre.setdefault(g - len(setup) + k, []).insert(0, x)
            add(pre, g, o)
            if post:
                pre.setdefault(g + 1, []).insert(0, post)
        if j == 31:
            break
        if j & 1:
            add(pre, 31, Wait(lg=[("QT", j + 1)]))
        else:
            need = [("QW", j // 2 + 1), ("QX", j + 1), ("QX", j + 2)] if j < 30 else [("QX", 31), ("K", 0)]
            need += {4: ["hs"], 18: ["fh"]}.get(j, [])
            add(pre, 31, Wait(vm=need, lg=[("QT", j + 1)]), "s_barrier")
        if j in (24, 30):
            add(pre, 30, *D.ops(1 if j == 24 else 2, 5))
        if j == 5:
            add(pre, 0, flag_store(59))
            add(pre, 30, f"s_movk_i32 s59, {FL_H}")
        if j in (9, 21) and OPT["pf"]:
            add(pre, 30, f"buffer_load_dword v63, {v(V_PF)}, {s(SR_PF, 4)}, {s(S_PFC)} offen")
        if j == 13:
            add(pre, 0, Op(f"buffer_load_dwordx4 v[56:59], {v(V_LANE16)}, {s(SR_FLAG, 4)}, s59 offen sc1", "fh"))
        if j == 19:
            assert not bg
            bg = ["v_min3_u32 v56, v56, v57, v58", f"v_min_u32 {v(V_FLG)}, v56, v59", f"v_cmp_eq_u32 vcc, 0, {v(V_FLG)}",
                  None, None, ["s_cmp_lg_u64 vcc, 0", "s_cbranch_scc1 L_spin_h", "L_spin_h_ret:"]] + bg1
        if j == 26:
            assert not bg
            bg = bg2
        C.weave(q_mfmas(j), pre, {}, bg)
    assert not bg and not st
    D.stamp(2)
    D.stamp(3, 5)
    D.stamp(8, 3)
    add(pre, 31, Wait(lg=[("KR", 0)]), *D.ops(4, 5))
    add(pre, 47, *D.ops(5, 5))
    add(pre, 49, *D.ops(6, 5))
    add(pre, 95, *D.ops(7, 5))
    for g, x in enumerate(k_reads(1, A_VF)):
        add(pre, 32 + g, x)
    add(pre, 48, Wait(vm=[("K", 1), ("V", 0)], lg=[("KR", 1)]), "s_barrier")
    kd = k_dma(4)
    g = 34
    for j in range(8):
        if j & 1 == 0:
            pre.setdefault(g - 1, []).insert(0, f"s_mov_b32 {s(S_SA)}, {j * 2048}")
        add(pre, g, n_act(j, 0, SR_ACT))
        add(pre, g + 4, n_act(j, 1, SR_ACT))
        g += 8
    for g, x in enumerate(k_reads(2, A_KF)):
        add(pre, 65 + 2 * g, x)
    bg = []
    for q in range(4):
        bg.append(("at", 8 * q + 6))
        for b in range(8):
            src, F = V_ACC + (b * 4 + q) * 4, V_Q + (q * 4 + (b >> 1)) * 4 + 2 * (b & 1)
            bg.append(("at", 8 * q + b + 5))
            bg += [f"v_cvt_pk_bf16_f32 {v(F + i)}, {v(src + 2 * i)}, {v(src + 2 * i + 1)}" for i in range(2)]
    for u in range(2):
        for q in range(4):
            bg.append(("at", 32 + 32 * u + 8 * q + 14))
            bg += max_ops(u, q, u == 0)
    C.weave(q_mfmas(31, True) + qk_mfmas(0, A_KF, True, True) + qk_mfmas(1, A_VF, True, True), pre, {}, bg)
    C(kd[0], v_reads(0, A_VF)[:4], kd[1])
    C(nops(2))
    C.drain(bg)
    C(wave_red([V_NEGM + 4 * q for q in range(4)], [V_NEGM + 4 * q + 1 for q in range(4)], "v_max_f32", False))
    C(f"s_cmp_lg_u32 {s(S_FB)}, 0", "s_cbranch_scc1 L_fb_hook")
    C.label("L_fb_ret")
    for q in range(4):
        C(f"v_sub_f32 {v(V_NEGM + 4 * q)}, {f32(-OPT['bias'])}, {v(V_NEGM + 4 * q)}")
    for q in range(4):
        C(f"v_mov_b32 {v(V_NEGM + 4 * q + 1)}, {v(V_NEGM + 4 * q)}")
    for q in range(4):
        C(f"v_mov_b64 {v(V_NEGM + 4 * q + 2, 2)}, {v(V_NEGM + 4 * q, 2)}")
    for u in range(2):
        for k in range(16):
            C(pk("add", V_S[u] + 2 * k, V_S[u] + 2 * k, V_NEGM + 4 * ((k >> 1) & 3)))
    C(kd[2], [x if x else "s_nop 0" for x in sm_seq(0, 0, 4)])
    C(Wait(lg=[("KR", 2)]))
    D.stamp(3)
    D.stamp(8, 5)
    C("s_branch L_attn_entry")
    sim = C.clone_dry()
    sim.record = {}
    for n in range(31):
        epoch(sim, n, False, n == 0)
    C(".p2align 6")
    C.label("L_attn_loop")
    C.fixed = sim.record
    for n in range(4, 8):
        epoch(C, n, True)
    C.fixed = None
    C.vm, C.lg = sim.vm, sim.lg
    C.label("L_hook0")
    C(mlp1_ids(), "s_lshl_b32 s48, s50, 8", f"s_sub_u32 s49, {2048 * 7168}, s48", "s_and_b32 s49, s49, s51")
    C(srd(SR_K, P_W1, "s48", "s49"), w_dma_offsets(V_OK, 7168, 250, 48))
    C(f"s_mov_b32 {s(S_SK)}, 0", f"s_mov_b32 {s(S_KSTEP)}, {2 * W1STEP}")
    C(srd(SR_FLAG, P_WS, WS_FLAG, FL_SIZE))
    C("s_lshr_b32 s48, s2, 3", f"s_or_b32 s48, s48, {s(S_W)}", f"s_or_b32 s48, s48, {s(S_FB)}", "s_min_u32 s48, s48, 1",
      "s_lshl_b32 s48, s48, 20", f"v_lshl_add_u32 v253, {v(V_LANE16)}, 16, s48", "v_mov_b32 v252, 1",
      f"s_movk_i32 s48, {FL_T}")
    C.A(f"buffer_atomic_add v252, v253, {s(SR_FLAG, 4)}, s48 offen sc0 sc1")
    C("s_lshr_b32 s48, s47, 1", "s_lshl_b32 s48, s48, 3", "s_and_b32 s49, s46, 7", "s_add_u32 s48, s48, s49",
      "s_lshl_b32 s48, s48, 3", "s_and_b32 s49, s47, 1", "s_lshl_b32 s49, s49, 2", "s_add_u32 s48, s48, s49",
      "s_lshr_b32 s49, s46, 3", "s_add_u32 s48, s48, s49", "s_lshl_b32 s48, s48, 12", f"s_add_u32 s48, s48, {WS_S}")
    C(srd(SR_X, P_WS, "s48", 4096), "v_mov_b64 v[224:225], -1", "v_mov_b64 v[226:227], -1")
    for i in range(2):
        C.A(f"buffer_store_dwordx4 v[224:227], {v(V_LANE16)}, {s(SR_X, 4)}, 0 offen offset:{1024 * i} sc1")
    C("s_branch L_hook0_ret")
    C.label("L_hook1")
    C(f"s_mov_b64 {s(SR_V, 2)}, {s(SR_K, 2)}", f"s_mov_b32 {s(SR_V + 2)}, {s(SR_K + 2)}")
    C([f"v_mov_b32 {v(V_OV + i)}, {v(V_OK + i)}" for i in range(4)])
    C("v_lshlrev_b32 v250, 3, v3")
    for b in range(8):
        C.A(f"buffer_load_dwordx2 {v(V_B1 + 2 * b, 2)}, v250, {s(SR_W, 4)}, 0 offen offset:{32 * b}")
    for i in range(2, 4):
        C.A(f"buffer_store_dwordx4 v[224:227], {v(V_LANE16)}, {s(SR_X, 4)}, 0 offen offset:{1024 * i} sc1")
    C(f"s_mov_b32 {s(S_SV)}, {W1STEP}", f"s_mov_b32 {s(S_VSTEP)}, {2 * W1STEP}", "s_branch L_hook1_ret")
    C(".p2align 6")
    C.label("L_attn_tail")
    D.stamp(4)
    D.stamp(9, 5)
    mf = pv_mfmas(61, A_VF, True)
    mf = mf[:4] + [l_mfma(61, 0)] + mf[4:12] + [l_mfma(61, 1)] + mf[12:]
    m2 = pv_mfmas(62, A_KF, True)
    mf += m2[:16] + [l_mfma(62, 0)] + m2[16:] + [l_mfma(62, 1)]
    m3 = pv_mfmas(63, A_VF, True)
    mf += m3[:16] + [l_mfma(63, 0)] + m3[16:24] + [l_mfma(63, 1)] + m3[24:]
    pre = {}
    for g, x in enumerate(v_reads(62, A_KF)):
        add(pre, (3 * g) // 2 + 2, x)
    add(pre, 33, Wait(lg=[("VR", 62)]))
    for g, x in enumerate(v_reads(63, A_VF)):
        add(pre, 36 + (3 * g) // 2, x)
    add(pre, 67, Wait(vm=[("W", 0), ("W", 1), ("X", 2)], lg=[("VR", 63)]), "s_barrier")
    g = 3
    for j in range(8, 15):
        if j & 1 == 0:
            pre.setdefault(g - 1, []).insert(0, f"s_mov_b32 {s(S_SA)}, {j * 2048}")
        add(pre, g, n_act(j, 0, SR_ACT))
        add(pre, g + 3, n_act(j, 1, SR_ACT))
        g += 6 if j != 11 else 16
    add(pre, 0, [f"s_and_b32 {s(S_FS)}, s2, 7", f"s_lshl_b32 {s(S_FS)}, {s(S_FS)}, 7",
                 f"s_add_u32 {s(S_FS)}, {s(S_FS)}, {FL_T + 128}"], "v_add_u32 v252, 1, v252")
    add(pre, 1, f"buffer_store_dword v252, v253, {s(SR_FLAG, 4)}, {s(S_FS)} offen sc1")
    add(pre, 70, set_m0(n_m0(5)))
    add(pre, 71, f"s_mov_b32 {s(S_SW)}, {5 * W1STEP}")
    add(pre, 72, dma(V_OK, SR_K, S_SW, 0, ("W", 5)))
    add(pre, 76, dma(V_OK + 1, SR_K, S_SW, 1, ("W", 5)))
    for g, x in enumerate(n_reads(0)):
        add(pre, 84 + g, x)
    add(pre, 101, Wait(lg=[("T", 0, 0)]))
    bg = sm_seq(62, 2, 4) + sm_seq(63, 0, 4)
    bg += [f"v_subrev_u32 {v(V_WA0 + b)}, {VBASE}, {v(V_VA + b)}" for b in range(8)]
    bg.append(("at", 68))
    for b in range(8):
        d = V_ACC + (b * 2 + 1) * 4
        for i in range(2):
            bg += [f"v_lshlrev_b32 {v(d + 2 * i)}, 16, {v(V_B1 + 2 * b + i)}",
                   f"v_and_b32 {v(d + 2 * i + 1)}, 0xffff0000, {v(V_B1 + 2 * b + i)}"]
    n0 = len(C.A.lines)
    C.weave(mf, pre, {}, bg, cap=3)
    assert not bg, len(bg)
    check_order(C.A.lines[n0:])
    D.stamp(5)
    T = 192
    bg = [("at", 2)] + [f"v_add_f32 {v(V_L + 2 * q)}, {v(V_L + 2 * q)}, {v(V_L + 2 * q + 1)}" for q in range(4)]
    bg += wave_red([V_L + 2 * q for q in range(4)], [V_L + 2 * q + 1 for q in range(4)], dpp=False)
    bg += [f"s_mov_b32 s48, {f32(OPT['thresh'])}",
           f"v_add_f32 v63, {v(V_L)}, {v(V_L + 2)}", f"v_add_f32 v62, {v(V_L + 4)}, {v(V_L + 6)}",
           "v_add_f32 v62, v62, v63", "v_cmp_nge_f32 vcc, s48, v62", f"v_mov_b32 v63, {s(S_W)}",
           "v_lshrrev_b32 v63, 10, v63", f"v_add_u32 v63, {VOTE}, v63",
           ["s_cmp_lg_u64 vcc, 0", f"s_cselect_b32 s48, 1, {OPT['force_fb']}"], "v_mov_b32 v62, s48",
           Op("ds_write_b32 v63, v62", "vote")]
    bg += [f"v_rcp_f32 {v(V_L + 2 * q)}, {v(V_L + 2 * q)}" for q in range(4)]
    bg += [f"v_mov_b32 v63, {VOTE}"]
    n = 0
    for q in range(4):
        for p in range(4):
            t = T + (n & 1) * 12
            bg += [f"v_accvgpr_read_b32 {v(t + i)}, {a(A_O + ((2 * p + (i >> 2)) * 4 + q) * 4 + (i & 3))}"
                   for i in range(8)]
            bg += [f"v_mul_f32 {v(t + i)}, {v(t + i)}, {v(V_L + 2 * q)}" for i in range(8)]
            bg += [f"v_cvt_pk_bf16_f32 {v(t + 8 + i)}, {v(t + 2 * i)}, {v(t + 2 * i + 1)}" for i in range(4)]
            bg += [f"s_mov_b32 s49, {(q >> 1) * 262144 + (p >> 1) * 4096}",
                   Op(f"buffer_store_dwordx4 {v(t + 8, 4)}, {v(V_LANE16)}, {s(SR_ST, 4)}, s49 offen "
                      f"offset:{(p & 1) * 2048 + (q & 1) * 1024} sc1", "O")]
            n += 1
    bg += [f"v_lshlrev_b32 {v(V_L0)}, 16, {v(V_LANE16)}", f"v_mov_b32 {v(V_ONEI)}, 1",
           f"s_lshl_b32 {s(S_FO)}, s47, 5", f"s_add_u32 {s(S_FO)}, {s(S_FO)}, s46", f"s_lshl_b32 {s(S_FO)}, {s(S_FO)}, 2"]
    isM = f"s_bitcmp1_b32 {s(S_RANK)}, 2"
    fin = [f"s_and_b32 s48, {s(S_RANK)}, 1", "s_lshl_b32 s48, s48, 2", "s_movk_i32 s50, 99", f"s_mov_b32 {s(S_C0)}, 0"]
    for c in range(4):
        fin += [None, f"v_readlane_b32 s49, {v(V_FLG)}, s48", None, "s_sub_u32 s49, s49, 1",
                ["s_cmp_lt_u32 s49, 4", "s_cselect_b32 s49, s49, 99"],
                ["s_cmp_lt_u32 s49, s50", f"s_cselect_b32 {s(S_C0)}, {c}, {s(S_C0)}"], "s_min_u32 s50, s50, s49",
                "s_add_u32 s48, s48, 1"]
    fin += [[isM, f"s_cselect_b32 {s(S_ROLE)}, -1, 0"], f"s_and_b32 {s(S_C0)}, {s(S_C0)}, {s(S_ROLE)}",
            f"s_mul_i32 {s(S_W0)}, {s(S_C0)}, {14 * 64 * 4096}"]
    fin += mlp1_ids() + ["s_mul_i32 s48, s49, 229376", "s_lshl_b32 s46, s50, 13", "s_add_u32 s48, s48, s46",
                         f"s_add_u32 s48, s48, {WS_UF}", "s_and_b32 s46, s51, 8192"] + srd(SR_UST, P_WS, "s48", "s46")
    fin += [f"s_lshl_b32 {s(S_FU)}, s49, 5", f"s_add_u32 {s(S_FU)}, {s(S_FU)}, s50", f"s_lshl_b32 {s(S_FU)}, {s(S_FU)}, 2",
            f"s_add_u32 {s(S_FU)}, {s(S_FU)}, {FL_U}", "s_andn2_b32 s48, 0x100000, s51",
            f"s_or_b32 {s(S_FU)}, {s(S_FU)}, s48"]
    fin += ["s_lshr_b32 s50, s2, 3", f"s_bfe_u32 s46, {s(S_RANK)}, 0x10001", "s_lshl_b32 s46, s46, 3",
            "s_lshr_b32 s51, s50, 2", "s_add_u32 s46, s46, s51", f"s_and_b32 s47, {s(S_RANK)}, 1",
            "s_lshl_b32 s47, s47, 2", "s_and_b32 s51, s50, 3", "s_add_u32 s47, s47, s51",
            [isM, f"s_cselect_b64 {s(SR_W, 2)}, {s(P_W2, 2)}, {s(P_WO, 2)}"],
            [isM, "s_cselect_b32 s48, s46, s47"], "s_lshl_b32 s48, s48, 8",
            f"s_mov_b32 s50, {8 * MB}", [isM, f"s_cselect_b32 s49, {3584 * 4096}, s50"],
            "s_sub_u32 s49, s49, s48"] + srd(SR_W, SR_W, "s48", "s49")
    fin += ["s_movk_i32 s50, 0x800", [isM, "s_cselect_b32 s50, 4096, s50"],
            f"s_lshl_b32 {s(S_WSTEP)}, s50, 6"] + w_dma_offsets(V_OW, "s50", 62, 48)
    fin += [f"s_lshr_b32 s48, {s(S_W)}, 12", "s_lshl_b32 s50, s46, 2", "s_add_u32 s50, s50, s48",
            "s_lshl_b32 s50, s50, 18", f"s_add_u32 s50, s50, {WS_OF}", "s_lshl_b32 s51, s47, 2",
            "s_add_u32 s51, s51, s48", "s_mul_i32 s48, s51, 229376", f"s_add_u32 s48, s48, {WS_UF}",
            [isM, "s_cselect_b32 s48, s48, s50"], f"s_andn2_b32 s49, 262144, {s(S_ROLE)}"]
    fin += srd(SR_ACT2, P_WS, "s48", "s49")
    fin += ["s_lshl_b32 s48, s46, 18", "s_lshl_b32 s49, s51, 6", "s_add_u32 s48, s48, s49",
            f"s_sub_u32 s49, {4 * MB}, s48", f"s_and_b32 s49, s49, {s(S_ROLE)}"]
    fin += srd(SR_X, P_X, "s48", "s49") + srd(SR_V, P_OUT, "s48", "s49")
    fin += [f"s_lshl_b32 {s(S_FO)}, s46, 8", f"v_lshrrev_b32 {v(V_FOFF)}, 2, {v(V_LANE16)}",
            "s_lshl_b32 s50, s46, 3", "s_add_u32 s50, s50, s47", "s_lshl_b32 s50, s50, 15",
            f"s_add_u32 s50, s50, {WS_S}"]
    fin += srd(SR_ST, P_WS, "s50", 32768)
    fin += [f"v_lshlrev_b32 {v(V_XO)}, 11, v2", f"v_lshl_add_u32 {v(V_XO)}, v3, 4, {v(V_XO)}", "v_lshlrev_b32 v62, 1, v2"]
    XR, SRG = 192, 224
    late = ["s_lshl_b32 s48, s46, 8", f"s_and_b32 s49, 256, {s(S_ROLE)}"] + srd(SR_ACT, P_B2, "s48", "s49")
    late += [Op(f"buffer_load_ushort {v(224 + b)}, v62, {s(SR_ACT, 4)}, 0 offen offset:{32 * b}", "b2") for b in range(8)]
    xl = [[f"s_mov_b32 s48, {b * 32768}", f"buffer_load_dwordx4 {v(XR + 4 * b, 4)}, {v(V_XO)}, {s(SR_X, 4)}, s48 offen"]
          for b in range(8)]
    last = [f"s_lshl_b32 {s(S_FO)}, s51, 7", f"s_add_u32 {s(S_FO)}, {s(S_FO)}, {FL_U}",
            f"v_min_u32 v63, 24, {v(V_FOFF)}", f"s_mul_i32 s48, {s(S_C0)}, 28", "v_add_u32 v63, s48, v63",
            f"v_min_u32 {v(V_FOFF)}, 108, {v(V_FOFF)}"]
    fl_at = None
    for j in range(64):
        extra, more = [], []
        if j == 2:
            extra = [(14, Wait(lg=["vote"]))]
        if j == 3:
            extra = [(3, Op("ds_read_b128 v[248:251], v63", "voter"))]
        if j == 4:
            extra = [(2, Wait(lg=["voter"])), (3, "v_or3_b32 v248, v248, v249, v250"), (4, "v_or_b32 v248, v248, v251"),
                     (6, "v_readfirstlane_b32 s48, v248"),
                     (8, [f"s_andn2_b32 s48, s48, {s(S_FB)}", "s_cbranch_scc1 L_fallback"])]
        if fl_at is None and not bg and "O" not in C.vm[-OPT["odelay"]:]:
            fl_at = j
            extra = [(2, Wait(vm=["O"])), (3, flag_store(S_FO)), (4, f"s_movk_i32 {s(S_FS)}, {FL_T + 128}"),
                     (6, f"v_bfe_u32 {v(V_FOFF)}, {v(V_LANE16)}, 4, 3"), (8, f"v_lshlrev_b32 {v(V_FOFF)}, 7, {v(V_FOFF)}"),
                     (11, Op(f"buffer_load_dword {v(V_FLG)}, {v(V_FOFF)}, {s(SR_FLAG, 4)}, {s(S_FS)} offen sc1", "rk"))]
        if fl_at is not None and j == fl_at + 6:
            extra = [(0, Wait(vm=["rk"]))] + [(2 + 2 * k, x) for k, x in enumerate(rank_test())]
            extra += [(14, ["s_cmp_eq_u32 s49, 0", "s_cbranch_scc1 L_spin_r", "L_spin_r_ret:"])]
        if fl_at is not None and j == fl_at + 7:
            bg = fin
        if j == 49:
            assert not fin
            extra = [(1, Op(f"buffer_load_dword {v(V_FLG)}, {v(V_FOFF)}, {s(SR_FLAG, 4)}, {s(S_FO)} offen sc1", "fo"))]
            bg = late
        if 51 <= j < 55:
            assert not late
            for g in (1, 9):
                x = xl.pop(0)
                extra += [(g - 1, x[0]), (g, x[1])]
        if j == 55:
            more = ["fo"]
        if j == 56:
            extra = [(2, f"v_cmp_eq_u32 vcc, 0, {v(V_FLG)}"),
                     (6, ["s_cmp_lg_u64 vcc, 0", "s_cbranch_scc1 L_spin_o", "L_spin_o_ret:"])]
        if j == 57:
            bg = last
        if j == 62:
            more = ["b2"]
        if j % 8 == 0:
            D.stamp(j // 8, 2)
        n_step(C, j, False, False, extra, bg, OPT["ocap"] if j < 20 else 2, more)
    assert not last
    print("O flag stored in step", fl_at, file=sys.stderr)
    D.stamp(6)
    D.stamp(8, 2)
    C0 = -2.0 * math.sqrt(2.0 / math.pi) * LOG2E
    C(Op(f"buffer_load_dword {v(V_FLG)}, v63, {s(SR_FLAG, 4)}, {s(S_FO)} offen sc1", "fu"))
    C(f"s_mov_b32 s48, {f32(C0 * 0.044715)}", "s_mov_b32 s49, s48", "s_mov_b32 s50, 1.0", "s_mov_b32 s51, 1.0",
      f"v_mov_b32 v4, {f32(C0)}", f"v_mov_b32 v5, {f32(C0)}", "s_movk_i32 s44, 0x1000")

    def gelu(p, fill):
        for q in range(2):
            t = 232 + q * 12
            src = [V_ACC + ((2 * p + (i >> 1)) * 2 + q) * 4 + (i & 1) * 2 for i in range(4)]
            for k, grp in enumerate((
                    [pk("mul", t + 2 * i, src[i], src[i]) for i in range(4)],
                    [pk("fma", t + 2 * i, t + 2 * i, "s[48:49]", 4) for i in range(4)],
                    [pk("mul", t + 2 * i, t + 2 * i, src[i]) for i in range(4)],
                    [f"v_exp_f32 {v(t + i)}, {v(t + i)}" for i in range(8)],
                    [pk("add", t + 2 * i, t + 2 * i, "s[50:51]") for i in range(4)],
                    [f"v_rcp_f32 {v(t + i)}, {v(t + i)}" for i in range(8)],
                    [pk("mul", t + 2 * i, t + 2 * i, src[i]) for i in range(4)],
                    [f"v_cvt_pk_bf16_f32 {v(t + 8 + i)}, {v(t + 2 * i)}, {v(t + 2 * i + 1)}" for i in range(4)])):
                C(grp)
                if fill and k in (0, 3, 5):
                    C(fill.pop(0))
            C(Op(f"buffer_store_dwordx4 {v(t + 8, 4)}, {v(V_LANE16)}, {s(SR_UST, 4)}, {'s44' if p >> 1 else '0'} offen "
                 f"offset:{(p & 1) * 2048 + q * 1024} sc1", "U"))
        for b in (2 * p, 2 * p + 1):
            C([f"v_lshlrev_b32 {v(V_ACC + b * 8 + i)}, 16, {v(224 + b)}" for i in range(2)])
            C([f"v_mov_b64 {v(V_ACC + b * 8 + 2 * i, 2)}, {v(V_ACC + b * 8, 2)}" for i in range(1, 4)])
        if fill:
            C(fill.pop(0))
    gelu(0, None)
    gelu(1, None)
    C(isM, "s_cbranch_scc1 L_mlp2")
    vm0, lg0 = list(C.vm), list(C.lg)
    gelu(2, None)
    gelu(3, None)
    D.stamp(7)
    n_loop(C, "oproj", 8, False)
    D.stamp(8)
    C(f"s_lshl_b32 s48, {s(S_W)}, 1", "s_add_u32 s49, s48, 4096", "s_nop 1")
    for p in range(4):
        for sb in range(2):
            t = T + 4 * (p * 2 + sb)
            C([f"v_cvt_pk_bf16_f32 {v(t + i)}, {v(V_ACC + ((2 * p + (i >> 1)) * 2 + sb) * 4 + (i & 1) * 2)}, "
               f"{v(V_ACC + ((2 * p + (i >> 1)) * 2 + sb) * 4 + (i & 1) * 2 + 1)}" for i in range(4)])
        C([f"v_min_u32 {v(T + 8 * p + i)}, -2, {v(T + 8 * p + i)}" for i in range(8)])
        for sw in ("v_permlane32_swap_b32", "v_permlane16_swap_b32"):
            C([f"{sw} {v(T + 8 * p + 4 * sb + i)}, {v(T + 8 * p + 4 * sb + 2 + i)}" for sb in range(2) for i in range(2)])
        for sb in range(2):
            C(f"buffer_store_dwordx4 {v(T + 8 * p + 4 * sb, 4)}, {v(V_LANE16)}, {s(SR_ST, 4)}, {s(48 + sb)} offen "
              f"offset:{1024 * p} sc1")
    C("s_branch L_done")
    C.label("L_hook_oproj")
    C.A("s_waitcnt vmcnt(14)", flag_store(S_FU), "s_branch L_hook_oproj_ret")
    C.vm, C.lg = vm0, lg0
    C.label("L_mlp2")
    C(Wait(vm=["fu"]), f"v_cmp_eq_u32 vcc, 0, {v(V_FLG)}", f"s_mul_i32 s46, {s(S_C0)}, {28 * 2048}", "s_nop 0",
      "s_cmp_lg_u64 vcc, 0", f"s_cselect_b32 {s(SR_ACT2 + 2)}, 0, 229376")

    def u_loads():
        out = []
        for j in range(64, 64 + LEAD):
            out.append(([f"s_add_u32 {s(S_SA)}, s46, {(j - 64) * 2048}"] if j & 1 == 0 else []) + [n_act(j, 0, SR_ACT2)])
            out.append([n_act(j, 1, SR_ACT2)])
        return out
    fill = u_loads()
    gelu(2, fill)
    gelu(3, fill)
    assert not fill
    C(f"s_cmp_eq_u32 {s(SR_ACT2 + 2)}, 0", "s_cbranch_scc1 L_u_late")
    C.label("L_u_late_ret")
    u_order = C.vm[-(2 * LEAD + 4):]
    C(Wait(vm=[("X", 64)]))
    D.stamp(7)
    n_loop(C, "mlp2", 7, True)
    D.stamp(8)

    def s_loads():
        C(f"s_lshr_b32 s47, {s(S_W)}, 2")
        for b in range(8):
            C(f"buffer_load_dwordx4 {v(SRG + 4 * b, 4)}, {v(V_LANE16)}, {s(SR_ST, 4)}, s47 offen sc1",
              "s_add_u32 s47, s47, 4096")
    s_loads()
    C(f"s_mov_b32 s48, {f32(-LOG2E)}", "s_mov_b32 s49, s48", "s_mov_b32 s50, 1.0", "s_mov_b32 s51, 1.0",
      f"s_mov_b32 {s(S_SPIN)}, {SPIN}")

    def silu(b):
        t, src = 8, V_ACC + 8 * b
        C([pk("mul", t + 2 * i, src + 2 * i, "s[48:49]") for i in range(4)])
        C([f"v_exp_f32 {v(t + i)}, {v(t + i)}" for i in range(8)])
        C([pk("add", t + 2 * i, t + 2 * i, "s[50:51]") for i in range(4)])
        C([f"v_rcp_f32 {v(t + i)}, {v(t + i)}" for i in range(8)])
        C([pk("mul", src + 2 * i, t + 2 * i, src + 2 * i) for i in range(4)])
    for b in range(8):
        silu(b)
    C.label("L_s_check")
    C("s_waitcnt vmcnt(0)", f"v_max_u32 v8, {v(SRG)}, {v(SRG + 1)}")
    C([f"v_max3_u32 v8, {v(SRG + 2 * i)}, {v(SRG + 2 * i + 1)}, v8" for i in range(1, 16)])
    C("v_cmp_eq_u32 vcc, -1, v8", "s_nop 1", "s_cmp_lg_u64 vcc, 0", "s_cbranch_scc1 L_s_late")
    C.label("L_combine")
    for b in range(8):
        t, src = 8 + (b & 1) * 20, V_ACC + 8 * b
        C(f"s_mov_b32 s48, {b * 32768}")
        for i in range(4):
            C(f"v_lshlrev_b32 {v(t + 2 * i)}, 16, {v(SRG + 4 * b + i)}",
              f"v_and_b32 {v(t + 2 * i + 1)}, 0xffff0000, {v(SRG + 4 * b + i)}",
              f"v_lshlrev_b32 {v(t + 8 + 2 * i)}, 16, {v(XR + 4 * b + i)}",
              f"v_and_b32 {v(t + 9 + 2 * i)}, 0xffff0000, {v(XR + 4 * b + i)}")
        C([pk("fma", t + 2 * i, t + 2 * i, src + 2 * i, t + 8 + 2 * i) for i in range(4)])
        C([f"v_cvt_pk_bf16_f32 {v(t + 16 + i)}, {v(t + 2 * i)}, {v(t + 2 * i + 1)}" for i in range(4)])
        C(f"buffer_store_dwordx4 {v(t + 16, 4)}, {v(V_XO)}, {s(SR_V, 4)}, s48 offen" + OSC[OPT["osc"]])
    C.label("L_done")
    C("s_waitcnt vmcnt(0) lgkmcnt(0)")
    D.stamp(9)
    D.stamp(9, 2)
    D.stamp(9, 3)
    D.flush(10)
    C.label("L_end")
    C("s_endpgm")
    C.label("L_s_late")
    C(f"s_sub_u32 {s(S_SPIN)}, {s(S_SPIN)}, 1", "s_cbranch_scc1 L_combine")
    s_loads()
    C("s_branch L_s_check")
    C.label("L_spin_r")
    C(f"s_mov_b32 {s(S_SPIN)}, {SPIN}")
    C.label("L_poll_r")
    C(f"buffer_load_dword {v(V_FLG)}, {v(V_FOFF)}, {s(SR_FLAG, 4)}, {s(S_FS)} offen sc1", "s_waitcnt vmcnt(0)")
    for x in rank_test():
        C(x, "s_nop 3")
    C(f"s_sub_u32 {s(S_SPIN)}, {s(S_SPIN)}, 1", "s_cbranch_scc1 L_spin_r_ret", "s_cmp_eq_u32 s49, 0",
      "s_cbranch_scc1 L_poll_r", "s_branch L_spin_r_ret")
    C.label("L_u_late")
    C("s_waitcnt vmcnt(0)", flag_store(S_FU), f"v_mov_b32 v62, {v(V_FOFF)}", f"v_mov_b32 {v(V_FOFF)}, v63")
    poll(C, "u", S_FO)
    C(f"v_mov_b32 {v(V_FOFF)}, v62", f"s_mov_b32 {s(SR_ACT2 + 2)}, 229376")
    fill = u_loads()
    for tag in u_order:
        C(f"buffer_load_dword v4, {v(V_L0)}, {s(SR_FLAG, 4)}, 0 offen" if tag == "U" else fill.pop(0))
    assert not fill
    C("s_branch L_u_late_ret")
    C.label("L_hook_mlp2")
    C(f"s_cmp_eq_u32 {s(S_CNT)}, 7", "s_cbranch_scc0 L_hook_mlp2_b")
    C("s_waitcnt vmcnt(14)", flag_store(S_FU), "s_branch L_hook_mlp2_ret")
    C.label("L_hook_mlp2_b")
    C("s_waitcnt vmcnt(25)", f"v_cmp_eq_u32 vcc, 0, {v(V_FLG)}", "s_nop 1", "s_cmp_lg_u64 vcc, 0",
      "s_cbranch_scc0 L_hook_mlp2_ret")
    poll(C, "u2", S_FO)
    C("s_branch L_hook_mlp2_ret")
    C.label("L_spin_o")
    poll(C, "o", S_FO)
    C("s_branch L_spin_o_ret")
    C.label("L_spin_go")
    poll(C, "go", None, SR_DBG)
    C("s_branch L_spin_go_ret")
    C.label("L_spin_h")
    poll(C, "h", 59, None, True)
    C("s_branch L_spin_h_ret")
    ln_clear(C)
    C.label("L_skip_ln1")
    C(early, "s_branch L_skip_ln1_ret")
    C.label("L_skip_ln2")
    C("s_waitcnt vmcnt(0)", "s_branch L_skip_ln2_ret")
    C.label("L_fallback")
    C(f"s_mov_b32 {s(S_FB)}, 1", "s_waitcnt vmcnt(0) lgkmcnt(0)", "s_barrier", "s_nop 7", "s_branch L_restart")
    C.label("L_fb_hook")
    C(f"v_lshl_add_u32 v62, v0, 4, 0", f"v_add_u32 v62, {MXB}, v62", f"s_cmp_eq_u32 {s(S_FB)}, 1",
      "s_cbranch_scc1 L_fb_scan")
    C("ds_read_b128 v[248:251], v62", "s_waitcnt lgkmcnt(0)")
    C([f"v_mov_b32 {v(V_NEGM + 4 * q)}, {v(248 + q)}" for q in range(4)])
    C("s_branch L_fb_ret")
    C.label("L_fb_scan")
    C(f"s_mov_b32 {s(S_SK)}, 0", f"s_mov_b32 {s(S_CNT)}, 32")
    C.label("L_fb_loop")
    C("s_waitcnt vmcnt(0) lgkmcnt(0)", "s_barrier")
    ops = k_dma(0)
    C(ops[0], "s_nop 0", ops[1:], "s_waitcnt vmcnt(0)", "s_barrier")
    C(k_reads(0, A_KF), "s_waitcnt lgkmcnt(0)", k_reads(1, A_VF), "s_waitcnt lgkmcnt(0)")
    C(qk_mfmas(0, A_KF, True), qk_mfmas(1, A_VF, True), "s_nop 7")
    for u in range(2):
        for q in range(4):
            C(max_ops(u, q, False))
    C(f"s_sub_u32 {s(S_CNT)}, {s(S_CNT)}, 1", f"s_cmp_lg_u32 {s(S_CNT)}, 0", "s_cbranch_scc1 L_fb_loop")
    C(wave_red([V_NEGM + 4 * q for q in range(4)], [V_NEGM + 4 * q + 1 for q in range(4)], "v_max_f32", False))
    C([f"v_mov_b32 {v(248 + q)}, {v(V_NEGM + 4 * q)}" for q in range(4)])
    C("ds_write_b128 v62, v[248:251]", f"s_mov_b32 {s(S_FB)}, 3", "s_waitcnt lgkmcnt(0)", "s_barrier",
      "s_branch L_restart")
    C.label("L_code_end")


def check_order(lines):
    from asmlib import I
    ins = [I(x) for x in lines if not x.endswith(":") and not x.startswith(".")]
    mf = [i for i, x in enumerate(ins) if x.is_mfma]
    for i, x in enumerate(ins):
        if x.op.startswith("v_cvt_pk"):
            r = next(iter(x.w))
            g = sum(1 for m in mf if m < i) - 1
            q = ((r[1] - 192) & 15) >> 2
            if r[1] < 208:
                assert g < 34 + 8 * q + (q >= 2), ("P62 late", x.text, g)
            else:
                assert g < 68 + 8 * q + (q >= 2), ("P63 late", x.text, g)
                last61 = max(k for k, m in enumerate(mf[:34]) if r in ins[m].r)
                assert g >= last61, ("P63 early", x.text, g, last61)
        if x.op == "v_subrev_u32":
            assert sum(1 for m in mf if m < i) - 1 < 84


def kd(name, nfv, acc):
    return f""".p2align 6
.amdhsa_kernel {name}
  .amdhsa_next_free_vgpr {nfv}
  .amdhsa_next_free_sgpr 102
  .amdhsa_accum_offset {acc}
  .amdhsa_group_segment_fixed_size 0
  .amdhsa_kernarg_size 104
  .amdhsa_user_sgpr_count 2
  .amdhsa_user_sgpr_kernarg_segment_ptr 1
  .amdhsa_system_sgpr_workgroup_id_x 1
.end_amdhsa_kernel
"""


def main():
    head = [l for l in open(f"cdna_kernels/{NAME}.s.ref").read().split("\n") if l.startswith(";")]
    head = [l for l in head if "@launch" not in l and "Override launch" not in l and "grid=ceil" not in l]
    out = "\n".join(head) + "\n"
    out += f"; @launch grid=(256,1,1) block=(256,1,1) lds={MAIN_LDS}\n"
    out += '.amdgcn_target "amdgcn-amd-amdhsa--gfx950"\n.text\n'
    name = NAME + "_kernel"
    C = Ctx(Asm())
    gen_main(C)
    pr = check_hazards(C.A.lines)
    for p in pr[:40]:
        print("HAZARD", p, file=sys.stderr)
    bad = len(pr)
    out += f".globl {name}\n.p2align 8\n.type {name},@function\n" + C.A.text()
    out += '.section .rodata,"a"\n' + kd(name, 512, 256)
    open(sys.argv[1], "w").write(out)
    print("hazards:", bad, file=sys.stderr)


main()
```

```python
import re
import struct


def v(i, n=1):
    return f"v{i}" if n == 1 else f"v[{i}:{i + n - 1}]"


def a(i, n=1):
    return f"a{i}" if n == 1 else f"a[{i}:{i + n - 1}]"


def s(i, n=1):
    return f"s{i}" if n == 1 else f"s[{i}:{i + n - 1}]"


def R(reg, n=1, off=0):
    k, i = reg
    return (v if k == "v" else a)(i + off, n)


def f32(x):
    return "0x%08x" % struct.unpack("<I", struct.pack("<f", x))[0]


class Asm:
    def __init__(self):
        self.lines = []

    def __call__(self, *txt):
        for t in txt:
            for ln in t.split("\n"):
                ln = ln.strip()
                if ln:
                    self.lines.append(ln)

    def label(self, name):
        self.lines.append(name + ":")

    def nop(self, n):
        while n > 0:
            k = min(n, 16)
            self.lines.append(f"s_nop {k - 1}")
            n -= k

    def text(self):
        out = []
        for ln in self.lines:
            if ln.endswith(":") or ln.startswith(".") or ln.startswith(";"):
                out.append(ln)
            else:
                out.append("    " + ln)
        return "\n".join(out) + "\n"


def weave(A, mfmas, pre, valu):
    for i, m in enumerate(mfmas):
        A(m)
        for x in pre.get(i, []):
            A(x)
        for x in valu.get(i, []):
            A(x)


_REG = re.compile(r"\b([vas])(?:(\d+)\b|\[(\d+):(\d+)\])")
TRANS = ("v_exp_f32", "v_log_f32", "v_rcp_f32", "v_rsq_f32", "v_sqrt_f32", "v_sin_f32", "v_cos_f32")


def regs(op):
    out = set()
    for m in _REG.finditer(op):
        k = m.group(1)
        if m.group(2) is not None:
            out.add((k, int(m.group(2))))
        else:
            for i in range(int(m.group(3)), int(m.group(4)) + 1):
                out.add((k, i))
    if re.search(r"\bvcc(_lo|_hi)?\b", op):
        out.add(("s", "vcc"))
    if re.search(r"\bm0\b", op):
        out.add(("s", "m0"))
    if re.search(r"\bexec\b", op):
        out.add(("s", "exec"))
    return out


class I:
    def __init__(self, text):
        self.text = text
        t = text.split(";")[0].strip()
        parts = t.split(None, 1)
        self.op = parts[0]
        opnds = [x.strip() for x in parts[1].split(",")] if len(parts) > 1 else []
        self.opnds = opnds
        op = self.op
        self.is_mfma = op.startswith(("v_mfma", "v_smfmac"))
        self.is_valu = op.startswith("v_") and not self.is_mfma
        self.is_trans = any(op.startswith(x) for x in TRANS)
        self.is_ds = op.startswith("ds_")
        self.is_vmem = op.startswith("buffer_") or op.startswith("global_")
        self.is_salu = op.startswith("s_")
        self.is_dma = self.is_vmem and bool(re.search(r"\blds\b", t))
        self.is_dpp = bool(re.search(r"quad_perm|row_|dpp", t))
        self.is_perml = op.startswith("v_permlane")
        self.ws = 1
        if op == "s_nop":
            self.ws = int(opnds[0], 0) + 1
        w, r = set(), set()
        self.srcc = set()
        self.srcab = set()
        self.stdata = set()
        if self.is_mfma:
            w = regs(opnds[0])
            self.srcab = regs(opnds[1]) | regs(opnds[2])
            self.srcc = regs(opnds[3])
            if op.startswith("v_smfmac"):
                self.srcab |= self.srcc
                self.srcc = set(w)
            r = self.srcab | self.srcc
            self.passes = 4 if "16x16x32" in op else 8
        elif self.is_valu:
            if self.is_perml and "swap" in op:
                w = regs(opnds[0]) | regs(opnds[1])
                r = set(w)
            else:
                w = regs(opnds[0])
                rest = opnds[1:]
                if op.startswith(("v_add_co", "v_addc_co", "v_sub_co", "v_subb_co")):
                    w |= regs(opnds[1])
                    rest = opnds[2:]
                for x in rest:
                    r |= regs(x)
                if op.startswith(("v_fmac", "v_dot2c", "v_writelane")) or self.is_dpp:
                    r |= regs(opnds[0])
                if op.startswith("v_cmpx"):
                    w.add(("s", "exec"))
        elif self.is_ds:
            if op.startswith(("ds_read", "ds_bpermute", "ds_swizzle", "ds_permute")):
                w = regs(opnds[0])
                for x in opnds[1:]:
                    r |= regs(x)
            else:
                for x in opnds:
                    r |= regs(x)
        elif self.is_vmem:
            if op in ("buffer_wbl2", "buffer_inv"):
                pass
            elif "load" in op and not self.is_dma:
                w = regs(opnds[0])
                for x in opnds[1:]:
                    r |= regs(x)
            else:
                for x in opnds:
                    r |= regs(x)
                if self.is_dma:
                    r.add(("s", "m0"))
                elif re.search(r"x[34]$", op):
                    self.stdata = regs(opnds[0] if op.startswith("buffer") else opnds[1])
                if "atomic" in op and re.search(r"\bsc0\b", t):
                    w = regs(opnds[0])
        elif self.is_salu:
            if op.startswith(("s_cmp", "s_cbranch", "s_branch", "s_waitcnt", "s_nop", "s_barrier", "s_endpgm",
                              "s_bitcmp", "s_setprio", "s_sleep")):
                for x in opnds:
                    r |= regs(x)
            else:
                w = regs(opnds[0])
                for x in opnds[1:]:
                    r |= regs(x)
                if "saveexec" in op:
                    w.add(("s", "exec"))
        self.w, self.r = w, r


def need(p, c):
    n = 0
    vw = {x for x in p.w if x[0] in "va"}
    sw = {x for x in p.w if x[0] == "s"}
    if p.is_valu:
        if c.is_mfma and vw & c.r:
            n = max(n, 2)
        if p.is_trans and c.is_valu and not c.is_trans and vw & c.r:
            n = max(n, 1)
        if c.is_perml and vw & c.r:
            n = max(n, 2)
        if c.is_dpp and vw & c.r:
            n = max(n, 2)
        if c.op.startswith(("v_readfirstlane", "v_readlane")) and vw & c.r:
            n = max(n, 1)
        if c.is_vmem and sw & c.r:
            n = max(n, 5)
        if c.is_valu and sw & c.r:
            n = max(n, 2)
        if c.is_salu and sw & c.r:
            n = max(n, 1)
        if ("s", "exec") in sw and (c.is_mfma or c.is_perml or c.op.startswith("v_read")):
            n = max(n, 4)
        if ("s", "exec") in sw and c.is_dpp:
            n = max(n, 5)
    if p.is_salu and ("s", "m0") in p.w and c.is_dma:
        n = max(n, 1)
    if p.is_mfma:
        far = {4: 8, 8: 12}[p.passes]
        if c.is_mfma:
            if p.w & c.srcab:
                n = max(n, far)
            if p.w & c.srcc and not (p.w == c.srcc and p.passes == c.passes):
                n = max(n, {4: 6, 8: 10}[p.passes])
        elif (c.is_valu or c.is_ds or c.is_vmem) and p.w & (c.r | c.w):
            n = max(n, far)
        if c.is_valu and p.srcc & c.w:
            n = max(n, {4: 3, 8: 7}[p.passes])
    if p.stdata and p.stdata & c.w:
        n = max(n, 2)
    return n


def check_hazards(lines, window=14):
    ins = []
    labels = {}
    for ln in lines:
        t = ln.split(";")[0].strip()
        if not t or t.startswith("."):
            continue
        if t.endswith(":"):
            labels[t[:-1]] = len(ins)
            continue
        ins.append(I(t))
    problems = []

    def succ(i):
        x = ins[i]
        if x.op == "s_endpgm":
            return []
        if x.op == "s_branch" and not x.opnds[0].startswith("L_stub"):
            return [labels[x.opnds[0]]]
        if x.op == "s_cbranch_execz":
            return [i + 1]
        if x.op in ("s_branch", "s_cbranch_scc1") and x.opnds[0].startswith("L_stub"):
            return [i + 1]
        if x.op.startswith("s_cbranch"):
            return [i + 1, labels[x.opnds[0]]]
        return [i + 1]

    for i, p in enumerate(ins):
        if not (p.is_valu or p.is_mfma or p.stdata or (p.is_salu and ("s", "m0") in p.w)):
            continue
        stack = [(j, 0) for j in succ(i)]
        seen = set()
        while stack:
            j, d = stack.pop()
            if j >= len(ins) or d >= window or (j, d) in seen:
                continue
            seen.add((j, d))
            c = ins[j]
            n = need(p, c)
            if n > d:
                problems.append(f"need {n} have {d}: [{p.text}] -> [{c.text}]")
            for k in succ(j):
                stack.append((k, d + c.ws))
    return problems


class Op:
    def __init__(self, text, tag=None):
        self.text, self.tag = text, tag


class Wait:
    def __init__(self, vm=(), lg=(), key=None):
        self.vm, self.lg, self.key = tuple(vm), tuple(lg), key


def text_of(x):
    return x.text if isinstance(x, Op) else x


def kind(x):
    if isinstance(x, Wait):
        return "s"
    if isinstance(x, list):
        return kind(x[0])
    t = text_of(x)
    if t.startswith(("ds_", "buffer_", "global_")):
        return "m"
    if t.startswith(("v_mfma", "v_smfmac")):
        return "x"
    if t.startswith("v_"):
        return "v"
    return "s"


def cost(x):
    if isinstance(x, list):
        return sum(cost(y) for y in x)
    if isinstance(x, Wait):
        return 1
    t = text_of(x)
    if t.endswith(":"):
        return 0
    return 2 if t.startswith(TRANS + ("v_permlane",)) else 1


class Ctx:
    def __init__(self, A):
        self.A, self.vm, self.lg = A, [], []
        self.fixed = None
        self.record = None

    def clone_dry(self):
        c = Ctx(Asm())
        c.vm, c.lg = list(self.vm), list(self.lg)
        return c

    @staticmethod
    def _after(seq, tags, cap):
        if not tags:
            return None
        if "*" in tags:
            return 0
        best = -1
        for t in tags:
            idx = [i for i, y in enumerate(seq) if y == t]
            assert idx, f"wait on tag never issued: {t}"
            best = max(best, idx[-1])
        return min(len(seq) - best - 1, cap)

    def __call__(self, *xs):
        for x in xs:
            if isinstance(x, list):
                self(*x)
            elif isinstance(x, Wait):
                if self.fixed is not None and x.key is not None:
                    nv, nl = self.fixed[x.key]
                else:
                    nv, nl = self._after(self.vm, x.vm, 63), self._after(self.lg, x.lg, 15)
                if self.record is not None and x.key is not None:
                    ov, ol = self.record.get(x.key, (nv, nl))
                    mn = lambda p, q_: q_ if p is None else (p if q_ is None else min(p, q_))
                    self.record[x.key] = (mn(ov, nv), mn(ol, nl))
                parts = ([f"vmcnt({nv})"] if nv is not None else []) + ([f"lgkmcnt({nl})"] if nl is not None else [])
                self.A("s_waitcnt " + " ".join(parts))
            else:
                t = text_of(x)
                tag = x.tag if isinstance(x, Op) else None
                if t.startswith("ds_"):
                    self.lg.append(tag)
                elif t.startswith(("buffer_", "global_")):
                    self.vm.append(tag)
                self.A(t)

    def label(self, n):
        self.A.label(n)

    def nop(self, n):
        self.A.nop(n)

    def weave(self, mfmas, pre=None, valu=None, bg=None, cap=2):
        pre, valu = pre or {}, valu or {}
        for g, m in enumerate(mfmas):
            self(m)
            px, vx = pre.get(g, []), valu.get(g, [])
            lim = cap(g) if callable(cap) else cap
            ns = sum(1 for x in px if kind(x) == "s")
            used = sum(cost(x) for x in px if kind(x) != "s") + sum(cost(x) for x in vx) + max(0, ns - 1)
            has_vm = any(kind(x) == "m" and not text_of(x).startswith("ds_") for x in px)
            has_ds = any(kind(x) == "m" and text_of(x).startswith("ds_") for x in px)
            blocked = any(isinstance(x, str) and x.startswith(("s_barrier", "s_cbranch", "s_branch")) for x in px)
            head = []
            while bg and isinstance(bg[0], tuple) and bg[0][1] <= g:
                bg.pop(0)
            if bg and bg[0] is None:
                bg.pop(0)
            if bg and not isinstance(bg[0], tuple) and bg[0] is not None and kind(bg[0]) == "s" and ns == 0:
                x = bg.pop(0)
                head.append(x)
                used += cost(x) - 1
            self(*head)
            self(*px)
            if (bg and not isinstance(bg[0], tuple) and bg[0] is not None and kind(bg[0]) == "m" and used < lim
                    and not blocked):
                isds = text_of(bg[0]).startswith("ds_")
                if isds or not has_vm:
                    self(bg.pop(0))
                    used += 2 if isds and has_ds else 1
            self(*vx)
            while bg and not blocked:
                x = bg[0]
                if isinstance(x, tuple) and x[1] <= g:
                    bg.pop(0)
                    continue
                if x is None or isinstance(x, tuple) or kind(x) == "m" or used + cost(x) > lim:
                    break
                self(bg.pop(0))
                used += cost(x)

    def drain(self, bg):
        while bg:
            x = bg.pop(0)
            if x is not None and not isinstance(x, tuple):
                self(x)


def warm_call(g, wreg):
    out = ["s_mov_b64 exec, 0"]
    for w in range(3):
        out += [f"s_cmp_eq_u32 {wreg}, {w * 4096}", f"s_cbranch_scc1 L_stub_{g}_{w}"]
    return out + [f"s_branch L_stub_{g}_3", f"L_warm_{g}_ret:", "s_mov_b64 exec, -1"]


def inst_sizes(lines):
    import subprocess, tempfile, os
    body = [ln for ln in lines if not ln.startswith((".", ";"))]
    stubs = sorted({m for ln in body for m in re.findall(r"L_stub_\w+", ln)})
    txt = ".text\n" + "\n".join(body) + "\n" + "".join(x + ":\n" for x in stubs) + "s_endpgm\n"
    d = tempfile.mkdtemp()
    open(d + "/a.s", "w").write(txt)
    subprocess.run(["clang", "-x", "assembler", "-target", "amdgcn-amd-amdhsa", "-mcpu=gfx950",
                    "-c", d + "/a.s", "-o", d + "/a.o"], check=True)
    dis = subprocess.run(["llvm-objdump", "-d", "--mcpu=gfx950", d + "/a.o"],
                         capture_output=True, text=True, check=True).stdout
    return [4 * len(m.group(1).split()) for m in re.finditer(r"// [0-9A-F]{12}: ([0-9A-F ]+)", dis)]


def insert_stubs(lines, labels):
    sizes = iter(inst_sizes(lines))
    out, groups, off, region, want = [], {}, None, "-", None

    def stub(g):
        k = len(groups.setdefault(g, []))
        groups[g].append(len(out))
        out.append(f"L_stub_{g}_{k}:")
        out.append(("stub", g, k))
    for n, ln in enumerate(lines):
        if ln.startswith("; region"):
            region = ln.split()[2]
            continue
        out.append(ln)
        if ln.startswith(".p2align"):
            al = 1 << int(ln.split()[1])
            if off is None and al == 4096:
                off = 0
            elif off is not None:
                new = -(-off // al) * al
                if new // 4096 != off // 4096 or (new % 4096 == 0 and new != off):
                    want = region
                off = new
            continue
        if ln.startswith((".", ";")):
            continue
        if ln.endswith(":"):
            for g in labels.get(ln[:-1], []):
                stub(g)
                off += 4
            continue
        sz = next(sizes)
        if off is None:
            continue
        if (off + sz) // 4096 != off // 4096:
            want = region
        off += sz
        if want is not None:
            late = off % 4096 >= 44
            ok = not ln.startswith(("s_getpc", "s_branch", "s_endpgm"))
            if want == "-":
                want = None
            elif ok and (ln.startswith(("v_mfma", "v_smfmac")) or late):
                for g in want.split("+"):
                    stub(g)
                    off += 4
                want = None
    res = []
    for x in out:
        if isinstance(x, tuple):
            _, g, k = x
            res.append("s_cbranch_execz " + (f"L_stub_{g}_{k + 4}" if k + 4 < len(groups[g]) else f"L_warm_{g}_ret"))
        else:
            m = re.search(r"L_stub_(\w+)_(\d)$", x)
            if m and int(m.group(2)) >= len(groups.get(m.group(1), [])):
                x = x.replace(m.group(0), f"L_warm_{m.group(1)}_ret")
            res.append(x)
    return res, {g: len(x) for g, x in groups.items()}
```

```python
import math
import sys
from asmlib import Asm, Ctx, Op, Wait, v, a, s, R, f32, check_hazards, warm_call, insert_stubs

NAME = "recurrent_scan__mha_block_cached__mixer_token_mlp__prompt"
OPT = dict(diag=0, bias=102.0, thresh=2.0 ** 60, force_fb=0, pf=1, qpre=12, qpro=12, cpos=-1, warm=7, pub0=3, pubb=8, chk=20, qc0=96, qc1=108, earlyw=1, tpos=0, hpos=2, latew=3, gopos=1, rank=1, odelay=12, osc=1, fg=7, skip=0, ost=1, qch=1, nch=1, lead=7, tcap=36, swpv=0, pad1=0, oshape=0, kvsc=0, wsc=0, asc=1, denorm=3, dbgout=0, l2hack=0, barpos=0, qrate=7, spin=0x10000, ocap=20)
for arg in sys.argv[2:]:
    k_, v_ = arg.split("=")
    OPT[k_] = float(v_) if "." in v_ else int(v_)

MB = 1 << 20
WS_ST, WS_RS, WS_CS, WS_MX = 0, 32768, 65536, 44 * MB
WS_XF, WS_HF, WS_OF, WS_UF, WS_S, WS_FLAG, WS_DIAG = 0, 4 * MB, 8 * MB, 24 * MB, 32 * MB, 40 * MB, 64 * MB
FL_O, FL_U, FL_T, FL_H, FL_SIZE = 0, 4096, 8192, 12288, 16384
KA_X, KA_K, KA_V, KA_WQ, KA_WO, KA_W1, KA_B1, KA_W2, KA_B2, KA_OUT, KA_DBG, KA_WS = (
    0, 8, 16, 24, 32, 48, 56, 64, 72, 80, 88, 96)
LOG2E = 1.4426950408889634
QSCALE = LOG2E / math.sqrt(128.0)
MF = "v_mfma_f32_16x16x32_bf16"
OSC = ('', ' sc1', ' nt', ' sc0 sc1', ' sc1 nt')
SPIN = OPT["spin"]


def mfma(d, x, y, c):
    return f"{MF} {d}, {x}, {y}, {c}"


def srd(sr, ptr, off, size):
    return [[f"s_add_u32 {s(sr)}, {s(ptr)}, {off}", f"s_addc_u32 {s(sr + 1)}, {s(ptr + 1)}, 0"],
            f"s_mov_b32 {s(sr + 2)}, {size}", f"s_mov_b32 {s(sr + 3)}, 0x20000"]


def code_srd(sr, start, end, tag):
    return [[f"s_getpc_b64 {s(sr, 2)}", f"L_pc_{tag}:", f"s_add_u32 {s(sr)}, {s(sr)}, {start}-L_pc_{tag}",
             f"s_addc_u32 {s(sr + 1)}, {s(sr + 1)}, 0"],
            f"s_mov_b32 {s(sr + 2)}, {end}-{start}", f"s_mov_b32 {s(sr + 3)}, 0x20000"]


def nops(n):
    return [f"s_nop {n - 1}"] if n > 0 else []


def wave_red(regs, tmp, op="v_add_f32", dpp=True, swaps=("v_permlane16_swap_b32", "v_permlane32_swap_b32")):
    out = []
    if dpp:
        for mod in ("quad_perm:[1,0,3,2]", "quad_perm:[2,3,0,1]", "row_half_mirror", "row_mirror"):
            out += nops(3 - len(regs))
            out += [f"{op}_dpp {v(r)}, {v(r)}, {v(r)} {mod} row_mask:0xf bank_mask:0xf" for r in regs]
    for sw in swaps:
        out += [f"v_mov_b32 {v(t)}, {v(r)}" for r, t in zip(regs, tmp)]
        out += nops(3 - len(regs))
        out += [f"{sw} {v(r)}, {v(t)}" for r, t in zip(regs, tmp)]
        out += [f"{op} {v(r)}, {v(r)}, {v(t)}" for r, t in zip(regs, tmp)]
    return out


class Diag:
    def __init__(self, C, slot):
        self.C, self.slot = C, slot

    def stamp(self, n, mode=1):
        if OPT["diag"] == mode or (OPT["diag"] and self.slot == 2):
            self.C("s_memtime s[98:99]", "s_waitcnt lgkmcnt(0)", f"s_mov_b32 {s(78 + 2 * n)}, s98",
                   "s_memrealtime s[98:99]", "s_waitcnt lgkmcnt(0)", f"s_mov_b32 {s(79 + 2 * n)}, s98")

    def ops(self, n, mode):
        if OPT["diag"] != mode:
            return []
        return [["s_memtime s[98:99]", "s_waitcnt lgkmcnt(0)", f"s_mov_b32 {s(78 + 2 * n)}, s98",
                 "s_memrealtime s[98:99]", "s_waitcnt lgkmcnt(0)", f"s_mov_b32 {s(79 + 2 * n)}, s98"]]

    def flush(self, nmax):
        if not OPT["diag"]:
            return
        C = self.C
        if OPT["dbgout"]:
            C(f"s_load_dwordx2 s[98:99], s[0:1], {KA_DBG}", "s_waitcnt lgkmcnt(0)", "s_cmp_eq_u32 s2, 9",
              "s_cselect_b32 s101, 64, 0")
            C(srd(4, 98, 0, "s101"))
            C("v_mov_b32 v1, 0")
            for i in range(1, nmax):
                C(f"s_sub_u32 s101, {s(79 + 2 * i)}, s79", "v_mov_b32 v2, s101",
                  f"buffer_store_dword v2, v1, s[4:7], 0 offen offset:{4 * i}")
            C(f"s_sub_u32 s101, {s(78 + 2 * (nmax - 1))}, s78", "v_mov_b32 v2, s101",
              f"buffer_store_dword v2, v1, s[4:7], 0 offen offset:{4 * nmax}", "s_waitcnt vmcnt(0)")
            return
        C(f"s_load_dwordx2 s[98:99], s[0:1], {KA_WS}", "s_waitcnt lgkmcnt(0)", "s_lshl_b32 s101, s2, 7",
          f"s_add_u32 s101, s101, {WS_DIAG + self.slot * 65536}")
        C(srd(4, 98, "s101", 128))
        C("v_mov_b32 v1, 0")
        for i in range(2 * nmax):
            C(f"v_mov_b32 v2, {s(78 + i)}", f"buffer_store_dword v2, v1, s[4:7], 0 offen offset:{4 * i}")
        C("v_mov_b32 v2, s43", "buffer_store_dword v2, v1, s[4:7], 0 offen offset:96")
        C("s_waitcnt vmcnt(0)")


V_LANE16 = 1
V_KA, V_VA, V_QA, V_ONE, V_OK, V_OV, V_OW = 4, 8, 16, 20, 24, 28, 32
V_L, V_NEGM, V_WA0, V_IDX, V_PF = 36, 44, 44, 60, 61
V_Q, V_S, V_P, V_ACC = 64, (128, 160), (192, 208, 224, 240), 128
V_B1, V_L0, V_FLG, V_FOFF, V_ONEI, V_XO = 112, 52, 53, 54, 55, 56
V_XA, V_XO4, V_CS = 112, 116, 120
A_O, A_KF, A_VF, A_CA, A_CB = 0, 128, 160, 0, 32
A_WF = (128, 160)
S_W = 3
SR_ACT, SR_W, SR_K, SR_V, SR_ST = 4, 8, 12, 16, 20
P_K, P_V, P_WQ, P_WS, P_W1, P_B1, P_WO, P_W2, P_X, P_B2, P_OUT = 24, 26, 28, 30, 32, 34, 36, 38, 52, 54, 56
S_SA, S_SW, S_SK, S_SV, S_CNT, S_FB = 40, 41, 42, 43, 44, 45
S_SPIN, S_RANK, S_W2, S_XB = 101, 100, 58, 59
SR_PF, S_PF, S_PFC = 60, 76, 77
SR_ACT2, SR_UST, SR_FLAG, SR_X = 60, 64, 68, 72
S_WSTEP, S_ROLE, S_PAIR, S_FO, S_FU = 58, 42, 43, 76, 77
VBASE, EBASE, VOTE = 65536, 131072, 131072
MAIN_LDS = 163840
WQSTEP, W1STEP = 64 * 8192, 64 * 7168


def ring(idx):
    idx %= 32
    return ("a", 192 + 4 * idx) if idx < 16 else ("v", 64 + 4 * (idx - 16))


def add(d, k, *x):
    d.setdefault(k, []).extend(x)


def v_read_addrs(dst, t0):
    out = [f"v_lshrrev_b32 {v(t0)}, 2, v2", f"v_and_b32 {v(t0 + 1)}, 1, v3",
           f"v_lshl_add_u32 {v(t0 + 1)}, {v(t0 + 1)}, 2, {v(t0)}", f"v_lshl_add_u32 {v(t0)}, v3, 2, {v(t0)}",
           f"v_lshlrev_b32 {v(t0)}, 8, {v(t0)}", f"v_lshl_add_u32 {v(t0)}, {v(t0 + 1)}, 5, {v(t0)}",
           f"v_and_b32 {v(t0 + 1)}, 3, v2", f"v_lshl_add_u32 {v(t0)}, {v(t0 + 1)}, 3, {v(t0)}",
           f"v_add_u32 {v(t0)}, {VBASE}, {v(t0)}"]
    return out + [f"v_xor_b32 {v(dst + b)}, {b * 32}, {v(t0)}" for b in range(8)]


def q_read_addrs(dst, t0):
    out = [f"v_lshrrev_b32 {v(t0)}, 2, v2", f"v_and_b32 {v(t0 + 1)}, 1, v3",
           f"v_lshl_add_u32 {v(t0 + 1)}, {v(t0 + 1)}, 2, {v(t0)}", f"v_lshl_add_u32 {v(t0)}, v3, 3, {v(t0)}",
           f"v_lshlrev_b32 {v(t0)}, 8, {v(t0)}", f"v_lshlrev_b32 {v(t0 + 1)}, 1, {v(t0 + 1)}",
           f"v_and_b32 {v(t0 + 2)}, 3, v2", f"v_xor_b32 {v(t0 + 1)}, {v(t0 + 1)}, {v(t0 + 2)}",
           f"v_lshl_add_u32 {v(t0)}, {v(t0 + 1)}, 4, {v(t0)}", f"s_lshr_b32 s48, {s(S_W)}, 6",
           f"s_add_u32 s48, s48, {VBASE}", f"v_xor_b32 {v(t0)}, s48, {v(t0)}"]
    return out + [f"v_xor_b32 {v(dst + x)}, {x * 64}, {v(t0)}" for x in range(4)]


def wq_dma_offsets(t0):
    return [f"s_lshr_b32 s48, {s(S_W)}, 8", f"v_add_u32 {v(t0)}, s48, v3", f"v_lshlrev_b32 {v(t0)}, 13, {v(t0)}",
            f"v_lshlrev_b32 {v(t0 + 1)}, 1, v3", f"v_xor_b32 {v(t0 + 1)}, {v(t0 + 1)}, v2",
            f"v_lshl_add_u32 {v(V_OW)}, {v(t0 + 1)}, 4, {v(t0)}", f"v_xor_b32 {v(t0 + 1)}, 8, {v(t0 + 1)}",
            f"v_lshl_add_u32 {v(V_OW + 2)}, {v(t0 + 1)}, 4, {v(t0)}", f"v_add_u32 {v(V_OW + 2)}, 63488, {v(V_OW + 2)}",
            f"v_add_u32 {v(V_OW + 1)}, 31744, {v(V_OW)}", f"v_add_u32 {v(V_OW + 3)}, 31744, {v(V_OW + 2)}"]


def x_dma_offsets(t0):
    return [f"v_bfe_u32 {v(t0)}, v0, 3, 3", f"v_lshlrev_b32 {v(t0)}, 11, {v(t0)}", f"v_and_b32 {v(t0 + 1)}, 7, v0",
            f"v_xor_b32 {v(t0 + 1)}, {v(t0 + 1)}, v3", f"v_lshl_add_u32 {v(V_XO4)}, {v(t0 + 1)}, 4, {v(t0)}",
            f"v_xor_b32 {v(t0 + 1)}, 4, {v(t0 + 1)}", f"v_lshl_add_u32 {v(V_XO4 + 1)}, {v(t0 + 1)}, 4, {v(t0)}",
            f"v_add_u32 {v(V_XO4 + 1)}, 15360, {v(V_XO4 + 1)}", f"v_add_u32 {v(V_XO4 + 2)}, 30720, {v(V_XO4)}",
            f"v_add_u32 {v(V_XO4 + 3)}, 30720, {v(V_XO4 + 1)}"]


def x_read_addrs(t0):
    return [f"v_lshrrev_b32 {v(t0)}, 1, v2", f"v_xor_b32 {v(t0)}, {v(t0)}, v3", f"v_lshlrev_b32 {v(t0)}, 4, {v(t0)}",
            f"v_lshl_add_u32 {v(t0)}, v2, 7, {v(t0)}", f"v_add_u32 {v(V_XA)}, {s(S_W2)}, {v(t0)}",
            f"v_xor_b32 {v(V_XA + 1)}, 64, {v(V_XA)}", f"v_add_u32 {v(V_XA + 2)}, {EBASE}, {v(V_XA)}",
            f"v_add_u32 {v(V_XA + 3)}, {EBASE}, {v(V_XA + 1)}"]


def w_dma_offsets(dst, ldw, t0, st):
    out = [f"s_lshr_b32 {s(st)}, {s(S_W)}, 8", f"v_add_u32 {v(t0)}, {s(st)}, v3",
           f"v_mul_u32_u24 {v(t0)}, {ldw}, {v(t0)}", f"v_lshlrev_b32 {v(t0 + 1)}, 1, v3",
           f"v_xor_b32 {v(t0 + 1)}, {v(t0 + 1)}, v2", f"v_lshl_add_u32 {v(dst)}, {v(t0 + 1)}, 4, {v(t0)}",
           f"v_xor_b32 {v(t0 + 1)}, 8, {v(t0 + 1)}", f"v_lshl_add_u32 {v(dst + 1)}, {v(t0 + 1)}, 4, {v(t0)}"]
    if isinstance(ldw, int):
        one, two = 4 * ldw - 1024, 8 * ldw - 2048
    else:
        out += [f"s_lshl_b32 {s(st)}, {ldw}, 2", f"s_sub_u32 {s(st)}, {s(st)}, 1024",
                f"s_lshl_b32 {s(st + 1)}, {s(st)}, 1"]
        one, two = s(st), s(st + 1)
    out += [f"v_add_u32 {v(dst + 1)}, {one}, {v(dst + 1)}", f"v_add_u32 {v(dst + 2)}, {two}, {v(dst)}",
            f"v_add_u32 {v(dst + 3)}, {two}, {v(dst + 1)}"]
    return out


def dma(voff, sr, soff, i, tag):
    return Op(f"buffer_load_dwordx4 {v(voff)}, {s(sr, 4)}, {s(soff)} offen offset:{i * 1024}"
              + OSC[OPT["kvsc"] if tag[0] in "KV" else OPT["wsc"]] + " lds", tag)


def set_m0(off):
    return f"s_add_u32 m0, {s(S_W)}, {off}"


def tr_read(dst, addr, off, tag):
    return Op(f"ds_read_b64_tr_b16 {dst}, {v(addr)} offset:{off}", tag)


def x_slot(e):
    return EBASE if e == 15 else (0, EBASE, 32768)[e % 3]


def x_frag(e, k, q):
    return a(192 + 32 * (e & 1) + (k * 4 + q) * 4, 4)


def x_reads(e, half):
    sl = x_slot(e)
    return [Op(f"ds_read_b128 {x_frag(e, k, q)}, {v(V_XA + k + 2 * (sl == EBASE))} offset:{sl % EBASE + q * 2048}",
               ("XR", e, half)) for q in (2 * half, 2 * half + 1) for k in range(2)]


def q_reads(j):
    base = ((j >> 1) & 3) * 16384
    return [tr_read(a(A_WF[j & 1] + 2 * m, 2), V_QA + 2 * (j & 1) + (m >> 3),
                    base + ((m >> 1) & 1) * 8192 + (m & 1) * 1024 + ((m >> 2) & 1) * 8, ("QT", j)) for m in range(16)]


def q_order(j):
    return [(bl, q) for q in range(4) for bl in range(4)] if j == 31 else [(bl, q) for bl in range(4) for q in range(4)]


def q_mfmas(j):
    out = []
    for bl, q in q_order(j):
        b = 4 * (j & 1) + bl
        acc = v(V_ACC + (b * 4 + q) * 4, 4)
        for k in range(2):
            out.append(mfma(acc, a(A_WF[j & 1] + 4 * (2 * bl + k), 4), x_frag(j >> 1, k, q), acc if j > 1 or k else "0"))
        if j >= 30:
            out.append(mfma(acc, a(A_CA + 4 * b, 4), a(A_CB + 4 * q, 4), acc))
    return out


def k_reads(u, dst):
    base = ((u >> 1) & 3) * 16384 + (u & 1) * 8192
    return [Op(f"ds_read_b128 {a(dst + (kb * 4 + ks) * 4, 4)}, {v(V_KA + ks)} offset:{base + kb * 4096}", ("KR", u))
            for kb in range(2) for ks in range(4)]


def v_reads(i, dst):
    base = ((i >> 1) & 3) * 16384
    return [tr_read(a(dst + 2 * m, 2), V_VA + 4 * (i & 1) + (m >> 2), base + ((m >> 1) & 1) * 8192 + (m & 1) * 4096,
                    ("VR", i)) for m in range(16)]


def k_dma(t):
    return ([set_m0((t & 3) * 16384)] + [dma(V_OK + i, SR_K, S_SK, i, ("K", t)) for i in range(4)]
            + [f"s_add_u32 {s(S_SK)}, {s(S_SK)}, 0x4000"])


def v_dma(t):
    return ([set_m0(VBASE + (t & 3) * 16384)] + [dma(V_OV + (i & 1), SR_V, S_SV, i, ("V", t)) for i in range(4)]
            + [f"s_add_u32 {s(S_SV)}, {s(S_SV)}, 0x4000"])


def w1_dma(sig):
    return ([set_m0(n_m0(sig))] + [dma(V_OK + i, SR_K, S_SW, i, ("W", sig)) for i in range(4)]
            + [f"s_mov_b32 {s(S_SW)}, {(sig + 1) * W1STEP}"])


def sm_ops(u):
    S, P = V_S[u & 1], V_P[u & 3]
    out = []
    for q in range(4):
        for pr in range(4):
            r0 = S + ((pr >> 1) * 4 + q) * 4 + (pr & 1) * 2
            out += [[f"v_exp_f32 {v(r0)}, {v(r0)}"], [], [f"v_exp_f32 {v(r0 + 1)}, {v(r0 + 1)}"],
                    [f"v_cvt_pk_bf16_f32 {v(P + q * 4 + pr)}, {v(r0)}, {v(r0 + 1)}"]]
    return out


def sm_seq(u, q0, q1):
    ops = sm_ops(u)[16 * q0:16 * q1]
    out, pend = [], None
    for g in range(0, len(ops), 4):
        out += ops[g] + ops[g + 2]
        if pend:
            out += pend
        pend = ops[g + 3]
    return out + [None] + pend


def qk_mfmas(u, kf, zero_c=False, q_outer=False):
    out = []
    order = [(kb, q) for q in range(4) for kb in range(2)] if q_outer else [(kb, q) for kb in range(2) for q in range(4)]
    for kb, q in order:
        d = v(V_S[u & 1] + (kb * 4 + q) * 4, 4)
        for ks in range(4):
            c = d if ks else ("0" if zero_c else v(V_NEGM + 4 * q, 4))
            out.append(mfma(d, a(kf + (kb * 4 + ks) * 4, 4), v(V_Q + (q * 4 + ks) * 4, 4), c))
    return out


def pv_mfmas(i, vf, q_outer=False):
    out = []
    for m in range(32):
        bl, q = ((m >> 1) & 3, m >> 3) if q_outer else (m >> 3, (m >> 1) & 3)
        k = m & 1
        d = a(A_O + ((4 * (i & 1) + bl) * 4 + q) * 4, 4)
        x, y = a(vf + 4 * (2 * bl + k), 4), v(V_P[((i & ~1) + k) & 3] + 4 * q, 4)
        out.append(mfma(d, y, x, d) if OPT["swpv"] else mfma(d, x, y, d))
    return out


def l_mfma(u, h):
    return f"v_smfmac_f32_16x16x64_bf16 {v(V_L + 4 * h, 4)}, {v(V_ONE, 4)}, {v(V_P[u & 3] + 8 * h, 8)}, {v(V_IDX)}"


def tile_dma(i):
    if i >= 55:
        return v_dma(31) if i == 55 else w1_dma(i - 56)
    return k_dma((i + 1) // 2 + 4) if i & 1 else v_dma(i // 2 + 3)


def phase_a(C, i, extra, bg=None):
    pre = {}
    for g, x in enumerate(v_reads(i, A_VF)[4:]):
        add(pre, 2 * g + 1, x)
    ops = tile_dma(i - 1)
    if OPT["barpos"]:
        add(pre, 13, ops[3])
        add(pre, 21, ops[4])
        add(pre, 24, ops[5])
    else:
        add(pre, 25, ops[3])
        add(pre, 29, ops[4])
        add(pre, 30, ops[5])
    for g, x in extra:
        add(pre, g, x)
    C.weave(qk_mfmas(i + 2, A_KF), pre, dict(enumerate(sm_ops(i + 1)[32:])), bg)


def phase_b(C, i, extra, bg=None):
    pre = {}
    for g, x in enumerate(k_reads(i + 3, A_KF)):
        add(pre, 2 * g + 1, x)
    ops = tile_dma(i)
    vr = v_reads(i + 1, A_VF)
    add(pre, 16, ops[0])
    for g, x in zip((17, 19, 21, 25, 27, 29), (ops[1], vr[0], vr[1], ops[2], vr[2], vr[3])):
        add(pre, g, x)
    add(pre, 31, Wait(lg=[("KR", i + 3)], key=("b", i & 7)))
    for g, x in extra:
        add(pre, g, x)
    valu = dict(enumerate(sm_ops(i + 2)[:32]))
    valu[7] = valu[7] + [l_mfma(i, 0)]
    valu[23] = valu[23] + [l_mfma(i, 1)]
    C.weave(pv_mfmas(i, A_VF), pre, valu, bg)


def epoch(C, n, real, skip_first=False, bg=None):
    p, inloop = n & 3, n < 28

    def xl(ph):
        j = ph - 113
        if 0 <= j < 8:
            return ([(4, f"s_mov_b32 {s(S_SA)}, {j * 2048}")] * (j & 1 == 0)
                    + [(1, f"buffer_load_dword a255, {v(V_LANE16)}, {s(SR_W, 4)}, 0 offen")] * (j == 0)
                    + [(5, n_act(j, 0, SR_ACT)), (9 if OPT['barpos'] else 13, n_act(j, 1, SR_ACT))])
        return []
    if not skip_first:
        extra = []
        if OPT["pf"] and (inloop or p == 0):
            so = S_PFC if p == 0 else S_PF
            extra.append((23, f"buffer_load_dword a255, {v(V_PF)}, {s(SR_PF + 4 * p, 4)}, {s(so)} offen"))
            if p == 3:
                extra.append((24, f"s_add_u32 {s(S_PF)}, {s(S_PF)}, 8192"))
        if p == 0 and real:
            extra += [(2, f"s_cmp_le_u32 {s(S_CNT)}, 3"), (4, "s_cbranch_scc1 L_hook"), (4, "L_hook_ret:")]
        phase_b(C, 2 * n - 1, extra + xl(4 * n - 1), bg)
    if p == 0 and real:
        C.label("L_attn_entry")
    phase_a(C, 2 * n, [(31, Wait(lg=[("VR", 2 * n)], key=("a", 2 * p)))] + xl(4 * n), bg)
    assert not bg
    phase_b(C, 2 * n, xl(4 * n + 1))
    need = [("K", n + 2)] * (n + 2 < 32) + [("V", n + 1)]
    wg, bg_ = {0: (31, 31), 1: (30, 31), 2: (30, 30), 3: (29, 29), 4: (28, 29)}[OPT["barpos"]]
    extra = [(wg, Wait(vm=need, lg=["*"], key=("a", 2 * p + 1))), (bg_, "s_barrier")]
    if p == 3:
        extra = [(26, f"s_sub_u32 {s(S_CNT)}, {s(S_CNT)}, 1")] + extra + [(31, f"s_cmp_lg_u32 {s(S_CNT)}, 0")]
    phase_a(C, 2 * n + 1, extra + xl(4 * n + 2))
    if real and p == 3:
        C("s_cbranch_scc1 L_attn_loop")


def max_ops(u, q, first):
    r = [V_S[u & 1] + (kb * 4 + q) * 4 + j for kb in range(2) for j in range(4)]
    m = v(V_NEGM + 4 * q)
    out = [f"v_max_f32 {m}, {v(r[0])}, {v(r[1])}" if first else f"v_max3_f32 {m}, {v(r[0])}, {v(r[1])}, {m}"]
    return out + [f"v_max3_f32 {m}, {v(r[k])}, {v(r[k + 1])}, {m}" for k in (2, 4, 6)]


def n_act(j, q, sr, sc=OSC[OPT["asc"]]):
    return Op(f"buffer_load_dwordx4 {R(ring(2 * j + q), 4)}, {v(V_LANE16)}, {s(sr, 4)}, {s(S_SA)} offen "
              f"offset:{(j & 1) * 2048 + q * 1024}{sc}", ("X", j))


def n_reads(j):
    sig = j >> 1
    wa = V_VA if sig & 1 else V_WA0
    if OPT["nch"]:
        base = ((sig >> 1) & 3) * 16384
        return [tr_read(a(A_WF[j & 1] + 2 * m, 2), wa + 4 * (j & 1) + (m >> 2),
                        base + ((m >> 1) & 1) * 8192 + (m & 1) * 4096, ("T", j, m >> 3)) for m in range(16)]
    base = ((sig >> 1) & 3) * 16384 + (j & 1) * 8192
    return [tr_read(a(A_WF[j & 1] + 2 * m, 2), wa + (m >> 1), base + (m & 1) * 4096, ("T", j, m >> 3))
            for m in range(16)]


def n_m0(sig):
    return (sig & 1) * VBASE + ((sig >> 1) & 3) * 16384


LEAD = OPT["lead"]
LEAD1 = 13 if OPT["nch"] else 15


def n_step(C, j, act_is_a, loop, extra=(), bg=None, cap=2, more_vm=()):
    mf, pre = [], {}
    for m in range(16):
        b, q = m >> 1, m & 1
        wf, xf = a(A_WF[j & 1] + 4 * b, 4), R(ring(2 * j + q), 4)
        acc = v(V_ACC + (b * 2 + q) * 4, 4)
        c = acc if j else v(V_ACC + (b * 2 + 1) * 4, 4)
        if OPT["nch"]:
            bl, q, k = m >> 2, (m >> 1) & 1, m & 1
            b = 4 * (j & 1) + bl
            wf, xf = a(A_WF[j & 1] + 4 * (2 * bl + k), 4), R(ring(2 * ((j & ~1) + k) + q), 4)
            acc = v(V_ACC + (b * 2 + q) * 4, 4)
            c = acc if j > 1 or k else v(V_ACC + (b * 2 + 1) * 4, 4)
        mf.append(mfma(acc, xf, wf, c) if act_is_a else mfma(acc, wf, xf, c))
    sig = (j + 11) // 2
    jx = j + LEAD1 if j + LEAD1 < 64 else (j + LEAD if j + LEAD >= 64 else None)
    if j & 1:
        if not loop and jx is not None:
            add(pre, 0, f"s_mov_b32 {s(S_SA)}, {(jx % 64) * 2048}")
        add(pre, 2, set_m0(n_m0(sig)))
        add(pre, 3, f"s_mov_b32 {s(S_SW)}, {(sig % 32) * W1STEP}" if sig <= 32 else
            f"s_add_u32 {s(S_SW)}, {s(S_SW)}, {s(S_WSTEP)}")
        if loop and OPT["l2hack"] & 1:
            add(pre, 4, f"s_and_b32 {s(S_SW)}, {s(S_SW)}, {(1 << (20 if act_is_a else 19)) - 1}")
    elif loop:
        add(pre, 10, f"s_add_u32 {s(S_SA)}, {s(S_SA)}, 4096")
        if OPT["l2hack"] & 2:
            add(pre, 11, f"s_and_b32 {s(S_SA)}, {s(S_SA)}, 16383")
    for m, x in enumerate(n_reads(j + 1)):
        add(pre, m, x)
    ow, srw = (V_OK, SR_K) if sig < 32 else (V_OW, SR_W)
    i0 = 0 if j & 1 else 2
    if jx is not None:
        add(pre, 1, n_act(jx, 0, SR_ACT if jx < 64 else SR_ACT2))
        add(pre, 9, n_act(jx, 1, SR_ACT if jx < 64 else SR_ACT2))
    add(pre, 5, dma(ow + i0, srw, S_SW, i0, ("W", sig)))
    add(pre, 13, dma(ow + i0 + 1, srw, S_SW, i0 + 1, ("W", sig)))
    kk = (lambda x: (x, j & 15)) if loop else (lambda x: None)
    add(pre, 7, Wait(lg=[("T", j, 1)], key=kk("h")))
    nch = OPT["nch"]
    need = list(more_vm) + ([("X", (j + 1) | nch)] if j >= 63 else [])
    if j & 3 == 2:
        need += [("W", (j >> 1) + 1), ("W", (j >> 1) + 2)] + [("X", k) for k in range(j + 1, min(j + 5 + nch, 64))]
    add(pre, 15, Wait(vm=need, lg=[("T", j + 1, 0)], key=kk("e")))
    if j & 3 == 2:
        add(pre, 15, "s_barrier")
    for g, x in extra:
        add(pre, g, x)
    C.weave(mf, pre, {}, bg, cap)


def n_loop(C, name, trips, mlp2):
    def extras(j, real):
        e = []
        if mlp2 and j & 15 == 13:
            e.append((3, f"buffer_load_dword {v(V_FLG)}, {v(V_FOFF)}, {s(SR_FLAG, 4)}, {s(S_FO)} offen sc1"))
        if real and j & 15 == 3:
            e.append((6, [f"s_cmp_ge_u32 {s(S_CNT)}, {trips - 2 * mlp2}", f"s_cbranch_scc1 L_hook_{name}",
                          f"L_hook_{name}_ret:"]))
        if real and mlp2 and j & 15 == 10:
            e.append((6, [f"s_cmp_eq_u32 {s(S_CNT)}, 1", "s_cbranch_scc1 L_hook_s", "L_hook_s_ret:"]))
        if real and j & 15 == 15:
            e += [(10, f"s_sub_u32 {s(S_CNT)}, {s(S_CNT)}, 1"), (11, f"s_cmp_lg_u32 {s(S_CNT)}, 0"),
                  (15, f"s_cbranch_scc1 L_{name}_loop")]
        return e
    sim = C.clone_dry()
    sim.record = {}
    for j in range(64, 64 + 16 * trips):
        n_step(sim, j, mlp2, True, extras(j, False))
    C(f"s_mov_b32 {s(S_CNT)}, {trips}", ".p2align 6")
    C.label(f"L_{name}_loop")
    C.fixed = sim.record
    for j in range(80, 96):
        n_step(C, j, mlp2, True, extras(j, True))
    C.fixed = None
    C.vm, C.lg = sim.vm, sim.lg


def poll(C, name, soff, sr=None, target=1):
    sr = SR_FLAG if sr is None else sr
    so = s(soff) if soff is not None else "0"
    C(f"s_mov_b32 {s(S_SPIN)}, {SPIN}")
    C.label(f"L_poll_{name}")
    C(f"buffer_load_dword {v(V_FLG)}, {v(V_FOFF)}, {s(sr, 4)}, {so} offen sc1")
    C(f"s_sub_u32 {s(S_SPIN)}, {s(S_SPIN)}, 1", f"s_cbranch_scc1 L_poll_{name}_out", "s_waitcnt vmcnt(0)")
    C(f"v_cmp_gt_u32 vcc, {target}, {v(V_FLG)}", "s_nop 1", "s_cmp_lg_u64 vcc, 0", f"s_cbranch_scc1 L_poll_{name}")
    C.label(f"L_poll_{name}_out")


def flag_store(soff):
    return f"buffer_store_dword {v(V_ONEI)}, {v(V_L0)}, {s(SR_FLAG, 4)}, {s(soff)} offen sc1"


def pk(op, d, *src):
    return f"v_pk_{op}_f32 {v(d, 2)}, " + ", ".join(x if isinstance(x, str) else v(x, 2) for x in src)


def mlp1_ids():
    tail = ["s_lshl_b32 s49, s49, 2", f"s_lshr_b32 s48, {s(S_W)}, 12", "s_add_u32 s49, s49, s48"]
    if OPT["fg"] == 4:
        return [[f"s_cmp_lt_u32 {s(S_RANK)}, 7", "s_cselect_b32 s51, -1, 0"], f"s_lshl_b32 s50, {s(S_RANK)}, 2",
                "s_bfe_u32 s48, s2, 0x20003", "s_add_u32 s50, s50, s48", "s_and_b32 s50, s50, s51",
                "s_lshr_b32 s49, s2, 5"] + tail
    g0, g1 = OPT["fg"], 14 - OPT["fg"]
    return [f"s_lshr_b32 s50, {s(S_RANK)}, 1", ["s_cmp_lt_u32 s50, 2", f"s_cselect_b32 s51, {g0}, {g1}"],
            f"s_mul_i32 s49, s50, {g0}", ["s_cmp_eq_u32 s50, 3", f"s_cselect_b32 s50, {2 * g0 + g1}, s49"],
            "s_lshr_b32 s48, s2, 5", ["s_cmp_lt_u32 s48, s51", "s_cselect_b32 s51, -1, 0"],
            "s_add_u32 s50, s50, s48", "s_and_b32 s50, s50, s51",
            f"s_and_b32 s49, {s(S_RANK)}, 1", "s_lshl_b32 s49, s49, 2", "s_bfe_u32 s48, s2, 0x20003",
            "s_add_u32 s49, s49, s48"] + tail


SR_LX, SR_LO, SR_DBG = 12, 68, 72
P_DBG = 50
LN_ST = VBASE + 3 * 16384
FAR = 0x40000000


def split_bf16(w0, w1, x, t, dup):
    out = [f"v_cvt_pk_bf16_f32 {v(w0)}, {v(x)}, {v(x)}", f"v_and_b32 {v(t)}, 0xffff0000, {v(w0)}",
           f"v_sub_f32 {v(t)}, {v(x)}, {v(t)}"]
    if dup:
        return out + [f"v_cvt_pk_bf16_f32 {v(w1)}, {v(t)}, 0"]
    return out + [f"v_and_b32 {v(w1)}, 0xffff, {v(w0)}", f"v_cvt_pk_bf16_f32 {v(w0)}, {v(x)}, {v(t)}"]


def ln_compute(C, D, fill):
    X, RAW = 160, 144
    half = ("v_permlane16_swap_b32",)

    def more():
        if fill:
            C(fill.pop(0))
    C(f"s_mov_b32 s48, {f32(-1.0 / 1024)}", f"s_mov_b32 s49, {f32(1e-5)}", f"s_mov_b32 s50, {f32(QSCALE)}")
    D.stamp(1, 4)
    C(Wait(vm=["x"]))
    D.stamp(2, 4)
    for i in range(16):
        C(f"v_lshlrev_b32 {v(X + 2 * i)}, 16, {v(RAW + i)}", f"v_and_b32 {v(X + 2 * i + 1)}, 0xffff0000, {v(RAW + i)}")
        if i % 8 == 7:
            more()
    C(pk("add", 192, X, X + 2), pk("add", 194, X + 4, X + 6))
    for i in range(4, 16, 2):
        C(pk("add", 192, 192, X + 2 * i), pk("add", 194, 194, X + 2 * i + 2))
    more()
    C(pk("add", 192, 192, 194), "v_add_f32 v192, v192, v193")
    C(wave_red([192], [194], swaps=half))
    more()
    C("v_mul_f32 v192, s48, v192", "v_mov_b32 v193, v192")
    C([pk("add", X + 2 * i, X + 2 * i, 192) for i in range(16)])
    C(split_bf16(80, 81, 192, 194, True), "v_mov_b64 v[82:83], v[80:81]")
    more()
    C(pk("mul", 192, X, X), pk("mul", 194, X + 2, X + 2))
    for i in range(2, 16, 2):
        C(pk("fma", 192, X + 2 * i, X + 2 * i, 192), pk("fma", 194, X + 2 * i + 2, X + 2 * i + 2, 194))
    more()
    C(pk("add", 192, 192, 194), "v_add_f32 v192, v192, v193")
    C(wave_red([192], [194], swaps=half))
    more()
    C("v_mov_b32 v196, s49", "v_fma_f32 v196, -v192, s48, v196", "v_rsq_f32 v196, v196", "s_nop 0",
      "v_mul_f32 v84, s50, v196", "v_mov_b32 v197, v196")
    C([pk("mul", X + 2 * i, X + 2 * i, 196) for i in range(16)])
    more()
    C(pk("add", 192, X, X + 2), pk("mul", 194, X, X), pk("fma", 194, X + 2, X + 2, 194))
    for i in range(2, 16):
        C(pk("add", 192, 192, X + 2 * i), pk("fma", 194, X + 2 * i, X + 2 * i, 194))
        if i % 8 == 7:
            more()
    C("v_add_f32 v192, v192, v193", "v_add_f32 v193, v194, v195")
    C(wave_red([192, 193], [194, 195], swaps=half))
    more()
    C("v_mul_f32 v192, s48, v192", "v_mul_f32 v193, s48, v193", "v_fma_f32 v193, -v192, v192, -v193",
      "v_max_f32 v193, 0, v193", "v_add_f32 v193, s49, v193", "v_rsq_f32 v196, v193", "s_nop 0",
      "v_mul_f32 v198, v192, v196", "v_mov_b32 v197, v196", "v_mov_b32 v199, v198")
    for t in range(4):
        C([pk("fma", 200 + 2 * i, X + 8 * t + 2 * i, 196, 198) for i in range(4)])
        C([f"v_cvt_pk_bf16_f32 {v(RAW + 4 * t + i)}, {v(200 + 2 * i)}, {v(201 + 2 * i)}" for i in range(4)])
        C(Op(f"ds_write_b128 v135, {v(RAW + 4 * t, 4)} offset:{512 * t}", "hw"))
        if t & 1:
            more()
    C(fill)
    D.stamp(3, 4)


def gen_main(C):
    D = Diag(C, 0)
    C.label(NAME + "_kernel")
    C("s_cmp_ge_u32 s2, 256", "s_cbranch_scc1 L_end")
    for m in (1, 4, 5):
        D.stamp(0, m)
    C(f"s_mov_b32 {s(S_FB)}, 0")
    C.label("L_restart")
    C(f"s_load_dwordx2 {s(P_X, 2)}, s[0:1], {KA_X}",
      f"s_load_dwordx2 {s(P_WQ, 2)}, s[0:1], {KA_WQ}", f"s_load_dwordx2 {s(P_WS, 2)}, s[0:1], {KA_WS}",
      f"s_load_dwordx4 {s(P_K, 4)}, s[0:1], {KA_K}", f"s_load_dwordx4 {s(P_W1, 4)}, s[0:1], {KA_W1}",
      f"s_load_dwordx2 {s(P_WO, 2)}, s[0:1], {KA_WO}", f"s_load_dwordx2 {s(P_W2, 2)}, s[0:1], {KA_W2}",
      f"s_load_dwordx2 {s(P_B2, 2)}, s[0:1], {KA_B2}",
      f"s_load_dwordx2 {s(P_OUT, 2)}, s[0:1], {KA_OUT}", f"s_load_dwordx2 {s(P_DBG, 2)}, s[0:1], {KA_DBG}")
    C(f"v_lshlrev_b32 {v(V_PF)}, 5, v0")
    C(code_srd(SR_PF, "L_early_code", "L_attn_last", "a"))
    C(f"s_bfe_u32 {s(S_PFC)}, s2, 0x20003", f"s_add_u32 {s(S_PFC)}, {s(S_PFC)}, 1",
      f"s_lshl_b32 {s(S_PFC)}, {s(S_PFC)}, 13")
    if OPT["pf"]:
        C(f"buffer_load_dword v59, {v(V_PF)}, {s(SR_PF, 4)}, 0 offen")
        if OPT["cpos"] < 0:
            C(f"buffer_load_dword v59, {v(V_PF)}, {s(SR_PF, 4)}, {s(S_PFC)} offen")
    C("v_and_b32 v1, 63, v0", "v_lshrrev_b32 v2, 6, v0", "v_lshrrev_b32 v3, 4, v1",
      f"v_readfirstlane_b32 {s(S_W)}, v2", "v_and_b32 v2, 15, v1", "v_lshlrev_b32 v1, 4, v1",
      f"s_lshl_b32 {s(S_W)}, {s(S_W)}, 12", f"s_lshl_b32 {s(S_W2)}, {s(S_W)}, 1")
    C("v_lshrrev_b32 v132, 5, v0", "v_lshrrev_b32 v136, 2, v132", "v_lshlrev_b32 v136, 4, v136",
      "v_and_b32 v134, 3, v132", "v_add_u32 v136, v136, v134", "v_and_b32 v134, 31, v0",
      "v_lshlrev_b32 v134, 4, v134", "v_lshl_add_u32 v133, v136, 11, v134")
    C("s_lshr_b32 s42, s2, 2", "s_and_b32 s43, s2, 3", "s_lshl_b32 s42, s42, 3", "s_add_u32 s42, s42, s43",
      "s_lshl_b32 s49, s42, 13")
    C("s_and_b32 s46, s2, 31", "s_lshr_b32 s47, s2, 5", f"s_lshl_b32 {s(S_SW)}, s47, 20",
      f"s_sub_u32 {s(S_SW)}, {s(S_SW)}, {WQSTEP}", f"s_lshl_b32 {s(S_XB)}, s47, 8", f"s_sub_u32 {s(S_XB)}, {s(S_XB)}, 128",
      "s_lshl_b32 s47, s47, 2", f"s_lshr_b32 s48, {s(S_W)}, 12", "s_add_u32 s47, s47, s48")
    C(wq_dma_offsets(62), x_dma_offsets(62))
    C("s_waitcnt lgkmcnt(0)", srd(SR_LX, P_X, "s49", 40960))
    for t in range(4):
        C(Op(f"buffer_load_dwordx4 {v(144 + 4 * t, 4)}, v133, {s(SR_LX, 4)}, 0 offen offset:{512 * t}", "x"))
    C("s_lshl_b32 s48, s46, 8", f"s_sub_u32 s49, {8 * MB}, s48", srd(SR_W, P_WQ, "s48", "s49"))
    C("s_lshl_b32 s48, s47, 17", srd(SR_ACT, P_X, "s48", 131072))

    st = []

    def grp(setup, ops, earliest, post=None):
        for i, o in enumerate(ops):
            st.append((setup if i == 0 else [], o, earliest, post if i == len(ops) - 1 else None))

    def gW(e):
        grp([set_m0(VBASE + (e & 3) * 16384),
             [f"s_add_u32 {s(S_SW)}, {s(S_SW)}, {WQSTEP}", f"s_and_b32 {s(S_SW)}, {s(S_SW)}, {8 * MB - 1}"]],
            [dma(V_OW + i, SR_W, S_SW, i, ("QW", e)) for i in range(4)], 1 if e == 3 else 2 * e - 7)

    def gX(e, h):
        prev = 13 if e == 15 else e - 3
        so = [f"s_add_u32 {s(S_SA)}, {s(S_XB)}, 65536"] if h else [
            f"s_add_u32 {s(S_XB)}, {s(S_XB)}, 128", f"s_and_b32 {s(S_XB)}, {s(S_XB)}, 2047"]
        grp([f"s_add_u32 m0, {s(S_W2)}, {x_slot(e) + 4096 * h}", so],
            [dma(V_XO4 + i, SR_ACT, S_SA if h else S_XB, i, ("QX", e, h)) for i in range(4)],
            max(2 * prev - 1 + h, 0) if prev >= 0 else -9)

    def gT(ops, earliest):
        grp([ops[0]], ops[1:5], earliest, ops[5])
    gW(0); gX(0, 0); gX(0, 1)
    for e in range(1, 15):
        gX(e, 0); gW(e); gX(e, 1)
    gW(15); gX(15, 0); gX(15, 1)
    for ops, t in ((k_dma(0), 25), (k_dma(1), 26), (v_dma(0), 27), (k_dma(2), 29), (v_dma(1), 29), (k_dma(3), 30),
                   (v_dma(2), 31)):
        gT(ops, t)
    for n in range(OPT["qpre"]):
        setup, o, _, _ = st.pop(0)
        C(setup, o)
    fill = [[x[0], x[1]] for x in st[:OPT["qpro"]]]
    assert all(x[2] < 0 for x in st[:OPT["qpro"]])
    del st[:OPT["qpro"]]
    t0 = V_NEGM
    C("s_branch L_early_code", ".p2align 12", "L_early_code:", "; region a")
    C(q_read_addrs(V_QA, t0), x_read_addrs(t0))
    C(f"v_lshrrev_b32 {v(t0)}, 1, v2", f"v_lshrrev_b32 {v(t0 + 1)}, 1, v3",
      f"v_cmp_eq_u32 vcc, {v(t0)}, {v(t0 + 1)}", f"v_mov_b32 {v(t0)}, 0x3f803f80", f"v_and_b32 {v(t0 + 1)}, 1, v2")
    C([f"v_cndmask_b32 {v(V_ONE + i)}, 0, {v(t0)}, vcc" for i in range(4)])
    C(f"v_mul_u32_u24 {v(t0 + 1)}, 0xaaaa, {v(t0 + 1)}", f"v_add_u32 {v(V_IDX)}, 0x4444, {v(t0 + 1)}")
    C([f"v_mov_b64 {v(V_CS + 2 * i, 2)}, 0" for i in range(4)])
    C(srd(SR_LO, P_WS, 0, 48 * MB), srd(SR_DBG, P_DBG, 0, 256))
    C("v_lshl_add_u32 v135, v132, 11, v134", f"v_add_u32 v135, {LN_ST}, v135")
    C("v_bfe_u32 v138, v0, 2, 2", "v_lshlrev_b32 v138, 11, v138", "v_lshl_add_u32 v138, v132, 6, v138",
      "v_bfe_u32 v141, v0, 4, 1", "v_lshl_add_u32 v138, v141, 3, v138", "v_and_b32 v140, 3, v0",
      "v_lshl_add_u32 v138, v140, 4, v138", f"v_add_u32 v138, {LN_ST}, v138")
    C("v_lshlrev_b32 v85, 17, v132", "v_lshl_add_u32 v85, v141, 10, v85", "v_lshl_add_u32 v85, v2, 4, v85")
    C("s_lshl_b32 s48, s42, 2", "v_add_u32 v136, s48, v136", "v_min_u32 v134, 1, v134", "v_lshlrev_b32 v134, 30, v134",
      "v_lshl_add_u32 v86, v136, 4, v134", "v_lshl_add_u32 v87, v136, 2, v134")
    C("s_lshr_b32 s42, s2, 2", "s_lshl_b32 s42, s42, 11", "s_lshl_b32 s43, s43, 8", "s_add_u32 s43, s43, s42",
      f"s_add_u32 s43, s43, {WS_HF}", "v_add_u32 v85, s43, v85")
    if OPT["warm"] & 1:
        C(warm_call("a", s(S_W)))
    if OPT["pf"] and OPT["cpos"] >= 0:
        fill.insert(OPT["cpos"], [f"buffer_load_dword v59, {v(V_PF)}, {s(SR_PF, 4)}, {s(S_PFC)} offen"])
    ln_compute(C, D, fill)
    C(Wait(vm=[("QW", 0), ("QX", 0, 1)], lg=["hw"]), "s_barrier")
    D.stamp(4, 4)
    C(x_reads(0, 0), x_reads(0, 1), q_reads(0))
    for t in range(4):
        C(f"ds_read_b64_tr_b16 {v(64 + 4 * t, 2)}, v138 offset:{512 * t}",
          f"ds_read_b64_tr_b16 {v(66 + 4 * t, 2)}, v138 offset:{8192 + 512 * t}")
    bg = ["v_lshrrev_b32 v88, 4, v0", f"v_or_b32 v88, {s(S_FB)}, v88", "v_min_u32 v88, 1, v88",
          "v_lshlrev_b32 v88, 30, v88", "v_lshl_add_u32 v88, v0, 2, v88", "v_mov_b32 v89, 0",
          f"v_or_b32 v95, {s(S_FB)}, v0", "v_lshlrev_b32 v95, 8, v95", f"v_mov_b32 {v(V_ONEI)}, 1",
          "v_min_u32 v94, 1, v3", "v_lshlrev_b32 v94, 30, v94", "v_lshl_add_u32 v94, v2, 4, v94"]
    bg += ["s_lshl_b32 s48, s46, 19"] + srd(SR_K, P_K, "s48", 524288) + srd(SR_V, P_V, "s48", 524288)
    bg += ["s_lshl_b32 s48, s47, 19", "s_lshl_b32 s49, s46, 13", "s_add_u32 s48, s48, s49",
           f"s_add_u32 s48, s48, {WS_OF}"] + srd(SR_ST, P_WS, "s48", 262144 + 8192)
    bg += ["s_mul_i32 s48, s2, 57344"] + srd(SR_PF + 4, P_W1, "s48", 57344)
    bg += [f"s_mov_b32 {s(S_PF)}, 0", f"s_mov_b32 {s(S_CNT)}, 7"]
    bg += v_read_addrs(V_VA, t0)
    bg += [f"v_xor_b32 {v(t0)}, v2, v3", f"v_lshlrev_b32 {v(t0)}, 4, {v(t0)}", f"v_lshl_add_u32 {v(t0)}, v2, 8, {v(t0)}",
           f"s_lshr_b32 s48, {s(S_W)}, 6", f"v_xor_b32 {v(t0)}, s48, {v(t0)}"]
    bg += [f"v_xor_b32 {v(V_KA + ks)}, {ks * 64}, {v(t0)}" for ks in range(4)]
    bgc = []
    for h in range(2):
        d = V_CS + 4 * h
        bgc += [f"v_add_f32 {v(d)}, {v(d)}, {v(d + 1)}", f"v_add_f32 {v(d + 2)}, {v(d + 2)}, {v(d + 3)}",
                f"v_add_f32 {v(d)}, {v(d)}, {v(d + 2)}"] + split_bf16(90 + 2 * h, 91 + 2 * h, d, d + 1, False)
    bgc += ["s_lshl_b32 s42, s46, 13", f"s_add_u32 s42, s42, {WS_CS}", f"s_lshr_b32 s48, {s(S_W)}, 1",
            "s_add_u32 s42, s42, s48", "s_lshr_b32 s48, s2, 6", "s_lshl_b32 s48, s48, 8", "s_bfe_u32 s49, s2, 0x10005",
            "s_lshl_b32 s49, s49, 3", "s_add_u32 s48, s48, s49", "s_add_u32 s51, s42, s48"]
    bgc += [Op(f"buffer_store_dwordx2 {v(90 + 2 * h, 2)}, v94, {s(SR_LO, 4)}, s51 offen offset:{1024 * h} sc1", "pub")
            for h in range(2)]
    bgc += [f"v_lshlrev_b32 {v(t0)}, 8, v3", f"v_add_u32 {v(t0)}, {s(S_W)}, {v(t0)}", f"v_xor_b32 {v(t0 + 1)}, v2, v3"]
    for i in range(4):
        bgc += [f"v_xor_b32 {v(t0 + 2)}, {4 * i}, {v(t0 + 1)}", f"v_lshl_add_u32 {v(V_OK + i)}, {v(t0 + 2)}, 4, {v(t0)}"]
    bgc += [f"v_lshlrev_b32 {v(t0 + 1)}, 1, v3", f"v_xor_b32 {v(t0 + 1)}, {v(t0 + 1)}, v2"]
    for i in range(2):
        bgc += [f"v_xor_b32 {v(t0 + 2)}, {8 * (i & 1)}, {v(t0 + 1)}",
                f"v_lshl_add_u32 {v(V_OV + i)}, {v(t0 + 2)}, 4, {v(t0)}"]
    bgc += [f"v_mov_b32 {v(V_L + i)}, 0" for i in range(8)]
    bgc += [f"v_accvgpr_write_b32 {a(A_O + i)}, 0" for i in range(48, 128)]
    bgc += [f"v_lshrrev_b32 {v(V_FOFF)}, 2, {v(V_LANE16)}", "v_lshlrev_b32 v62, 4, v2", "v_lshlrev_b32 v63, 2, v2"]
    hst = [[f"s_mov_b32 {s(S_SW)}, {t * MB}",
            Op(f"buffer_store_dwordx4 {v(64 + 4 * t, 4)}, v85, {s(SR_LO, 4)}, {s(S_SW)} offen sc1", ("hs",)), None]
           for t in range(4)]
    pub = [["s_nop 0", Op(f"buffer_store_dwordx4 v[80:83], v86, {s(SR_LO, 4)}, 0 offen sc1", "pub"), None],
            [f"s_mov_b32 s50, {WS_RS}", Op(f"buffer_store_dword v84, v87, {s(SR_LO, 4)}, s50 offen sc1", "pub"), None],
            [["s_lshl_b32 s50, s2, 6", f"s_add_u32 s50, s50, {WS_FLAG}"],
             Op(f"buffer_store_dword v89, v88, {s(SR_LO, 4)}, s50 offen sc1", "pub"), None]]
    corr = [[f"s_xor_b32 s50, s42, {(b >> 1) * 2048}",
             Op(f"buffer_load_dwordx4 {a(A_CA + 4 * b, 4)}, {v(V_LANE16)}, {s(SR_LO, 4)}, s50 offen "
                f"offset:{(b & 1) * 1024} sc1", "corr"), None] for b in range(8)]
    corr += [["s_lshl_b32 s50, s47, 10",
              Op(f"buffer_load_dwordx4 {a(A_CB + 4 * q, 4)}, v62, {s(SR_LO, 4)}, s50 offen offset:{256 * q} sc1", "corr"),
              None] for q in range(4)]
    corr += [[["s_lshl_b32 s50, s47, 8", f"s_add_u32 s50, s50, {WS_RS}"],
              Op(f"buffer_load_dword {v(V_NEGM + 4 * q + 2)}, v63, {s(SR_LO, 4)}, s50 offen offset:{64 * q} sc1", "corr"),
              None] for q in range(4)]
    bg1 = ["s_mul_i32 s48, s2, 57344"] + srd(SR_PF + 8, P_W2, "s48", 57344)
    bg1 += ["s_lshl_b32 s48, s2, 15"] + srd(SR_PF + 12, P_WO, "s48", 32768)
    bg2 = srd(SR_ACT, P_WS, WS_FLAG, FL_SIZE)
    bg2 += ["s_lshr_b32 s48, s47, 1", "s_lshl_b32 s48, s48, 3", "s_and_b32 s49, s46, 7", "s_add_u32 s48, s48, s49",
            "s_lshl_b32 s48, s48, 3", "s_and_b32 s49, s47, 1", "s_lshl_b32 s49, s49, 2", "s_add_u32 s48, s48, s49",
            "s_lshr_b32 s49, s46, 3", "s_add_u32 s48, s48, s49", "s_lshl_b32 s48, s48, 12",
            f"s_add_u32 s48, s48, {WS_S}"] + srd(SR_W, P_WS, "s48", 4096)
    bg2 += w_dma_offsets(V_OW, 7168, 62, 48) + code_srd(SR_PF, "L_attn_last", "L_code_end", "b")
    bg2 += [f"s_bfe_u32 {s(S_PFC)}, s2, 0x30003", f"s_lshl_b32 {s(S_PFC)}, {s(S_PFC)}, 13"]
    bg2 += ["s_lshr_b32 s48, s2, 3", f"s_or_b32 s48, s48, {s(S_W)}", f"s_or_b32 s48, s48, {s(S_FB)}",
            "s_min_u32 s48, s48, 1", "s_lshl_b32 s48, s48, 20", f"v_lshl_add_u32 v31, {v(V_LANE16)}, 16, s48",
            "v_mov_b32 v30, 1", "v_mov_b32 v62, 0", "v_lshlrev_b32 v63, 12, v95", f"s_movk_i32 s50, {FL_T}", "s_and_b32 s51, s2, 7",
            "s_lshl_b32 s51, s51, 7", f"s_add_u32 s51, s51, {FL_T + 128}"]
    C(Wait(lg=[("QT", 0)]))
    D.stamp(1)
    D.stamp(5, 4)
    C.label("L_q_code")
    tg = [g for g in range(24) if g % 3 != 2]
    P0, PB, CH = OPT["pub0"], OPT["pubb"], OPT["chk"]
    pre2 = {}
    for j in range(32):
        pre, valu, ng = {}, {}, 48 if j >= 30 else 32
        reads = q_reads(j + 1) if j < 31 else k_reads(0, A_KF)
        for g, x in zip(tg, reads):
            add(pre, g, x)
        if j < 30:
            add(pre, 13, Wait(vm=[("QX", j // 2 + 1, j & 1)]))
            for g, x in zip((14, 17, 20, 23), x_reads(j // 2 + 1, j & 1)):
                add(pre, g, x)
        if j in (0, 2):
            for h in range(2):
                valu[7 + 8 * h] = [f"v_smfmac_f32_16x16x64_bf16 {v(V_CS + 4 * h, 4)}, {v(V_ONE, 4)}, "
                                   f"{a(A_WF[0] + 8 * h, 8)}, {v(V_IDX)}"]
        mine = []
        if j >= P0 and pub:
            mine += [([x[0]], x[1], 0, x[2]) for x in pub[:1]]
            del pub[:1]
        if j >= 25 and hst:
            assert not any(x[1].tag[0] == "QW" for x in st)
            mine += [([x[0]], x[1], 0, x[2]) for x in hst[:1]]
            del hst[:1]
        if j > CH and corr:
            mine += [([x[0]], x[1], 0, x[2]) for x in corr[:4]]
            del corr[:4]
        lim = min(10, OPT["qrate"] + (len(mine) if j > CH else 0))
        while st and st[0][2] <= j and len(mine) < lim:
            mine.append(st.pop(0))
        for n, (setup, o, _, post) in enumerate(mine):
            g = 2 + (n * (ng - 2)) // max(len(mine), 1)
            assert n == 0 or g - len(setup) > 2 + ((n - 1) * (ng - 2)) // len(mine)
            for k, x in enumerate(setup):
                if x != "s_nop 0":
                    pre.setdefault(g - len(setup) + k, []).insert(0, x)
            add(pre, g, o)
            if post:
                pre.setdefault(g + 1, []).insert(0, post)
        if j == 31:
            add(pre, ng - 1, Wait(lg=[("KR", 0)]))
        elif j & 1:
            add(pre, 31, Wait(vm=["corr"] if j == 29 else [], lg=["*"]))
        else:
            need = [("QW", j // 2 + 1)] if j < 30 else [("K", 0)]
            if j == PB:
                assert C.vm.count("pub") == 5
                need.append("pub")
            add(pre, ng - 1, Wait(vm=need, lg=["*"]), "s_barrier")
        if j == PB + 1:
            add(pre, 28, ["s_and_b32 s50, s2, 63", "s_lshl_b32 s50, s50, 2"])
            add(pre, 30, f"buffer_atomic_add {v(V_ONEI)}, v95, {s(SR_DBG, 4)}, s50 offen sc1")
        if j in (9, 19) and OPT["pf"]:
            add(pre, 0, f"buffer_load_dword v59, {v(V_PF)}, {s(SR_PF, 4)}, {s(S_PFC)} offen")
        if j == CH - 4:
            add(pre, 30, Op(f"buffer_load_dword {v(V_FLG)}, {v(V_FOFF)}, {s(SR_DBG, 4)}, 0 offen sc1", "fh"))
        if j == 3:
            bg = bg + bgc
        if j == CH:
            assert not bg
            add(pre, 24, Wait(vm=["fh"]))
            add(pre, 25, f"v_cmp_gt_u32 vcc, 4, {v(V_FLG)}")
            add(pre, 29, ["s_cmp_lg_u64 vcc, 0", "s_cbranch_scc1 L_spin_h", "L_spin_h_ret:"])
        if j == 24:
            add(pre, 30, [f"s_mov_b32 {s(S_SK)}, 0", f"s_mov_b32 {s(S_SV)}, 0"])
        if j == 29:
            assert not corr and not hst and not bg
            bg = bg1
        if j == 27:
            assert not bg and not any(x[1].tag[0] in ("QX", "QW") for x in st + mine)
            bg = bg2
        if j in (0, 2, 4, 6, 8, 12, 16, 20, 24, 28):
            D.stamp((0, 2, 4, 6, 8, 12, 16, 20, 24, 28).index(j), 6)
        if j in (4, 8, 16, 24):
            D.stamp(6 + (4, 8, 16, 24).index(j), 4)
        if j < 30:
            C.weave(q_mfmas(j), pre, valu, bg)
        else:
            pre2.update({g + 48 * (j - 30): x for g, x in pre.items()})
    assert not bg and not st
    D.stamp(2)
    pre = pre2
    for g, x in enumerate(k_reads(1, A_VF)):
        add(pre, 96 + g, x)
    add(pre, 112, Wait(vm=[("K", 1), ("V", 0), ("hs",)], lg=[("KR", 1)]), "s_barrier")
    add(pre, 114, ["s_and_b32 s48, s2, 63", "s_lshl_b32 s48, s48, 2", f"s_add_u32 s48, s48, {FL_H}"])
    add(pre, 116, f"buffer_atomic_add v30, v63, {s(SR_ACT, 4)}, s48 offen sc1")
    kd = k_dma(4)
    add(pre, 121, kd[0])
    add(pre, 122, kd[1])
    add(pre, 126, kd[2])
    for i in range(4):
        add(pre, 120 + i, f"v_mov_b32 {v(224 + i)}, -1")
        add(pre, 130 + 8 * i, f"buffer_store_dwordx4 v[224:227], {v(V_LANE16)}, {s(SR_W, 4)}, 0 offen offset:{1024 * i} sc1")
    for g, x in enumerate(k_reads(2, A_KF)):
        add(pre, 129 + 2 * g, x)
    bg = []
    for j in (30, 31):
        for n, (bl, q) in enumerate(q_order(j)):
            b = 4 * (j & 1) + bl
            src, F = V_ACC + (b * 4 + q) * 4, V_Q + (q * 4 + (b >> 1)) * 4 + 2 * (b & 1)
            bg.append(("at", 48 * (j - 30) + 3 * n + 7))
            bg += [f"v_mul_f32 {v(src + i)}, {v(src + i)}, {v(V_NEGM + 4 * q + 2)}" for i in range(4)]
            bg += [f"v_cvt_pk_bf16_f32 {v(F + i)}, {v(src + 2 * i)}, {v(src + 2 * i + 1)}" for i in range(2)]
    zero = [f"v_accvgpr_write_b32 {a(A_O + i)}, 0" for i in range(48)]
    for u in range(2):
        for q in range(4):
            bg += zero[:6]
            del zero[:6]
            bg.append(("at", 96 + 32 * u + 8 * q + 14))
            bg += max_ops(u, q, u == 0)
    n0 = len(C.A.lines)
    C.weave(q_mfmas(30) + q_mfmas(31) + qk_mfmas(0, A_KF, True, True) + qk_mfmas(1, A_VF, True, True), pre, {}, bg,
            cap=lambda g: 3 if OPT["qc0"] <= g < OPT["qc1"] else 2)
    check_order(C.A.lines[n0:])
    C(v_reads(0, A_VF)[:4])
    C(nops(4))
    C.drain(bg)
    C(wave_red([V_NEGM + 4 * q for q in range(4)], [V_NEGM + 4 * q + 1 for q in range(4)], "v_max_f32", False))
    C(f"s_mov_b32 s48, {f32(-OPT['bias'])}", f"s_cmp_lg_u32 {s(S_FB)}, 0", "s_cbranch_scc1 L_fb_hook")
    C.label("L_fb_ret")
    for q in range(4):
        C(f"v_sub_f32 {v(V_NEGM + 4 * q)}, s48, {v(V_NEGM + 4 * q)}")
    for q in range(4):
        C(f"v_mov_b32 {v(V_NEGM + 4 * q + 1)}, {v(V_NEGM + 4 * q)}")
    for q in range(4):
        C(f"v_mov_b64 {v(V_NEGM + 4 * q + 2, 2)}, {v(V_NEGM + 4 * q, 2)}")
    for u in range(2):
        for k in range(16):
            C(pk("add", V_S[u] + 2 * k, V_S[u] + 2 * k, V_NEGM + 4 * ((k >> 1) & 3)))
    C([x if x else "s_nop 0" for x in sm_seq(0, 0, 4) + sm_seq(1, 0, 2)])
    C(Wait(lg=[("KR", 2)]))
    D.stamp(3)
    D.stamp(8, 5)
    C("s_branch L_attn_entry")
    sim = C.clone_dry()
    sim.record = {}
    for n in range(28):
        epoch(sim, n, False, n == 0)
    C.label("L_hook")
    C(f"s_cmp_eq_u32 {s(S_CNT)}, 2", "s_cbranch_scc1 L_hook_b", f"s_cmp_eq_u32 {s(S_CNT)}, 1",
      "s_cbranch_scc1 L_hook_c")
    C.A(f"buffer_atomic_add v30, v31, {s(SR_ACT, 4)}, s50 offen sc0 sc1", "s_branch L_hook_ret")
    C.label("L_hook_b")
    C.A("v_add_u32 v30, 1, v30", f"buffer_store_dword v30, v31, {s(SR_ACT, 4)}, s51 offen sc1", "s_branch L_hook_ret")
    C.label("L_hook_c")
    if OPT["warm"] & 2:
        C(warm_call("b", s(S_W)))
    C.A(f"v_lshrrev_b32 v31, 2, {v(V_LANE16)}", f"s_movk_i32 s50, {FL_H}",
        f"buffer_load_dword v63, v62, {s(SR_ACT, 4)}, s51 offen sc1",
        f"buffer_load_dword v30, v31, {s(SR_ACT, 4)}, s50 offen sc1", "s_branch L_hook_ret")
    C(".p2align 6")
    C.label("L_attn_loop")
    C.fixed = sim.record
    for n in range(4, 8):
        epoch(C, n, True)
    C.fixed = None
    C.vm, C.lg = sim.vm, sim.lg
    C.label("L_attn_last")
    C("; region b")
    C(nops(1) * OPT["pad1"])
    bg = [f"v_readfirstlane_b32 {s(S_RANK)}, v63", "v_cmp_gt_u32 vcc, 4, v30", None,
          ["s_cmp_lg_u64 vcc, 0", f"s_cselect_b32 {s(S_RANK)}, 0, {s(S_RANK)}"],
          [f"s_cmp_eq_u32 {s(S_RANK)}, 0", "s_cbranch_scc1 L_spin_r", "L_spin_r_ret:"],
          f"s_sub_u32 {s(S_RANK)}, {s(S_RANK)}, 1" if OPT["rank"] else f"s_mov_b32 {s(S_RANK)}, s2",
          f"s_and_b32 {s(S_RANK)}, {s(S_RANK)}, 7"]
    bg += mlp1_ids() + ["s_lshl_b32 s48, s49, 17", f"s_add_u32 s48, s48, {WS_HF}", "s_and_b32 s49, s51, 131072"]
    bg += srd(SR_ACT, P_WS, "s48", "s49")
    bg += ["s_lshl_b32 s48, s50, 8", f"s_sub_u32 s49, {2048 * 7168}, s48", "s_and_b32 s49, s49, s51"]
    bg += srd(SR_K, P_W1, "s48", "s49") + ["s_and_b32 s49, s51, 256"] + srd(SR_W, P_B1, "s48", "s49")
    bg += [f"v_mov_b32 {v(V_OK + i)}, {v(V_OW + i)}" for i in range(4)]
    bg += [f"s_mov_b32 {s(S_SW)}, 0", "v_lshlrev_b32 v62, 3, v3"]
    for n in range(28, 31):
        epoch(C, n, False, False, bg)
    D.stamp(4)
    D.stamp(9, 5)
    mf = pv_mfmas(61, A_VF)
    mf = mf[:8] + [l_mfma(61, 0)] + mf[8:24] + [l_mfma(61, 1)] + mf[24:]
    m2 = pv_mfmas(62, A_KF, True)
    mf += m2[:8] + [l_mfma(62, 0)] + m2[8:16] + [l_mfma(62, 1)] + m2[16:]
    m3 = pv_mfmas(63, A_VF)
    mf += m3[:2] + [l_mfma(63, 0)] + m3[2:4] + [l_mfma(63, 1)] + m3[4:]
    pre = {}
    for g, x in enumerate(v_reads(62, A_KF)):
        add(pre, 2 * g + 1 if g < 12 else 12 + g, x)
    add(pre, 33, Wait(lg=[("VR", 62)]))
    for g, x in enumerate(v_reads(63, A_VF)):
        add(pre, 35 + 2 * g if g < 10 else 45 + g, x)
    add(pre, 67, Wait(vm=[("W", 0), ("W", 1), ("X", 3), "b1"], lg=[("VR", 63)]), "s_barrier")
    for b in range(8):
        add(pre, 1 + 2 * b, Op(f"buffer_load_dwordx2 {v(V_B1 + 2 * b, 2)}, v62, {s(SR_W, 4)}, 0 offen offset:{32 * b}", "b1"))
    g = 19
    for j in range(8, LEAD1):
        if j & 1 == 0:
            pre.setdefault(g - 1, []).insert(0, f"s_mov_b32 {s(S_SA)}, {j * 2048}")
        add(pre, g, n_act(j, 0, SR_ACT))
        add(pre, g + 4, n_act(j, 1, SR_ACT))
        g += 8
    add(pre, 70, set_m0(n_m0(5)))
    add(pre, 71, f"s_mov_b32 {s(S_SW)}, {5 * W1STEP}")
    add(pre, 72, dma(V_OK, SR_K, S_SW, 0, ("W", 5)))
    add(pre, 76, dma(V_OK + 1, SR_K, S_SW, 1, ("W", 5)))
    for g, x in enumerate(n_reads(0)):
        add(pre, 84 + g, x)
    add(pre, 101, Wait(lg=[("T", 0, 0)]))
    bg = sm_seq(63, 0, 4)
    bg += [f"v_subrev_u32 {v(V_WA0 + b)}, {VBASE}, {v(V_VA + b)}" for b in range(8)]
    bg.append(("at", 68))
    for b in range(8):
        d = V_ACC + (b * 2 + 1) * 4
        for i in range(2):
            bg += [f"v_lshlrev_b32 {v(d + 2 * i)}, 16, {v(V_B1 + 2 * b + i)}",
                   f"v_and_b32 {v(d + 2 * i + 1)}, 0xffff0000, {v(V_B1 + 2 * b + i)}"]
    n0 = len(C.A.lines)
    C.weave(mf, pre, {}, bg, cap=lambda g: 3 if g < OPT["tcap"] else 2)
    assert not bg, len(bg)
    check_order(C.A.lines[n0:])
    D.stamp(5)
    T = 192
    bg = [("at", 2)] + [f"v_add_f32 {v(V_L + 2 * q)}, {v(V_L + 2 * q)}, {v(V_L + 2 * q + 1)}" for q in range(4)]
    bg += wave_red([V_L + 2 * q for q in range(4)], [V_L + 2 * q + 1 for q in range(4)], dpp=False)
    bg += [f"v_accvgpr_read_b32 {v(T + i)}, {a(A_O + 4 * (i >> 1) + 17 * (i & 1))}" for i in range(8)]
    bg += [f"v_max_f32_e64 {v(T + 2 * q)}, abs({v(T + 2 * q)}), abs({v(T + 2 * q + 1)})" for q in range(4)]
    bg += [f"s_mov_b32 s48, {f32(OPT['thresh'])}", f"s_mov_b32 s49, {1 << 19}",
           f"v_min3_u32 {v(T)}, {v(T)}, {v(T + 2)}, {v(T + 4)}", f"v_min_u32 {v(T)}, {v(T)}, {v(T + 6)}",
           f"v_add_f32 v63, {v(V_L)}, {v(V_L + 2)}", f"v_add_f32 v62, {v(V_L + 4)}, {v(V_L + 6)}",
           f"v_cmp_gt_u32 s[50:51], s49, {v(T)}",
           "v_add_f32 v62, v62, v63", "v_cmp_nge_f32 vcc, s48, v62", f"v_mov_b32 v63, {s(S_W)}",
           "v_lshrrev_b32 v63, 10, v63", f"v_add_u32 v63, {VOTE}, v63",
           ["s_or_b64 vcc, vcc, s[50:51]", f"s_cselect_b32 s48, 1, {OPT['force_fb']}"], "v_mov_b32 v62, s48",
           Op("ds_write_b32 v63, v62", "vote")]
    bg += [f"v_rcp_f32 {v(V_L + 2 * q)}, {v(V_L + 2 * q)}" for q in range(4)]
    bg += [f"v_mov_b32 v63, {VOTE}"]
    n = 0
    for q in range(4):
        for p in range(4):
            t = T + (n & 1) * 12
            bg += [f"v_accvgpr_read_b32 {v(t + i)}, {a(A_O + ((2 * p + (i >> 2)) * 4 + q) * 4 + (i & 3))}"
                   for i in range(8)]
            bg += [f"v_mul_f32 {v(t + i)}, {v(t + i)}, {v(V_L + 2 * q)}" for i in range(8)]
            bg += [f"v_cvt_pk_bf16_f32 {v(t + 8 + i)}, {v(t + 2 * i)}, {v(t + 2 * i + 1)}" for i in range(4)]
            bg += [f"s_mov_b32 s49, {(q >> 1) * 262144 + (p >> 1) * 4096}",
                   Op(f"buffer_store_dwordx4 {v(t + 8, 4)}, {v(V_LANE16)}, {s(SR_ST, 4)}, s49 offen "
                      f"offset:{(p & 1) * 2048 + (q & 1) * 1024}" + OSC[OPT["ost"]], "O")]
            n += 1
    bg += srd(SR_FLAG, P_WS, WS_FLAG, FL_SIZE)
    bg += [f"v_lshlrev_b32 {v(V_L0)}, 16, {v(V_LANE16)}", f"v_mov_b32 {v(V_ONEI)}, 1",
           f"s_lshl_b32 {s(S_FO)}, s47, 5", f"s_add_u32 {s(S_FO)}, {s(S_FO)}, s46", f"s_lshl_b32 {s(S_FO)}, {s(S_FO)}, 2"]
    isM = f"s_bitcmp1_b32 {s(S_PAIR)}, 2"
    fin = [f"s_lshl_b32 s48, {s(S_RANK)}, 2",
           f"s_lshr_b32 {s(S_PAIR)}, {0x14567320 if OPT['fg'] == 4 else 0x45673210}, s48",
           [isM, f"s_cselect_b32 {s(S_ROLE)}, -1, 0"]]
    fin += mlp1_ids() + ["s_mul_i32 s48, s49, 229376", "s_lshl_b32 s46, s50, 13", "s_add_u32 s48, s48, s46",
                         f"s_add_u32 s48, s48, {WS_UF}", "s_and_b32 s46, s51, 8192"] + srd(SR_UST, P_WS, "s48", "s46")
    fin += [f"s_lshl_b32 {s(S_FU)}, s49, 5", f"s_add_u32 {s(S_FU)}, {s(S_FU)}, s50", f"s_lshl_b32 {s(S_FU)}, {s(S_FU)}, 2",
            f"s_add_u32 {s(S_FU)}, {s(S_FU)}, {FL_U}", "s_andn2_b32 s48, 0x100000, s51",
            f"s_or_b32 {s(S_FU)}, {s(S_FU)}, s48"]
    fin += ["s_lshr_b32 s50, s2, 3", f"s_bfe_u32 s46, {s(S_PAIR)}, 0x10001", "s_lshl_b32 s46, s46, 3",
            "s_lshr_b32 s51, s50, 2", "s_add_u32 s46, s46, s51", f"s_and_b32 s47, {s(S_PAIR)}, 1",
            "s_lshl_b32 s47, s47, 2", "s_and_b32 s51, s50, 3", "s_add_u32 s47, s47, s51"]
    if OPT["oshape"]:
        sel = {1: "s_cselect_b32 {0}, {0}, {1}", 2: "s_cselect_b32 {0}, {1}, {1}", 3: "s_cselect_b32 {0}, {1}, {0}"}[OPT["oshape"]]
        fin += [f"s_and_b32 s48, {s(S_PAIR)}, 3", "s_lshl_b32 s48, s48, 2", "s_lshr_b32 s51, s50, 3",
                "s_add_u32 s48, s48, s51", [isM, sel.format("s46", "s48")], "s_and_b32 s48, s50, 7",
                [isM, sel.format("s47", "s48")]]
    fin += [
            [isM, f"s_cselect_b64 {s(SR_W, 2)}, {s(P_W2, 2)}, {s(P_WO, 2)}"],
            [isM, "s_cselect_b32 s48, s46, s47"], "s_lshl_b32 s48, s48, 8",
            f"s_mov_b32 s50, {8 * MB}", [isM, f"s_cselect_b32 s49, {3584 * 4096}, s50"],
            "s_sub_u32 s49, s49, s48"] + srd(SR_W, SR_W, "s48", "s49")
    fin += ["s_movk_i32 s50, 0x800", [isM, "s_cselect_b32 s50, 4096, s50"],
            f"s_lshl_b32 {s(S_WSTEP)}, s50, 6"] + w_dma_offsets(V_OW, "s50", 62, 48)
    fin += [f"s_lshr_b32 s48, {s(S_W)}, 12", "s_lshl_b32 s50, s46, 2", "s_add_u32 s50, s50, s48",
            "s_lshl_b32 s50, s50, 18", f"s_add_u32 s50, s50, {WS_OF}", "s_lshl_b32 s51, s47, 2",
            "s_add_u32 s51, s51, s48", "s_mul_i32 s48, s51, 229376", f"s_add_u32 s48, s48, {WS_UF}",
            [isM, "s_cselect_b32 s48, s48, s50"], f"s_andn2_b32 s49, 262144, {s(S_ROLE)}"]
    fin += srd(SR_ACT2, P_WS, "s48", "s49")
    fin += ["s_lshl_b32 s48, s46, 18", "s_lshl_b32 s49, s51, 6", "s_add_u32 s48, s48, s49",
            f"s_sub_u32 s49, {4 * MB}, s48", f"s_and_b32 s49, s49, {s(S_ROLE)}"]
    fin += srd(SR_X, P_X, "s48", "s49") + srd(SR_V, P_OUT, "s48", "s49")
    fin += [f"s_lshl_b32 {s(S_FO)}, s46, 8", f"v_lshrrev_b32 {v(V_FOFF)}, 2, {v(V_LANE16)}",
            "s_lshl_b32 s50, s46, 3", "s_add_u32 s50, s50, s47", "s_lshl_b32 s50, s50, 15",
            f"s_add_u32 s50, s50, {WS_S}"]
    fin += srd(SR_ST, P_WS, "s50", 32768)
    fin += [f"v_lshlrev_b32 {v(V_XO)}, 11, v2", f"v_lshl_add_u32 {v(V_XO)}, v3, 4, {v(V_XO)}", "v_lshlrev_b32 v62, 1, v2"]
    XR, SRG = 192, 224
    late = ["s_lshl_b32 s48, s46, 8", f"s_and_b32 s49, 256, {s(S_ROLE)}"] + srd(SR_ACT, P_B2, "s48", "s49")
    late += [Op(f"buffer_load_ushort {v(224 + b)}, v62, {s(SR_ACT, 4)}, 0 offen offset:{32 * b}", "b2") for b in range(8)]
    xl = [[f"s_mov_b32 s48, {b * 32768}", f"buffer_load_dwordx4 {v(XR + 4 * b, 4)}, {v(V_XO)}, {s(SR_X, 4)}, s48 offen"]
          for b in range(8)]
    last = [f"s_lshl_b32 {s(S_FO)}, s51, 7", f"s_add_u32 {s(S_FO)}, {s(S_FO)}, {FL_U}",
            f"v_min_u32 v63, 24, {v(V_FOFF)}",
            f"v_min_u32 {v(V_FOFF)}, 108, {v(V_FOFF)}"]
    fl_at, jumped = None, False
    for j in range(64):
        extra, more = [], []
        if j == 2:
            extra = [(14, Wait(lg=["vote"]))]
        if j == 3:
            extra = [(3, Op("ds_read_b128 v[248:251], v63", "voter"))]
        if j == 4:
            extra = [(2, Wait(lg=["voter"])), (3, "v_or3_b32 v248, v248, v249, v250"), (4, "v_or_b32 v248, v248, v251"),
                     (6, "v_readfirstlane_b32 s48, v248"),
                     (8, [f"s_andn2_b32 s48, s48, {s(S_FB)}", "s_cbranch_scc1 L_fallback"])]
        if fl_at is None and not bg and "O" not in C.vm[-OPT["odelay"]:]:
            fl_at = j
            extra = [(2, Wait(vm=["O"])), (3, flag_store(S_FO))]
        if fl_at is not None and j == fl_at + 1:
            bg = fin
        if OPT["skip"] and fl_at is not None and not fin and not jumped and j & 1:
            jumped = True
            extra.append((15, [f"s_cmp_eq_u32 {s(SR_UST + 2)}, 0", "s_cbranch_scc1 L_mlp1_late"]))
            print("tile-less workgroups jump after step", j, file=sys.stderr)
        if j == 48:
            C.label("L_mlp1_late")
        if j == 49:
            assert not fin
            extra = [(3, Op(f"buffer_load_dword {v(V_FLG)}, {v(V_FOFF)}, {s(SR_FLAG, 4)}, {s(S_FO)} offen sc1", "fo"))]
        if j == 64 - LEAD1:
            bg = late
        if 53 <= j < 57:
            assert not late
            for g in (1, 9):
                x = xl.pop(0)
                extra += [(g - 1, x[0]), (g, x[1])]
        if j == 55:
            more = ["fo"]
        if j == 56:
            extra += [(2, f"v_cmp_eq_u32 vcc, 0, {v(V_FLG)}"),
                      (6, ["s_cmp_lg_u64 vcc, 0", "s_cbranch_scc1 L_spin_o", "L_spin_o_ret:"])]
        if j == 57:
            bg = last
        if j == 62:
            more = ["b2"]
        if j == 3:
            C("; region -")
        if j == 56:
            C("; region o+m")
        if j == 44 and OPT["warm"] & 4:
            extra.append((4, [isM, "s_cbranch_scc1 L_warm_m"] + warm_call("o", s(S_W)) + ["L_warm_m_back:"]))
        if j % 8 == 0:
            D.stamp(j // 8, 2)
        n_step(C, j, False, False, extra, bg, 3 if j < OPT["ocap"] else 2, more)
    assert not last
    print("O flag stored in step", fl_at, file=sys.stderr)
    D.stamp(6)
    D.stamp(8, 2)
    C0 = -2.0 * math.sqrt(2.0 / math.pi) * LOG2E
    C(Op(f"buffer_load_dword {v(V_FLG)}, v63, {s(SR_FLAG, 4)}, {s(S_FO)} offen sc1", "fu"))
    C(f"s_mov_b32 s48, {f32(C0 * 0.044715)}", "s_mov_b32 s49, s48", "s_mov_b32 s50, 1.0", "s_mov_b32 s51, 1.0",
      f"v_mov_b32 v4, {f32(C0)}", f"v_mov_b32 v5, {f32(C0)}", "s_movk_i32 s44, 0x1000")

    def gelu(p, fill):
        for q in range(2):
            t = 232 + q * 12
            src = [V_ACC + ((2 * p + (i >> 1)) * 2 + q) * 4 + (i & 1) * 2 for i in range(4)]
            for k, grp in enumerate((
                    [pk("mul", t + 2 * i, src[i], src[i]) for i in range(4)],
                    [pk("fma", t + 2 * i, t + 2 * i, "s[48:49]", 4) for i in range(4)],
                    [pk("mul", t + 2 * i, t + 2 * i, src[i]) for i in range(4)],
                    [f"v_exp_f32 {v(t + i)}, {v(t + i)}" for i in range(8)],
                    [pk("add", t + 2 * i, t + 2 * i, "s[50:51]") for i in range(4)],
                    [f"v_rcp_f32 {v(t + i)}, {v(t + i)}" for i in range(8)],
                    [pk("mul", t + 2 * i, t + 2 * i, src[i]) for i in range(4)],
                    [f"v_cvt_pk_bf16_f32 {v(t + 8 + i)}, {v(t + 2 * i)}, {v(t + 2 * i + 1)}" for i in range(4)])):
                C(grp)
                if fill and k in (0, 3, 5):
                    C(fill.pop(0))
            C(Op(f"buffer_store_dwordx4 {v(t + 8, 4)}, {v(V_LANE16)}, {s(SR_UST, 4)}, {'s44' if p >> 1 else '0'} offen "
                 f"offset:{(p & 1) * 2048 + q * 1024} sc1", "U"))
        for b in (2 * p, 2 * p + 1):
            C([f"v_lshlrev_b32 {v(V_ACC + b * 8 + i)}, 16, {v(224 + b)}" for i in range(2)])
            C([f"v_mov_b64 {v(V_ACC + b * 8 + 2 * i, 2)}, {v(V_ACC + b * 8, 2)}" for i in range(1, 4)])
        if fill:
            C(fill.pop(0))
    gelu(0, None)
    gelu(1, None)
    C(isM, "s_cbranch_scc1 L_mlp2")
    vm0, lg0 = list(C.vm), list(C.lg)
    C("; region o")
    gelu(2, None)
    gelu(3, None)
    D.stamp(7)
    n_loop(C, "oproj", 8, False)
    D.stamp(8)
    C(f"s_lshl_b32 s48, {s(S_W)}, 1", "s_add_u32 s49, s48, 4096", "s_nop 1")
    for p in range(4):
        for sb in range(2):
            t = T + 4 * (p * 2 + sb)
            C([f"v_cvt_pk_bf16_f32 {v(t + i)}, {v(V_ACC + ((2 * p + (i >> 1)) * 2 + sb) * 4 + (i & 1) * 2)}, "
               f"{v(V_ACC + ((2 * p + (i >> 1)) * 2 + sb) * 4 + (i & 1) * 2 + 1)}" for i in range(4)])
        C([f"v_min_u32 {v(T + 8 * p + i)}, -2, {v(T + 8 * p + i)}" for i in range(8)])
        for sw in ("v_permlane32_swap_b32", "v_permlane16_swap_b32"):
            C([f"{sw} {v(T + 8 * p + 4 * sb + i)}, {v(T + 8 * p + 4 * sb + 2 + i)}" for sb in range(2) for i in range(2)])
        for sb in range(2):
            C(f"buffer_store_dwordx4 {v(T + 8 * p + 4 * sb, 4)}, {v(V_LANE16)}, {s(SR_ST, 4)}, {s(48 + sb)} offen "
              f"offset:{1024 * p} sc1")
    C("s_branch L_done")
    C.label("L_hook_oproj")
    C.A("s_waitcnt vmcnt(14)", flag_store(S_FU), "s_branch L_hook_oproj_ret")
    C.vm, C.lg = vm0, lg0
    C("; region m")
    if OPT["warm"] & 4:
        C("L_warm_m:", warm_call("m", s(S_W)), "s_branch L_warm_m_back")
    C.label("L_mlp2")
    C(Wait(vm=["fu"]), f"v_cmp_eq_u32 vcc, 0, {v(V_FLG)}", "s_nop 1",
      "s_cmp_lg_u64 vcc, 0", f"s_cselect_b32 {s(SR_ACT2 + 2)}, 0, 229376")

    def u_loads():
        out = []
        for j in range(64, 64 + LEAD):
            out.append(([f"s_mov_b32 {s(S_SA)}, {(j - 64) * 2048}"] if j & 1 == 0 else []) + [n_act(j, 0, SR_ACT2)])
            out.append([n_act(j, 1, SR_ACT2)])
        return out
    fill = u_loads()
    gelu(2, fill)
    gelu(3, fill)
    assert not fill
    C(f"s_cmp_eq_u32 {s(SR_ACT2 + 2)}, 0", "s_cbranch_scc1 L_u_late")
    C.label("L_u_late_ret")
    u_order = C.vm[-(2 * LEAD + 4):]
    C(Wait(vm=[("X", 64 + OPT["nch"])]))
    D.stamp(7)
    n_loop(C, "mlp2", 7, True)
    D.stamp(8)

    def s_loads():
        C(f"s_lshr_b32 s47, {s(S_W)}, 2")
        for b in range(8):
            C(f"buffer_load_dwordx4 {v(SRG + 4 * b, 4)}, {v(V_LANE16)}, {s(SR_ST, 4)}, s47 offen sc1",
              "s_add_u32 s47, s47, 4096")

    def s_test():
        C("s_waitcnt vmcnt(0)", f"v_max_u32 v8, {v(SRG)}, {v(SRG + 1)}")
        C([f"v_max3_u32 v8, {v(SRG + 2 * i)}, {v(SRG + 2 * i + 1)}, v8" for i in range(1, 16)])
        C("v_cmp_eq_u32 vcc, -1, v8", "s_nop 1", "s_cmp_lg_u64 vcc, 0")

    def silu(b):
        t, src = 8, V_ACC + 8 * b
        C([pk("mul", t + 2 * i, src + 2 * i, "s[48:49]") for i in range(4)])
        C([f"v_exp_f32 {v(t + i)}, {v(t + i)}" for i in range(8)])
        C([pk("add", t + 2 * i, t + 2 * i, "s[50:51]") for i in range(4)])
        C([f"v_rcp_f32 {v(t + i)}, {v(t + i)}" for i in range(8)])
        C([pk("mul", src + 2 * i, t + 2 * i, src + 2 * i) for i in range(4)])

    def combine(b):
        t, o, src = 16, 32 + (b & 1) * 4, V_ACC + 8 * b
        C(f"s_mov_b32 s46, {b * 32768}")
        for i in range(4):
            C(f"v_lshlrev_b32 {v(t + 2 * i)}, 16, {v(SRG + 4 * b + i)}",
              f"v_and_b32 {v(t + 2 * i + 1)}, 0xffff0000, {v(SRG + 4 * b + i)}",
              f"v_lshlrev_b32 {v(t + 8 + 2 * i)}, 16, {v(XR + 4 * b + i)}",
              f"v_and_b32 {v(t + 9 + 2 * i)}, 0xffff0000, {v(XR + 4 * b + i)}")
        C([pk("fma", t + 2 * i, t + 2 * i, src + 2 * i, t + 8 + 2 * i) for i in range(4)])
        C([f"v_cvt_pk_bf16_f32 {v(o + i)}, {v(t + 2 * i)}, {v(t + 2 * i + 1)}" for i in range(4)])
        C(f"buffer_store_dwordx4 {v(o, 4)}, {v(V_XO)}, {s(SR_V, 4)}, s46 offen" + OSC[OPT["osc"]])
    C(f"s_mov_b32 s48, {f32(-LOG2E)}", "s_mov_b32 s49, s48", "s_mov_b32 s50, 1.0", "s_mov_b32 s51, 1.0")
    s_test()
    C("s_cbranch_scc1 L_s_late")
    for b in range(8):
        silu(b)
        combine(b)
    C.label("L_done")
    C("s_waitcnt vmcnt(0) lgkmcnt(0)")
    D.stamp(9)
    D.stamp(9, 2)
    D.flush(10)
    C.label("L_end")
    C("s_endpgm")
    C.label("L_hook_s")
    s_loads()
    C("s_branch L_hook_s_ret")
    C.label("L_s_late")
    s_loads()
    for b in range(8):
        silu(b)
    C(f"s_mov_b32 {s(S_SPIN)}, {SPIN}")
    C.label("L_s_check")
    s_test()
    C("s_cbranch_scc0 L_s_ok", f"s_sub_u32 {s(S_SPIN)}, {s(S_SPIN)}, 1", "s_cbranch_scc1 L_s_ok")
    s_loads()
    C("s_branch L_s_check")
    C.label("L_s_ok")
    for b in range(8):
        combine(b)
    C("s_branch L_done")
    C.label("L_spin_r")
    C(f"s_mov_b32 {s(S_SPIN)}, {SPIN}")
    C.label("L_poll_r")
    C(f"buffer_load_dword v63, v62, {s(SR_ACT, 4)}, s51 offen sc1",
      f"buffer_load_dword v30, v31, {s(SR_ACT, 4)}, s50 offen sc1", "s_waitcnt vmcnt(0)",
      f"v_readfirstlane_b32 {s(S_RANK)}, v63", "v_cmp_gt_u32 vcc, 4, v30", "s_nop 1", "s_cmp_lg_u64 vcc, 0",
      f"s_cselect_b32 {s(S_RANK)}, 0, {s(S_RANK)}", f"s_sub_u32 {s(S_SPIN)}, {s(S_SPIN)}, 1",
      "s_cbranch_scc1 L_spin_r_ret", f"s_cmp_eq_u32 {s(S_RANK)}, 0", "s_cbranch_scc1 L_poll_r",
      "s_branch L_spin_r_ret")
    C.label("L_u_late")
    C("s_waitcnt vmcnt(0)", flag_store(S_FU), f"v_mov_b32 v62, {v(V_FOFF)}", f"v_mov_b32 {v(V_FOFF)}, v63")
    poll(C, "u", S_FO)
    C(f"v_mov_b32 {v(V_FOFF)}, v62", f"s_mov_b32 {s(SR_ACT2 + 2)}, 229376")
    fill = u_loads()
    for tag in u_order:
        C(f"buffer_load_dword v4, {v(V_L0)}, {s(SR_FLAG, 4)}, 0 offen" if tag == "U" else fill.pop(0))
    assert not fill
    C("s_branch L_u_late_ret")
    C.label("L_hook_mlp2")
    C(f"s_cmp_eq_u32 {s(S_CNT)}, 7", "s_cbranch_scc0 L_hook_mlp2_b")
    C("s_waitcnt vmcnt(14)", flag_store(S_FU), "s_branch L_hook_mlp2_ret")
    C.label("L_hook_mlp2_b")
    C("s_waitcnt vmcnt(25)", f"v_cmp_eq_u32 vcc, 0, {v(V_FLG)}", f"s_cmp_eq_u32 {s(S_CNT)}, 6",
      "s_cselect_b32 s48, 0x7ff, -1", "s_and_b32 s48, s48, vcc_lo", "s_cbranch_scc0 L_hook_mlp2_ret")
    poll(C, "u2", S_FO)
    C("s_branch L_hook_mlp2_ret")
    C("; region -")
    C.label("L_spin_o")
    poll(C, "o", S_FO)
    C("s_branch L_spin_o_ret")
    C.label("L_spin_h")
    poll(C, "h", None, SR_DBG, 4)
    C("s_branch L_spin_h_ret")
    C.label("L_fallback")
    C(f"s_mov_b32 {s(S_FB)}, 1", "s_waitcnt vmcnt(0) lgkmcnt(0)", "s_barrier", "s_nop 7", "s_branch L_restart")
    C.label("L_fb_hook")
    C("v_lshlrev_b32 v63, 4, v0", "s_lshl_b32 s48, s2, 12", f"s_add_u32 s48, s48, {WS_MX}",
      srd(SR_W, P_WS, "s48", 4096), f"s_cmp_eq_u32 {s(S_FB)}, 1", "s_cbranch_scc1 L_fb_scan")
    C(f"buffer_load_dwordx4 v[248:251], v63, {s(SR_W, 4)}, 0 offen sc1", "s_waitcnt vmcnt(0)")
    C([f"v_mov_b32 {v(V_NEGM + 4 * q)}, {v(248 + q)}" for q in range(4)])
    C("s_mov_b32 s48, 0", "s_branch L_fb_ret")
    C.label("L_fb_scan")
    C(f"s_mov_b32 {s(S_SK)}, 0", f"s_mov_b32 {s(S_CNT)}, 32")
    C.label("L_fb_loop")
    C("s_waitcnt vmcnt(0) lgkmcnt(0)", "s_barrier")
    ops = k_dma(0)
    C(ops[0], "s_nop 0", ops[1:], "s_waitcnt vmcnt(0)", "s_barrier")
    C(k_reads(0, A_KF), "s_waitcnt lgkmcnt(0)", k_reads(1, A_VF), "s_waitcnt lgkmcnt(0)")
    C(qk_mfmas(0, A_KF, True), qk_mfmas(1, A_VF, True), "s_nop 7")
    for u in range(2):
        for q in range(4):
            C(max_ops(u, q, False))
    C(f"s_sub_u32 {s(S_CNT)}, {s(S_CNT)}, 1", f"s_cmp_lg_u32 {s(S_CNT)}, 0", "s_cbranch_scc1 L_fb_loop")
    C(wave_red([V_NEGM + 4 * q for q in range(4)], [V_NEGM + 4 * q + 1 for q in range(4)], "v_max_f32", False))
    C([f"v_mov_b32 {v(248 + q)}, {v(V_NEGM + 4 * q)}" for q in range(4)])
    C(f"buffer_store_dwordx4 v[248:251], v63, {s(SR_W, 4)}, 0 offen sc1", f"s_mov_b32 {s(S_FB)}, 3",
      "s_waitcnt vmcnt(0)", "s_barrier",
      "s_branch L_restart")
    C.label("L_code_end")


def check_order(lines):
    from asmlib import I
    ins = [I(x) for x in lines if not x.endswith(":") and not x.startswith(".")]
    mf = [i for i, x in enumerate(ins) if x.is_mfma]
    for i, x in enumerate(ins):
        if x.op.startswith("v_cvt_pk"):
            r = next(iter(x.w))
            g = sum(1 for m in mf if m < i) - 1
            first = min(k for k, m in enumerate(mf) if r in ins[m].r)
            assert g < first, ("P63 late", x.text, g, first)
            for src in x.r:
                over = [k for k, y in enumerate(ins) if src in y.w and (y.op == "v_mov_b32" or y.text.endswith(", 0"))]
                assert all(k > i for k in over), ("source overwritten early", x.text)
        if x.op == "v_subrev_u32":
            assert sum(1 for m in mf if m < i) - 1 < 84
        if x.op == "v_accvgpr_write_b32":
            assert not any(m > i and x.w & ins[m].r for m in mf), x.text


def kd(name, nfv, acc):
    return f""".p2align 6
.amdhsa_kernel {name}
  .amdhsa_next_free_vgpr {nfv}
  .amdhsa_next_free_sgpr 102
  .amdhsa_accum_offset {acc}
  .amdhsa_group_segment_fixed_size 0
  .amdhsa_float_denorm_mode_32 {OPT["denorm"]}
  .amdhsa_kernarg_size 104
  .amdhsa_user_sgpr_count 2
  .amdhsa_user_sgpr_kernarg_segment_ptr 1
  .amdhsa_system_sgpr_workgroup_id_x 1
.end_amdhsa_kernel
"""


def main():
    head = [l for l in open(f"cdna_kernels/{NAME}.s.ref").read().split("\n") if l.startswith(";")]
    head = [l for l in head if "@launch" not in l and "Override launch" not in l and "grid=ceil" not in l]
    out = "\n".join(head) + "\n"
    out += f"; @launch grid=(256,1,1) block=(256,1,1) lds={MAIN_LDS}\n"
    out += '.amdgcn_target "amdgcn-amd-amdhsa--gfx950"\n.text\n'
    name = NAME + "_kernel"
    C = Ctx(Asm())
    gen_main(C)
    on = "".join(g for bit, g in ((1, "a"), (2, "b"), (4, "om")) if OPT["warm"] & bit)
    C.A.lines = [("; region -" if x.startswith("; region") and x.split()[2][0] not in on else x) for x in C.A.lines]
    lab = {"L_attn_loop": "a", "L_attn_entry": "a", "L_hook": "a", "L_hook_oproj": "o", "L_done": "o",
           "L_hook_mlp2": "m", "L_hook_s": "m", "L_u_late": "m", "L_s_ok": "m"}
    C.A.lines, cnt = insert_stubs(C.A.lines, {k: [g] for k, g in lab.items() if g in on})
    print("warm-up stubs:", cnt, file=sys.stderr)
    pr = check_hazards(C.A.lines)
    for p in pr[:40]:
        print("HAZARD", p, file=sys.stderr)
    bad = len(pr)
    out += f".globl {name}\n.p2align 8\n.type {name},@function\n" + C.A.text()
    out += '.section .rodata,"a"\n' + kd(name, 512, 256)
    open(sys.argv[1], "w").write(out)
    print("hazards:", bad, file=sys.stderr)


main()
```

```python
import re
import struct


def v(i, n=1):
    return f"v{i}" if n == 1 else f"v[{i}:{i + n - 1}]"


def a(i, n=1):
    return f"a{i}" if n == 1 else f"a[{i}:{i + n - 1}]"


def s(i, n=1):
    return f"s{i}" if n == 1 else f"s[{i}:{i + n - 1}]"


def R(reg, n=1, off=0):
    k, i = reg
    return (v if k == "v" else a)(i + off, n)


def f32(x):
    return "0x%08x" % struct.unpack("<I", struct.pack("<f", x))[0]


class Asm:
    def __init__(self):
        self.lines = []

    def __call__(self, *txt):
        for t in txt:
            for ln in t.split("\n"):
                ln = ln.strip()
                if ln:
                    self.lines.append(ln)

    def label(self, name):
        self.lines.append(name + ":")

    def nop(self, n):
        while n > 0:
            k = min(n, 16)
            self.lines.append(f"s_nop {k - 1}")
            n -= k

    def text(self):
        out = []
        for ln in self.lines:
            if ln.endswith(":") or ln.startswith(".") or ln.startswith(";"):
                out.append(ln)
            else:
                out.append(" " + ln.replace(", ", ","))
        return "\n".join(out) + "\n"


def weave(A, mfmas, pre, valu):
    for i, m in enumerate(mfmas):
        A(m)
        for x in pre.get(i, []):
            A(x)
        for x in valu.get(i, []):
            A(x)


_REG = re.compile(r"\b([vas])(?:(\d+)\b|\[(\d+):(\d+)\])")
TRANS = ("v_exp_f32", "v_log_f32", "v_rcp_f32", "v_rsq_f32", "v_sqrt_f32", "v_sin_f32", "v_cos_f32")


def regs(op):
    out = set()
    for m in _REG.finditer(op):
        k = m.group(1)
        if m.group(2) is not None:
            out.add((k, int(m.group(2))))
        else:
            for i in range(int(m.group(3)), int(m.group(4)) + 1):
                out.add((k, i))
    if re.search(r"\bvcc(_lo|_hi)?\b", op):
        out.add(("s", "vcc"))
    if re.search(r"\bm0\b", op):
        out.add(("s", "m0"))
    if re.search(r"\bexec\b", op):
        out.add(("s", "exec"))
    return out


class I:
    def __init__(self, text):
        self.text = text
        t = text.split(";")[0].strip()
        parts = t.split(None, 1)
        self.op = parts[0]
        opnds = [x.strip() for x in parts[1].split(",")] if len(parts) > 1 else []
        self.opnds = opnds
        op = self.op
        self.is_mfma = op.startswith(("v_mfma", "v_smfmac"))
        self.is_valu = op.startswith("v_") and not self.is_mfma
        self.is_trans = any(op.startswith(x) for x in TRANS)
        self.is_ds = op.startswith("ds_")
        self.is_vmem = op.startswith("buffer_") or op.startswith("global_")
        self.is_salu = op.startswith("s_")
        self.is_dma = self.is_vmem and bool(re.search(r"\blds\b", t))
        self.is_dpp = bool(re.search(r"quad_perm|row_|dpp", t))
        self.is_perml = op.startswith("v_permlane")
        self.ws = 1
        if op == "s_nop":
            self.ws = int(opnds[0], 0) + 1
        w, r = set(), set()
        self.srcc = set()
        self.srcab = set()
        self.stdata = set()
        if self.is_mfma:
            w = regs(opnds[0])
            self.srcab = regs(opnds[1]) | regs(opnds[2])
            self.srcc = regs(opnds[3])
            if op.startswith("v_smfmac"):
                self.srcab |= self.srcc
                self.srcc = set(w)
            r = self.srcab | self.srcc
            self.passes = 4 if "16x16x32" in op else 8
        elif self.is_valu:
            if self.is_perml and "swap" in op:
                w = regs(opnds[0]) | regs(opnds[1])
                r = set(w)
            else:
                w = regs(opnds[0])
                rest = opnds[1:]
                if op.startswith(("v_add_co", "v_addc_co", "v_sub_co", "v_subb_co")):
                    w |= regs(opnds[1])
                    rest = opnds[2:]
                for x in rest:
                    r |= regs(x)
                if op.startswith(("v_fmac", "v_dot2c", "v_writelane")) or self.is_dpp:
                    r |= regs(opnds[0])
                if op.startswith("v_cmpx"):
                    w.add(("s", "exec"))
        elif self.is_ds:
            if op.startswith(("ds_read", "ds_bpermute", "ds_swizzle", "ds_permute")):
                w = regs(opnds[0])
                for x in opnds[1:]:
                    r |= regs(x)
            else:
                for x in opnds:
                    r |= regs(x)
        elif self.is_vmem:
            if op in ("buffer_wbl2", "buffer_inv"):
                pass
            elif "load" in op and not self.is_dma:
                w = regs(opnds[0])
                for x in opnds[1:]:
                    r |= regs(x)
            else:
                for x in opnds:
                    r |= regs(x)
                if self.is_dma:
                    r.add(("s", "m0"))
                elif re.search(r"x[34]$", op):
                    self.stdata = regs(opnds[0] if op.startswith("buffer") else opnds[1])
                if "atomic" in op and re.search(r"\bsc0\b", t):
                    w = regs(opnds[0])
        elif self.is_salu:
            if op.startswith(("s_cmp", "s_cbranch", "s_branch", "s_waitcnt", "s_nop", "s_barrier", "s_endpgm",
                              "s_bitcmp", "s_setprio", "s_sleep")):
                for x in opnds:
                    r |= regs(x)
            else:
                w = regs(opnds[0])
                for x in opnds[1:]:
                    r |= regs(x)
                if "saveexec" in op:
                    w.add(("s", "exec"))
        self.w, self.r = w, r


def need(p, c):
    n = 0
    vw = {x for x in p.w if x[0] in "va"}
    sw = {x for x in p.w if x[0] == "s"}
    if p.is_valu:
        if c.is_mfma and vw & c.r:
            n = max(n, 2)
        if p.is_trans and c.is_valu and not c.is_trans and vw & c.r:
            n = max(n, 1)
        if c.is_perml and vw & c.r:
            n = max(n, 2)
        if c.is_dpp and vw & c.r:
            n = max(n, 2)
        if c.op.startswith(("v_readfirstlane", "v_readlane")) and vw & c.r:
            n = max(n, 1)
        if c.is_vmem and sw & c.r:
            n = max(n, 5)
        if c.is_valu and sw & c.r:
            n = max(n, 2)
        if c.is_salu and sw & c.r:
            n = max(n, 1)
        if ("s", "exec") in sw and (c.is_mfma or c.is_perml or c.op.startswith("v_read")):
            n = max(n, 4)
        if ("s", "exec") in sw and c.is_dpp:
            n = max(n, 5)
    if p.is_salu and ("s", "m0") in p.w and c.is_dma:
        n = max(n, 1)
    if p.is_mfma:
        far = {4: 8, 8: 12}[p.passes]
        if c.is_mfma:
            if p.w & c.srcab:
                n = max(n, far)
            if p.w & c.srcc and not (p.w == c.srcc and p.passes == c.passes):
                n = max(n, {4: 6, 8: 10}[p.passes])
        elif (c.is_valu or c.is_ds or c.is_vmem) and p.w & (c.r | c.w):
            n = max(n, far)
        if c.is_valu and p.srcc & c.w:
            n = max(n, {4: 3, 8: 7}[p.passes])
    if p.stdata and p.stdata & c.w:
        n = max(n, 2)
    return n


def check_hazards(lines, window=14):
    ins = []
    labels = {}
    for ln in lines:
        t = ln.split(";")[0].strip()
        if not t or t.startswith("."):
            continue
        if t.endswith(":"):
            labels[t[:-1]] = len(ins)
            continue
        ins.append(I(t))
    problems = []

    def succ(i):
        x = ins[i]
        if x.op == "s_endpgm":
            return []
        if x.op == "s_branch" and not x.opnds[0].startswith("L_stub"):
            return [labels[x.opnds[0]]]
        if x.op == "s_cbranch_execz":
            return [i + 1]
        if x.op in ("s_branch", "s_cbranch_scc1") and x.opnds[0].startswith("L_stub"):
            return [i + 1]
        if x.op.startswith("s_cbranch"):
            return [i + 1, labels[x.opnds[0]]]
        return [i + 1]

    for i, p in enumerate(ins):
        if not (p.is_valu or p.is_mfma or p.stdata or (p.is_salu and ("s", "m0") in p.w)):
            continue
        stack = [(j, 0) for j in succ(i)]
        seen = set()
        while stack:
            j, d = stack.pop()
            if j >= len(ins) or d >= window or (j, d) in seen:
                continue
            seen.add((j, d))
            c = ins[j]
            n = need(p, c)
            if n > d:
                problems.append(f"need {n} have {d}: [{p.text}] -> [{c.text}]")
            for k in succ(j):
                stack.append((k, d + c.ws))
    return problems


class Op:
    def __init__(self, text, tag=None):
        self.text, self.tag = text, tag


class Wait:
    def __init__(self, vm=(), lg=(), key=None):
        self.vm, self.lg, self.key = tuple(vm), tuple(lg), key


def text_of(x):
    return x.text if isinstance(x, Op) else x


def kind(x):
    if isinstance(x, Wait):
        return "s"
    if isinstance(x, list):
        return kind(x[0])
    t = text_of(x)
    if t.startswith(("ds_", "buffer_", "global_")):
        return "m"
    if t.startswith(("v_mfma", "v_smfmac")):
        return "x"
    if t.startswith("v_"):
        return "v"
    return "s"


def cost(x):
    if isinstance(x, list):
        return sum(cost(y) for y in x)
    if isinstance(x, Wait):
        return 1
    t = text_of(x)
    if t.endswith(":"):
        return 0
    return 2 if t.startswith(TRANS + ("v_permlane",)) else 1


class Ctx:
    def __init__(self, A):
        self.A, self.vm, self.lg = A, [], []
        self.fixed = None
        self.record = None

    def clone_dry(self):
        c = Ctx(Asm())
        c.vm, c.lg = list(self.vm), list(self.lg)
        return c

    @staticmethod
    def _after(seq, tags, cap):
        if not tags:
            return None
        if "*" in tags:
            return 0
        best = -1
        for t in tags:
            idx = [i for i, y in enumerate(seq) if y == t]
            assert idx, f"wait on tag never issued: {t}"
            full = {"FX": 8, "GX": 8, "W": 4, "QW": 4, "QX": 4, "K": 4, "V": 4, "X": 2}.get(t[0] if isinstance(t, tuple) else None)
            assert full is None or len(idx) % full == 0, f"wait on a partly issued group: {t}"
            best = max(best, idx[-1])
        return min(len(seq) - best - 1, cap)

    def __call__(self, *xs):
        for x in xs:
            if isinstance(x, list):
                self(*x)
            elif isinstance(x, Wait):
                if self.fixed is not None and x.key is not None:
                    nv, nl = self.fixed[x.key]
                else:
                    nv, nl = self._after(self.vm, x.vm, 62), self._after(self.lg, x.lg, 14)
                if self.record is not None and x.key is not None:
                    ov, ol = self.record.get(x.key, (nv, nl))
                    mn = lambda p, q_: q_ if p is None else (p if q_ is None else min(p, q_))
                    self.record[x.key] = (mn(ov, nv), mn(ol, nl))
                parts = ([f"vmcnt({nv})"] if nv is not None else []) + ([f"lgkmcnt({nl})"] if nl is not None else [])
                self.A("s_waitcnt " + " ".join(parts))
            else:
                t = text_of(x)
                tag = x.tag if isinstance(x, Op) else None
                if t.startswith("ds_"):
                    self.lg.append(tag)
                elif t.startswith(("buffer_", "global_")):
                    self.vm.append(tag)
                self.A(t)

    def label(self, n):
        self.A.label(n)

    def nop(self, n):
        self.A.nop(n)

    def weave(self, mfmas, pre=None, valu=None, bg=None, cap=2):
        pre, valu = pre or {}, valu or {}
        for g, m in enumerate(mfmas):
            self(m)
            px, vx = pre.get(g, []), valu.get(g, [])
            lim = cap(g) if callable(cap) else cap
            ns = sum(cost(x) for x in px if kind(x) == "s")
            used = sum(cost(x) for x in px if kind(x) != "s") + sum(cost(x) for x in vx) + max(0, ns - 1)
            has_vm = any(kind(x) == "m" and not text_of(x).startswith("ds_") for x in px)
            has_ds = any(kind(x) == "m" and text_of(x).startswith("ds_") for x in px)
            blocked = any(isinstance(x, str) and x.startswith(("s_barrier", "s_cbranch", "s_branch")) for x in px)
            head = []
            while bg and isinstance(bg[0], tuple) and bg[0][1] <= g:
                bg.pop(0)
            if bg and bg[0] is None:
                bg.pop(0)
            if bg and not isinstance(bg[0], tuple) and bg[0] is not None and kind(bg[0]) == "s" and ns == 0:
                x = bg.pop(0)
                head.append(x)
                used += cost(x) - 1
            self(*head)
            self(*px)
            if (bg and not isinstance(bg[0], tuple) and bg[0] is not None and kind(bg[0]) == "m" and used < lim
                    and not blocked):
                isds = text_of(bg[0]).startswith("ds_")
                if isds or not has_vm:
                    self(bg.pop(0))
                    used += 2 if isds and has_ds else 1
            self(*vx)
            while bg and not blocked:
                x = bg[0]
                if isinstance(x, tuple) and x[1] <= g:
                    bg.pop(0)
                    continue
                if x is None or isinstance(x, tuple) or kind(x) == "m" or used + cost(x) > lim:
                    break
                self(bg.pop(0))
                used += cost(x)

    def drain(self, bg):
        while bg:
            x = bg.pop(0)
            if x is not None and not isinstance(x, tuple):
                self(x)


def warm_call(g, wreg):
    out = ["s_mov_b64 exec, 0"]
    for w in range(3):
        out += [f"s_cmp_eq_u32 {wreg}, {w * 4096}", f"s_cbranch_scc1 L_stub_{g}_{w}"]
    return out + [f"s_branch L_stub_{g}_3", f"L_warm_{g}_ret:", "s_mov_b64 exec, -1"]


def warm_call2(g1, g2, wreg, test):
    out = ["s_mov_b64 exec, 0", test, f"s_cbranch_scc1 L_warm_{g2}_go"]
    for g in (g1, g2):
        if g == g2:
            out.append(f"L_warm_{g2}_go:")
        for w in range(3):
            out += [f"s_cmp_eq_u32 {wreg}, {w * 4096}", f"s_cbranch_scc1 L_stub_{g}_{w}"]
        out.append(f"s_branch L_stub_{g}_3")
    return out + [f"L_warm_{g1}_ret:", f"L_warm_{g2}_ret:", "s_mov_b64 exec, -1"]


def inst_sizes(lines):
    import subprocess, tempfile, os
    body = [ln for ln in lines if not ln.startswith((".", ";"))]
    stubs = sorted({m for ln in body for m in re.findall(r"L_stub_\w+", ln)})
    txt = ".text\n" + "\n".join(body) + "\n" + "".join(x + ":\n" for x in stubs) + "s_endpgm\n"
    d = tempfile.mkdtemp()
    open(d + "/a.s", "w").write(txt)
    subprocess.run(["clang", "-x", "assembler", "-target", "amdgcn-amd-amdhsa", "-mcpu=gfx950",
                    "-c", d + "/a.s", "-o", d + "/a.o"], check=True)
    dis = subprocess.run(["llvm-objdump", "-d", "--mcpu=gfx950", d + "/a.o"],
                         capture_output=True, text=True, check=True).stdout
    return [4 * len(m.group(1).split()) for m in re.finditer(r"// [0-9A-F]{12}: ([0-9A-F ]+)", dis)]


def insert_stubs(lines, labels):
    sizes = iter(inst_sizes(lines))
    out, groups, off, region, want = [], {}, None, "-", None

    def stub(g):
        k = len(groups.setdefault(g, []))
        groups[g].append(len(out))
        out.append(f"L_stub_{g}_{k}:")
        out.append(("stub", g, k))
    for n, ln in enumerate(lines):
        if ln.startswith("; region"):
            region = ln.split()[2]
            continue
        out.append(ln)
        if ln.startswith(".p2align"):
            al = 1 << int(ln.split()[1])
            if off is None and al == 4096:
                off = 0
            elif off is not None:
                new = -(-off // al) * al
                if new // 4096 != off // 4096 or (new % 4096 == 0 and new != off):
                    want = region
                off = new
            continue
        if ln.startswith((".", ";")):
            continue
        if ln.endswith(":"):
            for g in labels.get(ln[:-1], []):
                stub(g)
                off += 4
                if off % 4096 <= 64:
                    want = None
            continue
        sz = next(sizes)
        if off is None:
            continue
        if (off + sz) // 4096 != off // 4096:
            want = region
        off += sz
        if want is not None:
            late = off % 4096 >= 44
            ok = not ln.startswith(("s_getpc", "s_branch", "s_endpgm"))
            if want == "-":
                want = None
            elif ok and (ln.startswith(("v_mfma", "v_smfmac")) or late):
                for g in want.split("+"):
                    stub(g)
                    off += 4
                want = None
    res = []
    for x in out:
        if isinstance(x, tuple):
            _, g, k = x
            res.append("s_cbranch_execz " + (f"L_stub_{g}_{k + 4}" if k + 4 < len(groups[g]) else f"L_warm_{g}_ret"))
        else:
            m = re.search(r"L_stub_(\w+)_(\d)$", x)
            if m and int(m.group(2)) >= len(groups.get(m.group(1), [])):
                x = x.replace(m.group(0), f"L_warm_{m.group(1)}_ret")
            res.append(x)
    return res, {g: len(x) for g, x in groups.items()}
```

```python
import math
import sys
from asmlib import Asm, Ctx, Op, Wait, v, a, s, R, f32, check_hazards, warm_call, warm_call2, insert_stubs

NAME = "recurrent_scan__mha_block_cached__mixer_token_mlp__prompt"
OPT = dict(diag=0, bias=102.0, thresh=2.0 ** 60, force_fb=0, pf=1, qpre=12, qpro=12, cpos=-1, warm=7, pub0=3, pubb=8, chk=20, qc0=96, qc1=108, earlyw=1, tpos=0, hpos=2, latew=3, gopos=1, rank=1, odelay=8, osc=1, fg=7777, skip=0, ost=1, qch=1, nch=1, lead=7, tcap=40, swpv=0, pfm=0, qnc=0, uflag=1, oupos=32, win=4, mwin=4, mrate=7, msame=0, mord=8, osplit=0, tbl=0x45673210, fswap=0, flpos=-1, pfpos=-1, go=0, aflag=0, probe=0, nf=7, ford=0, alead=3, fu2=2, oord=1, ogets=1220000444, mgets=1220000001111112220, fcap=6, tail=28, frate=7, pcap=3, pnop=4, npre=2, mcap=3, xmode=0, stag=0, ering=2, pad1=0, oshape=0, kvsc=0, wsc=0, asc=1, denorm=3, dbgout=0, l2hack=0, barpos=0, qrate=7, spin=0x80000, ocap=0, grate=84444444446888888888880, opace=7, vlate=2, insplit=1)
for arg in sys.argv[2:]:
    k_, v_ = arg.split("=")
    OPT[k_] = float(v_) if "." in v_ else int(v_, 0)

MB = 1 << 20
WS_ST, WS_RS, WS_CS, WS_MX = 0, 32768, 65536, 44 * MB
WS_XF, WS_HF, WS_OF, WS_UF, WS_S, WS_FLAG, WS_DIAG = 0, 4 * MB, 8 * MB, 24 * MB, 72 * MB, 40 * MB, 64 * MB
FL_O, FL_U, FL_T, FL_H, FL_SIZE, FL_A = 0, 4096, 8192, 12288, 16384, 16384
KA_X, KA_K, KA_V, KA_WQ, KA_WO, KA_W1, KA_B1, KA_W2, KA_B2, KA_OUT, KA_DBG, KA_WS = (
    0, 8, 16, 24, 32, 48, 56, 64, 72, 80, 88, 96)
LOG2E = 1.4426950408889634
QSCALE = LOG2E / math.sqrt(128.0)
MF = "v_mfma_f32_16x16x32_bf16"
OSC = ('', ' sc1', ' nt', ' sc0 sc1', ' sc1 nt')
SPIN = OPT["spin"]


def mfma(d, x, y, c):
    return f"{MF} {d}, {x}, {y}, {c}"


def srd(sr, ptr, off, size):
    return [[f"s_add_u32 {s(sr)}, {s(ptr)}, {off}", f"s_addc_u32 {s(sr + 1)}, {s(ptr + 1)}, 0"],
            f"s_mov_b32 {s(sr + 2)}, {size}", f"s_mov_b32 {s(sr + 3)}, 0x20000"]


def code_srd(sr, start, end, tag):
    return [[f"s_getpc_b64 {s(sr, 2)}", f"L_pc_{tag}:", f"s_add_u32 {s(sr)}, {s(sr)}, {start}-L_pc_{tag}",
             f"s_addc_u32 {s(sr + 1)}, {s(sr + 1)}, 0"],
            f"s_mov_b32 {s(sr + 2)}, {end}-{start}", f"s_mov_b32 {s(sr + 3)}, 0x20000"]


def nops(n):
    return [f"s_nop {n - 1}"] if n > 0 else []


def wave_red(regs, tmp, op="v_add_f32", dpp=True, swaps=("v_permlane16_swap_b32", "v_permlane32_swap_b32")):
    out = []
    if dpp:
        for mod in ("quad_perm:[1,0,3,2]", "quad_perm:[2,3,0,1]", "row_half_mirror", "row_mirror"):
            out += nops(3 - len(regs))
            out += [f"{op}_dpp {v(r)}, {v(r)}, {v(r)} {mod} row_mask:0xf bank_mask:0xf" for r in regs]
    for sw in swaps:
        out += [f"v_mov_b32 {v(t)}, {v(r)}" for r, t in zip(regs, tmp)]
        out += nops(3 - len(regs))
        out += [f"{sw} {v(r)}, {v(t)}" for r, t in zip(regs, tmp)]
        out += [f"{op} {v(r)}, {v(r)}, {v(t)}" for r, t in zip(regs, tmp)]
    return out


class Diag:
    def __init__(self, C, slot):
        self.C, self.slot = C, slot

    def stamp(self, n, mode=1):
        if OPT["diag"] == mode or (OPT["diag"] and self.slot == 2):
            self.C("s_memtime s[98:99]", "s_waitcnt lgkmcnt(0)", f"s_mov_b32 {s(78 + 2 * n)}, s98",
                   "s_memrealtime s[98:99]", "s_waitcnt lgkmcnt(0)", f"s_mov_b32 {s(79 + 2 * n)}, s98")

    def ops(self, n, mode):
        if OPT["diag"] != mode:
            return []
        return [["s_memtime s[98:99]", "s_waitcnt lgkmcnt(0)", f"s_mov_b32 {s(78 + 2 * n)}, s98",
                 "s_memrealtime s[98:99]", "s_waitcnt lgkmcnt(0)", f"s_mov_b32 {s(79 + 2 * n)}, s98"]]

    def flush(self, nmax):
        if not OPT["diag"]:
            return
        C = self.C
        if OPT["dbgout"]:
            C(f"s_load_dwordx2 s[98:99], s[0:1], {KA_DBG}", "s_waitcnt lgkmcnt(0)", "s_cmp_eq_u32 s2, 9",
              "s_cselect_b32 s101, 64, 0")
            C(srd(4, 98, 0, "s101"))
            C("v_mov_b32 v1, 0")
            for i in range(1, nmax):
                C(f"s_sub_u32 s101, {s(79 + 2 * i)}, s79", "v_mov_b32 v2, s101",
                  f"buffer_store_dword v2, v1, s[4:7], 0 offen offset:{4 * i}")
            C(f"s_sub_u32 s101, {s(78 + 2 * (nmax - 1))}, s78", "v_mov_b32 v2, s101",
              f"buffer_store_dword v2, v1, s[4:7], 0 offen offset:{4 * nmax}", "s_waitcnt vmcnt(0)")
            return
        C(f"s_load_dwordx2 s[98:99], s[0:1], {KA_WS}", "s_waitcnt lgkmcnt(0)", "s_lshl_b32 s101, s2, 7",
          f"s_add_u32 s101, s101, {WS_DIAG + self.slot * 65536}")
        C(srd(4, 98, "s101", 128))
        C("v_mov_b32 v1, 0")
        for i in range(2 * nmax):
            C(f"v_mov_b32 v2, {s(78 + i)}", f"buffer_store_dword v2, v1, s[4:7], 0 offen offset:{4 * i}")
        C("v_mov_b32 v2, s43", "buffer_store_dword v2, v1, s[4:7], 0 offen offset:96")
        C("s_waitcnt vmcnt(0)")


V_LANE16 = 1
V_KA, V_VA, V_QA, V_ONE, V_OK, V_OV, V_OW = 4, 8, 16, 20, 24, 28, 32
V_L, V_NEGM, V_WA0, V_IDX, V_PF = 36, 44, 44, 60, 61
V_Q, V_S, V_P, V_ACC = 64, (128, 160), (192, 208, 224, 240), 128
V_EA = 36
V_B1, V_L0, V_FLG, V_FOFF, V_ONEI, V_XO = 120, 52, 53, 54, 55, 56
V_XA, V_XO4, V_CS, V_FA = 112, 116, 120, 16
A_O, A_KF, A_VF, A_CA, A_CB = 0, 128, 160, 0, 32
A_WF = (128, 160)
S_W = 3
SR_ACT, SR_W, SR_K, SR_V, SR_ST = 4, 8, 12, 16, 20
P_K, P_V, P_WQ, P_WS, P_W1, P_B1, P_WO, P_W2, P_X, P_B2, P_OUT = 24, 26, 28, 30, 32, 34, 36, 38, 52, 54, 56
S_SA, S_SW, S_SK, S_SV, S_CNT, S_FB = 40, 41, 42, 43, 44, 45
S_SPIN, S_RANK, S_W2, S_XB, S_STG, SR_GET = 101, 100, 58, 59, 59, 12
SR_PF, S_PF, S_PFC = 60, 76, 77
SR_ACT2, SR_UST, SR_FLAG, SR_X = 60, 64, 68, 72
S_WSTEP, S_ROLE, S_PAIR, S_FO, S_FU, S_KH, S_AB = 58, 42, 43, 76, 77, 100, 77
VBASE, EBASE = 65536, 131072
VOTE = 49152 if OPT["ering"] else EBASE
MAIN_LDS = 163840
WQSTEP, W1STEP = 64 * 8192, 64 * 7168


def ring(n):
    idx = n % 32
    return ("a", 192 + 4 * idx) if idx < 16 else ("a" if n >= 128 else "v", 64 + 4 * (idx - 16))


def add(d, k, *x):
    d.setdefault(k, []).extend(x)


def v_read_addrs(dst, t0):
    out = [f"v_lshrrev_b32 {v(t0)}, 2, v2", f"v_and_b32 {v(t0 + 1)}, 1, v3",
           f"v_lshl_add_u32 {v(t0 + 1)}, {v(t0 + 1)}, 2, {v(t0)}", f"v_lshl_add_u32 {v(t0)}, v3, 2, {v(t0)}",
           f"v_lshlrev_b32 {v(t0)}, 8, {v(t0)}", f"v_lshl_add_u32 {v(t0)}, {v(t0 + 1)}, 5, {v(t0)}",
           f"v_and_b32 {v(t0 + 1)}, 3, v2", f"v_lshl_add_u32 {v(t0)}, {v(t0 + 1)}, 3, {v(t0)}",
           f"v_add_u32 {v(t0)}, {VBASE}, {v(t0)}"]
    return out + [f"v_xor_b32 {v(dst + b)}, {b * 32}, {v(t0)}" for b in range(8)]


def q_read_addrs(dst, t0):
    out = [f"v_lshrrev_b32 {v(t0)}, 2, v2", f"v_and_b32 {v(t0 + 1)}, 1, v3",
           f"v_lshl_add_u32 {v(t0 + 1)}, {v(t0 + 1)}, 2, {v(t0)}", f"v_lshl_add_u32 {v(t0)}, v3, 3, {v(t0)}",
           f"v_lshlrev_b32 {v(t0)}, 8, {v(t0)}", f"v_lshlrev_b32 {v(t0 + 1)}, 1, {v(t0 + 1)}",
           f"v_and_b32 {v(t0 + 2)}, 3, v2", f"v_xor_b32 {v(t0 + 1)}, {v(t0 + 1)}, {v(t0 + 2)}",
           f"v_lshl_add_u32 {v(t0)}, {v(t0 + 1)}, 4, {v(t0)}", f"s_lshr_b32 s48, {s(S_W)}, 6",
           f"s_add_u32 s48, s48, {VBASE}", f"v_xor_b32 {v(t0)}, s48, {v(t0)}"]
    if OPT["qnc"]:
        out += [f"v_bfe_u32 {v(t0 + 1)}, v2, 1, 1", f"v_lshl_add_u32 {v(t0)}, {v(t0 + 1)}, 3, {v(t0)}"]
    return out + [f"v_xor_b32 {v(dst + x)}, {x * 64}, {v(t0)}" for x in range(4)]


def wq_dma_offsets(t0):
    return [f"s_lshr_b32 s48, {s(S_W)}, 8", f"v_add_u32 {v(t0)}, s48, v3", f"v_lshlrev_b32 {v(t0)}, 13, {v(t0)}",
            f"v_lshlrev_b32 {v(t0 + 1)}, 1, v3", f"v_xor_b32 {v(t0 + 1)}, {v(t0 + 1)}, v2",
            f"v_lshl_add_u32 {v(V_OW)}, {v(t0 + 1)}, 4, {v(t0)}", f"v_xor_b32 {v(t0 + 1)}, 8, {v(t0 + 1)}",
            f"v_lshl_add_u32 {v(V_OW + 2)}, {v(t0 + 1)}, 4, {v(t0)}", f"v_add_u32 {v(V_OW + 2)}, 63488, {v(V_OW + 2)}",
            f"v_add_u32 {v(V_OW + 1)}, 31744, {v(V_OW)}", f"v_add_u32 {v(V_OW + 3)}, 31744, {v(V_OW + 2)}"]


def x_dma_offsets(t0):
    return [f"v_bfe_u32 {v(t0)}, v0, 3, 3", f"v_lshlrev_b32 {v(t0)}, 11, {v(t0)}", f"v_and_b32 {v(t0 + 1)}, 7, v0",
            f"v_xor_b32 {v(t0 + 1)}, {v(t0 + 1)}, v3", f"v_lshl_add_u32 {v(V_XO4)}, {v(t0 + 1)}, 4, {v(t0)}",
            f"v_xor_b32 {v(t0 + 1)}, 4, {v(t0 + 1)}", f"v_lshl_add_u32 {v(V_XO4 + 1)}, {v(t0 + 1)}, 4, {v(t0)}",
            f"v_add_u32 {v(V_XO4 + 1)}, 15360, {v(V_XO4 + 1)}", f"v_add_u32 {v(V_XO4 + 2)}, 30720, {v(V_XO4)}",
            f"v_add_u32 {v(V_XO4 + 3)}, 30720, {v(V_XO4 + 1)}"]


def x_read_addrs(t0):
    return [f"v_lshrrev_b32 {v(t0)}, 1, v2", f"v_xor_b32 {v(t0)}, {v(t0)}, v3", f"v_lshlrev_b32 {v(t0)}, 4, {v(t0)}",
            f"v_lshl_add_u32 {v(t0)}, v2, 7, {v(t0)}", f"v_add_u32 {v(V_XA)}, {s(S_W2)}, {v(t0)}",
            f"v_xor_b32 {v(V_XA + 1)}, 64, {v(V_XA)}", f"v_add_u32 {v(V_XA + 2)}, {EBASE}, {v(V_XA)}",
            f"v_add_u32 {v(V_XA + 3)}, {EBASE}, {v(V_XA + 1)}"]


def w_dma_offsets(dst, ldw, t0, st):
    out = [f"s_lshr_b32 {s(st)}, {s(S_W)}, 8", f"v_add_u32 {v(t0)}, {s(st)}, v3",
           f"v_mul_u32_u24 {v(t0)}, {ldw}, {v(t0)}", f"v_lshlrev_b32 {v(t0 + 1)}, 1, v3",
           f"v_xor_b32 {v(t0 + 1)}, {v(t0 + 1)}, v2", f"v_lshl_add_u32 {v(dst)}, {v(t0 + 1)}, 4, {v(t0)}",
           f"v_xor_b32 {v(t0 + 1)}, 8, {v(t0 + 1)}", f"v_lshl_add_u32 {v(dst + 1)}, {v(t0 + 1)}, 4, {v(t0)}"]
    if isinstance(ldw, int):
        one, two = 4 * ldw - 1024, 8 * ldw - 2048
    else:
        out += [f"s_lshl_b32 {s(st)}, {ldw}, 2", f"s_sub_u32 {s(st)}, {s(st)}, 1024",
                f"s_lshl_b32 {s(st + 1)}, {s(st)}, 1"]
        one, two = s(st), s(st + 1)
    out += [f"v_add_u32 {v(dst + 1)}, {one}, {v(dst + 1)}", f"v_add_u32 {v(dst + 2)}, {two}, {v(dst)}",
            f"v_add_u32 {v(dst + 3)}, {two}, {v(dst + 1)}"]
    return out


def dma(voff, sr, soff, i, tag):
    return Op(f"buffer_load_dwordx4 {v(voff)}, {s(sr, 4)}, {s(soff)} offen offset:{i * 1024}"
              + OSC[OPT["kvsc"] if tag[0] in "KV" else OPT["wsc"]] + " lds", tag)


def set_m0(off):
    return f"s_add_u32 m0, {s(S_W)}, {off}"


def tr_read(dst, addr, off, tag):
    return Op(f"ds_read_b64_tr_b16 {dst}, {v(addr)} offset:{off}", tag)


def x_slot(e):
    return EBASE if e == 15 else (0, EBASE, 32768)[e % 3]


def x_frag(e, k, q):
    return a(192 + 32 * (e & 1) + (k * 4 + q) * 4, 4)


def x_reads(e, half):
    sl = x_slot(e)
    return [Op(f"ds_read_b128 {x_frag(e, k, q)}, {v(V_XA + k + 2 * (sl == EBASE))} offset:{sl % EBASE + q * 2048}",
               ("XR", e, half)) for q in (2 * half, 2 * half + 1) for k in range(2)]


def q_reads(j):
    base = ((j >> 1) & 3) * 16384
    return [tr_read(a(A_WF[j & 1] + 2 * m, 2), V_QA + 2 * (j & 1) + (m >> 3),
                    base + ((m >> 1) & 1) * 8192 + (m & 1) * 1024 + ((m >> 2) & 1) * 8 * (1 - OPT["qnc"]), ("QT", j)) for m in range(16)]


def q_order(j):
    return [(bl, q) for q in range(4) for bl in range(4)] if j == 31 else [(bl, q) for bl in range(4) for q in range(4)]


def q_mfmas(j):
    out = []
    for bl, q in q_order(j):
        b = 4 * (j & 1) + bl
        acc = v(V_ACC + (b * 4 + q) * 4, 4)
        for k in range(2):
            out.append(mfma(acc, a(A_WF[j & 1] + 4 * (2 * bl + k), 4), x_frag(j >> 1, k, q), acc if j > 1 or k else "0"))
        if j >= 30:
            out.append(mfma(acc, a(A_CA + 4 * b, 4), a(A_CB + 4 * q, 4), acc))
    return out


def k_reads(u, dst):
    base = ((u >> 1) & 3) * 16384 + (u & 1) * 8192
    return [Op(f"ds_read_b128 {a(dst + (kb * 4 + ks) * 4, 4)}, {v(V_KA + ks)} offset:{base + kb * 4096}", ("KR", u))
            for kb in range(2) for ks in range(4)]


def v_reads(i, dst):
    base = ((i >> 1) & 3) * 16384
    return [tr_read(a(dst + 2 * m, 2), V_VA + 4 * (i & 1) + (m >> 2), base + ((m >> 1) & 1) * 8192 + (m & 1) * 4096,
                    ("VR", i)) for m in range(16)]


def k_dma(t):
    return ([set_m0((t & 3) * 16384)] + [dma(V_OK + i, SR_K, S_SK, i, ("K", t)) for i in range(4)]
            + [f"s_add_u32 {s(S_SK)}, {s(S_SK)}, 0x4000"])


def v_dma(t):
    return ([set_m0(VBASE + (t & 3) * 16384)] + [dma(V_OV + (i & 1), SR_V, S_SV, i, ("V", t)) for i in range(4)]
            + [f"s_add_u32 {s(S_SV)}, {s(S_SV)}, 0x4000"])


def w1_dma(e):
    return [set_m0(g_m0(e))] + [o for _, o in g_w(e)] + [f"s_mov_b32 {s(S_SW)}, {(e + 1) * 2 * W1STEP}"]


def sm_ops(u):
    S, P = V_S[u & 1], V_P[u & 3]
    out = []
    for q in range(4):
        for pr in range(4):
            r0 = S + ((pr >> 1) * 4 + q) * 4 + (pr & 1) * 2
            out += [[f"v_exp_f32 {v(r0)}, {v(r0)}"], [], [f"v_exp_f32 {v(r0 + 1)}, {v(r0 + 1)}"],
                    [f"v_cvt_pk_bf16_f32 {v(P + q * 4 + pr)}, {v(r0)}, {v(r0 + 1)}"]]
    return out


def sm_seq(u, q0, q1):
    ops = sm_ops(u)[16 * q0:16 * q1]
    out, pend = [], None
    for g in range(0, len(ops), 4):
        out += ops[g] + ops[g + 2]
        if pend:
            out += pend
        pend = ops[g + 3]
    return out + [None] + pend


def qk_mfmas(u, kf, zero_c=False, q_outer=False):
    out = []
    order = [(kb, q) for q in range(4) for kb in range(2)] if q_outer else [(kb, q) for kb in range(2) for q in range(4)]
    for kb, q in order:
        d = v(V_S[u & 1] + (kb * 4 + q) * 4, 4)
        for ks in range(4):
            c = d if ks else ("0" if zero_c else v(V_NEGM + 4 * q, 4))
            out.append(mfma(d, a(kf + (kb * 4 + ks) * 4, 4), v(V_Q + (q * 4 + ks) * 4, 4), c))
    return out


def pv_mfmas(i, vf, q_outer=False):
    out = []
    for m in range(32):
        bl, q = ((m >> 1) & 3, m >> 3) if q_outer else (m >> 3, (m >> 1) & 3)
        k = m & 1
        d = a(A_O + ((4 * (i & 1) + bl) * 4 + q) * 4, 4)
        x, y = a(vf + 4 * (2 * bl + k), 4), v(V_P[((i & ~1) + k) & 3] + 4 * q, 4)
        out.append(mfma(d, y, x, d) if OPT["swpv"] else mfma(d, x, y, d))
    return out


def l_mfma(u, h):
    return f"v_smfmac_f32_16x16x64_bf16 {v(V_L + 4 * h, 4)}, {v(V_ONE, 4)}, {v(V_P[u & 3] + 8 * h, 8)}, {v(V_IDX)}"


def fill_srd():
    return srd(SR_W, P_WS, WS_S, 20 * MB)


def fill_store(sr, so, i):
    return f"buffer_store_dwordx4 {v(V_QA, 4)}, {v(V_LANE16)}, {s(sr, 4)}, {so} offen offset:{1024 * i} sc1"


def tile_dma(i):
    if i >= 55:
        return v_dma(31) if i == 55 else w1_dma(i - 56)
    return k_dma((i + 1) // 2 + 4) if i & 1 else v_dma(i // 2 + 3)


def phase_a(C, i, extra, bg=None):
    pre = {}
    for g, x in enumerate(v_reads(i, A_VF)[4:]):
        add(pre, 2 * g + 1, x)
    ops = tile_dma(i - 1)
    if OPT["barpos"]:
        add(pre, 13, ops[3])
        add(pre, 21, ops[4])
        add(pre, 24, ops[5])
    else:
        add(pre, 25, ops[3])
        add(pre, 29, ops[4])
        add(pre, 30, ops[5])
    for g, x in extra:
        add(pre, g, x)
    C.weave(qk_mfmas(i + 2, A_KF), pre, dict(enumerate(sm_ops(i + 1)[32:])), bg)


def phase_b(C, i, extra, bg=None):
    pre = {}
    for g, x in enumerate(k_reads(i + 3, A_KF)):
        add(pre, 2 * g + 1, x)
    ops = tile_dma(i)
    vr = v_reads(i + 1, A_VF)
    add(pre, 16, ops[0])
    for g, x in zip((17, 19, 21, 25, 27, 29), (ops[1], vr[0], vr[1], ops[2], vr[2], vr[3])):
        add(pre, g, x)
    add(pre, 31, Wait(lg=[("KR", i + 3)], key=("b", i & 7)))
    for g, x in extra:
        if g >= 0:
            add(pre, g, x)
    valu = dict(enumerate(sm_ops(i + 2)[:32]))
    valu[7] = valu[7] + [l_mfma(i, 0)] + [x for g, x in extra if g == -1]
    valu[23] = valu[23] + [l_mfma(i, 1)] + [x for g, x in extra if g == -2]
    C.weave(pv_mfmas(i, A_VF), pre, valu, bg)


def epoch(C, n, real, skip_first=False, bg=None):
    p, inloop = n & 3, n < 28

    def xl(ph):
        j = ph - 113
        if j == 0:
            return [(1, f"buffer_load_dword a255, {v(V_LANE16)}, {s(SR_W, 4)}, 0 offen")]
        if j in (1, 3, 5, 7):
            x = g_act(j >> 2, (j >> 1) & 1)
            return [(0, x[0][0])] + [(1 + 4 * k + 4 * (k > 1), x[k][1]) for k in range(4)]
        if j in (6, 8):
            x = g_w(5 + j // 2, S_SK)
            return [(0, x[0][0])] + [(1 + 4 * k, x[k][1]) for k in range(4)]
        return []
    if not skip_first:
        extra = []
        if OPT["pf"] and (inloop or p == 0):
            so = S_PFC if p == 0 else S_PF
            extra.append((OPT["pfpos"], f"buffer_load_dword a255, {v(V_PF)}, {s(SR_PF + 4 * p, 4)}, {s(so)} offen"))
            if p == 3:
                extra.append((24, f"s_add_u32 {s(S_PF)}, {s(S_PF)}, 8192"))
        if p == 0 and real:
            extra += [(2, f"s_cmp_le_u32 {s(S_CNT)}, 3"), (4, "s_cbranch_scc1 L_hook"), (4, "L_hook_ret:")]
        phase_b(C, 2 * n - 1, extra + xl(4 * n - 1), bg)
    if p == 0 and real:
        C.label("L_attn_entry")
    phase_a(C, 2 * n, [(31, Wait(lg=[("VR", 2 * n)], key=("a", 2 * p)))] + xl(4 * n), bg)
    assert not bg
    fl = [(OPT["flpos"], fill_store(SR_W, s(S_SA), p >> 1))] * (inloop and p & 1 == 0)
    fl += [(28, f"s_add_u32 {s(S_SA)}, {s(S_SA)}, 2048"),
           (30, f"s_min_u32 {s(S_SA)}, {s(S_SA)}, {s(S_W2)}")] * (inloop and p == 2)
    fl += [(OPT["flpos"], fill_store(SR_W, s(S_XB), 1)),
           (28, f"s_add_u32 {s(S_XB)}, {s(S_XB)}, 1024")] * (inloop and p == 1)
    phase_b(C, 2 * n, xl(4 * n + 1) + fl)
    need = [("K", n + 2)] * (n + 2 < 32) + [("V", n + 1)]
    wg, bg_ = {0: (31, 31), 1: (30, 31), 2: (30, 30), 3: (29, 29), 4: (28, 29)}[OPT["barpos"]]
    extra = [(wg, Wait(vm=need, lg=["*"], key=("a", 2 * p + 1))), (bg_, "s_barrier")]
    if p == 3:
        extra = [(26, f"s_sub_u32 {s(S_CNT)}, {s(S_CNT)}, 1")] + extra + [(31, f"s_cmp_lg_u32 {s(S_CNT)}, 0")]
    phase_a(C, 2 * n + 1, extra + xl(4 * n + 2))
    if real and p == 3:
        C("s_cbranch_scc1 L_attn_loop")


def max_ops(u, q, first):
    r = [V_S[u & 1] + (kb * 4 + q) * 4 + j for kb in range(2) for j in range(4)]
    m = v(V_NEGM + 4 * q)
    out = [f"v_max_f32 {m}, {v(r[0])}, {v(r[1])}" if first else f"v_max3_f32 {m}, {v(r[0])}, {v(r[1])}, {m}"]
    return out + [f"v_max3_f32 {m}, {v(r[k])}, {v(r[k + 1])}, {m}" for k in (2, 4, 6)]


G_SLOT = (0, 1, 2, 3, 4, 5, 7, 6, 8, 9, 2, 3, 4, 5, 7, 6)


def g_m0(e):
    sl = G_SLOT[e]
    return EBASE + (sl - 8) * 16384 if sl >= 8 else (sl & 1) * VBASE + (sl >> 1) * 16384


def g_set(e):
    return ("a", 64 + 32 * (e - 14)) if e >= 14 else (("a", 192), ("a", 224), ("v", 64), ("v", 96))[e & 3]


def g_acc(b, q):
    return V_ACC + ((((b >> 1) + 2) & 3) * 4 + q) * 8 + (b & 1) * 4


def g_act(e, h):
    return [([f"s_mov_b32 {s(S_SA)}, {e * 8192 + h * 131072}"] if n == 0 else [],
             Op(f"buffer_load_dwordx4 {R(g_set(e), 4, ((n >> 1) * 4 + 2 * h + (n & 1)) * 4)}, {v(V_LANE16)}, "
                f"{s(SR_ACT, 4)}, {s(S_SA)} offen offset:{n * 1024} sc1", ("GX", e))) for n in range(4)]


def g_w(e, so=None):
    so = S_SW if so is None else so
    return [([set_m0(g_m0(e)), f"s_mov_b32 {s(so)}, {e * 2 * W1STEP}"] if n == 0 else [],
             dma(V_OK + n, SR_K, so, n, ("W", e))) for n in range(4)]


def g_reads(i):
    out = []
    for m in range(16):
        e, b = (12 + (m >> 2), i - 24) if i >= 24 else (i >> 1, 4 * (i & 1) + (m >> 2))
        sl = G_SLOT[e]
        wa = V_EA if sl >= 8 else V_VA if sl & 1 else V_WA0
        out.append(tr_read(a(A_WF[i & 1] + 2 * m, 2), wa + b, g_m0(e) % 65536 + ((m >> 1) & 1) * 8192 + (m & 1) * 4096,
                           ("GT", i)))
    return out


def g_step(C, i, vm, extra, bg, cap):
    if i >= 24:
        todo = [(i - 24, q, kk, 12 + (kk >> 1), kk & 1) for q in range(4) for kk in range(8)]
    else:
        todo = [(4 * (i & 1) + bl, q, 2 * bl + k, i >> 1, k) for bl in range(4) for q in range(4) for k in range(2)]
    mf, pre = [], {}
    for b, q, f, e, k in todo:
        acc = c = v(g_acc(b, q), 4)
        if i < 2 and k == 0:
            c = v(g_acc(b, 3), 4) if i else "0"
        mf.append(mfma(acc, a(A_WF[i & 1] + 4 * f, 4), R(g_set(e), 4, (k * 4 + q) * 4), c))
    for g, x in zip(TG, g_reads(i + 1) if i < 31 else f_reads(0, 64)):
        add(pre, g, x)
    place(pre, vm, 32)
    nxt = range(12, 16) if i >> 1 == 11 else [(i >> 1) + 1]
    if i == 30:
        add(pre, 31, Wait(vm=[("W", 32)], lg=[("GT", 31)]), "s_barrier")
    elif 24 <= i < 31:
        add(pre, 31, Wait(lg=[("GT", i + 1)]))
    elif i & 1 and i < 24:
        add(pre, 31, Wait(vm=[("GX", x) for x in nxt], lg=["*"]))
    elif i < 24:
        add(pre, 31, Wait(vm=[("W", x) for x in nxt], lg=["*"]), "s_barrier")
    for g, x in extra:
        add(pre, g, x)
    C.weave(mf, pre, {}, bg, cap)


def place(pre, vm, ng):
    for n, (setup, o) in enumerate(vm):
        g = 2 + (n * (ng - 2)) // len(vm)
        assert n == 0 or g - len(setup) > 2 + ((n - 1) * (ng - 2)) // len(vm)
        for k, x in enumerate(setup):
            pre.setdefault(g - len(setup) + k, []).insert(0, x)
        add(pre, g, o)


def greedy(groups, steps, rate):
    groups = sorted(groups, key=lambda x: x[1])
    plan, cur = {}, []
    for n, i in enumerate(steps):
        mine = []
        while len(mine) < rate(i):
            if not cur:
                ok = [x for x in groups if x[0] <= i]
                if not ok:
                    break
                groups.remove(ok[0])
                cur = list(ok[0][2])
            mine.append(cur.pop(0))
        plan[i] = mine
    assert not groups and not cur
    return plan


TAIL = OPT["tail"]


def win_of(nq):
    return OPT["mwin"] if nq == 56 else OPT["win"]


TG = [g for g in range(24) if g % 3 != 2]


def f_slot(e, nq):
    n = nq // 2
    return 4 + e - (n - 4) if e >= n - 4 else e & 3


def f_set(e, nq):
    n = nq // 2
    return 192 + 32 * (e - (n - 2)) if e >= n - 2 else 32 * (e & 3)


def f_tr(dst, e, k, hh, slot_b, nq, tag):
    sl = f_slot(e, nq)
    return tr_read(dst, V_FA + 8 * (sl & 1) + slot_b, (sl >> 1) * 16384 + k * 8192 + hh * 4096, tag)


def f_window(nq):
    if nq == 64:
        return [(b, (0, 1, 2, 3)) for b in range(8)]
    other, partner = [(b, (0, 1)) for b in range(8)], [(b, (2, 3)) for b in range(4)]
    k = OPT["mord"]
    if k < 0:
        return [(b, (0, 1, 2, 3)) for b in range(4)] + other[4:] + [(b, (2, 3)) for b in range(4, 8)]
    return other[:k] + partner + other[k:] + [(b, (2, 3)) for b in range(4, 8)]


def f_acc(b, q, mlp2):
    if not mlp2:
        return V_ACC + ((b >> 1) * 4 + q) * 8 + (b & 1) * 4
    return V_ACC + b * 16 + q * 4 if b < 4 else V_ACC + 64 + (q >> 1) * 32 + (b - 4) * 8 + (q & 1) * 4


def f_reads(i, nq):
    w0, win = nq - 2 * win_of(nq), f_window(nq)
    if i >= w0 + len(win):
        return []
    dst = A_WF[i & 1]
    if i >= w0:
        return [f_tr(a(dst + 2 * m, 2), w0 // 2 + (m >> 2), (m >> 1) & 1, m & 1, win[i - w0][0], nq, ("FT", i, m >> 3))
                for m in range(4 * win_of(nq))]
    return [f_tr(a(dst + 2 * m, 2), i >> 1, (m >> 1) & 1, m & 1, 4 * (i & 1) + (m >> 2), nq, ("FT", i, m >> 3))
            for m in range(16)]


def f_mfmas(i, nq, mlp2):
    w0, out = nq - 2 * win_of(nq), []
    if i >= w0:
        b, qs = f_window(nq)[i - w0]
        if len(qs) == 4:
            todo = [(b, q, kk) for q in qs for kk in range(2 * win_of(nq))]
        else:
            todo = [(b, q, kk) for lo in (0, 4) for q in qs for kk in range(lo, min(lo + 4, 2 * win_of(nq)))]
        todo = [(b, q, kk, w0 // 2 + (kk >> 1), kk & 1) for b, q, kk in todo]
    else:
        todo = [(4 * (i & 1) + bl, q, 2 * bl + k, i >> 1, k) for bl in range(4) for q in range(4) for k in range(2)]
        if OPT["ford"] & (1 + mlp2):
            todo.sort(key=lambda x: (x[1], x[0]))
    for b, q, f, e, k in todo:
        wf, xf = a(A_WF[i & 1] + 4 * f, 4), a(f_set(e, nq) + (k * 4 + q) * 4, 4)
        acc = c = v(f_acc(b, q, mlp2), 4)
        if i < 2 and k == 0:
            c = v(f_acc(b, 3, True), 4) if mlp2 and i == 1 else "0"
        out.append(mfma(acc, xf, wf, c) if mlp2 != bool(OPT["fswap"] & (1 + mlp2)) else mfma(acc, wf, xf, c))
    return out


def f_act(e, h, nq, stride, loop=False, rel=None):
    r, step = S_XB if h else S_SA, 8192 if nq == 56 else 4096
    if loop:
        st = f"s_add_u32 {s(S_XB)}, {s(S_SA)}, {stride}" if h else f"s_add_u32 {s(S_SA)}, {s(S_SA)}, {step}"
    elif rel is not None:
        st = f"s_add_u32 {s(r)}, {s(S_AB)}, {(e - rel) * step + h * stride}"
    else:
        st = f"s_mov_b32 {s(r)}, {e * step + h * stride}"
    return [([st] if n == 0 else [],
             Op(f"buffer_load_dwordx4 {a(f_set(e, nq) + ((n >> 1) * 4 + 2 * h + (n & 1)) * 4, 4)}, {v(V_LANE16)}, "
                f"{s(SR_ACT2, 4)}, {s(r)} offen offset:{n * 1024} sc1", ("FX", e))) for n in range(4)]


def f_w(e, nq, loop=False, rel=None):
    sl, step = f_slot(e, nq), 128 * 4096 if nq == 56 else 64 * 2048
    st = [set_m0((sl & 1) * VBASE + (sl >> 1) * 16384),
          f"s_add_u32 {s(S_SW)}, {s(S_SW)}, {step}" if loop else f"s_mov_b32 {s(S_SW)}, {e * step}" if rel is None
          else f"s_add_u32 {s(S_SW)}, {s(S_WSTEP)}, {(e - rel) * step}"]
    return [(st if n == 0 else [], dma(V_OW + n, SR_W, S_SW, n, ("W", 32 + e))) for n in range(4)]


def f_step(C, i, nq, mlp2, vm, extra=(), bg=None, cap=2, loop=False):
    w0 = nq - 2 * win_of(nq)
    mf, pre = f_mfmas(i, nq, mlp2), {}
    ng = len(mf)
    short = i >= w0 and len(f_window(nq)[i - w0][1]) == 2
    for g, x in zip(range(16) if short else TG, f_reads(i + 1, nq)):
        add(pre, g, x)
    for n, (setup, o) in enumerate(vm):
        g = 2 + (n * (ng - 2)) // len(vm)
        assert n == 0 or g - len(setup) > 2 + ((n - 1) * (ng - 2)) // len(vm)
        for k, x in enumerate(setup):
            pre.setdefault(g - len(setup) + k, []).insert(0, x)
        add(pre, g, o)
    e, key = i >> 1, (("f", i & 7) if loop else None)
    nxt = range(e + 1, nq // 2) if e + 1 == w0 // 2 else [e + 1]
    if i >= w0:
        if short:
            add(pre, 7, Wait(lg=[("FT", i, 1)]))
        if i < w0 + len(f_window(nq)) - 1:
            add(pre, ng - 1, Wait(lg=[("FT", i + 1, 0 if short else 1)]))
    elif i & 1:
        add(pre, ng - 1, Wait(vm=[("FX", x) for x in nxt], lg=[("FT", i + 1, 1)], key=key))
    else:
        add(pre, ng - 1, Wait(vm=[("W", 32 + x) for x in nxt], lg=[("FT", i + 1, 1)], key=key), "s_barrier")
    for g, x in extra:
        add(pre, g, x)
    C.weave(mf, pre, {}, bg, cap)


def f_body(C, name, nq, mlp2, bg, D):
    stride = 229376 if mlp2 else 262144
    A_, W_ = (lambda e, h, lp=False: f_act(e, h, nq, stride, lp)), (lambda e, lp=False: f_w(e, nq, lp))
    head = [A_(2, 0) + A_(2, 1), W_(4)[:2] + A_(3, 0) + A_(3, 1)[:2], A_(3, 1)[2:] + W_(4)[2:] + A_(4, 0),
            A_(4, 1) + W_(5)[:2]]
    AL = OPT["alead"]
    if AL == 2:
        head = [A_(2, 0), A_(2, 1) + W_(4)[:2], A_(3, 0) + W_(4)[2:], A_(3, 1) + W_(5)[:2]]
    D.stamp(1, 7)
    for i in range(4):
        up = 32 * OPT["uflag"] if mlp2 else OPT["oupos"]
        ex = [(up % 32, Wait(vm=["U"])), (up % 32 + 1, flag_store(S_FU))] if i == up // 32 else []
        if mlp2 and OPT["nf"] < 7:
            chk = 2 * (OPT["nf"] - AL) - 1
            assert 1 <= chk <= 3
            if i == chk - 1:
                ex.append((0, Op(f"buffer_load_dword {v(V_FLG)}, {v(V_FOFF)}, {s(SR_FLAG, 4)}, {s(S_FO)} offen sc1", "fu3")))
            if i == chk:
                assert not any("vcc" in str(x) for x in bg)
                ex += [(25, Wait(vm=["fu3"])), (26, f"v_cmp_eq_u32 vcc, 0, {v(V_FLG)}"),
                       (29, ["s_or_b32 s44, vcc_lo, vcc_hi", "s_and_b32 s44, 0x7f, s44", "s_cbranch_scc1 L_poll_head",
                             "L_poll_head_ret:"])]
        f_step(C, i, nq, mlp2, head[i], ex, bg)
    assert not bg
    trips = (nq - 4 - TAIL) // 8

    def one(X, i, real):
        e, ex = i >> 1, []
        if i & 1:
            x, w = A_(e + AL, 1, True), W_(e + 4, True)[:2]
        else:
            x, w = A_(e + AL, 0, True), W_(e + 3, True)[2:]
        if mlp2 and i & 7 == 4:
            ex.append((0, f"buffer_load_dword {v(V_FLG)}, {v(V_FOFF)}, {s(SR_FLAG, 4)}, {s(S_FO)} offen sc1"))
        if real and mlp2 and i & 7 == 7:
            ex.append((28, [f"s_cmp_ge_u32 {s(S_CNT)}, {trips - 2}", "s_cbranch_scc1 L_hook_mlp2", "L_hook_mlp2_ret:"]))
        if real and i & 7 == 3:
            ex += [(28, f"s_sub_u32 {s(S_CNT)}, {s(S_CNT)}, 1"), (29, f"s_cmp_lg_u32 {s(S_CNT)}, 0"),
                   (31, f"s_cbranch_scc1 L_{name}_loop")]
        f_step(X, i, nq, mlp2, [x[0], w[0], x[1], x[2], w[1], x[3]], ex, loop=True)
    sim = C.clone_dry()
    sim.record = {}
    for i in range(4, 4 + 8 * trips):
        one(sim, i, False)
    D.stamp(2, 7)
    d = 0 if mlp2 else OPT["osplit"] // 8
    assert trips - d >= 2 + mlp2
    C(f"s_cmp_eq_u32 {s(S_KH)}, 0", f"s_cselect_b32 {s(S_CNT)}, {trips + d}, {trips - d}")
    C.label(f"L_{name}_loop")
    C.fixed = sim.record
    for i in range(4, 12):
        one(C, i, True)
    C.fixed = None
    C.vm, C.lg = sim.vm, sim.lg
    D.stamp(3, 7)
    i0, n = nq - TAIL, nq // 2
    e0 = i0 // 2
    C(f"s_mov_b32 {s(S_AB)}, {s(S_SA)}", f"s_mov_b32 {s(S_WSTEP)}, {s(S_SW)}")
    A_, W_ = (lambda e, h: f_act(e, h, nq, stride, False, e0 - 1 + AL)), (lambda e: f_w(e, nq, False, e0 + 3))
    groups = [(i0, 0, W_(e0 + 3)[2:])]
    for e in range(e0 + AL, n):
        dl = min(2 * e - 1, nq - 2 * win_of(nq) - 1)
        groups += [(0 if e >= n - 2 else 2 * e - 6, dl, A_(e, h)) for h in range(2)]
    for e in range(e0 + 4, n):
        groups.append((0 if e >= n - 4 else 2 * e - 7, min(2 * e - 2, nq - 2 * win_of(nq) - 2) - 0.5, W_(e)))
    groups.sort(key=lambda x: x[1])
    fr = OPT["mrate"] if mlp2 else OPT["frate"]
    rate = lambda i: int(fr * (i - i0 + 1) + 1e-6) - int(fr * (i - i0) + 1e-6)
    plan, cur = {}, []
    for i in range(i0, nq):
        mine = []
        while len(mine) < rate(i):
            if not cur:
                ok = [x for x in groups if x[0] <= i]
                if not ok:
                    break
                groups.remove(ok[0])
                cur = list(ok[0][2])
            mine.append(cur.pop(0))
        plan[i] = mine
    print(name, "closing loads per step", [len(plan[i]) for i in range(i0, nq)], file=sys.stderr)
    return plan, trips


def poll(C, name, soff, sr=None, target=1):
    sr = SR_FLAG if sr is None else sr
    so = s(soff) if soff is not None else "0"
    C(f"s_mov_b32 {s(S_SPIN)}, {SPIN}")
    C.label(f"L_poll_{name}")
    C(f"buffer_load_dword {v(V_FLG)}, {v(V_FOFF)}, {s(sr, 4)}, {so} offen sc1")
    C(f"s_sub_u32 {s(S_SPIN)}, {s(S_SPIN)}, 1", f"s_cbranch_scc1 L_poll_{name}_out", "s_waitcnt vmcnt(0)")
    C(f"v_cmp_gt_u32 vcc, {target}, {v(V_FLG)}", "s_nop 1", "s_cmp_lg_u64 vcc, 0", f"s_cbranch_scc1 L_poll_{name}")
    C.label(f"L_poll_{name}_out")


def flag_store(soff):
    op = "buffer_atomic_or" if OPT["aflag"] else "buffer_store_dword"
    return f"{op} {v(V_ONEI)}, {v(V_L0)}, {s(SR_FLAG, 4)}, {s(soff)} offen sc1"


def pk(op, d, *src):
    return f"v_pk_{op}_f32 {v(d, 2)}, " + ", ".join(x if isinstance(x, str) else v(x, 2) for x in src)


def mlp1_ids():
    tail = ["s_lshl_b32 s49, s49, 2", f"s_lshr_b32 s48, {s(S_W)}, 12", "s_add_u32 s49, s49, s48"]
    gs = [int(c) for c in str(OPT["fg"])]
    assert sum(gs) == 28 and gs[0] >= 6
    sizes = sum(g << (8 * i) for i, g in enumerate(gs))
    starts = sum(sum(gs[:i]) << (8 * i) for i in range(4))
    return [f"s_lshr_b32 s50, {s(S_RANK)}, 1", "s_lshl_b32 s50, s50, 3", f"s_lshr_b32 s51, {sizes}, s50",
            "s_and_b32 s51, s51, 0xff", f"s_lshr_b32 s50, {starts}, s50", "s_and_b32 s50, s50, 0xff",
            "s_lshr_b32 s48, s2, 5", ["s_cmp_lt_u32 s48, s51", "s_cselect_b32 s51, -1, 0"],
            "s_add_u32 s50, s50, s48", "s_and_b32 s50, s50, s51",
            f"s_and_b32 s49, {s(S_RANK)}, 1", "s_lshl_b32 s49, s49, 1", "s_bfe_u32 s48, s2, 0x10004",
            "s_add_u32 s49, s49, s48"] + tail


SR_LX, SR_LO, SR_DBG = 12, 68, 72
P_DBG = 50
LN_ST = VBASE + 3 * 16384
FAR = 0x40000000


def split_bf16(w0, w1, x, t, dup):
    out = [f"v_cvt_pk_bf16_f32 {v(w0)}, {v(x)}, {v(x)}", f"v_and_b32 {v(t)}, 0xffff0000, {v(w0)}",
           f"v_sub_f32 {v(t)}, {v(x)}, {v(t)}"]
    if dup:
        return out + [f"v_cvt_pk_bf16_f32 {v(w1)}, {v(t)}, 0"]
    return out + [f"v_and_b32 {v(w1)}, 0xffff, {v(w0)}", f"v_cvt_pk_bf16_f32 {v(w0)}, {v(x)}, {v(t)}"]


def ln_compute(C, D, fill):
    X, RAW = 160, 144
    half = ("v_permlane16_swap_b32",)

    def more():
        if fill:
            C(fill.pop(0))
    C(f"s_mov_b32 s48, {f32(-1.0 / 1024)}", f"s_mov_b32 s49, {f32(1e-5)}", f"s_mov_b32 s50, {f32(QSCALE)}")
    D.stamp(1, 4)
    C(Wait(vm=["x"]))
    D.stamp(2, 4)
    for i in range(16):
        C(f"v_lshlrev_b32 {v(X + 2 * i)}, 16, {v(RAW + i)}", f"v_and_b32 {v(X + 2 * i + 1)}, 0xffff0000, {v(RAW + i)}")
        if i % 8 == 7:
            more()
    C(pk("add", 192, X, X + 2), pk("add", 194, X + 4, X + 6))
    for i in range(4, 16, 2):
        C(pk("add", 192, 192, X + 2 * i), pk("add", 194, 194, X + 2 * i + 2))
    more()
    C(pk("add", 192, 192, 194), "v_add_f32 v192, v192, v193")
    C(wave_red([192], [194], swaps=half))
    more()
    C("v_mul_f32 v192, s48, v192", "v_mov_b32 v193, v192")
    C([pk("add", X + 2 * i, X + 2 * i, 192) for i in range(16)])
    C(split_bf16(80, 81, 192, 194, True), "v_mov_b64 v[82:83], v[80:81]")
    more()
    C(pk("mul", 192, X, X), pk("mul", 194, X + 2, X + 2))
    for i in range(2, 16, 2):
        C(pk("fma", 192, X + 2 * i, X + 2 * i, 192), pk("fma", 194, X + 2 * i + 2, X + 2 * i + 2, 194))
    more()
    C(pk("add", 192, 192, 194), "v_add_f32 v192, v192, v193")
    C(wave_red([192], [194], swaps=half))
    more()
    C("v_mov_b32 v196, s49", "v_fma_f32 v196, -v192, s48, v196", "v_rsq_f32 v196, v196", "s_nop 0",
      "v_mul_f32 v84, s50, v196", "v_mov_b32 v197, v196")
    C([pk("mul", X + 2 * i, X + 2 * i, 196) for i in range(16)])
    more()
    C(pk("add", 192, X, X + 2), pk("mul", 194, X, X), pk("fma", 194, X + 2, X + 2, 194))
    for i in range(2, 16):
        C(pk("add", 192, 192, X + 2 * i), pk("fma", 194, X + 2 * i, X + 2 * i, 194))
        if i % 8 == 7:
            more()
    C("v_add_f32 v192, v192, v193", "v_add_f32 v193, v194, v195")
    C(wave_red([192, 193], [194, 195], swaps=half))
    more()
    C("v_mul_f32 v192, s48, v192", "v_mul_f32 v193, s48, v193", "v_fma_f32 v193, -v192, v192, -v193",
      "v_max_f32 v193, 0, v193", "v_add_f32 v193, s49, v193", "v_rsq_f32 v196, v193", "s_nop 0",
      "v_mul_f32 v198, v192, v196", "v_mov_b32 v197, v196", "v_mov_b32 v199, v198")
    for t in range(4):
        C([pk("fma", 200 + 2 * i, X + 8 * t + 2 * i, 196, 198) for i in range(4)])
        C([f"v_cvt_pk_bf16_f32 {v(RAW + 4 * t + i)}, {v(200 + 2 * i)}, {v(201 + 2 * i)}" for i in range(4)])
        C(Op(f"ds_write_b128 v135, {v(RAW + 4 * t, 4)} offset:{512 * t}", "hw"))
        if t & 1:
            more()
    C(fill)
    D.stamp(3, 4)


def gen_main(C):
    D = Diag(C, 0)
    C.label(NAME + "_kernel")
    C("s_cmp_ge_u32 s2, 256", "s_cbranch_scc1 L_end")
    for m in (1, 4, 5):
        D.stamp(0, m)
    C(f"s_mov_b32 {s(S_FB)}, 0")
    C.label("L_restart")
    C(f"s_load_dwordx2 {s(P_X, 2)}, s[0:1], {KA_X}",
      f"s_load_dwordx2 {s(P_WQ, 2)}, s[0:1], {KA_WQ}", f"s_load_dwordx2 {s(P_WS, 2)}, s[0:1], {KA_WS}",
      f"s_load_dwordx4 {s(P_K, 4)}, s[0:1], {KA_K}", f"s_load_dwordx4 {s(P_W1, 4)}, s[0:1], {KA_W1}",
      f"s_load_dwordx2 {s(P_WO, 2)}, s[0:1], {KA_WO}", f"s_load_dwordx2 {s(P_W2, 2)}, s[0:1], {KA_W2}",
      f"s_load_dwordx2 {s(P_B2, 2)}, s[0:1], {KA_B2}",
      f"s_load_dwordx2 {s(P_OUT, 2)}, s[0:1], {KA_OUT}", f"s_load_dwordx2 {s(P_DBG, 2)}, s[0:1], {KA_DBG}")
    if OPT["pfm"] == 0:
        C(f"v_lshlrev_b32 {v(V_PF)}, 5, v0")
    else:
        nb = 5 - OPT["pfm"] % 2 if OPT["pfm"] < 3 else 4
        C(f"v_bfe_u32 v1, v0, {nb}, {6 - nb}", "v_lshlrev_b32 v1, 28, v1", "v_lshrrev_b32 v2, 6, v0",
          "v_lshl_add_u32 v1, v2, 11, v1", f"v_and_b32 v2, {(1 << nb) - 1}, v0",
          f"v_lshl_add_u32 {v(V_PF)}, v2, {11 - nb}, v1")
    C(code_srd(SR_PF, "L_early_code", "L_attn_last", "a"))
    C(f"s_bfe_u32 {s(S_PFC)}, s2, 0x20003", f"s_add_u32 {s(S_PFC)}, {s(S_PFC)}, 1",
      f"s_lshl_b32 {s(S_PFC)}, {s(S_PFC)}, 13")
    if OPT["pf"]:
        C(f"buffer_load_dword v59, {v(V_PF)}, {s(SR_PF, 4)}, 0 offen")
        if OPT["cpos"] < 0:
            C(f"buffer_load_dword v59, {v(V_PF)}, {s(SR_PF, 4)}, {s(S_PFC)} offen")
    C("v_and_b32 v1, 63, v0", "v_lshrrev_b32 v2, 6, v0", "v_lshrrev_b32 v3, 4, v1",
      f"v_readfirstlane_b32 {s(S_W)}, v2", "v_and_b32 v2, 15, v1", "v_lshlrev_b32 v1, 4, v1",
      f"s_lshl_b32 {s(S_W)}, {s(S_W)}, 12", f"s_lshl_b32 {s(S_W2)}, {s(S_W)}, 1")
    C("v_lshrrev_b32 v132, 5, v0", "v_lshrrev_b32 v136, 2, v132", "v_lshlrev_b32 v136, 4, v136",
      "v_and_b32 v134, 3, v132", "v_add_u32 v136, v136, v134", "v_and_b32 v134, 31, v0",
      "v_lshlrev_b32 v134, 4, v134", "v_lshl_add_u32 v133, v136, 11, v134")
    C("s_lshr_b32 s42, s2, 2", "s_and_b32 s43, s2, 3", "s_lshl_b32 s42, s42, 3", "s_add_u32 s42, s42, s43",
      "s_lshl_b32 s49, s42, 13")
    C("s_and_b32 s46, s2, 31", "s_lshr_b32 s47, s2, 5", f"s_lshl_b32 {s(S_SW)}, s47, 20",
      f"s_sub_u32 {s(S_SW)}, {s(S_SW)}, {WQSTEP}", f"s_lshl_b32 {s(S_XB)}, s47, 8", f"s_sub_u32 {s(S_XB)}, {s(S_XB)}, 128",
      "s_lshl_b32 s47, s47, 2", f"s_lshr_b32 s48, {s(S_W)}, 12", "s_add_u32 s47, s47, s48")
    C(wq_dma_offsets(62), x_dma_offsets(62))
    C("s_waitcnt lgkmcnt(0)", srd(SR_LX, P_X, "s49", 40960))
    for t in range(4):
        C(Op(f"buffer_load_dwordx4 {v(144 + 4 * t, 4)}, v133, {s(SR_LX, 4)}, 0 offen offset:{512 * t}", "x"))
    C("s_lshl_b32 s48, s46, 8", f"s_sub_u32 s49, {8 * MB}, s48", srd(SR_W, P_WQ, "s48", "s49"))
    C("s_lshl_b32 s48, s47, 17", srd(SR_ACT, P_X, "s48", 131072))

    st = []

    def grp(setup, ops, earliest, post=None):
        for i, o in enumerate(ops):
            st.append((setup if i == 0 else [], o, earliest, post if i == len(ops) - 1 else None))

    def gW(e):
        grp([set_m0(VBASE + (e & 3) * 16384),
             [f"s_add_u32 {s(S_SW)}, {s(S_SW)}, {WQSTEP}", f"s_and_b32 {s(S_SW)}, {s(S_SW)}, {8 * MB - 1}"]],
            [dma(V_OW + i, SR_W, S_SW, i, ("QW", e)) for i in range(4)], 1 if e == 3 else 2 * e - 7)

    def gX(e, h):
        prev = 13 if e == 15 else e - 3
        so = [f"s_add_u32 {s(S_SA)}, {s(S_XB)}, 65536"] if h else [
            f"s_add_u32 {s(S_XB)}, {s(S_XB)}, 128", f"s_and_b32 {s(S_XB)}, {s(S_XB)}, 2047"]
        grp([f"s_add_u32 m0, {s(S_W2)}, {x_slot(e) + 4096 * h}", so],
            [dma(V_XO4 + i, SR_ACT, S_SA if h else S_XB, i, ("QX", e, h)) for i in range(4)],
            max(2 * prev - 1 + h, 0) if prev >= 0 else -9)

    def gT(ops, earliest):
        grp([ops[0]], ops[1:5], earliest, ops[5])
    gW(0); gX(0, 0); gX(0, 1)
    for e in range(1, 15):
        gX(e, 0); gW(e); gX(e, 1)
    gW(15); gX(15, 0); gX(15, 1)
    for ops, t in ((k_dma(0), 25), (k_dma(1), 26), (v_dma(0), 27), (k_dma(2), 29), (v_dma(1), 29), (k_dma(3), 30),
                   (v_dma(2), 31)):
        gT(ops, t)
    for n in range(OPT["qpre"]):
        setup, o, _, _ = st.pop(0)
        C(setup, o)
    fill = [[x[0], x[1]] for x in st[:OPT["qpro"]]]
    assert all(x[2] < 0 for x in st[:OPT["qpro"]])
    del st[:OPT["qpro"]]
    t0 = V_NEGM
    C("s_branch L_early_code", ".p2align 12", "L_early_code:", "; region a")
    C(q_read_addrs(V_QA, t0), x_read_addrs(t0))
    C(f"v_lshrrev_b32 {v(t0)}, 1, v2", f"v_lshrrev_b32 {v(t0 + 1)}, 1, v3",
      f"v_cmp_eq_u32 vcc, {v(t0)}, {v(t0 + 1)}", f"v_mov_b32 {v(t0)}, 0x3f803f80", f"v_and_b32 {v(t0 + 1)}, 1, v2")
    C([f"v_cndmask_b32 {v(V_ONE + i)}, 0, {v(t0)}, vcc" for i in range(4)])
    C(f"v_mul_u32_u24 {v(t0 + 1)}, 0xaaaa, {v(t0 + 1)}", f"v_add_u32 {v(V_IDX)}, 0x4444, {v(t0 + 1)}")
    C([f"v_mov_b64 {v(V_CS + 2 * i, 2)}, 0" for i in range(4)])
    C(srd(SR_LO, P_WS, 0, 48 * MB), srd(SR_DBG, P_DBG, 0, 256))
    first_wave = [f"s_or_b32 s48, s2, {s(S_W)}", f"s_or_b32 s48, s48, {s(S_FB)}"]
    if OPT["go"]:
        C(first_wave, "s_cbranch_scc0 L_clear", "L_clear_ret:")
    C("v_lshl_add_u32 v135, v132, 11, v134", f"v_add_u32 v135, {LN_ST}, v135")
    C("v_bfe_u32 v96, v0, 2, 2", "v_lshlrev_b32 v96, 11, v96", "v_lshl_add_u32 v96, v132, 6, v96",
      "v_bfe_u32 v141, v0, 4, 1", "v_lshl_add_u32 v96, v141, 3, v96", "v_and_b32 v140, 3, v0",
      "v_lshl_add_u32 v96, v140, 4, v96", f"v_add_u32 v96, {LN_ST}, v96")
    C("v_lshlrev_b32 v85, 17, v132", "v_lshl_add_u32 v85, v141, 10, v85", "v_lshl_add_u32 v85, v2, 4, v85")
    C("s_lshl_b32 s48, s42, 2", "v_add_u32 v136, s48, v136", "v_min_u32 v134, 1, v134", "v_lshlrev_b32 v134, 30, v134",
      "v_lshl_add_u32 v86, v136, 4, v134", "v_lshl_add_u32 v87, v136, 2, v134")
    C("s_lshr_b32 s42, s2, 2", "s_lshl_b32 s42, s42, 11", "s_lshl_b32 s43, s43, 8", "s_add_u32 s43, s43, s42",
      f"s_add_u32 s43, s43, {WS_HF}", "v_add_u32 v85, s43, v85")
    if OPT["warm"] & 1:
        C(warm_call("a", s(S_W)))
    if OPT["pf"] and OPT["cpos"] >= 0:
        fill.insert(OPT["cpos"], [f"buffer_load_dword v59, {v(V_PF)}, {s(SR_PF, 4)}, {s(S_PFC)} offen"])
    ln_compute(C, D, fill)
    if OPT["go"]:
        assert OPT["cpos"] < 0
        C(first_wave, "s_cbranch_scc0 L_open", "L_open_ret:")
    C(Wait(vm=[("QW", 0), ("QX", 0, 1)]), x_reads(0, 0), x_reads(0, 1), Wait(lg=["hw"]), "s_barrier")
    D.stamp(4, 4)
    first = [Op(x.text, ("Q0", m >> 2)) for m, x in enumerate(q_reads(0))]
    C(first)
    hrd = [f"ds_read_b64_tr_b16 {v(64 + 2 * t, 2)}, v96 offset:{8192 * (t & 1) + 512 * (t >> 1)}" for t in range(8)]
    bg = ["v_lshrrev_b32 v88, 4, v0", f"v_or_b32 v88, {s(S_FB)}, v88", "v_min_u32 v88, 1, v88",
          "v_lshlrev_b32 v88, 30, v88", "v_lshl_add_u32 v88, v0, 2, v88", "v_mov_b32 v89, 0",
          f"v_or_b32 v95, {s(S_FB)}, v0", "v_lshlrev_b32 v95, 8, v95", "v_min_u32 v97, 1, v95", "v_lshlrev_b32 v97, 30, v97", f"v_mov_b32 {v(V_ONEI)}, 1",
          "v_min_u32 v94, 1, v3", "v_lshlrev_b32 v94, 30, v94", "v_lshl_add_u32 v94, v2, 4, v94"]
    bg += ["s_lshl_b32 s48, s46, 19"] + srd(SR_K, P_K, "s48", 524288) + srd(SR_V, P_V, "s48", 524288)
    bg += ["s_lshl_b32 s48, s47, 19", "s_lshl_b32 s49, s46, 13", "s_add_u32 s48, s48, s49",
           f"s_add_u32 s48, s48, {WS_OF}"] + srd(SR_ST, P_WS, "s48", 262144 + 8192)
    bg += ["s_mul_i32 s48, s2, 57344"] + srd(SR_PF + 4, P_W1, "s48", 57344)
    bg += [f"s_mov_b32 {s(S_PF)}, 0", f"s_mov_b32 {s(S_CNT)}, 7"]
    bg += v_read_addrs(V_VA, t0)
    bg += [f"v_xor_b32 {v(t0)}, v2, v3", f"v_lshlrev_b32 {v(t0)}, 4, {v(t0)}", f"v_lshl_add_u32 {v(t0)}, v2, 8, {v(t0)}",
           f"s_lshr_b32 s48, {s(S_W)}, 6", f"v_xor_b32 {v(t0)}, s48, {v(t0)}"]
    bg += [f"v_xor_b32 {v(V_KA + ks)}, {ks * 64}, {v(t0)}" for ks in range(4)]
    bgc = []
    for h in range(2):
        d = V_CS + 4 * h
        bgc += [f"v_add_f32 {v(d)}, {v(d)}, {v(d + 1)}", f"v_add_f32 {v(d + 2)}, {v(d + 2)}, {v(d + 3)}",
                f"v_add_f32 {v(d)}, {v(d)}, {v(d + 2)}"] + split_bf16(90 + 2 * h, 91 + 2 * h, d, d + 1, False)
    bgc += ["s_lshl_b32 s42, s46, 13", f"s_add_u32 s42, s42, {WS_CS}", f"s_lshr_b32 s48, {s(S_W)}, 1",
            "s_add_u32 s42, s42, s48", "s_lshr_b32 s48, s2, 6", "s_lshl_b32 s48, s48, 8", "s_bfe_u32 s49, s2, 0x10005",
            "s_lshl_b32 s49, s49, 3", "s_add_u32 s48, s48, s49", "s_add_u32 s51, s42, s48"]
    bgc += [Op(f"buffer_store_dwordx2 {v(90 + 2 * h, 2)}, v94, {s(SR_LO, 4)}, s51 offen offset:{1024 * h} sc1", "pub")
            for h in range(2)]
    bgc += [f"v_lshlrev_b32 {v(t0)}, 8, v3", f"v_add_u32 {v(t0)}, {s(S_W)}, {v(t0)}", f"v_xor_b32 {v(t0 + 1)}, v2, v3"]
    for i in range(4):
        bgc += [f"v_xor_b32 {v(t0 + 2)}, {4 * i}, {v(t0 + 1)}", f"v_lshl_add_u32 {v(V_OK + i)}, {v(t0 + 2)}, 4, {v(t0)}"]
    bgc += [f"v_lshlrev_b32 {v(t0 + 1)}, 1, v3", f"v_xor_b32 {v(t0 + 1)}, {v(t0 + 1)}, v2"]
    for i in range(2):
        bgc += [f"v_xor_b32 {v(t0 + 2)}, {8 * (i & 1)}, {v(t0 + 1)}",
                f"v_lshl_add_u32 {v(V_OV + i)}, {v(t0 + 2)}, 4, {v(t0)}"]
    bgc += [f"v_mov_b32 {v(V_L + i)}, 0" for i in range(8)]
    bgc += [f"v_accvgpr_write_b32 {a(A_O + i)}, 0" for i in range(48, 128)]
    bgc += [f"v_lshrrev_b32 {v(V_FOFF)}, 2, {v(V_LANE16)}"] * (1 - OPT["go"]) + ["v_lshlrev_b32 v62, 4, v2", "v_lshlrev_b32 v63, 2, v2"]
    hst = [[f"s_mov_b32 {s(S_SW)}, {t * MB}",
            Op(f"buffer_store_dwordx4 {v(64 + 4 * t, 4)}, v85, {s(SR_LO, 4)}, {s(S_SW)} offen sc1", ("hs",)), None]
           for t in range(4)]
    pub = [["s_nop 0", Op(f"buffer_store_dwordx4 v[80:83], v86, {s(SR_LO, 4)}, 0 offen sc1", "pub"), None],
            [f"s_mov_b32 s50, {WS_RS}", Op(f"buffer_store_dword v84, v87, {s(SR_LO, 4)}, s50 offen sc1", "pub"), None],
            [["s_lshl_b32 s50, s2, 6", f"s_add_u32 s50, s50, {WS_FLAG}"],
             Op(f"buffer_store_dword v89, v88, {s(SR_LO, 4)}, s50 offen sc1", "pub"), None]]
    corr = [[f"s_xor_b32 s50, s42, {(b >> 1) * 2048}",
             Op(f"buffer_load_dwordx4 {a(A_CA + 4 * b, 4)}, {v(V_LANE16)}, {s(SR_LO, 4)}, s50 offen "
                f"offset:{(b & 1) * 1024} sc1", "corr"), None] for b in range(8)]
    corr += [["s_lshl_b32 s50, s47, 10",
              Op(f"buffer_load_dwordx4 {a(A_CB + 4 * q, 4)}, v62, {s(SR_LO, 4)}, s50 offen offset:{256 * q} sc1", "corr"),
              None] for q in range(4)]
    corr += [[["s_lshl_b32 s50, s47, 8", f"s_add_u32 s50, s50, {WS_RS}"],
              Op(f"buffer_load_dword {v(V_NEGM + 4 * q + 2)}, v63, {s(SR_LO, 4)}, s50 offen offset:{64 * q} sc1", "corr"),
              None] for q in range(4)]
    bg1 = ["s_mul_i32 s48, s2, 57344"] + srd(SR_PF + 8, P_W2, "s48", 57344)
    bg1 += ["s_lshl_b32 s48, s2, 15"] + srd(SR_PF + 12, P_WO, "s48", 32768)
    bg2 = srd(SR_ACT, P_WS, WS_FLAG, FL_SIZE)
    bg2 += fill_srd() + ["s_lshl_b32 s48, s47, 5", "s_add_u32 s48, s48, s46", f"s_mul_i32 {s(S_SA)}, s48, 12288",
                         f"s_add_u32 {s(S_W2)}, {s(S_SA)}, 10240", f"s_lshl_b32 {s(S_XB)}, s48, 13",
                         f"s_add_u32 {s(S_XB)}, {s(S_XB)}, {12 * MB}"]
    bg2 += w_dma_offsets(V_OW, 7168, 62, 48) + code_srd(SR_PF, "L_attn_last", "L_code_end", "b")
    bg2 += [f"s_bfe_u32 {s(S_PFC)}, s2, 0x40003", f"s_lshl_b32 {s(S_PFC)}, {s(S_PFC)}, 13"]
    bg2 += ["s_lshr_b32 s48, s2, 3", f"s_or_b32 s48, s48, {s(S_W)}", f"s_or_b32 s48, s48, {s(S_FB)}",
            "s_min_u32 s48, s48, 1", "s_lshl_b32 s48, s48, 20", f"v_lshl_add_u32 v31, {v(V_LANE16)}, 16, s48",
            "v_mov_b32 v30, 1", "v_mov_b32 v62, 0", "v_lshlrev_b32 v63, 12, v95", f"s_movk_i32 s50, {FL_T}", "s_and_b32 s51, s2, 7",
            "s_lshl_b32 s51, s51, 7", f"s_add_u32 s51, s51, {FL_T + 128}"]
    C(Wait(lg=[("Q0", 0)]))
    D.stamp(1)
    D.stamp(5, 4)
    C.label("L_q_code")
    tg = [g for g in range(24) if g % 3 != 2]
    P0, PB, CH = OPT["pub0"], OPT["pubb"], OPT["chk"]
    pre2 = {}
    for j in range(32):
        pre, valu, ng = {}, {}, 48 if j >= 30 else 32
        reads = q_reads(j + 1) if j < 31 else k_reads(0, A_KF)
        if j == 0:
            for g, x in zip([g for g in range(28) if g not in (14, 17, 20, 23)], hrd + reads):
                add(pre, g, x)
            for k in (1, 2, 3):
                add(pre, 8 * k - 2, Wait(lg=[("Q0", k)]))
        else:
            for g, x in zip(tg, reads):
                add(pre, g, x)
        if j < 30:
            add(pre, 13, Wait(vm=[("QX", j // 2 + 1, j & 1)]))
            for g, x in zip((14, 17, 20, 23), x_reads(j // 2 + 1, j & 1)):
                add(pre, g, x)
        if j in (0, 2):
            for h in range(2):
                valu[7 + 8 * h] = [f"v_smfmac_f32_16x16x64_bf16 {v(V_CS + 4 * h, 4)}, {v(V_ONE, 4)}, "
                                   f"{a(A_WF[0] + 8 * h, 8)}, {v(V_IDX)}"]
        mine = []
        if j >= P0 and pub:
            mine += [([x[0]], x[1], 0, x[2]) for x in pub[:1]]
            del pub[:1]
        if j >= 25 and hst:
            assert not any(x[1].tag[0] == "QW" for x in st)
            mine += [([x[0]], x[1], 0, x[2]) for x in hst[:1]]
            del hst[:1]
        if j > CH and corr:
            mine += [([x[0]], x[1], 0, x[2]) for x in corr[:4]]
            del corr[:4]
        lim = min(10, OPT["qrate"] + (len(mine) if j > CH else 0))
        while st and st[0][2] <= j and len(mine) < lim:
            mine.append(st.pop(0))
        for n, (setup, o, _, post) in enumerate(mine):
            g = 2 + (n * (ng - 2)) // max(len(mine), 1)
            assert n == 0 or g - len(setup) > 2 + ((n - 1) * (ng - 2)) // len(mine)
            for k, x in enumerate(setup):
                if x != "s_nop 0":
                    pre.setdefault(g - len(setup) + k, []).insert(0, x)
            add(pre, g, o)
            if post:
                pre.setdefault(g + 1, []).insert(0, post)
        if j == 31:
            add(pre, ng - 1, Wait(lg=[("KR", 0)]))
        elif j & 1:
            add(pre, 31, Wait(vm=["corr"] if j == 29 else [], lg=["*"]))
        else:
            need = [("QW", j // 2 + 1)] if j < 30 else [("K", 0)]
            if j == PB:
                assert C.vm.count("pub") == 5
                need += ["pub"] + ["go"] * OPT["go"]
            add(pre, ng - 1, Wait(vm=need, lg=["*"]), "s_barrier")
        if j == PB + 1:
            if OPT["go"]:
                add(pre, 20, f"v_cmp_eq_u32 vcc, 0, {v(V_FLG)}")
                add(pre, 24, ["s_cmp_lg_u64 vcc, 0", "s_cbranch_scc1 L_spin_go", "L_spin_go_ret:"])
                add(pre, 26, f"v_lshlrev_b32 {v(V_FOFF)}, 7, v2")
                add(pre, 27, ["s_and_b32 s50, s2, 15", "s_lshl_b32 s50, s50, 7"])
                add(pre, 28, f"s_add_u32 s50, s50, {WS_FLAG + FL_A}")
                add(pre, 30, f"buffer_atomic_add {v(V_ONEI)}, v97, {s(SR_LO, 4)}, s50 offen sc1")
            else:
                add(pre, 28, ["s_and_b32 s50, s2, 63", "s_lshl_b32 s50, s50, 2"])
                add(pre, 30, f"buffer_atomic_add {v(V_ONEI)}, v95, {s(SR_DBG, 4)}, s50 offen sc1")
        if j == PB - 3 and OPT["go"]:
            add(pre, 30, Op(f"buffer_load_dword {v(V_FLG)}, v89, {s(SR_DBG, 4)}, 0 offen sc1", "go"))
        if j in (9, 19) and OPT["pf"]:
            add(pre, 0, f"buffer_load_dword v59, {v(V_PF)}, {s(SR_PF, 4)}, {s(S_PFC)} offen")
        if j == CH - 4:
            if OPT["go"]:
                add(pre, 29, f"s_mov_b32 s51, {WS_FLAG + FL_A}")
                add(pre, 30, Op(f"buffer_load_dword {v(V_FLG)}, {v(V_FOFF)}, {s(SR_LO, 4)}, s51 offen sc1", "fh"))
            else:
                add(pre, 30, Op(f"buffer_load_dword {v(V_FLG)}, {v(V_FOFF)}, {s(SR_DBG, 4)}, 0 offen sc1", "fh"))
        if j == 3:
            bg = bg + bgc
        if j == CH:
            assert not bg
            add(pre, 24, Wait(vm=["fh"]))
            add(pre, 25, f"v_cmp_gt_u32 vcc, {16 if OPT['go'] else 4}, {v(V_FLG)}")
            add(pre, 29, ["s_cmp_lg_u64 vcc, 0", "s_cbranch_scc1 L_spin_h", "L_spin_h_ret:"])
        if j == 24:
            add(pre, 30, [f"s_mov_b32 {s(S_SK)}, 0", f"s_mov_b32 {s(S_SV)}, 0"])
        if j == 29:
            assert not corr and not hst and not bg
            bg = bg1
        if j == 27:
            assert not bg and not any(x[1].tag[0] in ("QX", "QW") for x in st + mine)
            bg = bg2
        if j in (0, 2, 4, 6, 8, 12, 16, 20, 24, 28):
            D.stamp((0, 2, 4, 6, 8, 12, 16, 20, 24, 28).index(j), 6)
        if j in (4, 8, 16, 24):
            D.stamp(6 + (4, 8, 16, 24).index(j), 4)
        if j < 30:
            C.weave(q_mfmas(j), pre, valu, bg)
        else:
            pre2.update({g + 48 * (j - 30): x for g, x in pre.items()})
    assert not bg and not st
    D.stamp(2)
    pre = pre2
    for g, x in enumerate(k_reads(1, A_VF)):
        add(pre, 96 + g, x)
    add(pre, 112, Wait(vm=[("K", 1), ("V", 0), ("hs",)], lg=[("KR", 1)]), "s_barrier")
    add(pre, 114, ["s_and_b32 s48, s2, 63", "s_lshl_b32 s48, s48, 2", f"s_add_u32 s48, s48, {FL_H}"])
    add(pre, 116, f"buffer_atomic_add v30, v63, {s(SR_ACT, 4)}, s48 offen sc1")
    kd = k_dma(4)
    add(pre, 121, kd[0])
    add(pre, 122, kd[1])
    add(pre, 126, kd[2])
    for i in range(4):
        add(pre, 120 + i, f"v_mov_b32 {v(V_QA + i)}, -1")
    add(pre, 146, fill_store(SR_W, s(S_XB), 0))
    for g, x in enumerate(k_reads(2, A_KF)):
        add(pre, 129 + 2 * g, x)
    bg = []
    for j in (30, 31):
        for n, (bl, q) in enumerate(q_order(j)):
            b = 4 * (j & 1) + bl
            src, F = V_ACC + (b * 4 + q) * 4, V_Q + (q * 4 + (b >> 1)) * 4 + 2 * (b & 1)
            bg.append(("at", 48 * (j - 30) + 3 * n + 7))
            bg += [f"v_mul_f32 {v(src + i)}, {v(src + i)}, {v(V_NEGM + 4 * q + 2)}" for i in range(4)]
            bg += [f"v_cvt_pk_bf16_f32 {v(F + i)}, {v(src + 2 * i)}, {v(src + 2 * i + 1)}" for i in range(2)]
    zero = []
    valu = {100 + 8 * i + 3: [f"v_mfma_f32_32x32x16_bf16 {a(A_O + 16 * i, 16)}, {v(V_L, 4)}, {v(V_L, 4)}, 0"]
            for i in range(3)}
    for u in range(2):
        for q in range(4):
            bg += zero[:6]
            del zero[:6]
            bg.append(("at", 96 + 32 * u + 8 * q + 14))
            bg += max_ops(u, q, u == 0)
    n0 = len(C.A.lines)
    C.weave(q_mfmas(30) + q_mfmas(31) + qk_mfmas(0, A_KF, True, True) + qk_mfmas(1, A_VF, True, True), pre, valu, bg,
            cap=lambda g: 3 if OPT["qc0"] <= g < OPT["qc1"] else 2)
    check_order(C.A.lines[n0:])
    C(v_reads(0, A_VF)[:4])
    C(nops(4))
    C.drain(bg)
    C(wave_red([V_NEGM + 4 * q for q in range(4)], [V_NEGM + 4 * q + 1 for q in range(4)], "v_max_f32", False))
    C(f"s_mov_b32 s48, {f32(-OPT['bias'])}", f"s_cmp_lg_u32 {s(S_FB)}, 0", "s_cbranch_scc1 L_fb_hook")
    C.label("L_fb_ret")
    for q in range(4):
        C(f"v_sub_f32 {v(V_NEGM + 4 * q)}, s48, {v(V_NEGM + 4 * q)}")
    for q in range(4):
        C(f"v_mov_b32 {v(V_NEGM + 4 * q + 1)}, {v(V_NEGM + 4 * q)}")
    for q in range(4):
        C(f"v_mov_b64 {v(V_NEGM + 4 * q + 2, 2)}, {v(V_NEGM + 4 * q, 2)}")
    for u in range(2):
        for k in range(16):
            C(pk("add", V_S[u] + 2 * k, V_S[u] + 2 * k, V_NEGM + 4 * ((k >> 1) & 3)))
    C([x if x else "s_nop 0" for x in sm_seq(0, 0, 4) + sm_seq(1, 0, 2)])
    C(Wait(lg=[("KR", 2)]))
    D.stamp(3)
    D.stamp(8, 5)
    C("s_branch L_attn_entry")
    sim = C.clone_dry()
    sim.record = {}
    for n in range(28):
        epoch(sim, n, False, n == 0)
    C.label("L_hook")
    C(f"s_cmp_eq_u32 {s(S_CNT)}, 2", "s_cbranch_scc1 L_hook_b", f"s_cmp_eq_u32 {s(S_CNT)}, 1",
      "s_cbranch_scc1 L_hook_c")
    C.A(f"buffer_atomic_add v30, v31, {s(SR_ACT, 4)}, s50 offen sc0 sc1", "s_branch L_hook_ret")
    C.label("L_hook_b")
    C.A("v_add_u32 v30, 1, v30", f"buffer_store_dword v30, v31, {s(SR_ACT, 4)}, s51 offen sc1", "s_branch L_hook_ret")
    C.label("L_hook_c")
    if OPT["warm"] & 2:
        C(warm_call("b", s(S_W)))
    C.A(f"v_lshrrev_b32 v31, 2, {v(V_LANE16)}", f"s_movk_i32 s50, {FL_H}",
        f"buffer_load_dword v63, v62, {s(SR_ACT, 4)}, s51 offen sc1",
        f"buffer_load_dword v30, v31, {s(SR_ACT, 4)}, s50 offen sc1", "s_branch L_hook_ret")
    C(".p2align 6")
    C.label("L_attn_loop")
    C.fixed = sim.record
    for n in range(4, 8):
        epoch(C, n, True)
    C.fixed = None
    C.vm, C.lg = sim.vm, sim.lg
    C.label("L_attn_last")
    C("; region b")
    C(nops(1) * OPT["pad1"])
    bg = [f"v_readfirstlane_b32 {s(S_RANK)}, v63", "v_cmp_gt_u32 vcc, 4, v30", None,
          ["s_cmp_lg_u64 vcc, 0", f"s_cselect_b32 {s(S_RANK)}, 0, {s(S_RANK)}"],
          [f"s_cmp_eq_u32 {s(S_RANK)}, 0", "s_cbranch_scc1 L_spin_r", "L_spin_r_ret:"],
          f"s_sub_u32 {s(S_RANK)}, {s(S_RANK)}, 1" if OPT["rank"] else f"s_mov_b32 {s(S_RANK)}, s2",
          f"s_and_b32 {s(S_RANK)}, {s(S_RANK)}, 7"]
    bg += mlp1_ids() + ["s_bfe_u32 s44, s2, 0x10003", "s_lshl_b32 s48, s49, 18", "s_lshl_b32 s49, s44, 12",
                        "s_add_u32 s48, s48, s49", f"s_add_u32 s48, s48, {WS_HF}", f"s_and_b32 s49, s51, {262144 - 4096}"]
    bg += srd(SR_ACT, P_WS, "s48", "s49")
    bg += ["s_lshl_b32 s50, s50, 8", f"s_mul_i32 s48, s44, {W1STEP}", "s_add_u32 s48, s48, s50",
           f"s_sub_u32 s49, {2048 * 7168}, s48", "s_and_b32 s49, s49, s51"]
    bg += srd(SR_K, P_W1, "s48", "s49")
    bg += ["s_lshl_b32 s44, s44, 7", "s_add_u32 s48, s50, s44", "s_and_b32 s49, s51, 128"] + srd(SR_W, P_B1, "s48", "s49")
    bg += [f"v_mov_b32 {v(V_OK + i)}, {v(V_OW + i)}" for i in range(4)]
    bg += [f"s_mov_b32 {s(S_SW)}, 0", "v_lshlrev_b32 v62, 3, v3", "s_xor_b32 s44, s44, 128"]
    for n in range(28, 31):
        epoch(C, n, False, False, bg)
    D.stamp(4)
    D.stamp(9, 5)
    mf = pv_mfmas(61, A_VF)
    mf = mf[:8] + [l_mfma(61, 0)] + mf[8:24] + [l_mfma(61, 1)] + mf[24:]
    m2 = pv_mfmas(62, A_KF, True)
    mf += m2[:8] + [l_mfma(62, 0)] + m2[8:16] + [l_mfma(62, 1)] + m2[16:]
    m3 = pv_mfmas(63, A_VF)
    mf += m3[:2] + [l_mfma(63, 0)] + m3[2:4] + [l_mfma(63, 1)] + m3[4:]
    pre = {}
    for g, x in enumerate(v_reads(62, A_KF)):
        add(pre, 2 * g + 1 if g < 12 else 12 + g, x)
    add(pre, 33, Wait(lg=[("VR", 62)]))
    for g, x in enumerate(v_reads(63, A_VF)):
        add(pre, 35 + 2 * g if g < 10 else 45 + g, x)
    add(pre, 67, Wait(vm=[("W", 0), ("GX", 0), "b1"], lg=[("VR", 63)]), "s_barrier")
    for b in range(4):
        add(pre, 1 + 2 * b, Op(f"buffer_load_dwordx2 {v(V_B1 + 2 * b, 2)}, v62, {s(SR_W, 4)}, 0 offen offset:{32 * b}", "b1"))
    for g, (setup, o) in zip(range(11, 100, 6), g_act(2, 0) + g_act(2, 1) + g_w(5)):
        for k, x in enumerate(setup):
            pre.setdefault(g - len(setup) + k, []).insert(0, x)
        add(pre, g, o)
    for g, x in enumerate(g_reads(0)):
        add(pre, 80 + g, x)
    add(pre, 101, Wait(lg=[("GT", 0)]))
    bg = sm_seq(63, 0, 4) + [("at", 61)]
    for b in range(8):
        bg += [f"v_xor_b32 {v(V_VA + b)}, s44, {v(V_VA + b)}", f"v_subrev_u32 {v(V_WA0 + b)}, {VBASE}, {v(V_VA + b)}"]
    bg.append(("at", 68))
    for b in range(4):
        d = g_acc(4 + b, 3)
        for i in range(2):
            bg += [f"v_lshlrev_b32 {v(d + 2 * i)}, 16, {v(V_B1 + 2 * b + i)}",
                   f"v_and_b32 {v(d + 2 * i + 1)}, 0xffff0000, {v(V_B1 + 2 * b + i)}"]
    n0 = len(C.A.lines)
    C.weave(mf, pre, {}, bg, cap=lambda g: 3 if g < OPT["tcap"] else 2)
    assert not bg, len(bg)
    check_order(C.A.lines[n0:])
    D.stamp(5)
    T = 16
    bg = [("at", 2)] + [f"v_add_f32 {v(V_L + 2 * q)}, {v(V_L + 2 * q)}, {v(V_L + 2 * q + 1)}" for q in range(4)]
    bg += wave_red([V_L + 2 * q for q in range(4)], [V_L + 2 * q + 1 for q in range(4)], dpp=False)
    n_vote = len(bg)
    bg += [f"v_accvgpr_read_b32 {v(T + i)}, {a(A_O + 4 * (i >> 1) + 17 * (i & 1))}" for i in range(8)]
    bg += [f"v_max_f32_e64 {v(T + 2 * q)}, abs({v(T + 2 * q)}), abs({v(T + 2 * q + 1)})" for q in range(4)]
    bg += [f"s_mov_b32 s48, {f32(OPT['thresh'])}", f"s_mov_b32 s49, {1 << 19}",
           f"v_min3_u32 {v(T)}, {v(T)}, {v(T + 2)}, {v(T + 4)}", f"v_min_u32 {v(T)}, {v(T)}, {v(T + 6)}",
           f"v_add_f32 v63, {v(V_L)}, {v(V_L + 2)}", f"v_add_f32 v62, {v(V_L + 4)}, {v(V_L + 6)}",
           f"v_cmp_gt_u32 s[50:51], s49, {v(T)}",
           "v_add_f32 v62, v62, v63", "v_cmp_nge_f32 vcc, s48, v62", f"v_mov_b32 v63, {s(S_W)}",
           "v_lshrrev_b32 v63, 10, v63", f"v_add_u32 v63, {VOTE}, v63",
           ["s_or_b64 vcc, vcc, s[50:51]", f"s_cselect_b32 s48, 1, {OPT['force_fb']}"], "v_mov_b32 v62, s48",
           Op("ds_write_b32 v63, v62", "vote")]
    bg += [f"v_mov_b32 v63, {VOTE}"]
    vote = []
    if OPT["vlate"]:
        vote, bg = bg[n_vote:], bg[:n_vote]
    bg += [f"v_rcp_f32 {v(V_L + 2 * q + 1)}, {v(V_L + 2 * q)}" for q in range(4)]
    n = 0
    for q in range(4):
        for p in range(4):
            t = (12, 20)[n & 1]
            if n == OPT["vlate"] and n:
                bg += vote
            bg.append(("step", n * OPT["opace"] // 10))
            for hb, z in ((0, 4), (1, 16)):
                bg += [f"v_accvgpr_read_b32 {v(z + i)}, {a(A_O + ((2 * p + hb) * 4 + q) * 4 + i)}" for i in range(4)]
                bg += [f"v_mul_f32 {v(z + i)}, {v(z + i)}, {v(V_L + 2 * q + 1)}" for i in range(4)]
                bg += [f"v_cvt_pk_bf16_f32 {v(t + 8 + 2 * hb + i)}, {v(z + 2 * i)}, {v(z + 2 * i + 1)}" for i in range(2)]
            bg += [f"s_mov_b32 s49, {(q >> 1) * 262144 + (p >> 1) * 4096}",
                   Op(f"buffer_store_dwordx4 {v(t + 8, 4)}, {v(V_LANE16)}, {s(SR_ST, 4)}, s49 offen "
                      f"offset:{(p & 1) * 2048 + (q & 1) * 1024}" + OSC[OPT["ost"]], "O")]
            n += 1
    bg += srd(SR_FLAG, P_WS, WS_FLAG, FL_SIZE)
    bg += [f"v_lshlrev_b32 {v(V_L0)}, 16, {v(V_LANE16)}", f"v_mov_b32 {v(V_ONEI)}, 1",
           f"s_lshl_b32 {s(S_FO)}, s47, 5", f"s_add_u32 {s(S_FO)}, {s(S_FO)}, s46", f"s_lshl_b32 {s(S_FO)}, {s(S_FO)}, 2",
           f"s_xor_b32 s16, {s(S_FO)}, 32", f"s_lshl_b32 s17, {s(S_FO)}, 11", f"s_add_u32 s17, s17, {12 * MB}",
           "s_xor_b32 s18, s17, 65536"]
    bg += [f"v_add_u32 {v(V_EA + b)}, {EBASE - VBASE}, {v(V_VA + b)}" for b in range(8)]
    isM = f"s_bitcmp1_b32 {s(S_PAIR)}, 2"
    fin = [f"s_lshl_b32 s48, {s(S_RANK)}, 2",
           f"s_lshr_b32 {s(S_PAIR)}, {OPT['tbl']}, s48",
           [isM, f"s_cselect_b32 {s(S_ROLE)}, -1, 0"]]
    fin += mlp1_ids() + [f"s_mul_i32 s48, s49, {2 * 229376}", "s_lshl_b32 s46, s50, 13", "s_add_u32 s48, s48, s46",
                         "s_bfe_u32 s47, s2, 0x10003", "s_lshl_b32 s46, s47, 12", "s_add_u32 s48, s48, s46",
                         f"s_add_u32 s48, s48, {WS_UF}", f"s_and_b32 s46, s51, {229376 + 4096}"]
    fin += srd(SR_UST, P_WS, "s48", "s46")
    fin += [f"s_lshl_b32 {s(S_FU)}, s49, 1", f"s_add_u32 {s(S_FU)}, {s(S_FU)}, s47", f"s_lshl_b32 {s(S_FU)}, {s(S_FU)}, 5",
            f"s_add_u32 {s(S_FU)}, {s(S_FU)}, s50", f"s_lshl_b32 {s(S_FU)}, {s(S_FU)}, 2",
            f"s_add_u32 {s(S_FU)}, {s(S_FU)}, {FL_U}", "s_andn2_b32 s48, 0x100000, s51",
            f"s_or_b32 {s(S_FU)}, {s(S_FU)}, s48", f"v_xor_b32 v58, s44, {v(V_WA0)}"]
    fin += [f"s_and_b32 {s(S_KH)}, {s(S_PAIR)}, 1", f"s_bfe_u32 s51, {s(S_PAIR)}, 0x10001",
            "s_lshl_b32 s48, s51, 3", "s_lshr_b32 s49, s2, 5", "s_add_u32 s48, s48, s49", "s_bfe_u32 s49, s2, 0x30003",
            [isM, "s_cselect_b32 s46, s48, s49"],
            "s_lshl_b32 s48, s51, 2", "s_lshr_b32 s49, s2, 6", "s_add_u32 s48, s48, s49", "s_bfe_u32 s49, s2, 0x20003",
            [isM, "s_cselect_b32 s47, s49, s48"], "s_lshl_b32 s47, s47, 2", f"s_lshr_b32 s48, {s(S_W)}, 12",
            "s_add_u32 s47, s47, s48"]
    if OPT["msame"]:
        fin += [f"s_and_b32 s48, {s(S_PAIR)}, 3", "s_lshl_b32 s48, s48, 2", "s_lshr_b32 s49, s2, 6",
                "s_add_u32 s48, s48, s49", [isM, "s_cselect_b32 s46, s48, s46"], "s_bfe_u32 s48, s2, 0x10005",
                [isM, f"s_cselect_b32 {s(S_KH)}, s48, {s(S_KH)}"]]
    fin += ["s_movk_i32 s50, 0x800", [isM, "s_cselect_b32 s50, 4096, s50"], f"s_mov_b32 {s(S_WSTEP)}, {64 * 2048}",
            [isM, f"s_cmov_b32 {s(S_WSTEP)}, {128 * 4096}"],
            [isM, f"s_cselect_b32 s44, 1, {32 + OPT['osplit'] // 2}"], f"s_mul_i32 s44, s44, {s(S_KH)}",
            [isM, f"s_cselect_b64 {s(SR_W, 2)}, {s(P_W2, 2)}, {s(P_WO, 2)}"],
            "s_mul_i32 s48, s50, s44", "s_lshl_b32 s48, s48, 6", "s_lshl_b32 s49, s46, 8",
            "s_add_u32 s48, s48, s49", f"s_mov_b32 s51, {8 * MB}", [isM, f"s_cselect_b32 s49, {3584 * 4096}, s51"],
            "s_sub_u32 s49, s49, s48"] + srd(SR_W, SR_W, "s48", "s49") + w_dma_offsets(V_OW, "s50", 62, 48)
    fin += ["s_lshl_b32 s50, s47, 19", f"s_add_u32 s50, s50, {WS_OF}", f"s_mul_i32 s48, s47, {2 * 229376}",
            f"s_add_u32 s48, s48, {WS_UF}", [isM, "s_cselect_b32 s48, s48, s50"], "s_lshl_b32 s49, s44, 12",
            "s_add_u32 s48, s48, s49", "s_sub_u32 s49, 524288, s49", f"s_andn2_b32 s49, s49, {s(S_ROLE)}"]
    fin += srd(SR_ACT2, P_WS, "s48", "s49")
    fin += ["s_lshl_b32 s51, s46, 1", f"s_add_u32 s51, s51, {s(S_KH)}",
            "s_lshr_b32 s48, s47, 1", [isM, "s_cselect_b32 s48, s46, s48"], f"s_lshl_b32 {s(S_FO)}, s48, 8",
            f"v_lshrrev_b32 {v(V_FOFF)}, 2, {v(V_LANE16)}"] + srd(SR_ST, P_WS, WS_S, 20 * MB)
    fin += [f"v_lshlrev_b32 {v(V_XO)}, 11, v2", f"v_lshl_add_u32 {v(V_XO)}, v3, 4, {v(V_XO)}"]
    fin += ["v_lshrrev_b32 v57, 2, v2", "v_and_b32 v62, 1, v3", "v_lshl_add_u32 v62, v62, 2, v57",
            "v_lshl_add_u32 v57, v3, 2, v57", "v_lshlrev_b32 v57, 8, v57", "v_lshlrev_b32 v62, 1, v62",
            "v_and_b32 v63, 3, v2", "v_xor_b32 v62, v62, v63", "v_lshl_add_u32 v57, v62, 4, v57",
            f"v_bfi_b32 v57, {s(S_ROLE)}, v58, v57", f"s_xor_b32 s48, {s(S_KH)}, {s(S_ROLE)}",
            "s_and_b32 s48, s48, 1", "s_lshl_b32 s48, s48, 7", "v_xor_b32 v57, s48, v57", "v_lshlrev_b32 v62, 1, v2"]
    late = ["s_lshl_b32 s48, s51, 7", f"s_and_b32 s48, s48, {s(S_ROLE)}", f"s_and_b32 s49, 128, {s(S_ROLE)}"]
    late += srd(SR_ACT, P_B2, "s48", "s49")
    late += [Op(f"buffer_load_ushort {v(58 + b)}, v62, {s(SR_ACT, 4)}, 0 offen offset:{32 * b}", "b2") for b in range(4)]
    OPERM = (2, 1, 3, 0) if OPT["oord"] else (1, 3, 2, 0)
    mid = []
    for b in range(8):
        mid += [[f"s_movk_i32 s48, {OPERM[b >> 1] * 64 + (b & 1) * 8}", isM, f"s_cmovk_i32 s48, {b * 32}"],
                f"v_xor_b32 {v(V_FA + b)}, s48, v57", f"v_add_u32 {v(V_FA + 8 + b)}, {VBASE}, {v(V_FA + b)}"]
    AY, GI = 36, 64
    sel = ["v_and_b32 v4, 1, v2", "v_lshlrev_b32 v4, 4, v4", "v_mov_b32 v5, 0x3f80", "v_lshlrev_b32 v4, v4, v5",
           "v_bfe_u32 v5, v2, 1, 1", "v_lshrrev_b32 v6, 2, v2", "v_xor_b32 v6, v6, v3", "v_lshl_add_u32 v6, v6, 2, v5"]
    for r in range(2):
        sel += [f"v_cmp_eq_u32 vcc, {r}, v6", f"v_mov_b32 {v(AY + 2 + r)}, 0", f"v_mov_b32 {v(AY + 4 + r)}, 0",
                f"v_cndmask_b32 {v(AY + r)}, 0, v4, vcc", f"v_cndmask_b32 {v(AY + 6 + r)}, 0, v4, vcc"]
    last = [f"s_lshl_b32 {s(S_FO)}, s47, 1", f"s_add_u32 {s(S_FO)}, {s(S_FO)}, {s(S_KH)}",
            f"s_lshl_b32 {s(S_FO)}, {s(S_FO)}, 7", f"s_add_u32 {s(S_FO)}, {s(S_FO)}, {FL_U}",
            f"v_and_b32 {v(V_FOFF)}, 0x7c, {v(V_FOFF)}", f"v_min_u32 v63, {4 * OPT['nf'] - 4}, {v(V_FOFF)}",
            f"v_min_u32 {v(V_FOFF)}, 108, {v(V_FOFF)}", f"s_mov_b32 s48, {f32(-LOG2E)}", Wait(vm=["b2"])]
    for b in range(4):
        last += [f"v_lshlrev_b32 {v(58 + b)}, 16, {v(58 + b)}"]
        last += [f"v_mul_f32 {v(f_acc(4 + b, 3, True) + i)}, s48, {v(58 + b)}" for i in range(4)]

    def inbox(n):
        return ([f"s_add_u32 s19, s17, {(n >> 2) * 4096}"] if n & 3 == 0 else [],
                Op(f"buffer_load_dwordx4 {v(GI + 4 * n, 4)}, {v(V_LANE16)}, {s(SR_ST, 4)}, s19 offen "
                   f"offset:{(n & 3) * 1024} sc1", ("in", n >> 2)))

    def fw(e):
        x = f_w(e, 64)
        x[0] = ([x[0][0][0], f"s_add_u32 {s(S_SW)}, {s(S_SW)}, {s(S_WSTEP)}" if e else f"s_mov_b32 {s(S_SW)}, 0"], x[0][1])
        return x
    groups = [(14 if e >= 14 else max(2 * e - 6, 0), min(2 * e - 1, 23), g_act(e, h)) for e in range(3, 16) for h in range(2)]
    groups += [(t, min(2 * e - 2, 22) - 0.5, g_w(e))
               for e, t in ((6, 0), (7, 5 + 2 * bool(OPT['vlate'])), (10, 5), (11, 7), (12, 9), (13, 11), (14, 13), (15, 15))]
    rates = str(OPT["grate"])
    plan = greedy(groups, range(23), lambda i: int(rates[i]))
    print("MLP1 loads per step", [len(x) for x in plan.values()], file=sys.stderr)
    plan.update({23: fw(0), 24: fw(1), 25: fw(2) + fw(3), 30: [inbox(n) for n in range(4)],
                 31: [] if OPT["insplit"] else [inbox(n) for n in range(4, 8)]})
    plan.update({26 + k: f_act(k >> 1, k & 1, 64, 262144) for k in range(4)})
    fl_at = None
    for j in range(32):
        extra = []
        bg[:] = [(("at", 99) if x[1] > j else ("at", 0)) + (x[1],) if isinstance(x, tuple) and x[0] == "step"
                 else ("at", 99 if x[2] > j else 0, x[2]) if isinstance(x, tuple) and len(x) == 3 else x for x in bg]
        VS = 2 * bool(OPT["vlate"])
        if j == 3 + VS:
            assert "vote" in C.lg
            extra = [(2, Op("ds_read_b128 v[32:35], v63", "voter"))]
        if j == 4 + VS:
            extra = [(3, "v_or3_b32 v32, v32, v33, v34"), (4, "v_or_b32 v32, v32, v35"),
                     (6, "v_readfirstlane_b32 s48, v32"),
                     (8, [f"s_andn2_b32 s48, s48, {s(S_FB)}", "s_cbranch_scc1 L_fallback"])]
        if j == 14:
            assert C.vm.count("O") == 16
        if j == 15:
            assert fl_at is not None or not bg
        if fl_at is None and not bg and "O" not in C.vm[-OPT["odelay"]:]:
            fl_at = j
            extra = [(0, Wait(vm=["O"])), (1, flag_store(S_FO))]
            bg = [("at", 2)] + fin
        if j == 17:
            extra = [(0, Op(f"buffer_load_dword {v(V_FLG)}, {v(V_L0)}, {s(SR_FLAG, 4)}, s16 offen sc1", "fp"))]
        if j == 19:
            assert fl_at < 17
            bg = bg + sel
        if j == 20:
            assert not any("s48" in str(x) for x in bg)
            extra = [(24, Wait(vm=["fp"])), (25, f"v_readfirstlane_b32 s48, {v(V_FLG)}"),
                     (28, ["s_cmp_eq_u32 s48, 0", "s_cbranch_scc1 L_spin_p", "L_spin_p_ret:"])]
        if j == 21:
            assert not bg
            extra = [(30, Op(f"buffer_load_dword {v(V_FLG)}, {v(V_FOFF)}, {s(SR_FLAG, 4)}, {s(S_FO)} offen sc1", "fo"))]
        if j == 22 and OPT["warm"] & 4:
            extra.append((26, warm_call2("o", "m", s(S_W), isM)))
        if j == 23:
            assert not bg
            bg = late + mid
        if j == 25:
            extra = [(24, Wait(vm=["fo"])), (25, f"v_cmp_eq_u32 vcc, 0, {v(V_FLG)}"),
                     (29, ["s_cmp_lg_u64 vcc, 0", "s_cbranch_scc1 L_spin_o", "L_spin_o_ret:"])]
        if 26 <= j < 30:
            assert not bg
            for k in range(2):
                n, t = 2 * (j - 26) + k, 96 + 4 * k
                bg += [("at", 16 * k)]
                bg += [f"v_cvt_pk_bf16_f32 {v(t + i)}, {v(192 + 8 * n + 2 * i)}, {v(193 + 8 * n + 2 * i)}" for i in range(4)]
                bg += [f"v_min_u32 {v(t + i)}, -2, {v(t + i)}" for i in range(4)]
                bg += [f"s_add_u32 s19, s18, {(n >> 2) * 4096}",
                       f"buffer_store_dwordx4 {v(t, 4)}, {v(V_LANE16)}, {s(SR_ST, 4)}, s19 offen offset:{(n & 3) * 1024} sc1"]
        if j == 30:
            assert not bg
            bg = last
        if j == 2 and not OPT["warm"] & 8:
            C("; region -")
        if j == 27:
            C("; region b")
        if j % 4 == 0:
            D.stamp(j // 4, 2)
        g_step(C, j, plan.get(j, []), extra, bg, 3 if j < OPT["ocap"] else 2)
    assert not bg
    print("O flag stored in step", fl_at, file=sys.stderr)
    D.stamp(6)
    D.stamp(8, 2)
    D.stamp(0, 7)
    C0 = -2.0 * math.sqrt(2.0 / math.pi) * LOG2E
    C(f"s_mov_b32 s48, {f32(C0 * 0.044715)}", "s_mov_b32 s49, s48", f"s_mov_b32 s50, {f32(-1.0 / LOG2E)}",
      "s_mov_b32 s51, s50", f"v_mov_b32 v4, {f32(C0)}", f"v_mov_b32 v5, {f32(C0)}", "s_mov_b32 s44, 229376",
      f"s_mov_b32 {s(S_SPIN)}, {SPIN}")
    def take(nm, lo, hi):
        C(Wait(vm=[("in", (hi - 1) >> 2)]))
        C.label(f"L_in{nm}_check")
        C(f"v_max_u32 v6, {v(GI + 4 * lo)}, {v(GI + 4 * lo + 1)}",
          [f"v_max3_u32 v6, {v(GI + k)}, {v(GI + k + 1)}, v6" for k in range(4 * lo + 2, 4 * hi, 2)],
          "v_cmp_eq_u32 vcc, -1, v6", "s_nop 1", "s_cmp_lg_u64 vcc, 0", f"s_cbranch_scc1 L_in{nm}_late")
        C.label(f"L_in{nm}_ok")
        C([mfma(v(V_ACC + 8 * n + 4 * hb, 4), v(AY + 4 * hb, 4), v(GI + 4 * n, 4), v(V_ACC + 8 * n + 4 * hb, 4))
           for n in range(lo, hi) for hb in range(2)], "s_nop 1")
    halves = (("a", 0, 4), ("b", 4, 8)) if OPT["insplit"] else (("a", 0, 8),)
    if OPT["insplit"]:
        C([list(inbox(n)) for n in range(4, 8)])
    C(Op(f"buffer_load_dword {v(V_FLG)}, v63, {s(SR_FLAG, 4)}, {s(S_FO)} offen sc1", "fu"))
    take(*halves[0])

    def gelu(p, fill):
        for n in (2 * p, 2 * p + 1):
            t = 96 + (n & 1) * 12
            src = [V_ACC + 8 * n + 2 * i for i in range(4)]
            for k, grp in enumerate((
                    [pk("mul", t + 2 * i, src[i], src[i]) for i in range(4)],
                    [pk("fma", t + 2 * i, t + 2 * i, "s[48:49]", 4) for i in range(4)],
                    [pk("mul", t + 2 * i, t + 2 * i, src[i]) for i in range(4)],
                    [f"v_exp_f32 {v(t + i)}, {v(t + i)}" for i in range(8)],
                    [pk("fma", t + 2 * i, t + 2 * i, "s[50:51]", "s[50:51]") for i in range(4)],
                    [f"v_rcp_f32 {v(t + i)}, {v(t + i)}" for i in range(8)],
                    [pk("mul", t + 2 * i, t + 2 * i, src[i]) for i in range(4)],
                    [f"v_cvt_pk_bf16_f32 {v(t + 8 + i)}, {v(t + 2 * i)}, {v(t + 2 * i + 1)}" for i in range(4)])):
                C(grp)
                if fill and k in (0, 3, 4, 5):
                    C(fill.pop(0))
            C(Op(f"buffer_store_dwordx4 {v(t + 8, 4)}, {v(V_LANE16)}, {s(SR_UST, 4)}, {'s44' if n & 2 else '0'} offen "
                 f"offset:{(n >> 2) * 2048 + (n & 1) * 1024} sc1", "U"))
    gelu(0, None)
    gelu(1, None)
    if OPT["insplit"]:
        take(*halves[1])
    C(isM, "s_cbranch_scc1 L_mlp2")
    vm0, lg0 = list(C.vm), list(C.lg)
    C("; region o")
    gelu(2, None)
    gelu(3, None)
    D.stamp(7)
    C(Wait(vm=[("FX", 0)], lg=["*"]))
    AY, XP, GP, OWN, OTH, XW, TT, OUT = 36, 64, 80, 224, 128, 160, 192, 200
    S_U, S_G = 12, 15

    def setup(ops):
        out = []
        out += ops + [f"s_mul_i32 {s(S_G)}, s48, 393216", "s_lshl_b32 s50, s49, 10", f"s_add_u32 {s(S_G)}, {s(S_G)}, s50",
                      "s_lshl_b32 s48, s48, 17", "s_lshl_b32 s49, s49, 6", "s_add_u32 s48, s48, s49",
                      f"s_sub_u32 s49, {4 * MB}, s48"]
        return out + srd(SR_X, P_X, "s48", "s49") + srd(SR_V, P_OUT, "s48", "s49")

    def publish(n, src, u, row):
        t = (8, 12, 44, 48)[n & 3]
        return ([f"v_cvt_pk_bf16_f32 {v(t + i)}, {v(src + 2 * i)}, {v(src + 2 * i + 1)}" for i in range(4)]
                + [f"v_min_u32 {v(t + i)}, -2, {v(t + i)}" for i in range(4)]
                + [f"s_add_u32 s46, {s(S_U + u)}, {row * 32768}",
                   f"buffer_store_dwordx4 {v(t, 4)}, {v(V_LANE16)}, {s(SR_ST, 4)}, s46 offen sc1"])

    def get(buf, n):
        if buf == "x":
            return ([f"s_mov_b32 s47, {n * 32768}"],
                    f"buffer_load_dwordx4 {v(XP + 4 * n, 4)}, {v(V_XO)}, {s(SR_X, 4)}, s47 offen")
        return ([f"s_add_u32 s47, {s(S_G)}, {buf * 131072 + n * 32768}"],
                f"buffer_load_dwordx4 {v(GP + 16 * buf + 4 * n, 4)}, {v(V_LANE16)}, {s(SR_ST, 4)}, s47 offen sc1")

    def closing(nq, mlp2, plan, units, order, counts):
        bg, w0, nw = [], nq - 2 * win_of(nq), len(f_window(nq))
        seq = [(k, n) for k in order for n in range(4)]
        sched, cnt = {}, str(counts)[1:]
        for r, c_ in zip(range(nw - len(cnt), nw), cnt):
            sched[r], seq = seq[:int(c_)], seq[int(c_):]
        assert not seq
        np_ = 0
        for i in range(nq - TAIL, w0 + nw):
            r = i - w0
            for g, src, u, row in units(r):
                bg += [("at", g)] + publish(np_, src, u, row)
                np_ += 1
            if r in (-1, 1, nw - nw // 4):
                D.stamp(4 + (-1, 1, nw - nw // 4).index(r), 7)
            f_step(C, i, nq, mlp2, list(plan.get(i, [])) + [get(*x) for x in sched.get(r, [])], (), bg,
                   3 if mlp2 and r > 0 and (win_of(nq) < 4 or OPT['mord'] < 0 and r == 4) else 2)
            assert not bg, (r, len(bg))
        assert np_ == 12

    def finish(nm, mlp2):
        D.stamp(8)
        D.stamp(7, 7)
        C(f"s_mov_b32 s48, {f32(-LOG2E)}", f"s_mov_b32 {s(S_SPIN)}, {SPIN}")
        C.label(f"L_{nm}_check")
        C("s_waitcnt vmcnt(0)")
        for b in range(3):
            g = GP + 16 * b
            C(f"v_max_u32 {v(4 + b)}, {v(g)}, {v(g + 1)}",
              [f"v_max3_u32 {v(4 + b)}, {v(g + k)}, {v(g + k + 1)}, {v(4 + b)}" for k in range(2, 16, 2)])
        C("v_max3_u32 v7, v4, v5, v6", "v_cmp_eq_u32 vcc, -1, v7", "s_nop 1", "s_cmp_lg_u64 vcc, 0",
          f"s_cbranch_scc1 L_{nm}_late")
        C.label(f"L_{nm}_ok")
        D.stamp(8, 7)
        Y, S_ = (OWN, OTH) if mlp2 else (OTH, OWN)

        def sel(d, src, q, first):
            return mfma(v(d, 4), v(AY + 4 * q, 4), v(src, 4), "0" if first else v(d, 4))

        def own(n):
            return [sel(OWN + 8 * n + 4 * q, GP + 32 + 4 * n, q, False) for q in range(2)]

        def oth(n):
            return [sel(OTH + 8 * n + 4 * q, GP + 16 * k + 4 * n, q, k == 0) for q in range(2) for k in range(2)]
        fy, fs = (own, oth) if mlp2 else (oth, own)
        mf = fy(0) + fy(1)
        lead = len(mf)
        for n in range(4):
            mf += fs(n) + [sel(XW + 8 * n + 4 * q, XP + 4 * n, q, True) for q in range(2)] + (fy(n + 2) if n < 2 else [])
        bg = [("at", len(fy(0)) + 7)]
        for n in range(4):
            y = Y + 8 * n
            bg += [f"v_exp_f32 {v(TT + i)}, {v(y + i)}" for i in range(8)]
            bg += [f"v_fma_f32 {v(TT + i)}, {v(TT + i)}, s48, s48" for i in range(8)]
            bg += [f"v_rcp_f32 {v(TT + i)}, {v(TT + i)}" for i in range(8)]
            bg += [f"v_mul_f32 {v(y + i)}, {v(TT + i)}, {v(y + i)}" for i in range(8)]
            bg += [f"v_fma_f32 {v(y + i)}, {v(S_ + 8 * n + i)}, {v(y + i)}, {v(XW + 8 * n + i)}" for i in range(8)]
            bg += [f"v_cvt_pk_bf16_f32 {v(OUT + 4 * n + i)}, {v(y + 2 * i)}, {v(y + 2 * i + 1)}" for i in range(4)]
            bg += [f"s_mov_b32 s46, {n * 32768}",
                   f"buffer_store_dwordx4 {v(OUT + 4 * n, 4)}, {v(V_XO)}, {s(SR_V, 4)}, s46 offen" + OSC[OPT["osc"]]]
        n0 = len(C.A.lines)
        C.weave(mf, {}, {}, bg, OPT["fcap"])
        C.drain(bg)
        check_after(C.A.lines[n0:])

    def refetch(nm):
        C.label(f"L_{nm}_late")
        C(f"s_sub_u32 {s(S_SPIN)}, {s(S_SPIN)}, 1", f"s_cbranch_scc1 L_{nm}_ok")
        if OPT["probe"]:
            C(f"v_max3_u32 v7, {v(GP)}, {v(GP + 16)}, {v(GP + 32)}", "v_min_u32 v8, 2, v3", "v_cmp_eq_u32 vcc, -1, v7",
              "v_lshlrev_b32 v8, 17, v8", "s_nop 0", "s_cmp_lg_u64 vcc, 0", f"s_cbranch_scc0 L_{nm}_near")
            C.label(f"L_{nm}_probe")
            C(f"buffer_load_dword v7, v8, {s(SR_ST, 4)}, {s(S_G)} offen sc1",
              f"s_sub_u32 {s(S_SPIN)}, {s(S_SPIN)}, 1", f"s_cbranch_scc1 L_{nm}_ok", "s_waitcnt vmcnt(0)",
              "v_cmp_eq_u32 vcc, -1, v7", "s_nop 1", "s_cmp_lg_u64 vcc, 0", f"s_cbranch_scc1 L_{nm}_probe")
            C.label(f"L_{nm}_near")
        for b in range(3):
            C(f"v_cmp_eq_u32 vcc, -1, {v(4 + b)}", "s_nop 1", "s_cmp_lg_u64 vcc, 0", f"s_cbranch_scc0 L_{nm}_has{b}")
            C([list(get(b, n)) for n in range(4)])
            C.label(f"L_{nm}_has{b}")
        C(f"s_branch L_{nm}_check")
    ops = ["s_mul_i32 s48, s47, 393216", "s_lshl_b32 s49, s46, 12", "s_add_u32 s48, s48, s49",
           f"s_lshl_b32 s49, {s(S_KH)}, 11", f"s_lshl_b32 s50, {s(S_KH)}, 17"]
    for u in range(3):
        ops += [f"s_xor_b32 s51, s49, {OPERM[u] * 1024}", "s_add_u32 s51, s51, s48",
                f"s_add_u32 {s(S_U + u)}, s51, {'s50' if OPERM[u] & 1 else 262144}"]
    ops += ["s_mov_b32 s48, s47", "s_lshl_b32 s49, s46, 1", f"s_add_u32 s49, s49, {s(S_KH)}", "s_lshl_b32 s49, s49, 1"]
    plan, _ = f_body(C, "oproj", 64, False, setup(ops), D)
    closing(64, False, plan,
            lambda r: [(k * 4 * win_of(64), f_acc(r // 2 * 2 - 2, 2 * (r & 1) + k, False), r // 2 - 1, 2 * (r & 1) + k)
                       for k in range(2)] if r >= 2 else [],
            ("x", 2, 0, 1) if OPT["oord"] else ("x", 0, 1, 2), OPT["ogets"])
    finish("o", False)
    C("s_waitcnt vmcnt(0) lgkmcnt(0)", "s_branch L_done" if OPT["diag"] else "s_endpgm")
    refetch("o")
    C("; region m", ".p2align 12")
    C.label("L_hook_mlp2")
    C("s_waitcnt vmcnt(24)", f"v_cmp_eq_u32 vcc, 0, {v(V_FLG)}", f"s_cmp_eq_u32 {s(S_CNT)}, {(52 - TAIL) // 8}",
      "s_cselect_b32 s48, 0x7ff, -1", f"s_cmp_eq_u32 {s(S_CNT)}, {(52 - TAIL) // 8 - 1}",
      "s_cmov_b32 s48, 0x7fff", "s_or_b32 s49, vcc_lo, vcc_hi", "s_and_b32 s49, s48, s49",
      "s_cbranch_scc0 L_hook_mlp2_ret")
    C("s_branch L_poll_more")
    C.vm, C.lg = vm0, lg0
    C.label("L_mlp2")
    USZ = 2 * 229376 - 4096
    C(Wait(vm=["fu"]), f"v_cmp_eq_u32 vcc, 0, {v(V_FLG)}", "s_nop 1",
      "s_cmp_lg_u64 vcc, 0", f"s_cselect_b32 {s(SR_ACT2 + 2)}, 0, {USZ}")
    fu2 = Op(f"buffer_load_dword {v(V_FLG)}, v63, {s(SR_FLAG, 4)}, {s(S_FO)} offen sc1", "fu2")

    def u_loads():
        return [st_ + [o] for e in range(2) for h in range(2) for st_, o in f_act(e, h, 56, 229376)]
    fill = u_loads()
    if OPT["fu2"] == 1:
        C(fu2)
    gelu(2, fill)
    if OPT["fu2"] == 2:
        C(fu2)
    gelu(3, fill)
    assert not fill
    n_fu2 = len(C.vm) - 1 - C.vm.index("fu2") if OPT["fu2"] else 0
    C(f"s_cmp_eq_u32 {s(SR_ACT2 + 2)}, 0", "s_cbranch_scc1 L_u_late")
    C.label("L_u_late_ret")
    u_order = C.vm[-20 - (OPT['fu2'] == 2):]
    C(Wait(vm=[("FX", 0)], lg=["*"]))
    D.stamp(7)
    ops = ["s_lshl_b32 s48, s46, 1", f"s_add_u32 s48, s48, {s(S_KH)}", "s_lshl_b32 s49, s47, 11",
           f"s_lshl_b32 s50, {s(S_KH)}, 17", "s_xor_b32 s51, s48, 1", "s_mul_i32 s51, s51, 393216",
           "s_add_u32 s51, s51, s49", f"s_add_u32 {s(S_U)}, s51, s50", f"s_add_u32 {s(S_U + 2)}, s51, {262144 + 1024}",
           "s_mul_i32 s51, s48, 393216", "s_add_u32 s51, s51, s49", f"s_add_u32 {s(S_U + 1)}, s51, s50",
           "s_lshl_b32 s49, s47, 1", "s_add_u32 s49, s49, 1"]
    plan, _ = f_body(C, "mlp2", 56, True, setup(ops), D)

    def m_units(r):
        if not 1 <= r <= len(f_window(56)) - 4:
            return []
        b, qs = f_window(56)[r - 1]
        return [(2 + q, f_acc(b, q, True), 2 if q else b >> 2, b & 3) for q in qs[::2]]
    closing(56, True, plan, m_units, ("x", 0, 1, 2), OPT["mgets"])
    finish("m", True)
    C.label("L_done")
    C("s_waitcnt vmcnt(0) lgkmcnt(0)")
    D.stamp(9)
    D.stamp(9, 2)
    D.stamp(9, 7)
    D.flush(10)
    C.label("L_end")
    C("s_endpgm")
    refetch("m")
    C("; region -")
    for nm, lo, hi in halves:
        C.label(f"L_in{nm}_late")
        C(f"s_sub_u32 {s(S_SPIN)}, {s(S_SPIN)}, 1", f"s_cbranch_scc1 L_in{nm}_ok",
          [list(inbox(n)) for n in range(lo, hi)], "s_waitcnt vmcnt(0)", f"s_branch L_in{nm}_check")
    C.label("L_spin_p")
    C(f"s_mov_b32 {s(S_SPIN)}, {SPIN}")
    C.label("L_poll_p")
    C(f"buffer_load_dword {v(V_FLG)}, {v(V_L0)}, {s(SR_FLAG, 4)}, s16 offen sc1", "s_waitcnt vmcnt(0)",
      f"v_readfirstlane_b32 s48, {v(V_FLG)}", f"s_sub_u32 {s(S_SPIN)}, {s(S_SPIN)}, 1", "s_cbranch_scc1 L_spin_p_ret",
      "s_cmp_eq_u32 s48, 0", "s_cbranch_scc1 L_poll_p", "s_branch L_spin_p_ret")
    C.label("L_spin_r")
    C(f"s_mov_b32 {s(S_SPIN)}, {SPIN}")
    C.label("L_poll_r")
    C(f"buffer_load_dword v63, v62, {s(SR_ACT, 4)}, s51 offen sc1",
      f"buffer_load_dword v30, v31, {s(SR_ACT, 4)}, s50 offen sc1", "s_waitcnt vmcnt(0)",
      f"v_readfirstlane_b32 {s(S_RANK)}, v63", "v_cmp_gt_u32 vcc, 4, v30", "s_nop 1", "s_cmp_lg_u64 vcc, 0",
      f"s_cselect_b32 {s(S_RANK)}, 0, {s(S_RANK)}", f"s_sub_u32 {s(S_SPIN)}, {s(S_SPIN)}, 1",
      "s_cbranch_scc1 L_spin_r_ret", f"s_cmp_eq_u32 {s(S_RANK)}, 0", "s_cbranch_scc1 L_poll_r",
      "s_branch L_spin_r_ret")
    C.label("L_u_late")
    if OPT["fu2"]:
        C(f"s_waitcnt vmcnt({n_fu2})", f"v_cmp_eq_u32 vcc, 0, {v(V_FLG)}", "s_nop 1", "s_cmp_lg_u64 vcc, 0",
          "s_cbranch_scc0 L_u_go")
    C("s_waitcnt vmcnt(0)", flag_store(S_FU), f"v_mov_b32 v62, {v(V_FOFF)}", f"v_mov_b32 {v(V_FOFF)}, v63")
    poll(C, "u", S_FO)
    C(f"v_mov_b32 {v(V_FOFF)}, v62", "L_u_go:", f"s_mov_b32 {s(SR_ACT2 + 2)}, {USZ}")
    fill = u_loads()
    for tag in u_order:
        C(f"buffer_load_dword v57, {v(V_L0)}, {s(SR_FLAG, 4)}, 0 offen" if tag in ("U", "fu2") else fill.pop(0))
    assert not fill
    C("s_branch L_u_late_ret")
    C.label("L_poll_more")
    C(f"s_mov_b32 {s(S_SPIN)}, {SPIN}")
    C.label("L_poll_u2")
    C(f"buffer_load_dword {v(V_FLG)}, {v(V_FOFF)}, {s(SR_FLAG, 4)}, {s(S_FO)} offen sc1",
      f"s_sub_u32 {s(S_SPIN)}, {s(S_SPIN)}, 1", "s_cbranch_scc1 L_hook_mlp2_ret", "s_waitcnt vmcnt(0)",
      f"v_cmp_eq_u32 vcc, 0, {v(V_FLG)}", "s_nop 1", "s_or_b32 s49, vcc_lo, vcc_hi", "s_and_b32 s49, s48, s49",
      "s_cbranch_scc1 L_poll_u2", "s_branch L_hook_mlp2_ret")
    if OPT["nf"] < 7:
        C.label("L_poll_head")
        C(f"s_mov_b32 {s(S_SPIN)}, {SPIN}")
        C.label("L_poll_u3")
        C(f"buffer_load_dword {v(V_FLG)}, {v(V_FOFF)}, {s(SR_FLAG, 4)}, {s(S_FO)} offen sc1",
          f"s_sub_u32 {s(S_SPIN)}, {s(S_SPIN)}, 1", "s_cbranch_scc1 L_poll_head_ret", "s_waitcnt vmcnt(0)",
          f"v_cmp_eq_u32 vcc, 0, {v(V_FLG)}", "s_nop 1", "s_or_b32 s44, vcc_lo, vcc_hi", "s_and_b32 s44, 0x7f, s44",
          "s_cbranch_scc1 L_poll_u3", "s_branch L_poll_head_ret")
    C("; region -")
    C.label("L_spin_o")
    poll(C, "o", S_FO)
    C("s_branch L_spin_o_ret")
    C.label("L_spin_h")
    if OPT["go"]:
        poll(C, "h", 51, SR_LO, 16)
        C("s_branch L_spin_h_ret")
        C.label("L_spin_go")
        C(f"v_mov_b32 {v(V_FOFF)}, 0")
        poll(C, "go", None, SR_DBG)
        C("s_branch L_spin_go_ret")
        C.label("L_clear")
        C("v_mov_b64 v[128:129], 0", "v_mov_b64 v[130:131], 0", f"s_mov_b32 s48, {WS_FLAG + FL_A}")
        C([f"buffer_store_dwordx4 v[128:131], {v(V_LANE16)}, {s(SR_LO, 4)}, s48 offen offset:{1024 * i} sc1"
           for i in range(2)])
        C("s_branch L_clear_ret")
        C.label("L_open")
        C("v_mov_b32 v128, 1", f"v_lshlrev_b32 v129, 4, {v(V_LANE16)}", f"s_waitcnt vmcnt({OPT['qpro']})",
          f"buffer_store_dword v128, v129, {s(SR_DBG, 4)}, 0 offen sc1", "s_branch L_open_ret")
    else:
        poll(C, "h", None, SR_DBG, 4)
        C("s_branch L_spin_h_ret")
    C.label("L_fallback")
    C(f"s_mov_b32 {s(S_FB)}, 1", "s_waitcnt vmcnt(0) lgkmcnt(0)", "s_barrier", "s_nop 7", "s_branch L_restart")
    C.label("L_fb_hook")
    C("v_lshlrev_b32 v63, 4, v0", "s_lshl_b32 s48, s2, 12", f"s_add_u32 s48, s48, {WS_MX}",
      srd(SR_W, P_WS, "s48", 4096), f"s_cmp_eq_u32 {s(S_FB)}, 1", "s_cbranch_scc1 L_fb_scan")
    C(f"buffer_load_dwordx4 v[248:251], v63, {s(SR_W, 4)}, 0 offen sc1", "s_waitcnt vmcnt(0)")
    C([f"v_mov_b32 {v(V_NEGM + 4 * q)}, {v(248 + q)}" for q in range(4)])
    C(fill_srd(), "s_mov_b32 s48, 0", "s_branch L_fb_ret")
    C.label("L_fb_scan")
    C(f"s_mov_b32 {s(S_SK)}, 0", f"s_mov_b32 {s(S_CNT)}, 32")
    C.label("L_fb_loop")
    C("s_waitcnt vmcnt(0) lgkmcnt(0)", "s_barrier")
    ops = k_dma(0)
    C(ops[0], "s_nop 0", ops[1:], "s_waitcnt vmcnt(0)", "s_barrier")
    C(k_reads(0, A_KF), "s_waitcnt lgkmcnt(0)", k_reads(1, A_VF), "s_waitcnt lgkmcnt(0)")
    C(qk_mfmas(0, A_KF, True), qk_mfmas(1, A_VF, True), "s_nop 7")
    for u in range(2):
        for q in range(4):
            C(max_ops(u, q, False))
    C(f"s_sub_u32 {s(S_CNT)}, {s(S_CNT)}, 1", f"s_cmp_lg_u32 {s(S_CNT)}, 0", "s_cbranch_scc1 L_fb_loop")
    C(wave_red([V_NEGM + 4 * q for q in range(4)], [V_NEGM + 4 * q + 1 for q in range(4)], "v_max_f32", False))
    C([f"v_mov_b32 {v(248 + q)}, {v(V_NEGM + 4 * q)}" for q in range(4)])
    C(f"buffer_store_dwordx4 v[248:251], v63, {s(SR_W, 4)}, 0 offen sc1", f"s_mov_b32 {s(S_FB)}, 3",
      "s_waitcnt vmcnt(0)", "s_barrier",
      "s_branch L_restart")
    C.label("L_code_end")


def check_order(lines):
    from asmlib import I
    ins = [I(x) for x in lines if not x.endswith(":") and not x.startswith(".")]
    mf = [i for i, x in enumerate(ins) if x.is_mfma]
    for i, x in enumerate(ins):
        if x.op.startswith("v_cvt_pk"):
            r = next(iter(x.w))
            g = sum(1 for m in mf if m < i) - 1
            first = min(k for k, m in enumerate(mf) if r in ins[m].r)
            assert g < first, ("P63 late", x.text, g, first)
            for src in x.r:
                over = [k for k, y in enumerate(ins) if src in y.w and (y.op == "v_mov_b32" or y.text.endswith(", 0"))]
                assert all(k > i for k in over), ("source overwritten early", x.text)
        if x.op == "v_subrev_u32":
            assert sum(1 for m in mf if m < i) - 1 < 80
        if x.op == "v_accvgpr_write_b32":
            assert not any(m > i and x.w & ins[m].r for m in mf), x.text


def check_after(lines):
    from asmlib import I
    ins = [I(x) for x in lines if not x.endswith(":") and not x.startswith((".", ";"))]
    for i, x in enumerate(ins):
        if x.is_valu:
            assert not any(y.is_mfma and y.w & (x.r | x.w) for y in ins[i:]), x.text


def kd(name, nfv, acc):
    return f""".p2align 6
.amdhsa_kernel {name}
  .amdhsa_next_free_vgpr {nfv}
  .amdhsa_next_free_sgpr 102
  .amdhsa_accum_offset {acc}
  .amdhsa_group_segment_fixed_size 0
  .amdhsa_float_denorm_mode_32 {OPT["denorm"]}
  .amdhsa_kernarg_size 104
  .amdhsa_user_sgpr_count 2
  .amdhsa_user_sgpr_kernarg_segment_ptr 1
  .amdhsa_system_sgpr_workgroup_id_x 1
.end_amdhsa_kernel
"""


def main():
    head = [l for l in open(f"cdna_kernels/{NAME}.s.ref").read().split("\n") if l.startswith(";")]
    head = [l for l in head if "@launch" not in l and "Override launch" not in l and "grid=ceil" not in l]
    out = "\n".join(head) + "\n"
    out += f"; @launch grid=(256,1,1) block=(256,1,1) lds={MAIN_LDS}\n"
    out += '.amdgcn_target "amdgcn-amd-amdhsa--gfx950"\n.text\n'
    name = NAME + "_kernel"
    C = Ctx(Asm())
    gen_main(C)
    on = "".join(g for bit, g in ((1, "a"), (2, "b"), (4, "om")) if OPT["warm"] & bit)
    C.A.lines = [("; region -" if x.startswith("; region") and x.split()[2][0] not in on else x) for x in C.A.lines]
    lab = {"L_attn_loop": "a", "L_attn_entry": "a", "L_hook": "a",
           "L_hook_mlp2": "m", "L_u_late": "m"}
    C.A.lines, cnt = insert_stubs(C.A.lines, {k: [g] for k, g in lab.items() if g in on})
    print("warm-up stubs:", cnt, file=sys.stderr)
    pr = check_hazards(C.A.lines)
    for p in pr[:40]:
        print("HAZARD", p, file=sys.stderr)
    bad = len(pr)
    out += f".globl {name}\n.p2align 8\n.type {name},@function\n" + C.A.text()
    out += '.section .rodata,"a"\n' + kd(name, 512, 256)
    open(sys.argv[1], "w").write(out)
    print("hazards:", bad, file=sys.stderr)


main()
```

```python
import math
import sys
from asmlib import Asm, Ctx, Op, Wait, v, a, s, R, f32, check_hazards, warm_call, warm_call2, insert_stubs

NAME = "recurrent_scan__mha_block_cached__mixer_token_mlp__prompt"
OPT = dict(diag=0, bias=102.0, thresh=2.0 ** 60, force_fb=0, pf=1, noln=0, qmid=4, qmid2=4, qpre=4, qpro=20, cpos=-1, warm=7, pub0=3, pubb=8, chk=20, qc0=96, qc1=108, earlyw=1, tpos=0, hpos=2, latew=3, gopos=1, rank=1, odelay=8, osc=1, fg=7777, skip=0, ost=1, qch=1, nch=1, lead=7, tcap=40, swpv=0, pfm=0, qnc=0, uflag=1, oupos=32, win=4, mwin=4, mrate=7, msame=0, mord=8, osplit=0, tbl=0x45673210, fswap=0, xk=0, pfmask=15, flpos=-1, pfpos=-1, go=0, aflag=0, probe=0, nf=7, ford=0, alead=3, fu2=2, oord=1, ogets=1220000444, mgets=1220000001111112220, fcap=6, tail=28, frate=7, pcap=3, pnop=4, npre=2, mcap=3, xmode=0, stag=0, ering=2, pad1=0, oshape=0, kvsc=0, wsc=0, asc=1, denorm=3, dbgout=0, l2hack=0, barpos=0, qrate=7, spin=0x80000, ocap=0, grate=84444444446888888888880, opace=7, vlate=2, insplit=1)
for arg in sys.argv[2:]:
    k_, v_ = arg.split("=")
    OPT[k_] = float(v_) if "." in v_ else int(v_, 0)

MB = 1 << 20
WS_ST, WS_RS, WS_CS, WS_MX = 0, 32768, 65536, 44 * MB
WS_XF, WS_HF, WS_OF, WS_UF, WS_S, WS_FLAG, WS_DIAG = 0, 4 * MB, 8 * MB, 24 * MB, 72 * MB, 40 * MB, 64 * MB
FL_O, FL_U, FL_T, FL_H, FL_SIZE, FL_A = 0, 4096, 8192, 12288, 16384, 16384
KA_X, KA_K, KA_V, KA_WQ, KA_WO, KA_W1, KA_B1, KA_W2, KA_B2, KA_OUT, KA_DBG, KA_WS = (
    0, 8, 16, 24, 32, 48, 56, 64, 72, 80, 88, 96)
LOG2E = 1.4426950408889634
QSCALE = LOG2E / math.sqrt(128.0)
GC0 = -2.0 * math.sqrt(2.0 / math.pi) * LOG2E
HS = -abs(GC0 * 0.044715) ** (1.0 / 3.0)
MF = "v_mfma_f32_16x16x32_bf16"
OSC = ('', ' sc1', ' nt', ' sc0 sc1', ' sc1 nt')
SPIN = OPT["spin"]


def mfma(d, x, y, c):
    return f"{MF} {d}, {x}, {y}, {c}"


def srd(sr, ptr, off, size):
    return [[f"s_add_u32 {s(sr)}, {s(ptr)}, {off}", f"s_addc_u32 {s(sr + 1)}, {s(ptr + 1)}, 0"],
            f"s_mov_b32 {s(sr + 2)}, {size}", f"s_mov_b32 {s(sr + 3)}, 0x20000"]


def code_srd(sr, start, end, tag):
    return [[f"s_getpc_b64 {s(sr, 2)}", f"L_pc_{tag}:", f"s_add_u32 {s(sr)}, {s(sr)}, {start}-L_pc_{tag}",
             f"s_addc_u32 {s(sr + 1)}, {s(sr + 1)}, 0"],
            f"s_mov_b32 {s(sr + 2)}, {end}-{start}", f"s_mov_b32 {s(sr + 3)}, 0x20000"]


def nops(n):
    return [f"s_nop {n - 1}"] if n > 0 else []


def wave_red(regs, tmp, op="v_add_f32", dpp=True, swaps=("v_permlane16_swap_b32", "v_permlane32_swap_b32")):
    out = []
    if dpp:
        for mod in ("quad_perm:[1,0,3,2]", "quad_perm:[2,3,0,1]", "row_half_mirror", "row_mirror"):
            out += nops(3 - len(regs))
            out += [f"{op}_dpp {v(r)}, {v(r)}, {v(r)} {mod} row_mask:0xf bank_mask:0xf" for r in regs]
    for sw in swaps:
        out += [f"v_mov_b32 {v(t)}, {v(r)}" for r, t in zip(regs, tmp)]
        out += nops(3 - len(regs))
        out += [f"{sw} {v(r)}, {v(t)}" for r, t in zip(regs, tmp)]
        out += [f"{op} {v(r)}, {v(r)}, {v(t)}" for r, t in zip(regs, tmp)]
    return out


class Diag:
    def __init__(self, C, slot):
        self.C, self.slot = C, slot

    def stamp(self, n, mode=1):
        if OPT["diag"] == mode or (OPT["diag"] and self.slot == 2):
            self.C("s_memtime s[98:99]", "s_waitcnt lgkmcnt(0)", f"s_mov_b32 {s(78 + 2 * n)}, s98",
                   "s_memrealtime s[98:99]", "s_waitcnt lgkmcnt(0)", f"s_mov_b32 {s(79 + 2 * n)}, s98")

    def ops(self, n, mode):
        if OPT["diag"] != mode:
            return []
        return [["s_memtime s[98:99]", "s_waitcnt lgkmcnt(0)", f"s_mov_b32 {s(78 + 2 * n)}, s98",
                 "s_memrealtime s[98:99]", "s_waitcnt lgkmcnt(0)", f"s_mov_b32 {s(79 + 2 * n)}, s98"]]

    def flush(self, nmax):
        if not OPT["diag"]:
            return
        C = self.C
        if OPT["dbgout"]:
            C(f"s_load_dwordx2 s[98:99], s[0:1], {KA_DBG}", "s_waitcnt lgkmcnt(0)", "s_cmp_eq_u32 s2, 9",
              "s_cselect_b32 s101, 64, 0")
            C(srd(4, 98, 0, "s101"))
            C("v_mov_b32 v1, 0")
            for i in range(1, nmax):
                C(f"s_sub_u32 s101, {s(79 + 2 * i)}, s79", "v_mov_b32 v2, s101",
                  f"buffer_store_dword v2, v1, s[4:7], 0 offen offset:{4 * i}")
            C(f"s_sub_u32 s101, {s(78 + 2 * (nmax - 1))}, s78", "v_mov_b32 v2, s101",
              f"buffer_store_dword v2, v1, s[4:7], 0 offen offset:{4 * nmax}", "s_waitcnt vmcnt(0)")
            return
        C(f"s_load_dwordx2 s[98:99], s[0:1], {KA_WS}", "s_waitcnt lgkmcnt(0)", "s_lshl_b32 s101, s2, 7",
          f"s_add_u32 s101, s101, {WS_DIAG + self.slot * 65536}")
        C(srd(4, 98, "s101", 128))
        C("v_mov_b32 v1, 0")
        for i in range(2 * nmax):
            C(f"v_mov_b32 v2, {s(78 + i)}", f"buffer_store_dword v2, v1, s[4:7], 0 offen offset:{4 * i}")
        C("v_mov_b32 v2, s43", "buffer_store_dword v2, v1, s[4:7], 0 offen offset:96")
        C("s_waitcnt vmcnt(0)")


V_LANE16 = 1
V_KA, V_VA, V_QA, V_ONE, V_OK, V_OV, V_OW = 4, 8, 16, 20, 24, 28, 32
V_L, V_NEGM, V_WA0, V_IDX, V_PF = 36, 44, 44, 60, 61
V_Q, V_S, V_P, V_ACC = 64, (128, 160), (192, 208, 224, 240), 128
V_EA = 36
V_B1, V_L0, V_FLG, V_FOFF, V_ONEI, V_XO = 120, 52, 53, 54, 55, 56
V_XA, V_XO4, V_CS, V_FA = 112, 116, 120, 16
A_O, A_KF, A_VF, A_CA, A_CB = 0, 128, 160, 0, 32
A_WF = (128, 160)
S_W = 3
SR_ACT, SR_W, SR_K, SR_V, SR_ST = 4, 8, 12, 16, 20
P_K, P_V, P_WQ, P_WS, P_W1, P_B1, P_WO, P_W2, P_X, P_B2, P_OUT = 24, 26, 28, 30, 32, 34, 36, 38, 52, 54, 56
S_SA, S_SW, S_SK, S_SV, S_CNT, S_FB = 40, 41, 42, 43, 44, 45
S_SPIN, S_RANK, S_W2, S_XB, S_STG, SR_GET = 101, 100, 58, 59, 59, 12
SR_PF, S_PF, S_PFC = 60, 76, 77
SR_ACT2, SR_UST, SR_FLAG, SR_X = 60, 64, 68, 72
S_WSTEP, S_ROLE, S_PAIR, S_FO, S_FU, S_KH, S_AB = 58, 42, 43, 76, 77, 100, 77
VBASE, EBASE = 65536, 131072
VOTE = 49152 if OPT["ering"] else EBASE
MAIN_LDS = 163840
WQSTEP, W1STEP = 64 * 8192, 64 * 7168


def ring(n):
    idx = n % 32
    return ("a", 192 + 4 * idx) if idx < 16 else ("a" if n >= 128 else "v", 64 + 4 * (idx - 16))


def add(d, k, *x):
    d.setdefault(k, []).extend(x)


def v_read_addrs(dst, t0):
    out = [f"v_lshrrev_b32 {v(t0)}, 2, v2", f"v_and_b32 {v(t0 + 1)}, 1, v3",
           f"v_lshl_add_u32 {v(t0 + 1)}, {v(t0 + 1)}, 2, {v(t0)}", f"v_lshl_add_u32 {v(t0)}, v3, 2, {v(t0)}",
           f"v_lshlrev_b32 {v(t0)}, 8, {v(t0)}", f"v_lshl_add_u32 {v(t0)}, {v(t0 + 1)}, 5, {v(t0)}",
           f"v_and_b32 {v(t0 + 1)}, 3, v2", f"v_lshl_add_u32 {v(t0)}, {v(t0 + 1)}, 3, {v(t0)}",
           f"v_add_u32 {v(t0)}, {VBASE}, {v(t0)}"]
    return out + [f"v_xor_b32 {v(dst + b)}, {b * 32}, {v(t0)}" for b in range(8)]


def q_read_addrs(dst, t0):
    out = [f"v_lshrrev_b32 {v(t0)}, 2, v2", f"v_and_b32 {v(t0 + 1)}, 1, v3",
           f"v_lshl_add_u32 {v(t0 + 1)}, {v(t0 + 1)}, 2, {v(t0)}", f"v_lshl_add_u32 {v(t0)}, v3, 3, {v(t0)}",
           f"v_lshlrev_b32 {v(t0)}, 8, {v(t0)}", f"v_lshlrev_b32 {v(t0 + 1)}, 1, {v(t0 + 1)}",
           f"v_and_b32 {v(t0 + 2)}, 3, v2", f"v_xor_b32 {v(t0 + 1)}, {v(t0 + 1)}, {v(t0 + 2)}",
           f"v_lshl_add_u32 {v(t0)}, {v(t0 + 1)}, 4, {v(t0)}", f"s_lshr_b32 s48, {s(S_W)}, 6",
           f"s_add_u32 s48, s48, {VBASE}", f"v_xor_b32 {v(t0)}, s48, {v(t0)}"]
    if OPT["qnc"]:
        out += [f"v_bfe_u32 {v(t0 + 1)}, v2, 1, 1", f"v_lshl_add_u32 {v(t0)}, {v(t0 + 1)}, 3, {v(t0)}"]
    return out + [f"v_xor_b32 {v(dst + x)}, {x * 64}, {v(t0)}" for x in range(4)]


def wq_dma_offsets(t0):
    return [f"s_lshr_b32 s48, {s(S_W)}, 8", f"v_add_u32 {v(t0)}, s48, v3", f"v_lshlrev_b32 {v(t0)}, 13, {v(t0)}",
            f"v_lshlrev_b32 {v(t0 + 1)}, 1, v3", f"v_xor_b32 {v(t0 + 1)}, {v(t0 + 1)}, v2",
            f"v_lshl_add_u32 {v(V_OW)}, {v(t0 + 1)}, 4, {v(t0)}", f"v_xor_b32 {v(t0 + 1)}, 8, {v(t0 + 1)}",
            f"v_lshl_add_u32 {v(V_OW + 2)}, {v(t0 + 1)}, 4, {v(t0)}", f"v_add_u32 {v(V_OW + 2)}, 63488, {v(V_OW + 2)}",
            f"v_add_u32 {v(V_OW + 1)}, 31744, {v(V_OW)}", f"v_add_u32 {v(V_OW + 3)}, 31744, {v(V_OW + 2)}"]


def x_dma_offsets(t0):
    return [f"v_bfe_u32 {v(t0)}, v0, 3, 3", f"v_lshlrev_b32 {v(t0)}, 11, {v(t0)}", f"v_and_b32 {v(t0 + 1)}, 7, v0",
            f"v_xor_b32 {v(t0 + 1)}, {v(t0 + 1)}, v3", f"v_lshl_add_u32 {v(V_XO4)}, {v(t0 + 1)}, 4, {v(t0)}",
            f"v_xor_b32 {v(t0 + 1)}, 4, {v(t0 + 1)}", f"v_lshl_add_u32 {v(V_XO4 + 1)}, {v(t0 + 1)}, 4, {v(t0)}",
            f"v_add_u32 {v(V_XO4 + 1)}, 15360, {v(V_XO4 + 1)}", f"v_add_u32 {v(V_XO4 + 2)}, 30720, {v(V_XO4)}",
            f"v_add_u32 {v(V_XO4 + 3)}, 30720, {v(V_XO4 + 1)}"]


def x_read_addrs(t0):
    return [f"v_lshrrev_b32 {v(t0)}, 1, v2", f"v_xor_b32 {v(t0)}, {v(t0)}, v3", f"v_lshlrev_b32 {v(t0)}, 4, {v(t0)}",
            f"v_lshl_add_u32 {v(t0)}, v2, 7, {v(t0)}", f"v_add_u32 {v(V_XA)}, {s(S_W2)}, {v(t0)}",
            f"v_xor_b32 {v(V_XA + 1)}, 64, {v(V_XA)}", f"v_add_u32 {v(V_XA + 2)}, {EBASE}, {v(V_XA)}",
            f"v_add_u32 {v(V_XA + 3)}, {EBASE}, {v(V_XA + 1)}"]


def w_dma_offsets(dst, ldw, t0, st):
    out = [f"s_lshr_b32 {s(st)}, {s(S_W)}, 8", f"v_add_u32 {v(t0)}, {s(st)}, v3",
           f"v_mul_u32_u24 {v(t0)}, {ldw}, {v(t0)}", f"v_lshlrev_b32 {v(t0 + 1)}, 1, v3",
           f"v_xor_b32 {v(t0 + 1)}, {v(t0 + 1)}, v2", f"v_lshl_add_u32 {v(dst)}, {v(t0 + 1)}, 4, {v(t0)}",
           f"v_xor_b32 {v(t0 + 1)}, 8, {v(t0 + 1)}", f"v_lshl_add_u32 {v(dst + 1)}, {v(t0 + 1)}, 4, {v(t0)}"]
    if isinstance(ldw, int):
        one, two = 4 * ldw - 1024, 8 * ldw - 2048
    else:
        out += [f"s_lshl_b32 {s(st)}, {ldw}, 2", f"s_sub_u32 {s(st)}, {s(st)}, 1024",
                f"s_lshl_b32 {s(st + 1)}, {s(st)}, 1"]
        one, two = s(st), s(st + 1)
    out += [f"v_add_u32 {v(dst + 1)}, {one}, {v(dst + 1)}", f"v_add_u32 {v(dst + 2)}, {two}, {v(dst)}",
            f"v_add_u32 {v(dst + 3)}, {two}, {v(dst + 1)}"]
    return out


def dma(voff, sr, soff, i, tag):
    return Op(f"buffer_load_dwordx4 {v(voff)}, {s(sr, 4)}, {s(soff)} offen offset:{i * 1024}"
              + OSC[OPT["kvsc"] if tag[0] in "KV" else OPT["wsc"]] + " lds", tag)


def set_m0(off):
    return f"s_add_u32 m0, {s(S_W)}, {off}"


def tr_read(dst, addr, off, tag):
    return Op(f"ds_read_b64_tr_b16 {dst}, {v(addr)} offset:{off}", tag)


def x_slot(e):
    return EBASE if e == 15 else (0, EBASE, 32768)[e % 3]


def x_frag(e, k, q):
    return a(192 + 32 * (e & 1) + (k * 4 + q) * 4, 4)


def x_reads(e, half):
    sl = x_slot(e)
    return [Op(f"ds_read_b128 {x_frag(e, k, q)}, {v(V_XA + k + 2 * (sl == EBASE))} offset:{sl % EBASE + q * 2048}",
               ("XR", e, half)) for q in (2 * half, 2 * half + 1) for k in range(2)]


def q_reads(j):
    base = ((j >> 1) & 3) * 16384
    return [tr_read(a(A_WF[j & 1] + 2 * m, 2), V_QA + 2 * (j & 1) + (m >> 3),
                    base + ((m >> 1) & 1) * 8192 + (m & 1) * 1024 + ((m >> 2) & 1) * 8 * (1 - OPT["qnc"]), ("QT", j)) for m in range(16)]


def q_order(j):
    return [(bl, q) for q in range(4) for bl in range(4)] if j == 31 else [(bl, q) for bl in range(4) for q in range(4)]


def q_mfmas(j):
    out = []
    for bl, q in q_order(j):
        b = 4 * (j & 1) + bl
        acc = v(V_ACC + (b * 4 + q) * 4, 4)
        for k in range(2):
            out.append(mfma(acc, a(A_WF[j & 1] + 4 * (2 * bl + k), 4), x_frag(j >> 1, k, q), acc if j > 1 or k else "0"))
        if j >= 30:
            out.append(mfma(acc, a(A_CA + 4 * b, 4), a(A_CB + 4 * q, 4), acc))
    return out


def k_reads(u, dst):
    base = ((u >> 1) & 3) * 16384 + (u & 1) * 8192
    return [Op(f"ds_read_b128 {a(dst + (kb * 4 + ks) * 4, 4)}, {v(V_KA + ks)} offset:{base + kb * 4096}", ("KR", u))
            for kb in range(2) for ks in range(4)]


def v_reads(i, dst):
    base = ((i >> 1) & 3) * 16384
    return [tr_read(a(dst + 2 * m, 2), V_VA + 4 * (i & 1) + (m >> 2), base + ((m >> 1) & 1) * 8192 + (m & 1) * 4096,
                    ("VR", i)) for m in range(16)]


def k_dma(t):
    return ([set_m0((t & 3) * 16384)] + [dma(V_OK + i, SR_K, S_SK, i, ("K", t)) for i in range(4)]
            + [f"s_add_u32 {s(S_SK)}, {s(S_SK)}, 0x4000"])


def v_dma(t):
    return ([set_m0(VBASE + (t & 3) * 16384)] + [dma(V_OV + (i & 1), SR_V, S_SV, i, ("V", t)) for i in range(4)]
            + [f"s_add_u32 {s(S_SV)}, {s(S_SV)}, 0x4000"])


def w1_dma(e):
    return [set_m0(g_m0(e))] + [o for _, o in g_w(e)] + [f"s_mov_b32 {s(S_SW)}, {(e + 1) * 2 * W1STEP}"]


def sm_ops(u):
    S, P = V_S[u & 1], V_P[u & 3]
    out = []
    for q in range(4):
        for pr in range(4):
            r0 = S + ((pr >> 1) * 4 + q) * 4 + (pr & 1) * 2
            out += [[f"v_exp_f32 {v(r0)}, {v(r0)}"], [], [f"v_exp_f32 {v(r0 + 1)}, {v(r0 + 1)}"],
                    [f"v_cvt_pk_bf16_f32 {v(P + q * 4 + pr)}, {v(r0)}, {v(r0 + 1)}"]]
    return out


def sm_seq(u, q0, q1):
    ops = sm_ops(u)[16 * q0:16 * q1]
    out, pend = [], None
    for g in range(0, len(ops), 4):
        out += ops[g] + ops[g + 2]
        if pend:
            out += pend
        pend = ops[g + 3]
    return out + [None] + pend


def qk_mfmas(u, kf, zero_c=False, q_outer=False):
    out = []
    order = [(kb, q) for q in range(4) for kb in range(2)] if q_outer else [(kb, q) for kb in range(2) for q in range(4)]
    for kb, q in order:
        d = v(V_S[u & 1] + (kb * 4 + q) * 4, 4)
        for ks in range(4):
            c = d if ks else ("0" if zero_c else v(V_NEGM + 4 * q, 4))
            out.append(mfma(d, a(kf + (kb * 4 + ks) * 4, 4), v(V_Q + (q * 4 + ks) * 4, 4), c))
    return out


def pv_mfmas(i, vf, q_outer=False):
    out = []
    for m in range(32):
        bl, q = ((m >> 1) & 3, m >> 3) if q_outer else (m >> 3, (m >> 1) & 3)
        k = m & 1
        d = a(A_O + ((4 * (i & 1) + bl) * 4 + q) * 4, 4)
        x, y = a(vf + 4 * (2 * bl + k), 4), v(V_P[((i & ~1) + k) & 3] + 4 * q, 4)
        out.append(mfma(d, y, x, d) if OPT["swpv"] else mfma(d, x, y, d))
    return out


def l_mfma(u, h):
    return f"v_smfmac_f32_16x16x64_bf16 {v(V_L + 4 * h, 4)}, {v(V_ONE, 4)}, {v(V_P[u & 3] + 8 * h, 8)}, {v(V_IDX)}"


def fill_srd():
    return srd(SR_W, P_WS, WS_S, 20 * MB)


def fill_store(sr, so, i):
    return f"buffer_store_dwordx4 {v(V_QA, 4)}, {v(V_LANE16)}, {s(sr, 4)}, {so} offen offset:{1024 * i} sc1"


def tile_dma(i):
    if i >= 55:
        return v_dma(31) if i == 55 else w1_dma(i - 56)
    return k_dma((i + 1) // 2 + 4) if i & 1 else v_dma(i // 2 + 3)


def phase_a(C, i, extra, bg=None):
    pre = {}
    for g, x in enumerate(v_reads(i, A_VF)[4:]):
        add(pre, 2 * g + 1, x)
    ops = tile_dma(i - 1)
    if OPT["barpos"]:
        add(pre, 13, ops[3])
        add(pre, 21, ops[4])
        add(pre, 24, ops[5])
    else:
        add(pre, 25, ops[3])
        add(pre, 29, ops[4])
        add(pre, 30, ops[5])
    for g, x in extra:
        add(pre, g, x)
    C.weave(qk_mfmas(i + 2, A_KF), pre, dict(enumerate(sm_ops(i + 1)[32:])), bg)


def phase_b(C, i, extra, bg=None):
    pre = {}
    for g, x in enumerate(k_reads(i + 3, A_KF)):
        add(pre, 2 * g + 1, x)
    ops = tile_dma(i)
    vr = v_reads(i + 1, A_VF)
    add(pre, 16, ops[0])
    for g, x in zip((17, 19, 21, 25, 27, 29), (ops[1], vr[0], vr[1], ops[2], vr[2], vr[3])):
        add(pre, g, x)
    add(pre, 31, Wait(lg=[("KR", i + 3)], key=("b", i & 7)))
    for g, x in extra:
        if g >= 0:
            add(pre, g, x)
    valu = dict(enumerate(sm_ops(i + 2)[:32]))
    valu[7] = valu[7] + [l_mfma(i, 0)] + [x for g, x in extra if g == -1]
    valu[23] = valu[23] + [l_mfma(i, 1)] + [x for g, x in extra if g == -2]
    C.weave(pv_mfmas(i, A_VF), pre, valu, bg)


def epoch(C, n, real, skip_first=False, bg=None):
    p, inloop = n & 3, n < 28

    def xl(ph):
        j = ph - 113
        if j == 0:
            return [(1, f"buffer_load_dword a255, {v(V_LANE16)}, {s(SR_W, 4)}, 0 offen")]
        if j in (1, 3, 5, 7):
            x = g_act(j >> 2, (j >> 1) & 1)
            return [(0, x[0][0])] + [(1 + 4 * k + 4 * (k > 1), x[k][1]) for k in range(4)]
        if j in (6, 8):
            x = g_w(5 + j // 2, S_SK)
            return [(0, x[0][0])] + [(1 + 4 * k, x[k][1]) for k in range(4)]
        return []
    if not skip_first:
        extra = []
        if OPT["pf"] and (inloop or p == 0):
            so = S_PFC if p == 0 else S_PF
            if OPT["pfmask"] >> p & 1:
                extra.append((OPT["pfpos"], f"buffer_load_dword a255, {v(V_PF)}, {s(SR_PF + 4 * p, 4)}, {s(so)} offen"))
            if p == 3:
                extra.append((24, f"s_add_u32 {s(S_PF)}, {s(S_PF)}, 8192"))
        if p == 0 and real:
            extra += [(2, f"s_cmp_le_u32 {s(S_CNT)}, 3"), (4, "s_cbranch_scc1 L_hook"), (4, "L_hook_ret:")]
        phase_b(C, 2 * n - 1, extra + xl(4 * n - 1), bg)
    if p == 0 and real:
        C.label("L_attn_entry")
    phase_a(C, 2 * n, [(31, Wait(lg=[("VR", 2 * n)], key=("a", 2 * p)))] + xl(4 * n), bg)
    assert not bg
    fl = [(OPT["flpos"], fill_store(SR_W, s(S_SA), p >> 1))] * (inloop and p & 1 == 0)
    fl += [(28, f"s_add_u32 {s(S_SA)}, {s(S_SA)}, 2048"),
           (30, f"s_min_u32 {s(S_SA)}, {s(S_SA)}, {s(S_W2)}")] * (inloop and p == 2)
    fl += [(OPT["flpos"], fill_store(SR_W, s(S_XB), 1)),
           (28, f"s_add_u32 {s(S_XB)}, {s(S_XB)}, 1024")] * (inloop and p == 1)
    phase_b(C, 2 * n, xl(4 * n + 1) + fl)
    need = [("K", n + 2)] * (n + 2 < 32) + [("V", n + 1)]
    wg, bg_ = {0: (31, 31), 1: (30, 31), 2: (30, 30), 3: (29, 29), 4: (28, 29)}[OPT["barpos"]]
    extra = [(wg, Wait(vm=need, lg=["*"], key=("a", 2 * p + 1))), (bg_, "s_barrier")]
    if p == 3:
        extra = [(26, f"s_sub_u32 {s(S_CNT)}, {s(S_CNT)}, 1")] + extra + [(31, f"s_cmp_lg_u32 {s(S_CNT)}, 0")]
    phase_a(C, 2 * n + 1, extra + xl(4 * n + 2))
    if real and p == 3:
        C("s_cbranch_scc1 L_attn_loop")


def max_ops(u, q, first):
    r = [V_S[u & 1] + (kb * 4 + q) * 4 + j for kb in range(2) for j in range(4)]
    m = v(V_NEGM + 4 * q)
    out = [f"v_max_f32 {m}, {v(r[0])}, {v(r[1])}" if first else f"v_max3_f32 {m}, {v(r[0])}, {v(r[1])}, {m}"]
    return out + [f"v_max3_f32 {m}, {v(r[k])}, {v(r[k + 1])}, {m}" for k in (2, 4, 6)]


G_SLOT = (0, 1, 2, 3, 4, 5, 7, 6, 8, 9, 2, 3, 4, 5, 7, 6)


def g_m0(e):
    sl = G_SLOT[e]
    return EBASE + (sl - 8) * 16384 if sl >= 8 else (sl & 1) * VBASE + (sl >> 1) * 16384


def g_set(e):
    return ("a", 64 + 32 * (e - 14)) if e >= 14 else (("a", 192), ("a", 224), ("v", 64), ("v", 96))[e & 3]


def g_acc(b, q):
    return V_ACC + ((((b >> 1) + 2) & 3) * 4 + q) * 8 + (b & 1) * 4


def g_act(e, h):
    return [([f"s_mov_b32 {s(S_SA)}, {e * 8192 + h * 131072}"] if n == 0 else [],
             Op(f"buffer_load_dwordx4 {R(g_set(e), 4, ((n >> 1) * 4 + 2 * h + (n & 1)) * 4)}, {v(V_LANE16)}, "
                f"{s(SR_ACT, 4)}, {s(S_SA)} offen offset:{n * 1024} sc1", ("GX", e))) for n in range(4)]


def g_w(e, so=None):
    so = S_SW if so is None else so
    return [([set_m0(g_m0(e)), f"s_mov_b32 {s(so)}, {e * 2 * W1STEP}"] if n == 0 else [],
             dma(V_OK + n, SR_K, so, n, ("W", e))) for n in range(4)]


def g_reads(i):
    out = []
    for m in range(16):
        e, b = (12 + (m >> 2), i - 24) if i >= 24 else (i >> 1, 4 * (i & 1) + (m >> 2))
        sl = G_SLOT[e]
        wa = V_EA if sl >= 8 else V_VA if sl & 1 else V_WA0
        out.append(tr_read(a(A_WF[i & 1] + 2 * m, 2), wa + b, g_m0(e) % 65536 + ((m >> 1) & 1) * 8192 + (m & 1) * 4096,
                           ("GT", i)))
    return out


def g_step(C, i, vm, extra, bg, cap):
    if i >= 24:
        todo = [(i - 24, q, kk, 12 + (kk >> 1), kk & 1) for q in range(4) for kk in range(8)]
    else:
        todo = [(4 * (i & 1) + bl, q, 2 * bl + k, i >> 1, k) for bl in range(4) for q in range(4) for k in range(2)]
    mf, pre = [], {}
    for b, q, f, e, k in todo:
        acc = c = v(g_acc(b, q), 4)
        if i < 2 and k == 0:
            c = v(g_acc(b, 3), 4) if i else "0"
        mf.append(mfma(acc, a(A_WF[i & 1] + 4 * f, 4), R(g_set(e), 4, (k * 4 + q) * 4), c))
    for g, x in zip(TG, g_reads(i + 1) if i < 31 else f_reads(0, 64)):
        add(pre, g, x)
    place(pre, vm, 32)
    nxt = range(12, 16) if i >> 1 == 11 else [(i >> 1) + 1]
    if i == 30:
        add(pre, 31, Wait(vm=[("W", 32)], lg=[("GT", 31)]), "s_barrier")
    elif 24 <= i < 31:
        add(pre, 31, Wait(lg=[("GT", i + 1)]))
    elif i & 1 and i < 24:
        add(pre, 31, Wait(vm=[("GX", x) for x in nxt], lg=["*"]))
    elif i < 24:
        add(pre, 31, Wait(vm=[("W", x) for x in nxt], lg=["*"]), "s_barrier")
    for g, x in extra:
        add(pre, g, x)
    C.weave(mf, pre, {}, bg, cap)


def place(pre, vm, ng):
    for n, (setup, o) in enumerate(vm):
        g = 2 + (n * (ng - 2)) // len(vm)
        assert n == 0 or g - len(setup) > 2 + ((n - 1) * (ng - 2)) // len(vm)
        for k, x in enumerate(setup):
            pre.setdefault(g - len(setup) + k, []).insert(0, x)
        add(pre, g, o)


def greedy(groups, steps, rate):
    groups = sorted(groups, key=lambda x: x[1])
    plan, cur = {}, []
    for n, i in enumerate(steps):
        mine = []
        while len(mine) < rate(i):
            if not cur:
                ok = [x for x in groups if x[0] <= i]
                if not ok:
                    break
                groups.remove(ok[0])
                cur = list(ok[0][2])
            mine.append(cur.pop(0))
        plan[i] = mine
    assert not groups and not cur
    return plan


TAIL = OPT["tail"]


def win_of(nq):
    return OPT["mwin"] if nq == 56 else OPT["win"]


TG = [g for g in range(24) if g % 3 != 2]


def f_slot(e, nq):
    n = nq // 2
    return 4 + e - (n - 4) if e >= n - 4 else e & 3


def f_set(e, nq):
    n = nq // 2
    return 192 + 32 * (e - (n - 2)) if e >= n - 2 else 32 * (e & 3)


def f_tr(dst, e, k, hh, slot_b, nq, tag):
    sl = f_slot(e, nq)
    return tr_read(dst, V_FA + 8 * (sl & 1) + slot_b, (sl >> 1) * 16384 + k * 8192 + hh * 4096, tag)


def f_window(nq):
    if nq == 64:
        return [(b, (0, 1, 2, 3)) for b in range(8)]
    other, partner = [(b, (0, 1)) for b in range(8)], [(b, (2, 3)) for b in range(4)]
    k = OPT["mord"]
    if k < 0:
        return [(b, (0, 1, 2, 3)) for b in range(4)] + other[4:] + [(b, (2, 3)) for b in range(4, 8)]
    return other[:k] + partner + other[k:] + [(b, (2, 3)) for b in range(4, 8)]


def f_acc(b, q, mlp2):
    if not mlp2:
        return V_ACC + ((b >> 1) * 4 + q) * 8 + (b & 1) * 4
    return V_ACC + b * 16 + q * 4 if b < 4 else V_ACC + 64 + (q >> 1) * 32 + (b - 4) * 8 + (q & 1) * 4


def f_reads(i, nq):
    w0, win = nq - 2 * win_of(nq), f_window(nq)
    if i >= w0 + len(win):
        return []
    dst = A_WF[i & 1]
    if i >= w0:
        return [f_tr(a(dst + 2 * m, 2), w0 // 2 + (m >> 2), (m >> 1) & 1, m & 1, win[i - w0][0], nq, ("FT", i, m >> 3))
                for m in range(4 * win_of(nq))]
    return [f_tr(a(dst + 2 * m, 2), i >> 1, (m >> 1) & 1, m & 1, 4 * (i & 1) + (m >> 2), nq, ("FT", i, m >> 3))
            for m in range(16)]


def f_mfmas(i, nq, mlp2):
    w0, out = nq - 2 * win_of(nq), []
    if i >= w0:
        b, qs = f_window(nq)[i - w0]
        if len(qs) == 4:
            todo = [(b, q, kk) for q in qs for kk in range(2 * win_of(nq))]
        else:
            todo = [(b, q, kk) for lo in (0, 4) for q in qs for kk in range(lo, min(lo + 4, 2 * win_of(nq)))]
        todo = [(b, q, kk, w0 // 2 + (kk >> 1), kk & 1) for b, q, kk in todo]
    else:
        todo = [(4 * (i & 1) + bl, q, 2 * bl + k, i >> 1, k) for bl in range(4) for q in range(4) for k in range(2)]
        if OPT["ford"] & (1 + mlp2):
            todo.sort(key=lambda x: (x[1], x[0]))
    for b, q, f, e, k in todo:
        wf, xf = a(A_WF[i & 1] + 4 * f, 4), a(f_set(e, nq) + (k * 4 + q) * 4, 4)
        acc = c = v(f_acc(b, q, mlp2), 4)
        if i < 2 and k == 0:
            c = v(f_acc(b, 3, True), 4) if mlp2 and i == 1 else "0"
        out.append(mfma(acc, xf, wf, c) if mlp2 != bool(OPT["fswap"] & (1 + mlp2)) else mfma(acc, wf, xf, c))
    return out


def f_act(e, h, nq, stride, loop=False, rel=None):
    r, step = S_XB if h else S_SA, 8192 if nq == 56 else 4096
    if loop:
        st = f"s_add_u32 {s(S_XB)}, {s(S_SA)}, {stride}" if h else f"s_add_u32 {s(S_SA)}, {s(S_SA)}, {step}"
    elif rel is not None:
        st = f"s_add_u32 {s(r)}, {s(S_AB)}, {(e - rel) * step + h * stride}"
    else:
        st = f"s_mov_b32 {s(r)}, {e * step + h * stride}"
    return [([st] if n == 0 else [],
             Op(f"buffer_load_dwordx4 {a(f_set(e, nq) + ((n >> 1) * 4 + 2 * h + (n & 1)) * 4, 4)}, {v(V_LANE16)}, "
                f"{s(SR_ACT2, 4)}, {s(r)} offen offset:{n * 1024} sc1", ("FX", e))) for n in range(4)]


def f_w(e, nq, loop=False, rel=None):
    sl, step = f_slot(e, nq), 128 * 4096 if nq == 56 else 64 * 2048
    st = [set_m0((sl & 1) * VBASE + (sl >> 1) * 16384),
          f"s_add_u32 {s(S_SW)}, {s(S_SW)}, {step}" if loop else f"s_mov_b32 {s(S_SW)}, {e * step}" if rel is None
          else f"s_add_u32 {s(S_SW)}, {s(S_WSTEP)}, {(e - rel) * step}"]
    return [(st if n == 0 else [], dma(V_OW + n, SR_W, S_SW, n, ("W", 32 + e))) for n in range(4)]


def f_step(C, i, nq, mlp2, vm, extra=(), bg=None, cap=2, loop=False):
    w0 = nq - 2 * win_of(nq)
    mf, pre = f_mfmas(i, nq, mlp2), {}
    ng = len(mf)
    short = i >= w0 and len(f_window(nq)[i - w0][1]) == 2
    for g, x in zip(range(16) if short else TG, f_reads(i + 1, nq)):
        add(pre, g, x)
    for n, (setup, o) in enumerate(vm):
        g = 2 + (n * (ng - 2)) // len(vm)
        assert n == 0 or g - len(setup) > 2 + ((n - 1) * (ng - 2)) // len(vm)
        for k, x in enumerate(setup):
            pre.setdefault(g - len(setup) + k, []).insert(0, x)
        add(pre, g, o)
    e, key = i >> 1, (("f", i & 7) if loop else None)
    nxt = range(e + 1, nq // 2) if e + 1 == w0 // 2 else [e + 1]
    if i >= w0:
        if short:
            add(pre, 7, Wait(lg=[("FT", i, 1)]))
        if i < w0 + len(f_window(nq)) - 1:
            add(pre, ng - 1, Wait(lg=[("FT", i + 1, 0 if short else 1)]))
    elif i & 1:
        add(pre, ng - 1, Wait(vm=[("FX", x) for x in nxt], lg=[("FT", i + 1, 1)], key=key))
    else:
        add(pre, ng - 1, Wait(vm=[("W", 32 + x) for x in nxt], lg=[("FT", i + 1, 1)], key=key), "s_barrier")
    for g, x in extra:
        add(pre, g, x)
    C.weave(mf, pre, {}, bg, cap)


def f_body(C, name, nq, mlp2, bg, D):
    stride = 229376 if mlp2 else 262144
    A_, W_ = (lambda e, h, lp=False: f_act(e, h, nq, stride, lp)), (lambda e, lp=False: f_w(e, nq, lp))
    head = [A_(2, 0) + A_(2, 1), W_(4)[:2] + A_(3, 0) + A_(3, 1)[:2], A_(3, 1)[2:] + W_(4)[2:] + A_(4, 0),
            A_(4, 1) + W_(5)[:2]]
    AL = OPT["alead"]
    if AL == 2:
        head = [A_(2, 0), A_(2, 1) + W_(4)[:2], A_(3, 0) + W_(4)[2:], A_(3, 1) + W_(5)[:2]]
    D.stamp(1, 7)
    for i in range(4):
        up = 32 * OPT["uflag"] if mlp2 else OPT["oupos"]
        ex = [(up % 32, Wait(vm=["U"])), (up % 32 + 1, flag_store(S_FU))] if i == up // 32 else []
        if mlp2 and OPT["nf"] < 7:
            chk = 2 * (OPT["nf"] - AL) - 1
            assert 1 <= chk <= 3
            if i == chk - 1:
                ex.append((0, Op(f"buffer_load_dword {v(V_FLG)}, {v(V_FOFF)}, {s(SR_FLAG, 4)}, {s(S_FO)} offen sc1", "fu3")))
            if i == chk:
                assert not any("vcc" in str(x) for x in bg)
                ex += [(25, Wait(vm=["fu3"])), (26, f"v_cmp_eq_u32 vcc, 0, {v(V_FLG)}"),
                       (29, ["s_or_b32 s44, vcc_lo, vcc_hi", "s_and_b32 s44, 0x7f, s44", "s_cbranch_scc1 L_poll_head",
                             "L_poll_head_ret:"])]
        f_step(C, i, nq, mlp2, head[i], ex, bg)
    assert not bg
    trips = (nq - 4 - TAIL) // 8

    def one(X, i, real):
        e, ex = i >> 1, []
        if i & 1:
            x, w = A_(e + AL, 1, True), W_(e + 4, True)[:2]
        else:
            x, w = A_(e + AL, 0, True), W_(e + 3, True)[2:]
        if mlp2 and i & 7 == 4:
            ex.append((0, f"buffer_load_dword {v(V_FLG)}, {v(V_FOFF)}, {s(SR_FLAG, 4)}, {s(S_FO)} offen sc1"))
        if real and mlp2 and i & 7 == 7:
            ex.append((28, [f"s_cmp_ge_u32 {s(S_CNT)}, {trips - 2}", "s_cbranch_scc1 L_hook_mlp2", "L_hook_mlp2_ret:"]))
        if real and i & 7 == 3:
            ex += [(28, f"s_sub_u32 {s(S_CNT)}, {s(S_CNT)}, 1"), (29, f"s_cmp_lg_u32 {s(S_CNT)}, 0"),
                   (31, f"s_cbranch_scc1 L_{name}_loop")]
        f_step(X, i, nq, mlp2, [x[0], w[0], x[1], x[2], w[1], x[3]], ex, loop=True)
    sim = C.clone_dry()
    sim.record = {}
    for i in range(4, 4 + 8 * trips):
        one(sim, i, False)
    D.stamp(2, 7)
    d = 0 if mlp2 else OPT["osplit"] // 8
    assert trips - d >= 2 + mlp2
    C(f"s_cmp_eq_u32 {s(S_KH)}, 0", f"s_cselect_b32 {s(S_CNT)}, {trips + d}, {trips - d}")
    C.label(f"L_{name}_loop")
    C.fixed = sim.record
    for i in range(4, 12):
        one(C, i, True)
    C.fixed = None
    C.vm, C.lg = sim.vm, sim.lg
    D.stamp(3, 7)
    i0, n = nq - TAIL, nq // 2
    e0 = i0 // 2
    C(f"s_mov_b32 {s(S_AB)}, {s(S_SA)}", f"s_mov_b32 {s(S_WSTEP)}, {s(S_SW)}")
    A_, W_ = (lambda e, h: f_act(e, h, nq, stride, False, e0 - 1 + AL)), (lambda e: f_w(e, nq, False, e0 + 3))
    groups = [(i0, 0, W_(e0 + 3)[2:])]
    for e in range(e0 + AL, n):
        dl = min(2 * e - 1, nq - 2 * win_of(nq) - 1)
        groups += [(0 if e >= n - 2 else 2 * e - 6, dl, A_(e, h)) for h in range(2)]
    for e in range(e0 + 4, n):
        groups.append((0 if e >= n - 4 else 2 * e - 7, min(2 * e - 2, nq - 2 * win_of(nq) - 2) - 0.5, W_(e)))
    groups.sort(key=lambda x: x[1])
    fr = OPT["mrate"] if mlp2 else OPT["frate"]
    rate = lambda i: int(fr * (i - i0 + 1) + 1e-6) - int(fr * (i - i0) + 1e-6)
    plan, cur = {}, []
    for i in range(i0, nq):
        mine = []
        while len(mine) < rate(i):
            if not cur:
                ok = [x for x in groups if x[0] <= i]
                if not ok:
                    break
                groups.remove(ok[0])
                cur = list(ok[0][2])
            mine.append(cur.pop(0))
        plan[i] = mine
    print(name, "closing loads per step", [len(plan[i]) for i in range(i0, nq)], file=sys.stderr)
    return plan, trips


def poll(C, name, soff, sr=None, target=1):
    sr = SR_FLAG if sr is None else sr
    so = s(soff) if soff is not None else "0"
    C(f"s_mov_b32 {s(S_SPIN)}, {SPIN}")
    C.label(f"L_poll_{name}")
    C(f"buffer_load_dword {v(V_FLG)}, {v(V_FOFF)}, {s(sr, 4)}, {so} offen sc1")
    C(f"s_sub_u32 {s(S_SPIN)}, {s(S_SPIN)}, 1", f"s_cbranch_scc1 L_poll_{name}_out", "s_waitcnt vmcnt(0)")
    C(f"v_cmp_gt_u32 vcc, {target}, {v(V_FLG)}", "s_nop 1", "s_cmp_lg_u64 vcc, 0", f"s_cbranch_scc1 L_poll_{name}")
    C.label(f"L_poll_{name}_out")


def flag_store(soff):
    op = "buffer_atomic_or" if OPT["aflag"] else "buffer_store_dword"
    return f"{op} {v(V_ONEI)}, {v(V_L0)}, {s(SR_FLAG, 4)}, {s(soff)} offen sc1"


def pk(op, d, *src):
    return f"v_pk_{op}_f32 {v(d, 2)}, " + ", ".join(x if isinstance(x, str) else v(x, 2) for x in src)


def kh1(r):
    return f"s_and_b32 {r}, {s(S_RANK)}, 1" if OPT["xk"] else f"s_bfe_u32 {r}, s2, 0x10003"


def mlp1_ids():
    tail = ["s_lshl_b32 s49, s49, 2", f"s_lshr_b32 s48, {s(S_W)}, 12", "s_add_u32 s49, s49, s48"]
    gs = [int(c) for c in str(OPT["fg"])]
    assert sum(gs) == 28 and gs[0] >= 6
    sizes = sum(g << (8 * i) for i, g in enumerate(gs))
    starts = sum(sum(gs[:i]) << (8 * i) for i in range(4))
    return [f"s_lshr_b32 s50, {s(S_RANK)}, 1", "s_lshl_b32 s50, s50, 3", f"s_lshr_b32 s51, {sizes}, s50",
            "s_and_b32 s51, s51, 0xff", f"s_lshr_b32 s50, {starts}, s50", "s_and_b32 s50, s50, 0xff",
            "s_lshr_b32 s48, s2, 5", ["s_cmp_lt_u32 s48, s51", "s_cselect_b32 s51, -1, 0"],
            "s_add_u32 s50, s50, s48", "s_and_b32 s50, s50, s51",
            ] + (["s_bfe_u32 s49, s2, 0x20003"] if OPT["xk"] else [
            f"s_and_b32 s49, {s(S_RANK)}, 1", "s_lshl_b32 s49, s49, 1", "s_bfe_u32 s48, s2, 0x10004",
            "s_add_u32 s49, s49, s48"]) + tail


SR_LX, SR_LO, SR_DBG = 12, 68, 72
P_DBG = 50
LN_ST = VBASE + 3 * 16384
FAR = 0x40000000


def split_bf16(w0, w1, x, t, dup):
    out = [f"v_cvt_pk_bf16_f32 {v(w0)}, {v(x)}, {v(x)}", f"v_and_b32 {v(t)}, 0xffff0000, {v(w0)}",
           f"v_sub_f32 {v(t)}, {v(x)}, {v(t)}"]
    if dup:
        return out + [f"v_cvt_pk_bf16_f32 {v(w1)}, {v(t)}, 0"]
    return out + [f"v_and_b32 {v(w1)}, 0xffff, {v(w0)}", f"v_cvt_pk_bf16_f32 {v(w0)}, {v(x)}, {v(t)}"]


def ln_compute(C, D, fill):
    X, RAW = 160, 144
    half = ("v_permlane16_swap_b32",)

    def more():
        if fill:
            C(fill.pop(0))
    C(f"s_mov_b32 s48, {f32(-1.0 / 1024)}", f"s_mov_b32 s49, {f32(1e-5)}", f"s_mov_b32 s50, {f32(QSCALE)}")
    D.stamp(1, 4)
    C(Wait(vm=["x"]))
    D.stamp(2, 4)
    D.stamp(7, 8)
    for i in range(16):
        C(f"v_lshlrev_b32 {v(X + 2 * i)}, 16, {v(RAW + i)}", f"v_and_b32 {v(X + 2 * i + 1)}, 0xffff0000, {v(RAW + i)}")
        if i % 8 == 7:
            more()
    C(pk("add", 192, X, X + 2), pk("add", 194, X + 4, X + 6))
    for i in range(4, 16, 2):
        C(pk("add", 192, 192, X + 2 * i), pk("add", 194, 194, X + 2 * i + 2))
    more()
    C(pk("add", 192, 192, 194), "v_add_f32 v192, v192, v193")
    C(wave_red([192], [194], swaps=half))
    more()
    C("v_mul_f32 v192, s48, v192", "v_mov_b32 v193, v192")
    C([pk("add", X + 2 * i, X + 2 * i, 192) for i in range(16)])
    C(split_bf16(80, 81, 192, 194, True), "v_mov_b64 v[82:83], v[80:81]")
    more()
    C(pk("mul", 192, X, X), pk("mul", 194, X + 2, X + 2))
    for i in range(2, 16, 2):
        C(pk("fma", 192, X + 2 * i, X + 2 * i, 192), pk("fma", 194, X + 2 * i + 2, X + 2 * i + 2, 194))
    more()
    C(pk("add", 192, 192, 194), "v_add_f32 v192, v192, v193")
    C(wave_red([192], [194], swaps=half))
    more()
    C("v_mov_b32 v196, s49", "v_fma_f32 v196, -v192, s48, v196", "v_rsq_f32 v196, v196", "s_nop 0",
      "v_mul_f32 v84, s50, v196", "v_mov_b32 v197, v196")
    C([pk("mul", X + 2 * i, X + 2 * i, 196) for i in range(16)])
    more()
    C(pk("add", 192, X, X + 2), pk("mul", 194, X, X), pk("fma", 194, X + 2, X + 2, 194))
    for i in range(2, 16):
        C(pk("add", 192, 192, X + 2 * i), pk("fma", 194, X + 2 * i, X + 2 * i, 194))
        if i % 8 == 7:
            more()
    C("v_add_f32 v192, v192, v193", "v_add_f32 v193, v194, v195")
    C(wave_red([192, 193], [194, 195], swaps=half))
    more()
    C("v_mul_f32 v192, s48, v192", "v_mul_f32 v193, s48, v193", "v_fma_f32 v193, -v192, v192, -v193",
      "v_max_f32 v193, 0, v193", "v_add_f32 v193, s49, v193", "v_rsq_f32 v196, v193", "s_nop 0",
      f"v_mul_f32 v196, {f32(HS)}, v196", "v_mul_f32 v198, v192, v196", "v_mov_b32 v197, v196", "v_mov_b32 v199, v198")
    for t in range(4):
        C([pk("fma", 200 + 2 * i, X + 8 * t + 2 * i, 196, 198) for i in range(4)])
        C([f"v_cvt_pk_bf16_f32 {v(RAW + 4 * t + i)}, {v(200 + 2 * i)}, {v(201 + 2 * i)}" for i in range(4)])
        C(Op(f"ds_write_b128 v135, {v(RAW + 4 * t, 4)} offset:{512 * t}", "hw"))
        if t & 1:
            more()
    C(fill)
    D.stamp(3, 4)
    D.stamp(8, 8)


def gen_main(C):
    D = Diag(C, 0)
    C.label(NAME + "_kernel")
    C("s_cmp_ge_u32 s2, 256", "s_cbranch_scc1 L_end")
    for m in (1, 4, 5, 8):
        D.stamp(0, m)
    C(f"s_mov_b32 {s(S_FB)}, 0")
    C.label("L_restart")
    C(f"s_load_dwordx2 {s(P_X, 2)}, s[0:1], {KA_X}",
      f"s_load_dwordx2 {s(P_WQ, 2)}, s[0:1], {KA_WQ}", f"s_load_dwordx2 {s(P_WS, 2)}, s[0:1], {KA_WS}",
      f"s_load_dwordx4 {s(P_K, 4)}, s[0:1], {KA_K}", f"s_load_dwordx4 {s(P_W1, 4)}, s[0:1], {KA_W1}",
      f"s_load_dwordx2 {s(P_WO, 2)}, s[0:1], {KA_WO}", f"s_load_dwordx2 {s(P_W2, 2)}, s[0:1], {KA_W2}",
      f"s_load_dwordx2 {s(P_B2, 2)}, s[0:1], {KA_B2}",
      f"s_load_dwordx2 {s(P_OUT, 2)}, s[0:1], {KA_OUT}", f"s_load_dwordx2 {s(P_DBG, 2)}, s[0:1], {KA_DBG}")
    if OPT["pfm"] == 0:
        C(f"v_lshlrev_b32 {v(V_PF)}, 5, v0")
    else:
        nb = 5 - OPT["pfm"] % 2 if OPT["pfm"] < 3 else 4
        C(f"v_bfe_u32 v1, v0, {nb}, {6 - nb}", "v_lshlrev_b32 v1, 28, v1", "v_lshrrev_b32 v2, 6, v0",
          "v_lshl_add_u32 v1, v2, 11, v1", f"v_and_b32 v2, {(1 << nb) - 1}, v0",
          f"v_lshl_add_u32 {v(V_PF)}, v2, {11 - nb}, v1")
    C(code_srd(SR_PF, "L_early_code", "L_attn_last", "a"))
    C(f"s_bfe_u32 {s(S_PFC)}, s2, 0x20003", f"s_add_u32 {s(S_PFC)}, {s(S_PFC)}, 1",
      f"s_lshl_b32 {s(S_PFC)}, {s(S_PFC)}, 13")
    if OPT["pf"]:
        C(f"buffer_load_dword v59, {v(V_PF)}, {s(SR_PF, 4)}, 0 offen")
        if OPT["cpos"] < 0:
            C(f"buffer_load_dword v59, {v(V_PF)}, {s(SR_PF, 4)}, {s(S_PFC)} offen")
    C("v_and_b32 v1, 63, v0", "v_lshrrev_b32 v2, 6, v0", "v_lshrrev_b32 v3, 4, v1",
      f"v_readfirstlane_b32 {s(S_W)}, v2", "v_and_b32 v2, 15, v1", "v_lshlrev_b32 v1, 4, v1",
      f"s_lshl_b32 {s(S_W)}, {s(S_W)}, 12", f"s_lshl_b32 {s(S_W2)}, {s(S_W)}, 1")
    C("v_lshrrev_b32 v132, 5, v0", "v_lshrrev_b32 v136, 2, v132", "v_lshlrev_b32 v136, 4, v136",
      "v_and_b32 v134, 3, v132", "v_add_u32 v136, v136, v134", "v_and_b32 v134, 31, v0",
      "v_lshlrev_b32 v134, 4, v134", "v_lshl_add_u32 v133, v136, 11, v134")
    C("s_lshr_b32 s42, s2, 2", "s_and_b32 s43, s2, 3", "s_lshl_b32 s42, s42, 3", "s_add_u32 s42, s42, s43",
      "s_lshl_b32 s49, s42, 13")
    C("s_and_b32 s46, s2, 31", "s_lshr_b32 s47, s2, 5", f"s_lshl_b32 {s(S_SW)}, s47, 20",
      f"s_sub_u32 {s(S_SW)}, {s(S_SW)}, {WQSTEP}", f"s_lshl_b32 {s(S_XB)}, s47, 8", f"s_sub_u32 {s(S_XB)}, {s(S_XB)}, 128",
      "s_lshl_b32 s47, s47, 2", f"s_lshr_b32 s48, {s(S_W)}, 12", "s_add_u32 s47, s47, s48")
    C(wq_dma_offsets(62), x_dma_offsets(62))
    C("s_waitcnt lgkmcnt(0)")
    D.stamp(1, 8)
    C(srd(SR_LX, P_X, "s49", 40960))
    lnx = [Op(f"buffer_load_dwordx4 {v((100 if OPT['noln'] else 144 + 4 * t), 4)}, v133, {s(SR_LX, 4)}, 0 offen offset:{512 * t}", "x")
           for t in range(4)]
    if not OPT["noln"]:
        C(lnx)
    D.stamp(2, 8)
    C("s_lshl_b32 s48, s46, 8", f"s_sub_u32 s49, {8 * MB}, s48", srd(SR_W, P_WQ, "s48", "s49"))
    C("s_lshl_b32 s48, s47, 17", srd(SR_ACT, P_X, "s48", 131072))

    st = []

    def grp(setup, ops, earliest, post=None):
        for i, o in enumerate(ops):
            st.append((setup if i == 0 else [], o, earliest, post if i == len(ops) - 1 else None))

    def gW(e):
        grp([set_m0(VBASE + (e & 3) * 16384),
             [f"s_add_u32 {s(S_SW)}, {s(S_SW)}, {WQSTEP}", f"s_and_b32 {s(S_SW)}, {s(S_SW)}, {8 * MB - 1}"]],
            [dma(V_OW + i, SR_W, S_SW, i, ("QW", e)) for i in range(4)], 1 if e == 3 else 2 * e - 7)

    def gX(e, h):
        prev = 13 if e == 15 else e - 3
        so = [f"s_add_u32 {s(S_SA)}, {s(S_XB)}, 65536"] if h else [
            f"s_add_u32 {s(S_XB)}, {s(S_XB)}, 128", f"s_and_b32 {s(S_XB)}, {s(S_XB)}, 2047"]
        grp([f"s_add_u32 m0, {s(S_W2)}, {x_slot(e) + 4096 * h}", so],
            [dma(V_XO4 + i, SR_ACT, S_SA if h else S_XB, i, ("QX", e, h)) for i in range(4)],
            max(2 * prev - 1 + h, 0) if prev >= 0 else -9)

    def gT(ops, earliest):
        grp([ops[0]], ops[1:5], earliest, ops[5])
    gW(0); gX(0, 0); gX(0, 1)
    for e in range(1, 15):
        gX(e, 0); gW(e); gX(e, 1)
    gW(15); gX(15, 0); gX(15, 1)
    for ops, t in ((k_dma(0), 25), (k_dma(1), 26), (v_dma(0), 27), (k_dma(2), 29), (v_dma(1), 29), (k_dma(3), 30),
                   (v_dma(2), 31)):
        gT(ops, t)
    for n in range(OPT["qpre"]):
        setup, o, _, _ = st.pop(0)
        C(setup, o)
    fill = [[x[0], x[1]] for x in st[:OPT["qpro"]]]
    assert all(x[2] < 0 for x in st[:OPT["qpro"]])
    del st[:OPT["qpro"]]
    t0 = V_NEGM
    D.stamp(3, 8)
    C("s_branch L_early_code", ".p2align 12", "L_early_code:", "; region a")
    D.stamp(4, 8)
    C(q_read_addrs(V_QA, t0), x_read_addrs(t0))
    C(f"v_lshrrev_b32 {v(t0)}, 1, v2", f"v_lshrrev_b32 {v(t0 + 1)}, 1, v3",
      f"v_cmp_eq_u32 vcc, {v(t0)}, {v(t0 + 1)}", f"v_mov_b32 {v(t0)}, 0x3f803f80", f"v_and_b32 {v(t0 + 1)}, 1, v2")
    C([f"v_cndmask_b32 {v(V_ONE + i)}, 0, {v(t0)}, vcc" for i in range(4)])
    C(f"v_mul_u32_u24 {v(t0 + 1)}, 0xaaaa, {v(t0 + 1)}", f"v_add_u32 {v(V_IDX)}, 0x4444, {v(t0 + 1)}")
    C([f"v_mov_b64 {v(V_CS + 2 * i, 2)}, 0" for i in range(4)])
    C(srd(SR_LO, P_WS, 0, 48 * MB), srd(SR_DBG, P_DBG, 0, 256))
    first_wave = [f"s_or_b32 s48, s2, {s(S_W)}", f"s_or_b32 s48, s48, {s(S_FB)}"]
    if OPT["go"]:
        C(first_wave, "s_cbranch_scc0 L_clear", "L_clear_ret:")
    C("v_lshl_add_u32 v135, v132, 11, v134", f"v_add_u32 v135, {LN_ST}, v135")
    C("v_bfe_u32 v96, v0, 2, 2", "v_lshlrev_b32 v96, 11, v96", "v_lshl_add_u32 v96, v132, 6, v96",
      "v_bfe_u32 v141, v0, 4, 1", "v_lshl_add_u32 v96, v141, 3, v96", "v_and_b32 v140, 3, v0",
      "v_lshl_add_u32 v96, v140, 4, v96", f"v_add_u32 v96, {LN_ST}, v96")
    C("v_lshlrev_b32 v85, 17, v132", "v_lshl_add_u32 v85, v141, 10, v85", "v_lshl_add_u32 v85, v2, 4, v85")
    C("s_lshl_b32 s48, s42, 2", "v_add_u32 v136, s48, v136", "v_min_u32 v134, 1, v134", "v_lshlrev_b32 v134, 30, v134",
      "v_lshl_add_u32 v86, v136, 4, v134", "v_lshl_add_u32 v87, v136, 2, v134")
    C("s_lshr_b32 s42, s2, 2", "s_lshl_b32 s42, s42, 11", "s_lshl_b32 s43, s43, 8", "s_add_u32 s43, s43, s42",
      f"s_add_u32 s43, s43, {WS_HF}", "v_add_u32 v85, s43, v85")
    C(fill[:OPT["qmid"]])
    del fill[:OPT["qmid"]]
    D.stamp(5, 8)
    if OPT["warm"] & 1:
        C(warm_call("a", s(S_W)))
    C(fill[:OPT["qmid2"]])
    del fill[:OPT["qmid2"]]
    D.stamp(6, 8)
    if OPT["pf"] and OPT["cpos"] >= 0:
        fill.insert(OPT["cpos"], [f"buffer_load_dword v59, {v(V_PF)}, {s(SR_PF, 4)}, {s(S_PFC)} offen"])
    if OPT["noln"]:
        C(fill, lnx, Op("ds_write_b128 v135, v[144:147]", "hw"), "v_mov_b64 v[80:81], 0", "v_mov_b64 v[82:83], 0",
          f"v_mov_b32 v84, {f32(20 * QSCALE)}")
    else:
        ln_compute(C, D, fill)
    if OPT["go"]:
        assert OPT["cpos"] < 0
        C(first_wave, "s_cbranch_scc0 L_open", "L_open_ret:")
    C(Wait(vm=[("QW", 0), ("QX", 0, 1)]), x_reads(0, 0), x_reads(0, 1), Wait(lg=["hw"]), "s_barrier")
    D.stamp(4, 4)
    first = [Op(x.text, ("Q0", m >> 2)) for m, x in enumerate(q_reads(0))]
    C(first)
    hrd = [f"ds_read_b64_tr_b16 {v(64 + 2 * t, 2)}, v96 offset:{8192 * (t & 1) + 512 * (t >> 1)}" for t in range(8)]
    bg = ["v_lshrrev_b32 v88, 4, v0", f"v_or_b32 v88, {s(S_FB)}, v88", "v_min_u32 v88, 1, v88",
          "v_lshlrev_b32 v88, 30, v88", "v_lshl_add_u32 v88, v0, 2, v88", "v_mov_b32 v89, 0",
          f"v_or_b32 v95, {s(S_FB)}, v0", "v_lshlrev_b32 v95, 8, v95", "v_min_u32 v97, 1, v95", "v_lshlrev_b32 v97, 30, v97", f"v_mov_b32 {v(V_ONEI)}, 1",
          "v_min_u32 v94, 1, v3", "v_lshlrev_b32 v94, 30, v94", "v_lshl_add_u32 v94, v2, 4, v94"]
    bg += ["s_lshl_b32 s48, s46, 19"] + srd(SR_K, P_K, "s48", 524288) + srd(SR_V, P_V, "s48", 524288)
    bg += ["s_lshl_b32 s48, s47, 19", "s_lshl_b32 s49, s46, 13", "s_add_u32 s48, s48, s49",
           f"s_add_u32 s48, s48, {WS_OF}"] + srd(SR_ST, P_WS, "s48", 262144 + 8192)
    bg += ["s_mul_i32 s48, s2, 57344"] + srd(SR_PF + 4, P_W1, "s48", 57344)
    bg += [f"s_mov_b32 {s(S_PF)}, 0", f"s_mov_b32 {s(S_CNT)}, 7"]
    bg += v_read_addrs(V_VA, t0)
    bg += [f"v_xor_b32 {v(t0)}, v2, v3", f"v_lshlrev_b32 {v(t0)}, 4, {v(t0)}", f"v_lshl_add_u32 {v(t0)}, v2, 8, {v(t0)}",
           f"s_lshr_b32 s48, {s(S_W)}, 6", f"v_xor_b32 {v(t0)}, s48, {v(t0)}"]
    bg += [f"v_xor_b32 {v(V_KA + ks)}, {ks * 64}, {v(t0)}" for ks in range(4)]
    bgc = []
    for h in range(2):
        d = V_CS + 4 * h
        bgc += [f"v_add_f32 {v(d)}, {v(d)}, {v(d + 1)}", f"v_add_f32 {v(d + 2)}, {v(d + 2)}, {v(d + 3)}",
                f"v_add_f32 {v(d)}, {v(d)}, {v(d + 2)}"] + split_bf16(90 + 2 * h, 91 + 2 * h, d, d + 1, False)
    bgc += ["s_lshl_b32 s42, s46, 13", f"s_add_u32 s42, s42, {WS_CS}", f"s_lshr_b32 s48, {s(S_W)}, 1",
            "s_add_u32 s42, s42, s48", "s_lshr_b32 s48, s2, 6", "s_lshl_b32 s48, s48, 8", "s_bfe_u32 s49, s2, 0x10005",
            "s_lshl_b32 s49, s49, 3", "s_add_u32 s48, s48, s49", "s_add_u32 s51, s42, s48"]
    bgc += [Op(f"buffer_store_dwordx2 {v(90 + 2 * h, 2)}, v94, {s(SR_LO, 4)}, s51 offen offset:{1024 * h} sc1", "pub")
            for h in range(2)]
    bgc += [f"v_lshlrev_b32 {v(t0)}, 8, v3", f"v_add_u32 {v(t0)}, {s(S_W)}, {v(t0)}", f"v_xor_b32 {v(t0 + 1)}, v2, v3"]
    for i in range(4):
        bgc += [f"v_xor_b32 {v(t0 + 2)}, {4 * i}, {v(t0 + 1)}", f"v_lshl_add_u32 {v(V_OK + i)}, {v(t0 + 2)}, 4, {v(t0)}"]
    bgc += [f"v_lshlrev_b32 {v(t0 + 1)}, 1, v3", f"v_xor_b32 {v(t0 + 1)}, {v(t0 + 1)}, v2"]
    for i in range(2):
        bgc += [f"v_xor_b32 {v(t0 + 2)}, {8 * (i & 1)}, {v(t0 + 1)}",
                f"v_lshl_add_u32 {v(V_OV + i)}, {v(t0 + 2)}, 4, {v(t0)}"]
    bgc += [f"v_mov_b32 {v(V_L + i)}, 0" for i in range(8)]
    bgc += [f"v_accvgpr_write_b32 {a(A_O + i)}, 0" for i in range(48, 128)]
    bgc += [f"v_lshrrev_b32 {v(V_FOFF)}, 2, {v(V_LANE16)}"] * (1 - OPT["go"]) + ["v_lshlrev_b32 v62, 4, v2", "v_lshlrev_b32 v63, 2, v2"]
    hst = [[f"s_mov_b32 {s(S_SW)}, {t * MB}",
            Op(f"buffer_store_dwordx4 {v(64 + 4 * t, 4)}, v85, {s(SR_LO, 4)}, {s(S_SW)} offen sc1", ("hs",)), None]
           for t in range(4)]
    pub = [["s_nop 0", Op(f"buffer_store_dwordx4 v[80:83], v86, {s(SR_LO, 4)}, 0 offen sc1", "pub"), None],
            [f"s_mov_b32 s50, {WS_RS}", Op(f"buffer_store_dword v84, v87, {s(SR_LO, 4)}, s50 offen sc1", "pub"), None],
            [["s_lshl_b32 s50, s2, 6", f"s_add_u32 s50, s50, {WS_FLAG}"],
             Op(f"buffer_store_dword v89, v88, {s(SR_LO, 4)}, s50 offen sc1", "pub"), None]]
    corr = [[f"s_xor_b32 s50, s42, {(b >> 1) * 2048}",
             Op(f"buffer_load_dwordx4 {a(A_CA + 4 * b, 4)}, {v(V_LANE16)}, {s(SR_LO, 4)}, s50 offen "
                f"offset:{(b & 1) * 1024} sc1", "corr"), None] for b in range(8)]
    corr += [["s_lshl_b32 s50, s47, 10",
              Op(f"buffer_load_dwordx4 {a(A_CB + 4 * q, 4)}, v62, {s(SR_LO, 4)}, s50 offen offset:{256 * q} sc1", "corr"),
              None] for q in range(4)]
    corr += [[["s_lshl_b32 s50, s47, 8", f"s_add_u32 s50, s50, {WS_RS}"],
              Op(f"buffer_load_dword {v(V_NEGM + 4 * q + 2)}, v63, {s(SR_LO, 4)}, s50 offen offset:{64 * q} sc1", "corr"),
              None] for q in range(4)]
    bg1 = ["s_mul_i32 s48, s2, 57344"] + srd(SR_PF + 8, P_W2, "s48", 57344)
    bg1 += ["s_lshl_b32 s48, s2, 15"] + srd(SR_PF + 12, P_WO, "s48", 32768)
    bg2 = srd(SR_ACT, P_WS, WS_FLAG, FL_SIZE)
    bg2 += fill_srd() + ["s_lshl_b32 s48, s47, 5", "s_add_u32 s48, s48, s46", f"s_mul_i32 {s(S_SA)}, s48, 12288",
                         f"s_add_u32 {s(S_W2)}, {s(S_SA)}, 10240", f"s_lshl_b32 {s(S_XB)}, s48, 13",
                         f"s_add_u32 {s(S_XB)}, {s(S_XB)}, {12 * MB}"]
    bg2 += w_dma_offsets(V_OW, 7168, 62, 48) + code_srd(SR_PF, "L_attn_last", "L_code_end", "b")
    bg2 += [f"s_bfe_u32 {s(S_PFC)}, s2, 0x40003", f"s_lshl_b32 {s(S_PFC)}, {s(S_PFC)}, 13"]
    bg2 += ["s_lshr_b32 s48, s2, 3", f"s_or_b32 s48, s48, {s(S_W)}", f"s_or_b32 s48, s48, {s(S_FB)}",
            "s_min_u32 s48, s48, 1", "s_lshl_b32 s48, s48, 20", f"v_lshl_add_u32 v31, {v(V_LANE16)}, 16, s48",
            "v_mov_b32 v30, 1", "v_mov_b32 v62, 0", "v_lshlrev_b32 v63, 12, v95", f"s_movk_i32 s50, {FL_T}", "s_and_b32 s51, s2, 7",
            "s_lshl_b32 s51, s51, 7", f"s_add_u32 s51, s51, {FL_T + 128}"]
    C(Wait(lg=[("Q0", 0)]))
    D.stamp(1)
    D.stamp(5, 4)
    D.stamp(9, 8)
    C("; ---- Q projection (32 steps) followed by Q packing and the first two score units")
    C.label("L_q_code")
    tg = [g for g in range(24) if g % 3 != 2]
    P0, PB, CH = OPT["pub0"], OPT["pubb"], OPT["chk"]
    pre2 = {}
    for j in range(32):
        pre, valu, ng = {}, {}, 48 if j >= 30 else 32
        reads = q_reads(j + 1) if j < 31 else k_reads(0, A_KF)
        if j == 0:
            for g, x in zip([g for g in range(28) if g not in (14, 17, 20, 23)], hrd + reads):
                add(pre, g, x)
            for k in (1, 2, 3):
                add(pre, 8 * k - 2, Wait(lg=[("Q0", k)]))
        else:
            for g, x in zip(tg, reads):
                add(pre, g, x)
        if j < 30:
            add(pre, 13, Wait(vm=[("QX", j // 2 + 1, j & 1)]))
            for g, x in zip((14, 17, 20, 23), x_reads(j // 2 + 1, j & 1)):
                add(pre, g, x)
        if j in (0, 2):
            for h in range(2):
                valu[7 + 8 * h] = [f"v_smfmac_f32_16x16x64_bf16 {v(V_CS + 4 * h, 4)}, {v(V_ONE, 4)}, "
                                   f"{a(A_WF[0] + 8 * h, 8)}, {v(V_IDX)}"]
        mine = []
        if j >= P0 and pub:
            mine += [([x[0]], x[1], 0, x[2]) for x in pub[:1]]
            del pub[:1]
        if j >= 25 and hst:
            assert not any(x[1].tag[0] == "QW" for x in st)
            mine += [([x[0]], x[1], 0, x[2]) for x in hst[:1]]
            del hst[:1]
        if j > CH and corr:
            mine += [([x[0]], x[1], 0, x[2]) for x in corr[:4]]
            del corr[:4]
        lim = min(10, OPT["qrate"] + (len(mine) if j > CH else 0))
        while st and st[0][2] <= j and len(mine) < lim:
            mine.append(st.pop(0))
        for n, (setup, o, _, post) in enumerate(mine):
            g = 2 + (n * (ng - 2)) // max(len(mine), 1)
            assert n == 0 or g - len(setup) > 2 + ((n - 1) * (ng - 2)) // len(mine)
            for k, x in enumerate(setup):
                if x != "s_nop 0":
                    pre.setdefault(g - len(setup) + k, []).insert(0, x)
            add(pre, g, o)
            if post:
                pre.setdefault(g + 1, []).insert(0, post)
        if j == 31:
            add(pre, ng - 1, Wait(lg=[("KR", 0)]))
        elif j & 1:
            add(pre, 31, Wait(vm=["corr"] if j == 29 else [], lg=["*"]))
        else:
            need = [("QW", j // 2 + 1)] if j < 30 else [("K", 0)]
            if j == PB:
                assert C.vm.count("pub") == 5
                need += ["pub"] + ["go"] * OPT["go"]
            add(pre, ng - 1, Wait(vm=need, lg=["*"]), "s_barrier")
        if j == PB + 1:
            if OPT["go"]:
                add(pre, 20, f"v_cmp_eq_u32 vcc, 0, {v(V_FLG)}")
                add(pre, 24, ["s_cmp_lg_u64 vcc, 0", "s_cbranch_scc1 L_spin_go", "L_spin_go_ret:"])
                add(pre, 26, f"v_lshlrev_b32 {v(V_FOFF)}, 7, v2")
                add(pre, 27, ["s_and_b32 s50, s2, 15", "s_lshl_b32 s50, s50, 7"])
                add(pre, 28, f"s_add_u32 s50, s50, {WS_FLAG + FL_A}")
                add(pre, 30, f"buffer_atomic_add {v(V_ONEI)}, v97, {s(SR_LO, 4)}, s50 offen sc1")
            else:
                add(pre, 28, ["s_and_b32 s50, s2, 63", "s_lshl_b32 s50, s50, 2"])
                add(pre, 30, f"buffer_atomic_add {v(V_ONEI)}, v95, {s(SR_DBG, 4)}, s50 offen sc1")
        if j == PB - 3 and OPT["go"]:
            add(pre, 30, Op(f"buffer_load_dword {v(V_FLG)}, v89, {s(SR_DBG, 4)}, 0 offen sc1", "go"))
        if j in (9, 19) and OPT["pf"]:
            add(pre, 0, f"buffer_load_dword v59, {v(V_PF)}, {s(SR_PF, 4)}, {s(S_PFC)} offen")
        if j == CH - 4:
            if OPT["go"]:
                add(pre, 29, f"s_mov_b32 s51, {WS_FLAG + FL_A}")
                add(pre, 30, Op(f"buffer_load_dword {v(V_FLG)}, {v(V_FOFF)}, {s(SR_LO, 4)}, s51 offen sc1", "fh"))
            else:
                add(pre, 30, Op(f"buffer_load_dword {v(V_FLG)}, {v(V_FOFF)}, {s(SR_DBG, 4)}, 0 offen sc1", "fh"))
        if j == 3:
            bg = bg + bgc
        if j == CH:
            assert not bg
            add(pre, 24, Wait(vm=["fh"]))
            add(pre, 25, f"v_cmp_gt_u32 vcc, {16 if OPT['go'] else 4}, {v(V_FLG)}")
            add(pre, 29, ["s_cmp_lg_u64 vcc, 0", "s_cbranch_scc1 L_spin_h", "L_spin_h_ret:"])
        if j == 24:
            add(pre, 30, [f"s_mov_b32 {s(S_SK)}, 0", f"s_mov_b32 {s(S_SV)}, 0"])
        if j == 29:
            assert not corr and not hst and not bg
            bg = bg1
        if j == 27:
            assert not bg and not any(x[1].tag[0] in ("QX", "QW") for x in st + mine)
            bg = bg2
        if j in (0, 2, 4, 6, 8, 12, 16, 20, 24, 28):
            D.stamp((0, 2, 4, 6, 8, 12, 16, 20, 24, 28).index(j), 6)
        if j in (4, 8, 16, 24):
            D.stamp(6 + (4, 8, 16, 24).index(j), 4)
        if j < 30:
            C.weave(q_mfmas(j), pre, valu, bg)
        else:
            pre2.update({g + 48 * (j - 30): x for g, x in pre.items()})
    assert not bg and not st
    D.stamp(2)
    pre = pre2
    for g, x in enumerate(k_reads(1, A_VF)):
        add(pre, 96 + g, x)
    add(pre, 112, Wait(vm=[("K", 1), ("V", 0), ("hs",)], lg=[("KR", 1)]), "s_barrier")
    add(pre, 114, ["s_and_b32 s48, s2, 63", "s_lshl_b32 s48, s48, 2", f"s_add_u32 s48, s48, {FL_H}"])
    add(pre, 116, f"buffer_atomic_add v30, v63, {s(SR_ACT, 4)}, s48 offen sc1")
    kd = k_dma(4)
    add(pre, 121, kd[0])
    add(pre, 122, kd[1])
    add(pre, 126, kd[2])
    for i in range(4):
        add(pre, 120 + i, f"v_mov_b32 {v(V_QA + i)}, -1")
    add(pre, 146, fill_store(SR_W, s(S_XB), 0))
    for g, x in enumerate(k_reads(2, A_KF)):
        add(pre, 129 + 2 * g, x)
    bg = []
    for j in (30, 31):
        for n, (bl, q) in enumerate(q_order(j)):
            b = 4 * (j & 1) + bl
            src, F = V_ACC + (b * 4 + q) * 4, V_Q + (q * 4 + (b >> 1)) * 4 + 2 * (b & 1)
            bg.append(("at", 48 * (j - 30) + 3 * n + 7))
            bg += [f"v_mul_f32 {v(src + i)}, {v(src + i)}, {v(V_NEGM + 4 * q + 2)}" for i in range(4)]
            bg += [f"v_cvt_pk_bf16_f32 {v(F + i)}, {v(src + 2 * i)}, {v(src + 2 * i + 1)}" for i in range(2)]
    zero = []
    valu = {100 + 8 * i + 3: [f"v_mfma_f32_32x32x16_bf16 {a(A_O + 16 * i, 16)}, {v(V_L, 4)}, {v(V_L, 4)}, 0"]
            for i in range(3)}
    for u in range(2):
        for q in range(4):
            bg += zero[:6]
            del zero[:6]
            bg.append(("at", 96 + 32 * u + 8 * q + 14))
            bg += max_ops(u, q, u == 0)
    n0 = len(C.A.lines)
    C.weave(q_mfmas(30) + q_mfmas(31) + qk_mfmas(0, A_KF, True, True) + qk_mfmas(1, A_VF, True, True), pre, valu, bg,
            cap=lambda g: 3 if OPT["qc0"] <= g < OPT["qc1"] else 2)
    check_order(C.A.lines[n0:])
    C(v_reads(0, A_VF)[:4])
    C(nops(4))
    C.drain(bg)
    C(wave_red([V_NEGM + 4 * q for q in range(4)], [V_NEGM + 4 * q + 1 for q in range(4)], "v_max_f32", False))
    C(f"s_mov_b32 s48, {f32(-OPT['bias'])}", f"s_cmp_lg_u32 {s(S_FB)}, 0", "s_cbranch_scc1 L_fb_hook")
    C.label("L_fb_ret")
    for q in range(4):
        C(f"v_sub_f32 {v(V_NEGM + 4 * q)}, s48, {v(V_NEGM + 4 * q)}")
    for q in range(4):
        C(f"v_mov_b32 {v(V_NEGM + 4 * q + 1)}, {v(V_NEGM + 4 * q)}")
    for q in range(4):
        C(f"v_mov_b64 {v(V_NEGM + 4 * q + 2, 2)}, {v(V_NEGM + 4 * q, 2)}")
    for u in range(2):
        for k in range(16):
            C(pk("add", V_S[u] + 2 * k, V_S[u] + 2 * k, V_NEGM + 4 * ((k >> 1) & 3)))
    C([x if x else "s_nop 0" for x in sm_seq(0, 0, 4) + sm_seq(1, 0, 2)])
    C(Wait(lg=[("KR", 2)]))
    D.stamp(3)
    D.stamp(8, 5)
    C("s_branch L_attn_entry")
    sim = C.clone_dry()
    sim.record = {}
    for n in range(28):
        epoch(sim, n, False, n == 0)
    C.label("L_hook")
    C(f"s_cmp_eq_u32 {s(S_CNT)}, 2", "s_cbranch_scc1 L_hook_b", f"s_cmp_eq_u32 {s(S_CNT)}, 1",
      "s_cbranch_scc1 L_hook_c")
    C.A(f"buffer_atomic_add v30, v31, {s(SR_ACT, 4)}, s50 offen sc0 sc1", "s_branch L_hook_ret")
    C.label("L_hook_b")
    C.A("v_add_u32 v30, 1, v30", f"buffer_store_dword v30, v31, {s(SR_ACT, 4)}, s51 offen sc1", "s_branch L_hook_ret")
    C.label("L_hook_c")
    if OPT["warm"] & 2:
        C(warm_call("b", s(S_W)))
    C.A(f"v_lshrrev_b32 v31, 2, {v(V_LANE16)}", f"s_movk_i32 s50, {FL_H}",
        f"buffer_load_dword v63, v62, {s(SR_ACT, 4)}, s51 offen sc1",
        f"buffer_load_dword v30, v31, {s(SR_ACT, 4)}, s50 offen sc1", "s_branch L_hook_ret")
    C(".p2align 6")
    C.label("L_attn_loop")
    C.fixed = sim.record
    for n in range(4, 8):
        epoch(C, n, True)
    C.fixed = None
    C.vm, C.lg = sim.vm, sim.lg
    C.label("L_attn_last")
    C("; region b")
    C(nops(1) * OPT["pad1"])
    bg = [f"v_readfirstlane_b32 {s(S_RANK)}, v63", "v_cmp_gt_u32 vcc, 4, v30", None,
          ["s_cmp_lg_u64 vcc, 0", f"s_cselect_b32 {s(S_RANK)}, 0, {s(S_RANK)}"],
          [f"s_cmp_eq_u32 {s(S_RANK)}, 0", "s_cbranch_scc1 L_spin_r", "L_spin_r_ret:"],
          f"s_sub_u32 {s(S_RANK)}, {s(S_RANK)}, 1" if OPT["rank"] else f"s_mov_b32 {s(S_RANK)}, s2",
          f"s_and_b32 {s(S_RANK)}, {s(S_RANK)}, 7"]
    bg += mlp1_ids() + [kh1("s44"), "s_lshl_b32 s48, s49, 18", "s_lshl_b32 s49, s44, 12",
                        "s_add_u32 s48, s48, s49", f"s_add_u32 s48, s48, {WS_HF}", f"s_and_b32 s49, s51, {262144 - 4096}"]
    bg += srd(SR_ACT, P_WS, "s48", "s49")
    bg += ["s_lshl_b32 s50, s50, 8", f"s_mul_i32 s48, s44, {W1STEP}", "s_add_u32 s48, s48, s50",
           f"s_sub_u32 s49, {2048 * 7168}, s48", "s_and_b32 s49, s49, s51"]
    bg += srd(SR_K, P_W1, "s48", "s49")
    bg += ["s_lshl_b32 s44, s44, 7", "s_add_u32 s48, s50, s44", "s_and_b32 s49, s51, 128"] + srd(SR_W, P_B1, "s48", "s49")
    bg += [f"v_mov_b32 {v(V_OK + i)}, {v(V_OW + i)}" for i in range(4)]
    bg += [f"s_mov_b32 {s(S_SW)}, 0", "v_lshlrev_b32 v62, 3, v3", "s_xor_b32 s44, s44, 128"]
    for n in range(28, 31):
        epoch(C, n, False, False, bg)
    D.stamp(4)
    D.stamp(9, 5)
    mf = pv_mfmas(61, A_VF)
    mf = mf[:8] + [l_mfma(61, 0)] + mf[8:24] + [l_mfma(61, 1)] + mf[24:]
    m2 = pv_mfmas(62, A_KF, True)
    mf += m2[:8] + [l_mfma(62, 0)] + m2[8:16] + [l_mfma(62, 1)] + m2[16:]
    m3 = pv_mfmas(63, A_VF)
    mf += m3[:2] + [l_mfma(63, 0)] + m3[2:4] + [l_mfma(63, 1)] + m3[4:]
    pre = {}
    for g, x in enumerate(v_reads(62, A_KF)):
        add(pre, 2 * g + 1 if g < 12 else 12 + g, x)
    add(pre, 33, Wait(lg=[("VR", 62)]))
    for g, x in enumerate(v_reads(63, A_VF)):
        add(pre, 35 + 2 * g if g < 10 else 45 + g, x)
    add(pre, 67, Wait(vm=[("W", 0), ("GX", 0), "b1"], lg=[("VR", 63)]), "s_barrier")
    for b in range(4):
        add(pre, 1 + 2 * b, Op(f"buffer_load_dwordx2 {v(V_B1 + 2 * b, 2)}, v62, {s(SR_W, 4)}, 0 offen offset:{32 * b}", "b1"))
    for g, (setup, o) in zip(range(11, 100, 6), g_act(2, 0) + g_act(2, 1) + g_w(5)):
        for k, x in enumerate(setup):
            pre.setdefault(g - len(setup) + k, []).insert(0, x)
        add(pre, g, o)
    for g, x in enumerate(g_reads(0)):
        add(pre, 80 + g, x)
    add(pre, 101, Wait(lg=[("GT", 0)]))
    bg = sm_seq(63, 0, 4) + [("at", 61)]
    for b in range(8):
        bg += [f"v_xor_b32 {v(V_VA + b)}, s44, {v(V_VA + b)}", f"v_subrev_u32 {v(V_WA0 + b)}, {VBASE}, {v(V_VA + b)}"]
    bg.append(("at", 68))
    for b in range(4):
        d = g_acc(4 + b, 3)
        for i in range(2):
            bg += [f"v_lshlrev_b32 {v(d + 2 * i)}, 16, {v(V_B1 + 2 * b + i)}",
                   f"v_and_b32 {v(d + 2 * i + 1)}, 0xffff0000, {v(V_B1 + 2 * b + i)}"]
        bg += [f"v_mul_f32 {v(d + i)}, {f32(HS)}, {v(d + i)}" for i in range(4)]
    n0 = len(C.A.lines)
    C.weave(mf, pre, {}, bg, cap=lambda g: 3 if g < OPT["tcap"] else 2)
    assert not bg, len(bg)
    check_order(C.A.lines[n0:])
    D.stamp(5)
    T = 16
    bg = [("at", 2)] + [f"v_add_f32 {v(V_L + 2 * q)}, {v(V_L + 2 * q)}, {v(V_L + 2 * q + 1)}" for q in range(4)]
    bg += wave_red([V_L + 2 * q for q in range(4)], [V_L + 2 * q + 1 for q in range(4)], dpp=False)
    n_vote = len(bg)
    bg += [f"v_accvgpr_read_b32 {v(T + i)}, {a(A_O + 4 * (i >> 1) + 17 * (i & 1))}" for i in range(8)]
    bg += [f"v_max_f32_e64 {v(T + 2 * q)}, abs({v(T + 2 * q)}), abs({v(T + 2 * q + 1)})" for q in range(4)]
    bg += [f"s_mov_b32 s48, {f32(OPT['thresh'])}", f"s_mov_b32 s49, {1 << 19}",
           f"v_min3_u32 {v(T)}, {v(T)}, {v(T + 2)}, {v(T + 4)}", f"v_min_u32 {v(T)}, {v(T)}, {v(T + 6)}",
           f"v_add_f32 v63, {v(V_L)}, {v(V_L + 2)}", f"v_add_f32 v62, {v(V_L + 4)}, {v(V_L + 6)}",
           f"v_cmp_gt_u32 s[50:51], s49, {v(T)}",
           "v_add_f32 v62, v62, v63", "v_cmp_nge_f32 vcc, s48, v62", f"v_mov_b32 v63, {s(S_W)}",
           "v_lshrrev_b32 v63, 10, v63", f"v_add_u32 v63, {VOTE}, v63",
           ["s_or_b64 vcc, vcc, s[50:51]", f"s_cselect_b32 s48, 1, {OPT['force_fb']}"], "v_mov_b32 v62, s48",
           Op("ds_write_b32 v63, v62", "vote")]
    bg += [f"v_mov_b32 v63, {VOTE}"]
    vote = []
    if OPT["vlate"]:
        vote, bg = bg[n_vote:], bg[:n_vote]
    bg += [f"v_rcp_f32 {v(V_L + 2 * q + 1)}, {v(V_L + 2 * q)}" for q in range(4)]
    n = 0
    for q in range(4):
        for p in range(4):
            t = (12, 20)[n & 1]
            if n == OPT["vlate"] and n:
                bg += vote
            bg.append(("step", n * OPT["opace"] // 10))
            for hb, z in ((0, 4), (1, 16)):
                bg += [f"v_accvgpr_read_b32 {v(z + i)}, {a(A_O + ((2 * p + hb) * 4 + q) * 4 + i)}" for i in range(4)]
                bg += [f"v_mul_f32 {v(z + i)}, {v(z + i)}, {v(V_L + 2 * q + 1)}" for i in range(4)]
                bg += [f"v_cvt_pk_bf16_f32 {v(t + 8 + 2 * hb + i)}, {v(z + 2 * i)}, {v(z + 2 * i + 1)}" for i in range(2)]
            bg += [f"s_mov_b32 s49, {(q >> 1) * 262144 + (p >> 1) * 4096}",
                   Op(f"buffer_store_dwordx4 {v(t + 8, 4)}, {v(V_LANE16)}, {s(SR_ST, 4)}, s49 offen "
                      f"offset:{(p & 1) * 2048 + (q & 1) * 1024}" + OSC[OPT["ost"]], "O")]
            n += 1
    bg += srd(SR_FLAG, P_WS, WS_FLAG, FL_SIZE)
    bg += [f"v_lshlrev_b32 {v(V_L0)}, 16, {v(V_LANE16)}", f"v_mov_b32 {v(V_ONEI)}, 1",
           f"s_lshl_b32 {s(S_FO)}, s47, 5", f"s_add_u32 {s(S_FO)}, {s(S_FO)}, s46", f"s_lshl_b32 {s(S_FO)}, {s(S_FO)}, 2",
           f"s_xor_b32 s16, {s(S_FO)}, 32", f"s_lshl_b32 s17, {s(S_FO)}, 11", f"s_add_u32 s17, s17, {12 * MB}",
           "s_xor_b32 s18, s17, 65536"]
    bg += [f"v_add_u32 {v(V_EA + b)}, {EBASE - VBASE}, {v(V_VA + b)}" for b in range(8)]
    isM = f"s_bitcmp1_b32 {s(S_PAIR)}, 2"
    fin = [f"s_lshl_b32 s48, {s(S_RANK)}, 2",
           f"s_lshr_b32 {s(S_PAIR)}, {OPT['tbl']}, s48",
           [isM, f"s_cselect_b32 {s(S_ROLE)}, -1, 0"]]
    fin += mlp1_ids() + [f"s_mul_i32 s48, s49, {2 * 229376}", "s_lshl_b32 s46, s50, 13", "s_add_u32 s48, s48, s46",
                         kh1("s47"), "s_lshl_b32 s46, s47, 12", "s_add_u32 s48, s48, s46",
                         f"s_add_u32 s48, s48, {WS_UF}", f"s_and_b32 s46, s51, {229376 + 4096}"]
    fin += srd(SR_UST, P_WS, "s48", "s46")
    fin += [f"s_lshl_b32 {s(S_FU)}, s49, 1", f"s_add_u32 {s(S_FU)}, {s(S_FU)}, s47", f"s_lshl_b32 {s(S_FU)}, {s(S_FU)}, 5",
            f"s_add_u32 {s(S_FU)}, {s(S_FU)}, s50", f"s_lshl_b32 {s(S_FU)}, {s(S_FU)}, 2",
            f"s_add_u32 {s(S_FU)}, {s(S_FU)}, {FL_U}", "s_andn2_b32 s48, 0x100000, s51",
            f"s_or_b32 {s(S_FU)}, {s(S_FU)}, s48", f"v_xor_b32 v58, s44, {v(V_WA0)}"]
    fin += [f"s_and_b32 {s(S_KH)}, {s(S_PAIR)}, 1", f"s_bfe_u32 s51, {s(S_PAIR)}, 0x10001",
            "s_lshl_b32 s48, s51, 3", "s_lshr_b32 s49, s2, 5", "s_add_u32 s48, s48, s49", "s_bfe_u32 s49, s2, 0x30003",
            [isM, "s_cselect_b32 s46, s48, s49"],
            "s_lshl_b32 s48, s51, 2", "s_lshr_b32 s49, s2, 6", "s_add_u32 s48, s48, s49", "s_bfe_u32 s49, s2, 0x20003",
            [isM, "s_cselect_b32 s47, s49, s48"], "s_lshl_b32 s47, s47, 2", f"s_lshr_b32 s48, {s(S_W)}, 12",
            "s_add_u32 s47, s47, s48"]
    if OPT["msame"]:
        fin += [f"s_and_b32 s48, {s(S_PAIR)}, 3", "s_lshl_b32 s48, s48, 2", "s_lshr_b32 s49, s2, 6",
                "s_add_u32 s48, s48, s49", [isM, "s_cselect_b32 s46, s48, s46"], "s_bfe_u32 s48, s2, 0x10005",
                [isM, f"s_cselect_b32 {s(S_KH)}, s48, {s(S_KH)}"]]
    fin += ["s_movk_i32 s50, 0x800", [isM, "s_cselect_b32 s50, 4096, s50"], f"s_mov_b32 {s(S_WSTEP)}, {64 * 2048}",
            [isM, f"s_cmov_b32 {s(S_WSTEP)}, {128 * 4096}"],
            [isM, f"s_cselect_b32 s44, 1, {32 + OPT['osplit'] // 2}"], f"s_mul_i32 s44, s44, {s(S_KH)}",
            [isM, f"s_cselect_b64 {s(SR_W, 2)}, {s(P_W2, 2)}, {s(P_WO, 2)}"],
            "s_mul_i32 s48, s50, s44", "s_lshl_b32 s48, s48, 6", "s_lshl_b32 s49, s46, 8",
            "s_add_u32 s48, s48, s49", f"s_mov_b32 s51, {8 * MB}", [isM, f"s_cselect_b32 s49, {3584 * 4096}, s51"],
            "s_sub_u32 s49, s49, s48"] + srd(SR_W, SR_W, "s48", "s49") + w_dma_offsets(V_OW, "s50", 62, 48)
    fin += ["s_lshl_b32 s50, s47, 19", f"s_add_u32 s50, s50, {WS_OF}", f"s_mul_i32 s48, s47, {2 * 229376}",
            f"s_add_u32 s48, s48, {WS_UF}", [isM, "s_cselect_b32 s48, s48, s50"], "s_lshl_b32 s49, s44, 12",
            "s_add_u32 s48, s48, s49", "s_sub_u32 s49, 524288, s49", f"s_andn2_b32 s49, s49, {s(S_ROLE)}"]
    fin += srd(SR_ACT2, P_WS, "s48", "s49")
    fin += ["s_lshl_b32 s51, s46, 1", f"s_add_u32 s51, s51, {s(S_KH)}",
            "s_lshr_b32 s48, s47, 1", [isM, "s_cselect_b32 s48, s46, s48"], f"s_lshl_b32 {s(S_FO)}, s48, 8",
            f"v_lshrrev_b32 {v(V_FOFF)}, 2, {v(V_LANE16)}"] + srd(SR_ST, P_WS, WS_S, 20 * MB)
    fin += [f"v_lshlrev_b32 {v(V_XO)}, 11, v2", f"v_lshl_add_u32 {v(V_XO)}, v3, 4, {v(V_XO)}"]
    fin += ["v_lshrrev_b32 v57, 2, v2", "v_and_b32 v62, 1, v3", "v_lshl_add_u32 v62, v62, 2, v57",
            "v_lshl_add_u32 v57, v3, 2, v57", "v_lshlrev_b32 v57, 8, v57", "v_lshlrev_b32 v62, 1, v62",
            "v_and_b32 v63, 3, v2", "v_xor_b32 v62, v62, v63", "v_lshl_add_u32 v57, v62, 4, v57",
            f"v_bfi_b32 v57, {s(S_ROLE)}, v58, v57", f"s_xor_b32 s48, {s(S_KH)}, {s(S_ROLE)}",
            "s_and_b32 s48, s48, 1", "s_lshl_b32 s48, s48, 7", "v_xor_b32 v57, s48, v57", "v_lshlrev_b32 v62, 1, v2"]
    late = ["s_lshl_b32 s48, s51, 7", f"s_and_b32 s48, s48, {s(S_ROLE)}", f"s_and_b32 s49, 128, {s(S_ROLE)}"]
    late += srd(SR_ACT, P_B2, "s48", "s49")
    late += [Op(f"buffer_load_ushort {v(58 + b)}, v62, {s(SR_ACT, 4)}, 0 offen offset:{32 * b}", "b2") for b in range(4)]
    OPERM = (2, 1, 3, 0) if OPT["oord"] else (1, 3, 2, 0)
    mid = []
    for b in range(8):
        mid += [[f"s_movk_i32 s48, {OPERM[b >> 1] * 64 + (b & 1) * 8}", isM, f"s_cmovk_i32 s48, {b * 32}"],
                f"v_xor_b32 {v(V_FA + b)}, s48, v57", f"v_add_u32 {v(V_FA + 8 + b)}, {VBASE}, {v(V_FA + b)}"]
    AY, GI = 36, 64
    sel = ["v_and_b32 v4, 1, v2", "v_lshlrev_b32 v4, 4, v4", "v_mov_b32 v5, 0x3f80", "v_lshlrev_b32 v4, v4, v5",
           "v_bfe_u32 v5, v2, 1, 1", "v_lshrrev_b32 v6, 2, v2", "v_xor_b32 v6, v6, v3", "v_lshl_add_u32 v6, v6, 2, v5"]
    for r in range(2):
        sel += [f"v_cmp_eq_u32 vcc, {r}, v6", f"v_mov_b32 {v(AY + 2 + r)}, 0", f"v_mov_b32 {v(AY + 4 + r)}, 0",
                f"v_cndmask_b32 {v(AY + r)}, 0, v4, vcc", f"v_cndmask_b32 {v(AY + 6 + r)}, 0, v4, vcc"]
    last = [f"s_lshl_b32 {s(S_FO)}, s47, 1", f"s_add_u32 {s(S_FO)}, {s(S_FO)}, {s(S_KH)}",
            f"s_lshl_b32 {s(S_FO)}, {s(S_FO)}, 7", f"s_add_u32 {s(S_FO)}, {s(S_FO)}, {FL_U}",
            f"v_and_b32 {v(V_FOFF)}, 0x7c, {v(V_FOFF)}", f"v_min_u32 v63, {4 * OPT['nf'] - 4}, {v(V_FOFF)}",
            f"v_min_u32 {v(V_FOFF)}, 108, {v(V_FOFF)}", f"s_mov_b32 s48, {f32(-LOG2E)}", Wait(vm=["b2"])]
    for b in range(4):
        last += [f"v_lshlrev_b32 {v(58 + b)}, 16, {v(58 + b)}"]
        last += [f"v_mul_f32 {v(f_acc(4 + b, 3, True) + i)}, s48, {v(58 + b)}" for i in range(4)]

    def inbox(n):
        return ([f"s_add_u32 s19, s17, {(n >> 2) * 4096}"] if n & 3 == 0 else [],
                Op(f"buffer_load_dwordx4 {v(GI + 4 * n, 4)}, {v(V_LANE16)}, {s(SR_ST, 4)}, s19 offen "
                   f"offset:{(n & 3) * 1024} sc1", ("in", n >> 2)))

    def fw(e):
        x = f_w(e, 64)
        x[0] = ([x[0][0][0], f"s_add_u32 {s(S_SW)}, {s(S_SW)}, {s(S_WSTEP)}" if e else f"s_mov_b32 {s(S_SW)}, 0"], x[0][1])
        return x
    groups = [(14 if e >= 14 else max(2 * e - 6, 0), min(2 * e - 1, 23), g_act(e, h)) for e in range(3, 16) for h in range(2)]
    groups += [(t, min(2 * e - 2, 22) - 0.5, g_w(e))
               for e, t in ((6, 0), (7, 5 + 2 * bool(OPT['vlate'])), (10, 5), (11, 7), (12, 9), (13, 11), (14, 13), (15, 15))]
    rates = str(OPT["grate"])
    plan = greedy(groups, range(23), lambda i: int(rates[i]))
    print("MLP1 loads per step", [len(x) for x in plan.values()], file=sys.stderr)
    plan.update({23: fw(0), 24: fw(1), 25: fw(2) + fw(3), 30: [inbox(n) for n in range(4)],
                 31: [] if OPT["insplit"] else [inbox(n) for n in range(4, 8)]})
    plan.update({26 + k: f_act(k >> 1, k & 1, 64, 262144) for k in range(4)})
    fl_at = None
    for j in range(32):
        extra = []
        bg[:] = [(("at", 99) if x[1] > j else ("at", 0)) + (x[1],) if isinstance(x, tuple) and x[0] == "step"
                 else ("at", 99 if x[2] > j else 0, x[2]) if isinstance(x, tuple) and len(x) == 3 else x for x in bg]
        VS = 2 * bool(OPT["vlate"])
        if j == 3 + VS:
            assert "vote" in C.lg
            extra = [(2, Op("ds_read_b128 v[32:35], v63", "voter"))]
        if j == 4 + VS:
            extra = [(3, "v_or3_b32 v32, v32, v33, v34"), (4, "v_or_b32 v32, v32, v35"),
                     (6, "v_readfirstlane_b32 s48, v32"),
                     (8, [f"s_andn2_b32 s48, s48, {s(S_FB)}", "s_cbranch_scc1 L_fallback"])]
        if j == 14:
            assert C.vm.count("O") == 16
        if j == 15:
            assert fl_at is not None or not bg
        if fl_at is None and not bg and "O" not in C.vm[-OPT["odelay"]:]:
            fl_at = j
            extra = [(0, Wait(vm=["O"])), (1, flag_store(S_FO))]
            bg = [("at", 2)] + fin
        if j == 17:
            extra = [(0, Op(f"buffer_load_dword {v(V_FLG)}, {v(V_L0)}, {s(SR_FLAG, 4)}, s16 offen sc1", "fp"))]
        if j == 19:
            assert fl_at < 17
            bg = bg + sel
        if j == 20:
            assert not any("s48" in str(x) for x in bg)
            extra = [(24, Wait(vm=["fp"])), (25, f"v_readfirstlane_b32 s48, {v(V_FLG)}"),
                     (28, ["s_cmp_eq_u32 s48, 0", "s_cbranch_scc1 L_spin_p", "L_spin_p_ret:"])]
        if j == 21:
            assert not bg
            extra = [(30, Op(f"buffer_load_dword {v(V_FLG)}, {v(V_FOFF)}, {s(SR_FLAG, 4)}, {s(S_FO)} offen sc1", "fo"))]
        if j == 22 and OPT["warm"] & 4:
            extra.append((26, warm_call2("o", "m", s(S_W), isM)))
        if j == 23:
            assert not bg
            bg = late + mid
        if j == 25:
            extra = [(24, Wait(vm=["fo"])), (25, f"v_cmp_eq_u32 vcc, 0, {v(V_FLG)}"),
                     (29, ["s_cmp_lg_u64 vcc, 0", "s_cbranch_scc1 L_spin_o", "L_spin_o_ret:"])]
        if 26 <= j < 30:
            assert not bg
            for k in range(2):
                n, t = 2 * (j - 26) + k, 96 + 4 * k
                bg += [("at", 16 * k)]
                bg += [f"v_cvt_pk_bf16_f32 {v(t + i)}, {v(192 + 8 * n + 2 * i)}, {v(193 + 8 * n + 2 * i)}" for i in range(4)]
                bg += [f"v_min_u32 {v(t + i)}, -2, {v(t + i)}" for i in range(4)]
                bg += [f"s_add_u32 s19, s18, {(n >> 2) * 4096}",
                       f"buffer_store_dwordx4 {v(t, 4)}, {v(V_LANE16)}, {s(SR_ST, 4)}, s19 offen offset:{(n & 3) * 1024} sc1"]
        if j == 30:
            assert not bg
            bg = last
        if j == 2 and not OPT["warm"] & 8:
            C("; region -")
        if j == 27:
            C("; region b")
        if j % 4 == 0:
            D.stamp(j // 4, 2)
        g_step(C, j, plan.get(j, []), extra, bg, 3 if j < OPT["ocap"] else 2)
    assert not bg
    print("O flag stored in step", fl_at, file=sys.stderr)
    D.stamp(6)
    D.stamp(8, 2)
    D.stamp(0, 7)
    C(f"s_mov_b32 s48, {f32(GC0 / HS)}", "s_mov_b32 s49, s48", f"s_mov_b32 s50, {f32(-HS / LOG2E)}",
      "s_mov_b32 s51, s50", "s_mov_b32 s44, 229376", f"s_mov_b32 {s(S_SPIN)}, {SPIN}")

    def take(nm, lo, hi):
        C(Wait(vm=[("in", (hi - 1) >> 2)]))
        C.label(f"L_in{nm}_check")
        C(f"v_max_u32 v6, {v(GI + 4 * lo)}, {v(GI + 4 * lo + 1)}",
          [f"v_max3_u32 v6, {v(GI + k)}, {v(GI + k + 1)}, v6" for k in range(4 * lo + 2, 4 * hi, 2)],
          "v_cmp_eq_u32 vcc, -1, v6", "s_nop 1", "s_cmp_lg_u64 vcc, 0", f"s_cbranch_scc1 L_in{nm}_late")
        C.label(f"L_in{nm}_ok")
        C([mfma(v(V_ACC + 8 * n + 4 * hb, 4), v(AY + 4 * hb, 4), v(GI + 4 * n, 4), v(V_ACC + 8 * n + 4 * hb, 4))
           for n in range(lo, hi) for hb in range(2)], "s_nop 1")
    halves = (("a", 0, 4), ("b", 4, 8)) if OPT["insplit"] else (("a", 0, 8),)
    if OPT["insplit"]:
        C([list(inbox(n)) for n in range(4, 8)])
    C(Op(f"buffer_load_dword {v(V_FLG)}, v63, {s(SR_FLAG, 4)}, {s(S_FO)} offen sc1", "fu"))
    take(*halves[0])

    def gelu(p, fill):
        for n in (2 * p, 2 * p + 1):
            t = 96 + (n & 1) * 12
            src = [V_ACC + 8 * n + 2 * i for i in range(4)]
            for k, grp in enumerate((
                    [pk("fma", t + 2 * i, src[i], src[i], "s[48:49]") for i in range(4)],
                    [pk("mul", t + 2 * i, t + 2 * i, src[i]) for i in range(4)],
                    [f"v_exp_f32 {v(t + i)}, {v(t + i)}" for i in range(8)],
                    [pk("fma", t + 2 * i, t + 2 * i, "s[50:51]", "s[50:51]") for i in range(4)],
                    [f"v_rcp_f32 {v(t + i)}, {v(t + i)}" for i in range(8)],
                    [pk("mul", t + 2 * i, t + 2 * i, src[i]) for i in range(4)],
                    [f"v_cvt_pk_bf16_f32 {v(t + 8 + i)}, {v(t + 2 * i)}, {v(t + 2 * i + 1)}" for i in range(4)])):
                C(grp)
                if fill and k in (0, 2, 3, 4):
                    C(fill.pop(0))
            C(Op(f"buffer_store_dwordx4 {v(t + 8, 4)}, {v(V_LANE16)}, {s(SR_UST, 4)}, {'s44' if n & 2 else '0'} offen "
                 f"offset:{(n >> 2) * 2048 + (n & 1) * 1024} sc1", "U"))
    gelu(0, None)
    gelu(1, None)
    if OPT["insplit"]:
        take(*halves[1])
    C(isM, "s_cbranch_scc1 L_mlp2")
    vm0, lg0 = list(C.vm), list(C.lg)
    C("; region o", "; ---- output projection role")
    gelu(2, None)
    gelu(3, None)
    D.stamp(7)
    C(Wait(vm=[("FX", 0)], lg=["*"]))
    AY, XP, GP, OWN, OTH, XW, TT, OUT = 36, 64, 80, 224, 128, 160, 192, 200
    S_U, S_G = 12, 15

    def setup(ops):
        out = []
        out += ops + [f"s_mul_i32 {s(S_G)}, s48, 393216", "s_lshl_b32 s50, s49, 10", f"s_add_u32 {s(S_G)}, {s(S_G)}, s50",
                      "s_lshl_b32 s48, s48, 17", "s_lshl_b32 s49, s49, 6", "s_add_u32 s48, s48, s49",
                      f"s_sub_u32 s49, {4 * MB}, s48"]
        return out + srd(SR_X, P_X, "s48", "s49") + srd(SR_V, P_OUT, "s48", "s49")

    def publish(n, src, u, row):
        t = (8, 12, 44, 48)[n & 3]
        return ([f"v_cvt_pk_bf16_f32 {v(t + i)}, {v(src + 2 * i)}, {v(src + 2 * i + 1)}" for i in range(4)]
                + [f"v_min_u32 {v(t + i)}, -2, {v(t + i)}" for i in range(4)]
                + [f"s_add_u32 s46, {s(S_U + u)}, {row * 32768}",
                   f"buffer_store_dwordx4 {v(t, 4)}, {v(V_LANE16)}, {s(SR_ST, 4)}, s46 offen sc1"])

    def get(buf, n):
        if buf == "x":
            return ([f"s_mov_b32 s47, {n * 32768}"],
                    f"buffer_load_dwordx4 {v(XP + 4 * n, 4)}, {v(V_XO)}, {s(SR_X, 4)}, s47 offen")
        return ([f"s_add_u32 s47, {s(S_G)}, {buf * 131072 + n * 32768}"],
                f"buffer_load_dwordx4 {v(GP + 16 * buf + 4 * n, 4)}, {v(V_LANE16)}, {s(SR_ST, 4)}, s47 offen sc1")

    def closing(nq, mlp2, plan, units, order, counts):
        bg, w0, nw = [], nq - 2 * win_of(nq), len(f_window(nq))
        seq = [(k, n) for k in order for n in range(4)]
        sched, cnt = {}, str(counts)[1:]
        for r, c_ in zip(range(nw - len(cnt), nw), cnt):
            sched[r], seq = seq[:int(c_)], seq[int(c_):]
        assert not seq
        np_ = 0
        for i in range(nq - TAIL, w0 + nw):
            r = i - w0
            for g, src, u, row in units(r):
                bg += [("at", g)] + publish(np_, src, u, row)
                np_ += 1
            if r in (-1, 1, nw - nw // 4):
                D.stamp(4 + (-1, 1, nw - nw // 4).index(r), 7)
            f_step(C, i, nq, mlp2, list(plan.get(i, [])) + [get(*x) for x in sched.get(r, [])], (), bg,
                   3 if mlp2 and r > 0 and (win_of(nq) < 4 or OPT['mord'] < 0 and r == 4) else 2)
            assert not bg, (r, len(bg))
        assert np_ == 12

    def finish(nm, mlp2):
        D.stamp(8)
        D.stamp(7, 7)
        C(f"s_mov_b32 s48, {f32(-LOG2E)}", f"s_mov_b32 {s(S_SPIN)}, {SPIN}")
        C.label(f"L_{nm}_check")
        C("s_waitcnt vmcnt(0)")
        for b in range(3):
            g = GP + 16 * b
            C(f"v_max_u32 {v(4 + b)}, {v(g)}, {v(g + 1)}",
              [f"v_max3_u32 {v(4 + b)}, {v(g + k)}, {v(g + k + 1)}, {v(4 + b)}" for k in range(2, 16, 2)])
        C("v_max3_u32 v7, v4, v5, v6", "v_cmp_eq_u32 vcc, -1, v7", "s_nop 1", "s_cmp_lg_u64 vcc, 0",
          f"s_cbranch_scc1 L_{nm}_late")
        C.label(f"L_{nm}_ok")
        D.stamp(8, 7)
        Y, S_ = (OWN, OTH) if mlp2 else (OTH, OWN)

        def sel(d, src, q, first):
            return mfma(v(d, 4), v(AY + 4 * q, 4), v(src, 4), "0" if first else v(d, 4))

        def own(n):
            return [sel(OWN + 8 * n + 4 * q, GP + 32 + 4 * n, q, False) for q in range(2)]

        def oth(n):
            return [sel(OTH + 8 * n + 4 * q, GP + 16 * k + 4 * n, q, k == 0) for q in range(2) for k in range(2)]
        fy, fs = (own, oth) if mlp2 else (oth, own)
        mf = fy(0) + fy(1)
        lead = len(mf)
        for n in range(4):
            mf += fs(n) + [sel(XW + 8 * n + 4 * q, XP + 4 * n, q, True) for q in range(2)] + (fy(n + 2) if n < 2 else [])
        bg = [("at", len(fy(0)) + 7)]
        for n in range(4):
            y = Y + 8 * n
            bg += [f"v_exp_f32 {v(TT + i)}, {v(y + i)}" for i in range(8)]
            bg += [f"v_fma_f32 {v(TT + i)}, {v(TT + i)}, s48, s48" for i in range(8)]
            bg += [f"v_rcp_f32 {v(TT + i)}, {v(TT + i)}" for i in range(8)]
            bg += [f"v_mul_f32 {v(y + i)}, {v(TT + i)}, {v(y + i)}" for i in range(8)]
            bg += [f"v_fma_f32 {v(y + i)}, {v(S_ + 8 * n + i)}, {v(y + i)}, {v(XW + 8 * n + i)}" for i in range(8)]
            bg += [f"v_cvt_pk_bf16_f32 {v(OUT + 4 * n + i)}, {v(y + 2 * i)}, {v(y + 2 * i + 1)}" for i in range(4)]
            bg += [f"s_mov_b32 s46, {n * 32768}",
                   f"buffer_store_dwordx4 {v(OUT + 4 * n, 4)}, {v(V_XO)}, {s(SR_V, 4)}, s46 offen" + OSC[OPT["osc"]]]
        n0 = len(C.A.lines)
        C.weave(mf, {}, {}, bg, OPT["fcap"])
        C.drain(bg)
        check_after(C.A.lines[n0:])

    def refetch(nm):
        C.label(f"L_{nm}_late")
        C(f"s_sub_u32 {s(S_SPIN)}, {s(S_SPIN)}, 1", f"s_cbranch_scc1 L_{nm}_ok")
        if OPT["probe"]:
            C(f"v_max3_u32 v7, {v(GP)}, {v(GP + 16)}, {v(GP + 32)}", "v_min_u32 v8, 2, v3", "v_cmp_eq_u32 vcc, -1, v7",
              "v_lshlrev_b32 v8, 17, v8", "s_nop 0", "s_cmp_lg_u64 vcc, 0", f"s_cbranch_scc0 L_{nm}_near")
            C.label(f"L_{nm}_probe")
            C(f"buffer_load_dword v7, v8, {s(SR_ST, 4)}, {s(S_G)} offen sc1",
              f"s_sub_u32 {s(S_SPIN)}, {s(S_SPIN)}, 1", f"s_cbranch_scc1 L_{nm}_ok", "s_waitcnt vmcnt(0)",
              "v_cmp_eq_u32 vcc, -1, v7", "s_nop 1", "s_cmp_lg_u64 vcc, 0", f"s_cbranch_scc1 L_{nm}_probe")
            C.label(f"L_{nm}_near")
        for b in range(3):
            C(f"v_cmp_eq_u32 vcc, -1, {v(4 + b)}", "s_nop 1", "s_cmp_lg_u64 vcc, 0", f"s_cbranch_scc0 L_{nm}_has{b}")
            C([list(get(b, n)) for n in range(4)])
            C.label(f"L_{nm}_has{b}")
        C(f"s_branch L_{nm}_check")
    ops = ["s_mul_i32 s48, s47, 393216", "s_lshl_b32 s49, s46, 12", "s_add_u32 s48, s48, s49",
           f"s_lshl_b32 s49, {s(S_KH)}, 11", f"s_lshl_b32 s50, {s(S_KH)}, 17"]
    for u in range(3):
        ops += [f"s_xor_b32 s51, s49, {OPERM[u] * 1024}", "s_add_u32 s51, s51, s48",
                f"s_add_u32 {s(S_U + u)}, s51, {'s50' if OPERM[u] & 1 else 262144}"]
    ops += ["s_mov_b32 s48, s47", "s_lshl_b32 s49, s46, 1", f"s_add_u32 s49, s49, {s(S_KH)}", "s_lshl_b32 s49, s49, 1"]
    plan, _ = f_body(C, "oproj", 64, False, setup(ops), D)
    closing(64, False, plan,
            lambda r: [(k * 4 * win_of(64), f_acc(r // 2 * 2 - 2, 2 * (r & 1) + k, False), r // 2 - 1, 2 * (r & 1) + k)
                       for k in range(2)] if r >= 2 else [],
            ("x", 2, 0, 1) if OPT["oord"] else ("x", 0, 1, 2), OPT["ogets"])
    finish("o", False)
    C("s_waitcnt vmcnt(0) lgkmcnt(0)", "s_branch L_done" if OPT["diag"] else "s_endpgm")
    refetch("o")
    C("; region m", ".p2align 12")
    C.label("L_hook_mlp2")
    C("s_waitcnt vmcnt(24)", f"v_cmp_eq_u32 vcc, 0, {v(V_FLG)}", f"s_cmp_eq_u32 {s(S_CNT)}, {(52 - TAIL) // 8}",
      "s_cselect_b32 s48, 0x7ff, -1", f"s_cmp_eq_u32 {s(S_CNT)}, {(52 - TAIL) // 8 - 1}",
      "s_cmov_b32 s48, 0x7fff", "s_or_b32 s49, vcc_lo, vcc_hi", "s_and_b32 s49, s48, s49",
      "s_cbranch_scc0 L_hook_mlp2_ret")
    C("s_branch L_poll_more")
    C.vm, C.lg = vm0, lg0
    C.label("L_mlp2")
    USZ = 2 * 229376 - 4096
    C(Wait(vm=["fu"]), f"v_cmp_eq_u32 vcc, 0, {v(V_FLG)}", "s_nop 1",
      "s_cmp_lg_u64 vcc, 0", f"s_cselect_b32 {s(SR_ACT2 + 2)}, 0, {USZ}")
    fu2 = Op(f"buffer_load_dword {v(V_FLG)}, v63, {s(SR_FLAG, 4)}, {s(S_FO)} offen sc1", "fu2")

    def u_loads():
        return [st_ + [o] for e in range(2) for h in range(2) for st_, o in f_act(e, h, 56, 229376)]
    fill = u_loads()
    if OPT["fu2"] == 1:
        C(fu2)
    gelu(2, fill)
    if OPT["fu2"] == 2:
        C(fu2)
    gelu(3, fill)
    assert not fill
    n_fu2 = len(C.vm) - 1 - C.vm.index("fu2") if OPT["fu2"] else 0
    C(f"s_cmp_eq_u32 {s(SR_ACT2 + 2)}, 0", "s_cbranch_scc1 L_u_late")
    C.label("L_u_late_ret")
    u_order = C.vm[-20 - (OPT['fu2'] == 2):]
    C(Wait(vm=[("FX", 0)], lg=["*"]))
    D.stamp(7)
    ops = ["s_lshl_b32 s48, s46, 1", f"s_add_u32 s48, s48, {s(S_KH)}", "s_lshl_b32 s49, s47, 11",
           f"s_lshl_b32 s50, {s(S_KH)}, 17", "s_xor_b32 s51, s48, 1", "s_mul_i32 s51, s51, 393216",
           "s_add_u32 s51, s51, s49", f"s_add_u32 {s(S_U)}, s51, s50", f"s_add_u32 {s(S_U + 2)}, s51, {262144 + 1024}",
           "s_mul_i32 s51, s48, 393216", "s_add_u32 s51, s51, s49", f"s_add_u32 {s(S_U + 1)}, s51, s50",
           "s_lshl_b32 s49, s47, 1", "s_add_u32 s49, s49, 1"]
    plan, _ = f_body(C, "mlp2", 56, True, setup(ops), D)

    def m_units(r):
        if not 1 <= r <= len(f_window(56)) - 4:
            return []
        b, qs = f_window(56)[r - 1]
        return [(2 + q, f_acc(b, q, True), 2 if q else b >> 2, b & 3) for q in qs[::2]]
    closing(56, True, plan, m_units, ("x", 0, 1, 2), OPT["mgets"])
    finish("m", True)
    C.label("L_done")
    C("s_waitcnt vmcnt(0) lgkmcnt(0)")
    D.stamp(9)
    D.stamp(9, 2)
    D.stamp(9, 7)
    D.flush(10)
    C.label("L_end")
    C("s_endpgm")
    refetch("m")
    C("; region -")
    for nm, lo, hi in halves:
        C.label(f"L_in{nm}_late")
        C(f"s_sub_u32 {s(S_SPIN)}, {s(S_SPIN)}, 1", f"s_cbranch_scc1 L_in{nm}_ok",
          [list(inbox(n)) for n in range(lo, hi)], "s_waitcnt vmcnt(0)", f"s_branch L_in{nm}_check")
    C.label("L_spin_p")
    C(f"s_mov_b32 {s(S_SPIN)}, {SPIN}")
    C.label("L_poll_p")
    C(f"buffer_load_dword {v(V_FLG)}, {v(V_L0)}, {s(SR_FLAG, 4)}, s16 offen sc1", "s_waitcnt vmcnt(0)",
      f"v_readfirstlane_b32 s48, {v(V_FLG)}", f"s_sub_u32 {s(S_SPIN)}, {s(S_SPIN)}, 1", "s_cbranch_scc1 L_spin_p_ret",
      "s_cmp_eq_u32 s48, 0", "s_cbranch_scc1 L_poll_p", "s_branch L_spin_p_ret")
    C.label("L_spin_r")
    C(f"s_mov_b32 {s(S_SPIN)}, {SPIN}")
    C.label("L_poll_r")
    C(f"buffer_load_dword v63, v62, {s(SR_ACT, 4)}, s51 offen sc1",
      f"buffer_load_dword v30, v31, {s(SR_ACT, 4)}, s50 offen sc1", "s_waitcnt vmcnt(0)",
      f"v_readfirstlane_b32 {s(S_RANK)}, v63", "v_cmp_gt_u32 vcc, 4, v30", "s_nop 1", "s_cmp_lg_u64 vcc, 0",
      f"s_cselect_b32 {s(S_RANK)}, 0, {s(S_RANK)}", f"s_sub_u32 {s(S_SPIN)}, {s(S_SPIN)}, 1",
      "s_cbranch_scc1 L_spin_r_ret", f"s_cmp_eq_u32 {s(S_RANK)}, 0", "s_cbranch_scc1 L_poll_r",
      "s_branch L_spin_r_ret")
    C.label("L_u_late")
    if OPT["fu2"]:
        C(f"s_waitcnt vmcnt({n_fu2})", f"v_cmp_eq_u32 vcc, 0, {v(V_FLG)}", "s_nop 1", "s_cmp_lg_u64 vcc, 0",
          "s_cbranch_scc0 L_u_go")
    C("s_waitcnt vmcnt(0)", flag_store(S_FU), f"v_mov_b32 v62, {v(V_FOFF)}", f"v_mov_b32 {v(V_FOFF)}, v63")
    poll(C, "u", S_FO)
    C(f"v_mov_b32 {v(V_FOFF)}, v62", "L_u_go:", f"s_mov_b32 {s(SR_ACT2 + 2)}, {USZ}")
    fill = u_loads()
    for tag in u_order:
        C(f"buffer_load_dword v57, {v(V_L0)}, {s(SR_FLAG, 4)}, 0 offen" if tag in ("U", "fu2") else fill.pop(0))
    assert not fill
    C("s_branch L_u_late_ret")
    C.label("L_poll_more")
    C(f"s_mov_b32 {s(S_SPIN)}, {SPIN}")
    C.label("L_poll_u2")
    C(f"buffer_load_dword {v(V_FLG)}, {v(V_FOFF)}, {s(SR_FLAG, 4)}, {s(S_FO)} offen sc1",
      f"s_sub_u32 {s(S_SPIN)}, {s(S_SPIN)}, 1", "s_cbranch_scc1 L_hook_mlp2_ret", "s_waitcnt vmcnt(0)",
      f"v_cmp_eq_u32 vcc, 0, {v(V_FLG)}", "s_nop 1", "s_or_b32 s49, vcc_lo, vcc_hi", "s_and_b32 s49, s48, s49",
      "s_cbranch_scc1 L_poll_u2", "s_branch L_hook_mlp2_ret")
    if OPT["nf"] < 7:
        C.label("L_poll_head")
        C(f"s_mov_b32 {s(S_SPIN)}, {SPIN}")
        C.label("L_poll_u3")
        C(f"buffer_load_dword {v(V_FLG)}, {v(V_FOFF)}, {s(SR_FLAG, 4)}, {s(S_FO)} offen sc1",
          f"s_sub_u32 {s(S_SPIN)}, {s(S_SPIN)}, 1", "s_cbranch_scc1 L_poll_head_ret", "s_waitcnt vmcnt(0)",
          f"v_cmp_eq_u32 vcc, 0, {v(V_FLG)}", "s_nop 1", "s_or_b32 s44, vcc_lo, vcc_hi", "s_and_b32 s44, 0x7f, s44",
          "s_cbranch_scc1 L_poll_u3", "s_branch L_poll_head_ret")
    C("; region -")
    C.label("L_spin_o")
    poll(C, "o", S_FO)
    C("s_branch L_spin_o_ret")
    C.label("L_spin_h")
    if OPT["go"]:
        poll(C, "h", 51, SR_LO, 16)
        C("s_branch L_spin_h_ret")
        C.label("L_spin_go")
        C(f"v_mov_b32 {v(V_FOFF)}, 0")
        poll(C, "go", None, SR_DBG)
        C("s_branch L_spin_go_ret")
        C.label("L_clear")
        C("v_mov_b64 v[128:129], 0", "v_mov_b64 v[130:131], 0", f"s_mov_b32 s48, {WS_FLAG + FL_A}")
        C([f"buffer_store_dwordx4 v[128:131], {v(V_LANE16)}, {s(SR_LO, 4)}, s48 offen offset:{1024 * i} sc1"
           for i in range(2)])
        C("s_branch L_clear_ret")
        C.label("L_open")
        C("v_mov_b32 v128, 1", f"v_lshlrev_b32 v129, 4, {v(V_LANE16)}", f"s_waitcnt vmcnt({OPT['qpro']})",
          f"buffer_store_dword v128, v129, {s(SR_DBG, 4)}, 0 offen sc1", "s_branch L_open_ret")
    else:
        poll(C, "h", None, SR_DBG, 4)
        C("s_branch L_spin_h_ret")
    C.label("L_fallback")
    C(f"s_mov_b32 {s(S_FB)}, 1", "s_waitcnt vmcnt(0) lgkmcnt(0)", "s_barrier", "s_nop 7", "s_branch L_restart")
    C.label("L_fb_hook")
    C("v_lshlrev_b32 v63, 4, v0", "s_lshl_b32 s48, s2, 12", f"s_add_u32 s48, s48, {WS_MX}",
      srd(SR_W, P_WS, "s48", 4096), f"s_cmp_eq_u32 {s(S_FB)}, 1", "s_cbranch_scc1 L_fb_scan")
    C(f"buffer_load_dwordx4 v[248:251], v63, {s(SR_W, 4)}, 0 offen sc1", "s_waitcnt vmcnt(0)")
    C([f"v_mov_b32 {v(V_NEGM + 4 * q)}, {v(248 + q)}" for q in range(4)])
    C(fill_srd(), "s_mov_b32 s48, 0", "s_branch L_fb_ret")
    C.label("L_fb_scan")
    C(f"s_mov_b32 {s(S_SK)}, 0", f"s_mov_b32 {s(S_CNT)}, 32")
    C.label("L_fb_loop")
    C("s_waitcnt vmcnt(0) lgkmcnt(0)", "s_barrier")
    ops = k_dma(0)
    C(ops[0], "s_nop 0", ops[1:], "s_waitcnt vmcnt(0)", "s_barrier")
    C(k_reads(0, A_KF), "s_waitcnt lgkmcnt(0)", k_reads(1, A_VF), "s_waitcnt lgkmcnt(0)")
    C(qk_mfmas(0, A_KF, True), qk_mfmas(1, A_VF, True), "s_nop 7")
    for u in range(2):
        for q in range(4):
            C(max_ops(u, q, False))
    C(f"s_sub_u32 {s(S_CNT)}, {s(S_CNT)}, 1", f"s_cmp_lg_u32 {s(S_CNT)}, 0", "s_cbranch_scc1 L_fb_loop")
    C(wave_red([V_NEGM + 4 * q for q in range(4)], [V_NEGM + 4 * q + 1 for q in range(4)], "v_max_f32", False))
    C([f"v_mov_b32 {v(248 + q)}, {v(V_NEGM + 4 * q)}" for q in range(4)])
    C(f"buffer_store_dwordx4 v[248:251], v63, {s(SR_W, 4)}, 0 offen sc1", f"s_mov_b32 {s(S_FB)}, 3",
      "s_waitcnt vmcnt(0)", "s_barrier",
      "s_branch L_restart")
    C.label("L_code_end")


def check_order(lines):
    from asmlib import I
    ins = [I(x) for x in lines if not x.endswith(":") and not x.startswith(".")]
    mf = [i for i, x in enumerate(ins) if x.is_mfma]
    for i, x in enumerate(ins):
        if x.op.startswith("v_cvt_pk"):
            r = next(iter(x.w))
            g = sum(1 for m in mf if m < i) - 1
            first = min(k for k, m in enumerate(mf) if r in ins[m].r)
            assert g < first, ("P63 late", x.text, g, first)
            for src in x.r:
                over = [k for k, y in enumerate(ins) if src in y.w and (y.op == "v_mov_b32" or y.text.endswith(", 0"))]
                assert all(k > i for k in over), ("source overwritten early", x.text)
        if x.op == "v_subrev_u32":
            assert sum(1 for m in mf if m < i) - 1 < 80
        if x.op == "v_accvgpr_write_b32":
            assert not any(m > i and x.w & ins[m].r for m in mf), x.text


def check_after(lines):
    from asmlib import I
    ins = [I(x) for x in lines if not x.endswith(":") and not x.startswith((".", ";"))]
    for i, x in enumerate(ins):
        if x.is_valu:
            assert not any(y.is_mfma and y.w & (x.r | x.w) for y in ins[i:]), x.text


def kd(name, nfv, acc):
    return f""".p2align 6
.amdhsa_kernel {name}
  .amdhsa_next_free_vgpr {nfv}
  .amdhsa_next_free_sgpr 102
  .amdhsa_accum_offset {acc}
  .amdhsa_group_segment_fixed_size 0
  .amdhsa_float_denorm_mode_32 {OPT["denorm"]}
  .amdhsa_kernarg_size 104
  .amdhsa_user_sgpr_count 2
  .amdhsa_user_sgpr_kernarg_segment_ptr 1
  .amdhsa_system_sgpr_workgroup_id_x 1
.end_amdhsa_kernel
"""


DOC = """;
;  1. Layer norms of 8 rows per workgroup: mean / rstd and h = LN(LN(x)) (stored as MFMA fragments) are published.
;  2. Q projection on raw x: q = rstd * c * (x @ wq - mean * colsum(wq)); the mean term is one extra MFMA step.
"""


def main():
    head = [l for l in open(f"cdna_kernels/{NAME}.s.ref").read().split("\n") if l.startswith(";")]
    head = [l for l in head if "@launch" not in l and "Override launch" not in l and "grid=ceil" not in l]
    out = "\n".join(head) + "\n"
    out += f"; @launch grid=(256,1,1) block=(256,1,1) lds={MAIN_LDS}\n"
    out += DOC
    out += '.amdgcn_target "amdgcn-amd-amdhsa--gfx950"\n.text\n'
    name = NAME + "_kernel"
    C = Ctx(Asm())
    gen_main(C)
    on = "".join(g for bit, g in ((1, "a"), (2, "b"), (4, "om")) if OPT["warm"] & bit)
    C.A.lines = [("; region -" if x.startswith("; region") and x.split()[2][0] not in on else x) for x in C.A.lines]
    lab = {"L_attn_loop": "a", "L_attn_entry": "a", "L_hook": "a",
           "L_hook_mlp2": "m", "L_u_late": "m"}
    C.A.lines, cnt = insert_stubs(C.A.lines, {k: [g] for k, g in lab.items() if g in on})
    print("warm-up stubs:", cnt, file=sys.stderr)
    pr = check_hazards(C.A.lines)
    for p in pr[:40]:
        print("HAZARD", p, file=sys.stderr)
    bad = len(pr)
    out += f".globl {name}\n.p2align 8\n.type {name},@function\n" + C.A.text()
    out += '.section .rodata,"a"\n' + kd(name, 512, 256)
    open(sys.argv[1], "w").write(out)
    print("hazards:", bad, file=sys.stderr)


main()
```

```python
import math
import sys
from asmlib import Asm, Ctx, Op, Wait, v, a, s, R, f32, check_hazards, warm_call, warm_call2, insert_stubs

NAME = "recurrent_scan__mha_block_cached__mixer_token_mlp__prompt"
OPT = dict(diag=0, bias=102.0, thresh=2.0 ** 60, force_fb=0, pf=1, noln=0, qmid=4, qmid2=4, qpre=4, qpro=20, cpos=-1, warm=7, pub0=3, pubb=8, chk=20, qc0=96, qc1=108, earlyw=1, tpos=0, hpos=2, latew=3, gopos=1, rank=1, odelay=8, osc=1, fg=7777, skip=0, ost=1, qch=1, nch=1, lead=7, tcap=40, swpv=0, pfm=0, qnc=0, uflag=1, oupos=32, win=4, mwin=4, mrate=7, msame=0, mord=8, osplit=0, tbl=0x45673210, fswap=0, lp0=31, lp1=31, snake=63, qko=2, pvo=2, dspin=0, xk=0, pfmask=15, flpos=23, pfpos=23, go=0, aflag=0, probe=0, nf=7, ford=0, alead=3, fu2=2, oord=1, ogets=1220000444, mgets=1220000001111112220, fcap=6, tail=28, frate=7, pcap=3, pnop=4, npre=2, mcap=3, xmode=0, stag=0, ering=2, pad1=0, oshape=0, kvsc=0, wsc=0, asc=1, denorm=3, dbgout=0, l2hack=0, barpos=0, qrate=7, spin=0x80000, ocap=0, grate=84444444446888888888880, opace=7, vlate=2, insplit=1)
for arg in sys.argv[2:]:
    k_, v_ = arg.split("=")
    OPT[k_] = float(v_) if "." in v_ else int(v_, 0)

MB = 1 << 20
WS_ST, WS_RS, WS_CS, WS_MX = 0, 32768, 65536, 44 * MB
WS_XF, WS_HF, WS_OF, WS_UF, WS_S, WS_FLAG, WS_DIAG = 0, 4 * MB, 8 * MB, 24 * MB, 72 * MB, 40 * MB, 64 * MB
FL_O, FL_U, FL_T, FL_H, FL_SIZE, FL_A = 0, 4096, 8192, 12288, 16384, 16384
KA_X, KA_K, KA_V, KA_WQ, KA_WO, KA_W1, KA_B1, KA_W2, KA_B2, KA_OUT, KA_DBG, KA_WS = (
    0, 8, 16, 24, 32, 48, 56, 64, 72, 80, 88, 96)
LOG2E = 1.4426950408889634
QSCALE = LOG2E / math.sqrt(128.0)
GC0 = -2.0 * math.sqrt(2.0 / math.pi) * LOG2E
HS = -abs(GC0 * 0.044715) ** (1.0 / 3.0)
MF = "v_mfma_f32_16x16x32_bf16"
OSC = ('', ' sc1', ' nt', ' sc0 sc1', ' sc1 nt')
SPIN = OPT["spin"]


def mfma(d, x, y, c):
    return f"{MF} {d}, {x}, {y}, {c}"


def srd(sr, ptr, off, size):
    return [[f"s_add_u32 {s(sr)}, {s(ptr)}, {off}", f"s_addc_u32 {s(sr + 1)}, {s(ptr + 1)}, 0"],
            f"s_mov_b32 {s(sr + 2)}, {size}", f"s_mov_b32 {s(sr + 3)}, 0x20000"]


def code_srd(sr, start, end, tag):
    return [[f"s_getpc_b64 {s(sr, 2)}", f"L_pc_{tag}:", f"s_add_u32 {s(sr)}, {s(sr)}, {start}-L_pc_{tag}",
             f"s_addc_u32 {s(sr + 1)}, {s(sr + 1)}, 0"],
            f"s_mov_b32 {s(sr + 2)}, {end}-{start}", f"s_mov_b32 {s(sr + 3)}, 0x20000"]


def nops(n):
    return [f"s_nop {n - 1}"] if n > 0 else []


def wave_red(regs, tmp, op="v_add_f32", dpp=True, swaps=("v_permlane16_swap_b32", "v_permlane32_swap_b32")):
    out = []
    if dpp:
        for mod in ("quad_perm:[1,0,3,2]", "quad_perm:[2,3,0,1]", "row_half_mirror", "row_mirror"):
            out += nops(3 - len(regs))
            out += [f"{op}_dpp {v(r)}, {v(r)}, {v(r)} {mod} row_mask:0xf bank_mask:0xf" for r in regs]
    for sw in swaps:
        out += [f"v_mov_b32 {v(t)}, {v(r)}" for r, t in zip(regs, tmp)]
        out += nops(3 - len(regs))
        out += [f"{sw} {v(r)}, {v(t)}" for r, t in zip(regs, tmp)]
        out += [f"{op} {v(r)}, {v(r)}, {v(t)}" for r, t in zip(regs, tmp)]
    return out


class Diag:
    def __init__(self, C, slot):
        self.C, self.slot = C, slot

    def stamp(self, n, mode=1):
        if OPT["diag"] == mode or (OPT["diag"] and self.slot == 2):
            self.C("s_memtime s[98:99]", "s_waitcnt lgkmcnt(0)", f"s_mov_b32 {s(78 + 2 * n)}, s98",
                   "s_memrealtime s[98:99]", "s_waitcnt lgkmcnt(0)", f"s_mov_b32 {s(79 + 2 * n)}, s98")

    def ops(self, n, mode):
        if OPT["diag"] != mode:
            return []
        return [["s_memtime s[98:99]", "s_waitcnt lgkmcnt(0)", f"s_mov_b32 {s(78 + 2 * n)}, s98",
                 "s_memrealtime s[98:99]", "s_waitcnt lgkmcnt(0)", f"s_mov_b32 {s(79 + 2 * n)}, s98"]]

    def flush(self, nmax):
        if not OPT["diag"]:
            return
        C = self.C
        if OPT["dspin"]:
            a_, b_ = OPT["dspin"] // 10 % 10, OPT["dspin"] % 10
            C(f"s_sub_u32 s4, {s(79 + 2 * b_)}, {s(79 + 2 * a_)}", f"s_mul_i32 s4, s4, {OPT['dspin'] // 100}",
              "s_min_u32 s4, s4, 100000", "L_dspin:", "s_memrealtime s[98:99]", "s_waitcnt lgkmcnt(0)",
              "s_sub_u32 s5, s98, s97", "s_cmp_lt_u32 s5, s4", "s_cbranch_scc1 L_dspin")
            return
        if OPT["dbgout"]:
            C(f"s_load_dwordx2 s[98:99], s[0:1], {KA_DBG}", "s_waitcnt lgkmcnt(0)", "s_cmp_eq_u32 s2, 9",
              "s_cselect_b32 s101, 64, 0")
            C(srd(4, 98, 0, "s101"))
            C("v_mov_b32 v1, 0")
            for i in range(1, nmax):
                C(f"s_sub_u32 s101, {s(79 + 2 * i)}, s79", "v_mov_b32 v2, s101",
                  f"buffer_store_dword v2, v1, s[4:7], 0 offen offset:{4 * i}")
            C(f"s_sub_u32 s101, {s(78 + 2 * (nmax - 1))}, s78", "v_mov_b32 v2, s101",
              f"buffer_store_dword v2, v1, s[4:7], 0 offen offset:{4 * nmax}", "s_waitcnt vmcnt(0)")
            return
        C(f"s_load_dwordx2 s[98:99], s[0:1], {KA_WS}", "s_waitcnt lgkmcnt(0)", "s_lshl_b32 s101, s2, 7",
          f"s_add_u32 s101, s101, {WS_DIAG + self.slot * 65536}")
        C(srd(4, 98, "s101", 128))
        C("v_mov_b32 v1, 0")
        for i in range(2 * nmax):
            C(f"v_mov_b32 v2, {s(78 + i)}", f"buffer_store_dword v2, v1, s[4:7], 0 offen offset:{4 * i}")
        C("v_mov_b32 v2, s43", "buffer_store_dword v2, v1, s[4:7], 0 offen offset:96")
        C("s_waitcnt vmcnt(0)")


V_LANE16 = 1
V_KA, V_VA, V_QA, V_ONE, V_OK, V_OV, V_OW = 4, 8, 16, 20, 24, 28, 32
V_L, V_NEGM, V_WA0, V_IDX, V_PF = 36, 44, 44, 60, 61
V_Q, V_S, V_P, V_ACC = 64, (128, 160), (192, 208, 224, 240), 128
V_EA = 36
V_B1, V_L0, V_FLG, V_FOFF, V_ONEI, V_XO = 120, 52, 53, 54, 55, 56
V_XA, V_XO4, V_CS, V_FA = 112, 116, 120, 16
A_O, A_KF, A_VF, A_CA, A_CB = 0, 128, 160, 0, 32
A_WF = (128, 160)
S_W = 3
SR_ACT, SR_W, SR_K, SR_V, SR_ST = 4, 8, 12, 16, 20
P_K, P_V, P_WQ, P_WS, P_W1, P_B1, P_WO, P_W2, P_X, P_B2, P_OUT = 24, 26, 28, 30, 32, 34, 36, 38, 52, 54, 56
S_SA, S_SW, S_SK, S_SV, S_CNT, S_FB = 40, 41, 42, 43, 44, 45
S_SPIN, S_RANK, S_W2, S_XB, S_STG, SR_GET = 101, 100, 58, 59, 59, 12
SR_PF, S_PF, S_PFC = 60, 76, 77
SR_ACT2, SR_UST, SR_FLAG, SR_X = 60, 64, 68, 72
S_WSTEP, S_ROLE, S_PAIR, S_FO, S_FU, S_KH, S_AB = 58, 42, 43, 76, 77, 100, 77
VBASE, EBASE = 65536, 131072
VOTE = 49152 if OPT["ering"] else EBASE
MAIN_LDS = 163840
WQSTEP, W1STEP = 64 * 8192, 64 * 7168


def ring(n):
    idx = n % 32
    return ("a", 192 + 4 * idx) if idx < 16 else ("a" if n >= 128 else "v", 64 + 4 * (idx - 16))


def add(d, k, *x):
    d.setdefault(k, []).extend(x)


def v_read_addrs(dst, t0):
    out = [f"v_lshrrev_b32 {v(t0)}, 2, v2", f"v_and_b32 {v(t0 + 1)}, 1, v3",
           f"v_lshl_add_u32 {v(t0 + 1)}, {v(t0 + 1)}, 2, {v(t0)}", f"v_lshl_add_u32 {v(t0)}, v3, 2, {v(t0)}",
           f"v_lshlrev_b32 {v(t0)}, 8, {v(t0)}", f"v_lshl_add_u32 {v(t0)}, {v(t0 + 1)}, 5, {v(t0)}",
           f"v_and_b32 {v(t0 + 1)}, 3, v2", f"v_lshl_add_u32 {v(t0)}, {v(t0 + 1)}, 3, {v(t0)}",
           f"v_add_u32 {v(t0)}, {VBASE}, {v(t0)}"]
    return out + [f"v_xor_b32 {v(dst + b)}, {b * 32}, {v(t0)}" for b in range(8)]


def q_read_addrs(dst, t0):
    out = [f"v_lshrrev_b32 {v(t0)}, 2, v2", f"v_and_b32 {v(t0 + 1)}, 1, v3",
           f"v_lshl_add_u32 {v(t0 + 1)}, {v(t0 + 1)}, 2, {v(t0)}", f"v_lshl_add_u32 {v(t0)}, v3, 3, {v(t0)}",
           f"v_lshlrev_b32 {v(t0)}, 8, {v(t0)}", f"v_lshlrev_b32 {v(t0 + 1)}, 1, {v(t0 + 1)}",
           f"v_and_b32 {v(t0 + 2)}, 3, v2", f"v_xor_b32 {v(t0 + 1)}, {v(t0 + 1)}, {v(t0 + 2)}",
           f"v_lshl_add_u32 {v(t0)}, {v(t0 + 1)}, 4, {v(t0)}", f"s_lshr_b32 s48, {s(S_W)}, 6",
           f"s_add_u32 s48, s48, {VBASE}", f"v_xor_b32 {v(t0)}, s48, {v(t0)}"]
    if OPT["qnc"]:
        out += [f"v_bfe_u32 {v(t0 + 1)}, v2, 1, 1", f"v_lshl_add_u32 {v(t0)}, {v(t0 + 1)}, 3, {v(t0)}"]
    return out + [f"v_xor_b32 {v(dst + x)}, {x * 64}, {v(t0)}" for x in range(4)]


def wq_dma_offsets(t0):
    return [f"s_lshr_b32 s48, {s(S_W)}, 8", f"v_add_u32 {v(t0)}, s48, v3", f"v_lshlrev_b32 {v(t0)}, 13, {v(t0)}",
            f"v_lshlrev_b32 {v(t0 + 1)}, 1, v3", f"v_xor_b32 {v(t0 + 1)}, {v(t0 + 1)}, v2",
            f"v_lshl_add_u32 {v(V_OW)}, {v(t0 + 1)}, 4, {v(t0)}", f"v_xor_b32 {v(t0 + 1)}, 8, {v(t0 + 1)}",
            f"v_lshl_add_u32 {v(V_OW + 2)}, {v(t0 + 1)}, 4, {v(t0)}", f"v_add_u32 {v(V_OW + 2)}, 63488, {v(V_OW + 2)}",
            f"v_add_u32 {v(V_OW + 1)}, 31744, {v(V_OW)}", f"v_add_u32 {v(V_OW + 3)}, 31744, {v(V_OW + 2)}"]


def x_dma_offsets(t0):
    return [f"v_bfe_u32 {v(t0)}, v0, 3, 3", f"v_lshlrev_b32 {v(t0)}, 11, {v(t0)}", f"v_and_b32 {v(t0 + 1)}, 7, v0",
            f"v_xor_b32 {v(t0 + 1)}, {v(t0 + 1)}, v3", f"v_lshl_add_u32 {v(V_XO4)}, {v(t0 + 1)}, 4, {v(t0)}",
            f"v_xor_b32 {v(t0 + 1)}, 4, {v(t0 + 1)}", f"v_lshl_add_u32 {v(V_XO4 + 1)}, {v(t0 + 1)}, 4, {v(t0)}",
            f"v_add_u32 {v(V_XO4 + 1)}, 15360, {v(V_XO4 + 1)}", f"v_add_u32 {v(V_XO4 + 2)}, 30720, {v(V_XO4)}",
            f"v_add_u32 {v(V_XO4 + 3)}, 30720, {v(V_XO4 + 1)}"]


def x_read_addrs(t0):
    return [f"v_lshrrev_b32 {v(t0)}, 1, v2", f"v_xor_b32 {v(t0)}, {v(t0)}, v3", f"v_lshlrev_b32 {v(t0)}, 4, {v(t0)}",
            f"v_lshl_add_u32 {v(t0)}, v2, 7, {v(t0)}", f"v_add_u32 {v(V_XA)}, {s(S_W2)}, {v(t0)}",
            f"v_xor_b32 {v(V_XA + 1)}, 64, {v(V_XA)}", f"v_add_u32 {v(V_XA + 2)}, {EBASE}, {v(V_XA)}",
            f"v_add_u32 {v(V_XA + 3)}, {EBASE}, {v(V_XA + 1)}"]


def w_dma_offsets(dst, ldw, t0, st):
    out = [f"s_lshr_b32 {s(st)}, {s(S_W)}, 8", f"v_add_u32 {v(t0)}, {s(st)}, v3",
           f"v_mul_u32_u24 {v(t0)}, {ldw}, {v(t0)}", f"v_lshlrev_b32 {v(t0 + 1)}, 1, v3",
           f"v_xor_b32 {v(t0 + 1)}, {v(t0 + 1)}, v2", f"v_lshl_add_u32 {v(dst)}, {v(t0 + 1)}, 4, {v(t0)}",
           f"v_xor_b32 {v(t0 + 1)}, 8, {v(t0 + 1)}", f"v_lshl_add_u32 {v(dst + 1)}, {v(t0 + 1)}, 4, {v(t0)}"]
    if isinstance(ldw, int):
        one, two = 4 * ldw - 1024, 8 * ldw - 2048
    else:
        out += [f"s_lshl_b32 {s(st)}, {ldw}, 2", f"s_sub_u32 {s(st)}, {s(st)}, 1024",
                f"s_lshl_b32 {s(st + 1)}, {s(st)}, 1"]
        one, two = s(st), s(st + 1)
    out += [f"v_add_u32 {v(dst + 1)}, {one}, {v(dst + 1)}", f"v_add_u32 {v(dst + 2)}, {two}, {v(dst)}",
            f"v_add_u32 {v(dst + 3)}, {two}, {v(dst + 1)}"]
    return out


def dma(voff, sr, soff, i, tag):
    return Op(f"buffer_load_dwordx4 {v(voff)}, {s(sr, 4)}, {s(soff)} offen offset:{i * 1024}"
              + OSC[OPT["kvsc"] if tag[0] in "KV" else OPT["wsc"]] + " lds", tag)


def set_m0(off):
    return f"s_add_u32 m0, {s(S_W)}, {off}"


def tr_read(dst, addr, off, tag):
    return Op(f"ds_read_b64_tr_b16 {dst}, {v(addr)} offset:{off}", tag)


def x_slot(e):
    return EBASE if e == 15 else (0, EBASE, 32768)[e % 3]


def x_frag(e, k, q):
    return a(192 + 32 * (e & 1) + (k * 4 + q) * 4, 4)


def x_reads(e, half):
    sl = x_slot(e)
    return [Op(f"ds_read_b128 {x_frag(e, k, q)}, {v(V_XA + k + 2 * (sl == EBASE))} offset:{sl % EBASE + q * 2048}",
               ("XR", e, half)) for q in (2 * half, 2 * half + 1) for k in range(2)]


def q_reads(j):
    base = ((j >> 1) & 3) * 16384
    return [tr_read(a(A_WF[j & 1] + 2 * m, 2), V_QA + 2 * (j & 1) + (m >> 3),
                    base + ((m >> 1) & 1) * 8192 + (m & 1) * 1024 + ((m >> 2) & 1) * 8 * (1 - OPT["qnc"]), ("QT", j)) for m in range(16)]


def q_order(j):
    if OPT["snake"] & 32 and 1 < j < 30:
        return [(bl, 3 - q if bl & 1 else q) for bl in range(4) for q in range(4)]
    return [(bl, q) for q in range(4) for bl in range(4)] if j == 31 else [(bl, q) for bl in range(4) for q in range(4)]


def q_mfmas(j):
    out = []
    for bl, q in q_order(j):
        b = 4 * (j & 1) + bl
        acc = v(V_ACC + (b * 4 + q) * 4, 4)
        for k in (1, 0) if OPT["snake"] & 4 and (q ^ (bl if OPT["snake"] & 32 else 0)) & 1 and 1 < j < 30 else (0, 1):
            out.append(mfma(acc, a(A_WF[j & 1] + 4 * (2 * bl + k), 4), x_frag(j >> 1, k, q), acc if j > 1 or k else "0"))
        if j >= 30:
            out.append(mfma(acc, a(A_CA + 4 * b, 4), a(A_CB + 4 * q, 4), acc))
    return out


def k_reads(u, dst):
    base = ((u >> 1) & 3) * 16384 + (u & 1) * 8192
    return [Op(f"ds_read_b128 {a(dst + (kb * 4 + ks) * 4, 4)}, {v(V_KA + ks)} offset:{base + kb * 4096}", ("KR", u))
            for kb in range(2) for ks in range(4)]


def v_reads(i, dst):
    base = ((i >> 1) & 3) * 16384
    return [tr_read(a(dst + 2 * m, 2), V_VA + 4 * (i & 1) + (m >> 2), base + ((m >> 1) & 1) * 8192 + (m & 1) * 4096,
                    ("VR", i)) for m in range(16)]


def k_dma(t):
    return ([set_m0((t & 3) * 16384)] + [dma(V_OK + i, SR_K, S_SK, i, ("K", t)) for i in range(4)]
            + [f"s_add_u32 {s(S_SK)}, {s(S_SK)}, 0x4000"])


def v_dma(t):
    return ([set_m0(VBASE + (t & 3) * 16384)] + [dma(V_OV + (i & 1), SR_V, S_SV, i, ("V", t)) for i in range(4)]
            + [f"s_add_u32 {s(S_SV)}, {s(S_SV)}, 0x4000"])


def w1_dma(e):
    return [set_m0(g_m0(e))] + [o for _, o in g_w(e)] + [f"s_mov_b32 {s(S_SW)}, {(e + 1) * 2 * W1STEP}"]


def sm_ops(u):
    S, P = V_S[u & 1], V_P[u & 3]
    out = []
    for q in range(4):
        for pr in range(4):
            r0 = S + ((pr >> 1) * 4 + q) * 4 + (pr & 1) * 2
            out += [[f"v_exp_f32 {v(r0)}, {v(r0)}"], [], [f"v_exp_f32 {v(r0 + 1)}, {v(r0 + 1)}"],
                    [f"v_cvt_pk_bf16_f32 {v(P + q * 4 + pr)}, {v(r0)}, {v(r0 + 1)}"]]
    return out


def sm_seq(u, q0, q1):
    ops = sm_ops(u)[16 * q0:16 * q1]
    out, pend = [], None
    for g in range(0, len(ops), 4):
        out += ops[g] + ops[g + 2]
        if pend:
            out += pend
        pend = ops[g + 3]
    return out + [None] + pend


def qk_mfmas(u, kf, zero_c=False, q_outer=False):
    out = []
    order = [(kb, q) for q in range(4) for kb in range(2)] if q_outer else [(kb, q) for kb in range(2) for q in range(4)]
    if OPT["qko"] == 1 or (q_outer and OPT["qko"]):
        order = [(kb ^ (q & 1), q) for q in range(4) for kb in range(2)]
    elif OPT["qko"] == 2:
        order = [(0, q) for q in range(4)] + [(1, q) for q in range(3, -1, -1)]
    elif OPT["qko"] == 3:
        order = [(kb, q) for q in range(4) for kb in range(2)]
    if OPT["qko"] >= 4 and not q_outer:
        for kb in range(2):
            for hf in range(2):
                for q in (range(3, -1, -1) if hf and OPT["qko"] == 5 else range(4)):
                    d = v(V_S[u & 1] + (kb * 4 + q) * 4, 4)
                    for ks in (2 * hf, 2 * hf + 1):
                        c = d if ks else ("0" if zero_c else v(V_NEGM + 4 * q, 4))
                        out.append(mfma(d, a(kf + (kb * 4 + ks) * 4, 4), v(V_Q + (q * 4 + ks) * 4, 4), c))
        return out
    for ci, (kb, q) in enumerate(order):
        d = v(V_S[u & 1] + (kb * 4 + q) * 4, 4)
        rev = OPT["snake"] & 1 and ci & 1
        for n, ks in enumerate(range(3, -1, -1) if rev else range(4)):
            c = d if n else ("0" if zero_c else v(V_NEGM + 4 * q, 4))
            out.append(mfma(d, a(kf + (kb * 4 + ks) * 4, 4), v(V_Q + (q * 4 + ks) * 4, 4), c))
    return out


def pv_mfmas(i, vf, q_outer=False):
    out = []
    for m in range(32):
        bl, q = ((m >> 1) & 3, m >> 3) if q_outer else (m >> 3, (m >> 1) & 3)
        if OPT["pvo"] == 1 and not q_outer:
            bl, q = (m >> 1) & 3, m >> 3
            bl = 3 - bl if q & 1 else bl
        if OPT["pvo"] == 2 and not q_outer:
            q = 3 - q if bl & 1 else q
        k = (m ^ (m >> 1)) & 1 if OPT["snake"] & 2 else m & 1
        d = a(A_O + ((4 * (i & 1) + bl) * 4 + q) * 4, 4)
        x, y = a(vf + 4 * (2 * bl + k), 4), v(V_P[((i & ~1) + k) & 3] + 4 * q, 4)
        out.append(mfma(d, y, x, d) if OPT["swpv"] else mfma(d, x, y, d))
    return out


def l_mfma(u, h):
    return f"v_smfmac_f32_16x16x64_bf16 {v(V_L + 4 * h, 4)}, {v(V_ONE, 4)}, {v(V_P[u & 3] + 8 * h, 8)}, {v(V_IDX)}"


def fill_srd():
    return srd(SR_W, P_WS, WS_S, 20 * MB)


def fill_store(sr, so, i):
    return f"buffer_store_dwordx4 {v(V_QA, 4)}, {v(V_LANE16)}, {s(sr, 4)}, {so} offen offset:{1024 * i} sc1"


def tile_dma(i):
    if i >= 55:
        return v_dma(31) if i == 55 else w1_dma(i - 56)
    return k_dma((i + 1) // 2 + 4) if i & 1 else v_dma(i // 2 + 3)


def phase_a(C, i, extra, bg=None):
    pre = {}
    for g, x in enumerate(v_reads(i, A_VF)[4:]):
        add(pre, 2 * g + 1, x)
    ops = tile_dma(i - 1)
    if OPT["barpos"]:
        add(pre, 13, ops[3])
        add(pre, 21, ops[4])
        add(pre, 24, ops[5])
    else:
        add(pre, 25, ops[3])
        add(pre, 29, ops[4])
        add(pre, 30, ops[5])
    for g, x in extra:
        add(pre, g, x)
    C.weave(qk_mfmas(i + 2, A_KF), pre, dict(enumerate(sm_ops(i + 1)[32:])), bg)


def phase_b(C, i, extra, bg=None):
    pre = {}
    for g, x in enumerate(k_reads(i + 3, A_KF)):
        add(pre, 2 * g + 1, x)
    ops = tile_dma(i)
    vr = v_reads(i + 1, A_VF)
    add(pre, 16, ops[0])
    for g, x in zip((17, 19, 21, 25, 27, 29), (ops[1], vr[0], vr[1], ops[2], vr[2], vr[3])):
        add(pre, g, x)
    add(pre, 31, Wait(lg=[("KR", i + 3)], key=("b", i & 7)))
    for g, x in extra:
        if g >= 0:
            add(pre, g, x)
    valu = dict(enumerate(sm_ops(i + 2)[:32]))
    l0, l1 = OPT["lp0"], OPT["lp1"]
    valu[l0] = valu[l0] + [l_mfma(i, 0)] + [x for g, x in extra if g == -1]
    valu[l1] = valu[l1] + [l_mfma(i, 1)] + [x for g, x in extra if g == -2]
    C.weave(pv_mfmas(i, A_VF), pre, valu, bg)


def epoch(C, n, real, skip_first=False, bg=None):
    p, inloop = n & 3, n < 28

    def xl(ph):
        j = ph - 113
        if j == 0:
            return [(1, f"buffer_load_dword a255, {v(V_LANE16)}, {s(SR_W, 4)}, 0 offen")]
        if j in (1, 3, 5, 7):
            x = g_act(j >> 2, (j >> 1) & 1)
            return [(0, x[0][0])] + [(1 + 4 * k + 4 * (k > 1), x[k][1]) for k in range(4)]
        if j in (6, 8):
            x = g_w(5 + j // 2, S_SK)
            return [(0, x[0][0])] + [(1 + 4 * k, x[k][1]) for k in range(4)]
        return []
    if not skip_first:
        extra = []
        if OPT["pf"] and (inloop or p == 0):
            so = S_PFC if p == 0 else S_PF
            if OPT["pfmask"] >> p & 1:
                extra.append((OPT["pfpos"], f"buffer_load_dword a255, {v(V_PF)}, {s(SR_PF + 4 * p, 4)}, {s(so)} offen"))
            if p == 3:
                extra.append((24, f"s_add_u32 {s(S_PF)}, {s(S_PF)}, 8192"))
        if p == 0 and real:
            extra += [(2, f"s_cmp_le_u32 {s(S_CNT)}, 3"), (4, "s_cbranch_scc1 L_hook"), (4, "L_hook_ret:")]
        phase_b(C, 2 * n - 1, extra + xl(4 * n - 1), bg)
    if p == 0 and real:
        C.label("L_attn_entry")
    phase_a(C, 2 * n, [(31, Wait(lg=[("VR", 2 * n)], key=("a", 2 * p)))] + xl(4 * n), bg)
    assert not bg
    fl = [(OPT["flpos"], fill_store(SR_W, s(S_SA), p >> 1))] * (inloop and p & 1 == 0)
    fl += [(28, f"s_add_u32 {s(S_SA)}, {s(S_SA)}, 2048"),
           (30, f"s_min_u32 {s(S_SA)}, {s(S_SA)}, {s(S_W2)}")] * (inloop and p == 2)
    fl += [(OPT["flpos"], fill_store(SR_W, s(S_XB), 1)),
           (28, f"s_add_u32 {s(S_XB)}, {s(S_XB)}, 1024")] * (inloop and p == 1)
    phase_b(C, 2 * n, xl(4 * n + 1) + fl)
    need = [("K", n + 2)] * (n + 2 < 32) + [("V", n + 1)]
    wg, bg_ = {0: (31, 31), 1: (30, 31), 2: (30, 30), 3: (29, 29), 4: (28, 29)}[OPT["barpos"]]
    extra = [(wg, Wait(vm=need, lg=["*"], key=("a", 2 * p + 1))), (bg_, "s_barrier")]
    if p == 3:
        extra = [(26, f"s_sub_u32 {s(S_CNT)}, {s(S_CNT)}, 1")] + extra + [(31, f"s_cmp_lg_u32 {s(S_CNT)}, 0")]
    phase_a(C, 2 * n + 1, extra + xl(4 * n + 2))
    if real and p == 3:
        C("s_cbranch_scc1 L_attn_loop")


def max_ops(u, q, first):
    r = [V_S[u & 1] + (kb * 4 + q) * 4 + j for kb in range(2) for j in range(4)]
    m = v(V_NEGM + 4 * q)
    out = [f"v_max_f32 {m}, {v(r[0])}, {v(r[1])}" if first else f"v_max3_f32 {m}, {v(r[0])}, {v(r[1])}, {m}"]
    return out + [f"v_max3_f32 {m}, {v(r[k])}, {v(r[k + 1])}, {m}" for k in (2, 4, 6)]


G_SLOT = (0, 1, 2, 3, 4, 5, 7, 6, 8, 9, 2, 3, 4, 5, 7, 6)


def g_m0(e):
    sl = G_SLOT[e]
    return EBASE + (sl - 8) * 16384 if sl >= 8 else (sl & 1) * VBASE + (sl >> 1) * 16384


def g_set(e):
    return ("a", 64 + 32 * (e - 14)) if e >= 14 else (("a", 192), ("a", 224), ("v", 64), ("v", 96))[e & 3]


def g_acc(b, q):
    return V_ACC + ((((b >> 1) + 2) & 3) * 4 + q) * 8 + (b & 1) * 4


def g_act(e, h):
    return [([f"s_mov_b32 {s(S_SA)}, {e * 8192 + h * 131072}"] if n == 0 else [],
             Op(f"buffer_load_dwordx4 {R(g_set(e), 4, ((n >> 1) * 4 + 2 * h + (n & 1)) * 4)}, {v(V_LANE16)}, "
                f"{s(SR_ACT, 4)}, {s(S_SA)} offen offset:{n * 1024} sc1", ("GX", e))) for n in range(4)]


def g_w(e, so=None):
    so = S_SW if so is None else so
    return [([set_m0(g_m0(e)), f"s_mov_b32 {s(so)}, {e * 2 * W1STEP}"] if n == 0 else [],
             dma(V_OK + n, SR_K, so, n, ("W", e))) for n in range(4)]


def g_reads(i):
    out = []
    for m in range(16):
        e, b = (12 + (m >> 2), i - 24) if i >= 24 else (i >> 1, 4 * (i & 1) + (m >> 2))
        sl = G_SLOT[e]
        wa = V_EA if sl >= 8 else V_VA if sl & 1 else V_WA0
        out.append(tr_read(a(A_WF[i & 1] + 2 * m, 2), wa + b, g_m0(e) % 65536 + ((m >> 1) & 1) * 8192 + (m & 1) * 4096,
                           ("GT", i)))
    return out


def g_step(C, i, vm, extra, bg, cap):
    if i >= 24:
        todo = [(i - 24, q, kk, 12 + (kk >> 1), kk & 1) for q in range(4)
                for kk in (range(7, -1, -1) if OPT["snake"] & 16 and q & 1 else range(8))]
    else:
        todo = [(4 * (i & 1) + bl, q, 2 * bl + k, i >> 1, k) for bl in range(4)
                for q in (range(3, -1, -1) if OPT["snake"] & 8 and bl & 1 and i > 1 else range(4))
                for k in ((1, 0) if OPT["snake"] & 4 and (q ^ (bl if OPT["snake"] & 8 else 0)) & 1 and i > 1 else (0, 1))]
    mf, pre = [], {}
    for b, q, f, e, k in todo:
        acc = c = v(g_acc(b, q), 4)
        if i < 2 and k == 0:
            c = v(g_acc(b, 3), 4) if i else "0"
        mf.append(mfma(acc, a(A_WF[i & 1] + 4 * f, 4), R(g_set(e), 4, (k * 4 + q) * 4), c))
    for g, x in zip(TG, g_reads(i + 1) if i < 31 else f_reads(0, 64)):
        add(pre, g, x)
    place(pre, vm, 32)
    nxt = range(12, 16) if i >> 1 == 11 else [(i >> 1) + 1]
    if i == 30:
        add(pre, 31, Wait(vm=[("W", 32)], lg=[("GT", 31)]), "s_barrier")
    elif 24 <= i < 31:
        add(pre, 31, Wait(lg=[("GT", i + 1)]))
    elif i & 1 and i < 24:
        add(pre, 31, Wait(vm=[("GX", x) for x in nxt], lg=["*"]))
    elif i < 24:
        add(pre, 31, Wait(vm=[("W", x) for x in nxt], lg=["*"]), "s_barrier")
    for g, x in extra:
        add(pre, g, x)
    C.weave(mf, pre, {}, bg, cap)


def place(pre, vm, ng):
    for n, (setup, o) in enumerate(vm):
        g = 2 + (n * (ng - 2)) // len(vm)
        assert n == 0 or g - len(setup) > 2 + ((n - 1) * (ng - 2)) // len(vm)
        for k, x in enumerate(setup):
            pre.setdefault(g - len(setup) + k, []).insert(0, x)
        add(pre, g, o)


def greedy(groups, steps, rate):
    groups = sorted(groups, key=lambda x: x[1])
    plan, cur = {}, []
    for n, i in enumerate(steps):
        mine = []
        while len(mine) < rate(i):
            if not cur:
                ok = [x for x in groups if x[0] <= i]
                if not ok:
                    break
                groups.remove(ok[0])
                cur = list(ok[0][2])
            mine.append(cur.pop(0))
        plan[i] = mine
    assert not groups and not cur
    return plan


TAIL = OPT["tail"]


def win_of(nq):
    return OPT["mwin"] if nq == 56 else OPT["win"]


TG = [g for g in range(24) if g % 3 != 2]


def f_slot(e, nq):
    n = nq // 2
    return 4 + e - (n - 4) if e >= n - 4 else e & 3


def f_set(e, nq):
    n = nq // 2
    return 192 + 32 * (e - (n - 2)) if e >= n - 2 else 32 * (e & 3)


def f_tr(dst, e, k, hh, slot_b, nq, tag):
    sl = f_slot(e, nq)
    return tr_read(dst, V_FA + 8 * (sl & 1) + slot_b, (sl >> 1) * 16384 + k * 8192 + hh * 4096, tag)


def f_window(nq):
    if nq == 64:
        return [(b, (0, 1, 2, 3)) for b in range(8)]
    other, partner = [(b, (0, 1)) for b in range(8)], [(b, (2, 3)) for b in range(4)]
    k = OPT["mord"]
    if k < 0:
        return [(b, (0, 1, 2, 3)) for b in range(4)] + other[4:] + [(b, (2, 3)) for b in range(4, 8)]
    return other[:k] + partner + other[k:] + [(b, (2, 3)) for b in range(4, 8)]


def f_acc(b, q, mlp2):
    if not mlp2:
        return V_ACC + ((b >> 1) * 4 + q) * 8 + (b & 1) * 4
    return V_ACC + b * 16 + q * 4 if b < 4 else V_ACC + 64 + (q >> 1) * 32 + (b - 4) * 8 + (q & 1) * 4


def f_reads(i, nq):
    w0, win = nq - 2 * win_of(nq), f_window(nq)
    if i >= w0 + len(win):
        return []
    dst = A_WF[i & 1]
    if i >= w0:
        return [f_tr(a(dst + 2 * m, 2), w0 // 2 + (m >> 2), (m >> 1) & 1, m & 1, win[i - w0][0], nq, ("FT", i, m >> 3))
                for m in range(4 * win_of(nq))]
    return [f_tr(a(dst + 2 * m, 2), i >> 1, (m >> 1) & 1, m & 1, 4 * (i & 1) + (m >> 2), nq, ("FT", i, m >> 3))
            for m in range(16)]


def f_mfmas(i, nq, mlp2):
    w0, out = nq - 2 * win_of(nq), []
    if i >= w0:
        b, qs = f_window(nq)[i - w0]
        if len(qs) == 4:
            todo = [(b, q, kk) for q in qs
                    for kk in list(range(2 * win_of(nq)))[::-1 if OPT["snake"] & 16 and q & 1 else 1]]
        else:
            todo = [(b, q, kk) for lo in (0, 4) for q in qs for kk in list(range(lo, min(lo + 4, 2 * win_of(nq))))[::-1 if OPT["snake"] & 16 and q & 1 else 1]]
        todo = [(b, q, kk, w0 // 2 + (kk >> 1), kk & 1) for b, q, kk in todo]
    else:
        todo = [(4 * (i & 1) + bl, q, 2 * bl + k, i >> 1, k) for bl in range(4)
                for q in (range(3, -1, -1) if OPT["snake"] & 8 and bl & 1 and i > 1 else range(4))
                for k in ((1, 0) if OPT["snake"] & 4 and (q ^ (bl if OPT["snake"] & 8 else 0)) & 1 and i > 1 else (0, 1))]
        if OPT["ford"] & (1 + mlp2):
            todo.sort(key=lambda x: (x[1], x[0]))
    for b, q, f, e, k in todo:
        wf, xf = a(A_WF[i & 1] + 4 * f, 4), a(f_set(e, nq) + (k * 4 + q) * 4, 4)
        acc = c = v(f_acc(b, q, mlp2), 4)
        if i < 2 and k == 0:
            c = v(f_acc(b, 3, True), 4) if mlp2 and i == 1 else "0"
        out.append(mfma(acc, xf, wf, c) if mlp2 != bool(OPT["fswap"] & (1 + mlp2)) else mfma(acc, wf, xf, c))
    return out


def f_act(e, h, nq, stride, loop=False, rel=None):
    r, step = S_XB if h else S_SA, 8192 if nq == 56 else 4096
    if loop:
        st = f"s_add_u32 {s(S_XB)}, {s(S_SA)}, {stride}" if h else f"s_add_u32 {s(S_SA)}, {s(S_SA)}, {step}"
    elif rel is not None:
        st = f"s_add_u32 {s(r)}, {s(S_AB)}, {(e - rel) * step + h * stride}"
    else:
        st = f"s_mov_b32 {s(r)}, {e * step + h * stride}"
    return [([st] if n == 0 else [],
             Op(f"buffer_load_dwordx4 {a(f_set(e, nq) + ((n >> 1) * 4 + 2 * h + (n & 1)) * 4, 4)}, {v(V_LANE16)}, "
                f"{s(SR_ACT2, 4)}, {s(r)} offen offset:{n * 1024} sc1", ("FX", e))) for n in range(4)]


def f_w(e, nq, loop=False, rel=None):
    sl, step = f_slot(e, nq), 128 * 4096 if nq == 56 else 64 * 2048
    st = [set_m0((sl & 1) * VBASE + (sl >> 1) * 16384),
          f"s_add_u32 {s(S_SW)}, {s(S_SW)}, {step}" if loop else f"s_mov_b32 {s(S_SW)}, {e * step}" if rel is None
          else f"s_add_u32 {s(S_SW)}, {s(S_WSTEP)}, {(e - rel) * step}"]
    return [(st if n == 0 else [], dma(V_OW + n, SR_W, S_SW, n, ("W", 32 + e))) for n in range(4)]


def f_step(C, i, nq, mlp2, vm, extra=(), bg=None, cap=2, loop=False):
    w0 = nq - 2 * win_of(nq)
    mf, pre = f_mfmas(i, nq, mlp2), {}
    ng = len(mf)
    short = i >= w0 and len(f_window(nq)[i - w0][1]) == 2
    for g, x in zip(range(16) if short else TG, f_reads(i + 1, nq)):
        add(pre, g, x)
    for n, (setup, o) in enumerate(vm):
        g = 2 + (n * (ng - 2)) // len(vm)
        assert n == 0 or g - len(setup) > 2 + ((n - 1) * (ng - 2)) // len(vm)
        for k, x in enumerate(setup):
            pre.setdefault(g - len(setup) + k, []).insert(0, x)
        add(pre, g, o)
    e, key = i >> 1, (("f", i & 7) if loop else None)
    nxt = range(e + 1, nq // 2) if e + 1 == w0 // 2 else [e + 1]
    if i >= w0:
        if short:
            add(pre, 7, Wait(lg=[("FT", i, 1)]))
        if i < w0 + len(f_window(nq)) - 1:
            add(pre, ng - 1, Wait(lg=[("FT", i + 1, 0 if short else 1)]))
    elif i & 1:
        add(pre, ng - 1, Wait(vm=[("FX", x) for x in nxt], lg=[("FT", i + 1, 1)], key=key))
    else:
        add(pre, ng - 1, Wait(vm=[("W", 32 + x) for x in nxt], lg=[("FT", i + 1, 1)], key=key), "s_barrier")
    for g, x in extra:
        add(pre, g, x)
    C.weave(mf, pre, {}, bg, cap)


def f_body(C, name, nq, mlp2, bg, D):
    stride = 229376 if mlp2 else 262144
    A_, W_ = (lambda e, h, lp=False: f_act(e, h, nq, stride, lp)), (lambda e, lp=False: f_w(e, nq, lp))
    head = [A_(2, 0) + A_(2, 1), W_(4)[:2] + A_(3, 0) + A_(3, 1)[:2], A_(3, 1)[2:] + W_(4)[2:] + A_(4, 0),
            A_(4, 1) + W_(5)[:2]]
    AL = OPT["alead"]
    if AL == 2:
        head = [A_(2, 0), A_(2, 1) + W_(4)[:2], A_(3, 0) + W_(4)[2:], A_(3, 1) + W_(5)[:2]]
    D.stamp(1, 7)
    for i in range(4):
        up = 32 * OPT["uflag"] if mlp2 else OPT["oupos"]
        ex = [(up % 32, Wait(vm=["U"])), (up % 32 + 1, flag_store(S_FU))] if i == up // 32 else []
        if mlp2 and OPT["nf"] < 7:
            chk = 2 * (OPT["nf"] - AL) - 1
            assert 1 <= chk <= 3
            if i == chk - 1:
                ex.append((0, Op(f"buffer_load_dword {v(V_FLG)}, {v(V_FOFF)}, {s(SR_FLAG, 4)}, {s(S_FO)} offen sc1", "fu3")))
            if i == chk:
                assert not any("vcc" in str(x) for x in bg)
                ex += [(25, Wait(vm=["fu3"])), (26, f"v_cmp_eq_u32 vcc, 0, {v(V_FLG)}"),
                       (29, ["s_or_b32 s44, vcc_lo, vcc_hi", "s_and_b32 s44, 0x7f, s44", "s_cbranch_scc1 L_poll_head",
                             "L_poll_head_ret:"])]
        f_step(C, i, nq, mlp2, head[i], ex, bg)
    assert not bg
    trips = (nq - 4 - TAIL) // 8

    def one(X, i, real):
        e, ex = i >> 1, []
        if i & 1:
            x, w = A_(e + AL, 1, True), W_(e + 4, True)[:2]
        else:
            x, w = A_(e + AL, 0, True), W_(e + 3, True)[2:]
        if mlp2 and i & 7 == 4:
            ex.append((0, f"buffer_load_dword {v(V_FLG)}, {v(V_FOFF)}, {s(SR_FLAG, 4)}, {s(S_FO)} offen sc1"))
        if real and mlp2 and i & 7 == 7:
            ex.append((28, [f"s_cmp_ge_u32 {s(S_CNT)}, {trips - 2}", "s_cbranch_scc1 L_hook_mlp2", "L_hook_mlp2_ret:"]))
        if real and i & 7 == 3:
            ex += [(28, f"s_sub_u32 {s(S_CNT)}, {s(S_CNT)}, 1"), (29, f"s_cmp_lg_u32 {s(S_CNT)}, 0"),
                   (31, f"s_cbranch_scc1 L_{name}_loop")]
        f_step(X, i, nq, mlp2, [x[0], w[0], x[1], x[2], w[1], x[3]], ex, loop=True)
    sim = C.clone_dry()
    sim.record = {}
    for i in range(4, 4 + 8 * trips):
        one(sim, i, False)
    D.stamp(2, 7)
    d = 0 if mlp2 else OPT["osplit"] // 8
    assert trips - d >= 2 + mlp2
    C(f"s_cmp_eq_u32 {s(S_KH)}, 0", f"s_cselect_b32 {s(S_CNT)}, {trips + d}, {trips - d}")
    C.label(f"L_{name}_loop")
    C.fixed = sim.record
    for i in range(4, 12):
        one(C, i, True)
    C.fixed = None
    C.vm, C.lg = sim.vm, sim.lg
    D.stamp(3, 7)
    i0, n = nq - TAIL, nq // 2
    e0 = i0 // 2
    C(f"s_mov_b32 {s(S_AB)}, {s(S_SA)}", f"s_mov_b32 {s(S_WSTEP)}, {s(S_SW)}")
    A_, W_ = (lambda e, h: f_act(e, h, nq, stride, False, e0 - 1 + AL)), (lambda e: f_w(e, nq, False, e0 + 3))
    groups = [(i0, 0, W_(e0 + 3)[2:])]
    for e in range(e0 + AL, n):
        dl = min(2 * e - 1, nq - 2 * win_of(nq) - 1)
        groups += [(0 if e >= n - 2 else 2 * e - 6, dl, A_(e, h)) for h in range(2)]
    for e in range(e0 + 4, n):
        groups.append((0 if e >= n - 4 else 2 * e - 7, min(2 * e - 2, nq - 2 * win_of(nq) - 2) - 0.5, W_(e)))
    groups.sort(key=lambda x: x[1])
    fr = OPT["mrate"] if mlp2 else OPT["frate"]
    rate = lambda i: int(fr * (i - i0 + 1) + 1e-6) - int(fr * (i - i0) + 1e-6)
    plan, cur = {}, []
    for i in range(i0, nq):
        mine = []
        while len(mine) < rate(i):
            if not cur:
                ok = [x for x in groups if x[0] <= i]
                if not ok:
                    break
                groups.remove(ok[0])
                cur = list(ok[0][2])
            mine.append(cur.pop(0))
        plan[i] = mine
    print(name, "closing loads per step", [len(plan[i]) for i in range(i0, nq)], file=sys.stderr)
    return plan, trips


def poll(C, name, soff, sr=None, target=1):
    sr = SR_FLAG if sr is None else sr
    so = s(soff) if soff is not None else "0"
    C(f"s_mov_b32 {s(S_SPIN)}, {SPIN}")
    C.label(f"L_poll_{name}")
    C(f"buffer_load_dword {v(V_FLG)}, {v(V_FOFF)}, {s(sr, 4)}, {so} offen sc1")
    C(f"s_sub_u32 {s(S_SPIN)}, {s(S_SPIN)}, 1", f"s_cbranch_scc1 L_poll_{name}_out", "s_waitcnt vmcnt(0)")
    C(f"v_cmp_gt_u32 vcc, {target}, {v(V_FLG)}", "s_nop 1", "s_cmp_lg_u64 vcc, 0", f"s_cbranch_scc1 L_poll_{name}")
    C.label(f"L_poll_{name}_out")


def flag_store(soff):
    op = "buffer_atomic_or" if OPT["aflag"] else "buffer_store_dword"
    return f"{op} {v(V_ONEI)}, {v(V_L0)}, {s(SR_FLAG, 4)}, {s(soff)} offen sc1"


def pk(op, d, *src):
    return f"v_pk_{op}_f32 {v(d, 2)}, " + ", ".join(x if isinstance(x, str) else v(x, 2) for x in src)


def kh1(r):
    return f"s_and_b32 {r}, {s(S_RANK)}, 1" if OPT["xk"] else f"s_bfe_u32 {r}, s2, 0x10003"


def mlp1_ids():
    tail = ["s_lshl_b32 s49, s49, 2", f"s_lshr_b32 s48, {s(S_W)}, 12", "s_add_u32 s49, s49, s48"]
    gs = [int(c) for c in str(OPT["fg"])]
    assert sum(gs) == 28 and gs[0] >= 6
    sizes = sum(g << (8 * i) for i, g in enumerate(gs))
    starts = sum(sum(gs[:i]) << (8 * i) for i in range(4))
    return [f"s_lshr_b32 s50, {s(S_RANK)}, 1", "s_lshl_b32 s50, s50, 3", f"s_lshr_b32 s51, {sizes}, s50",
            "s_and_b32 s51, s51, 0xff", f"s_lshr_b32 s50, {starts}, s50", "s_and_b32 s50, s50, 0xff",
            "s_lshr_b32 s48, s2, 5", ["s_cmp_lt_u32 s48, s51", "s_cselect_b32 s51, -1, 0"],
            "s_add_u32 s50, s50, s48", "s_and_b32 s50, s50, s51",
            ] + (["s_bfe_u32 s49, s2, 0x20003"] if OPT["xk"] else [
            f"s_and_b32 s49, {s(S_RANK)}, 1", "s_lshl_b32 s49, s49, 1", "s_bfe_u32 s48, s2, 0x10004",
            "s_add_u32 s49, s49, s48"]) + tail


SR_LX, SR_LO, SR_DBG = 12, 68, 72
P_DBG = 50
LN_ST = VBASE + 3 * 16384
FAR = 0x40000000


def split_bf16(w0, w1, x, t, dup):
    out = [f"v_cvt_pk_bf16_f32 {v(w0)}, {v(x)}, {v(x)}", f"v_and_b32 {v(t)}, 0xffff0000, {v(w0)}",
           f"v_sub_f32 {v(t)}, {v(x)}, {v(t)}"]
    if dup:
        return out + [f"v_cvt_pk_bf16_f32 {v(w1)}, {v(t)}, 0"]
    return out + [f"v_and_b32 {v(w1)}, 0xffff, {v(w0)}", f"v_cvt_pk_bf16_f32 {v(w0)}, {v(x)}, {v(t)}"]


def ln_compute(C, D, fill):
    X, RAW = 160, 144
    half = ("v_permlane16_swap_b32",)

    def more():
        if fill:
            C(fill.pop(0))
    C(f"s_mov_b32 s48, {f32(-1.0 / 1024)}", f"s_mov_b32 s49, {f32(1e-5)}", f"s_mov_b32 s50, {f32(QSCALE)}")
    D.stamp(1, 4)
    C(Wait(vm=["x"]))
    D.stamp(2, 4)
    D.stamp(7, 8)
    for i in range(16):
        C(f"v_lshlrev_b32 {v(X + 2 * i)}, 16, {v(RAW + i)}", f"v_and_b32 {v(X + 2 * i + 1)}, 0xffff0000, {v(RAW + i)}")
        if i % 8 == 7:
            more()
    C(pk("add", 192, X, X + 2), pk("add", 194, X + 4, X + 6))
    for i in range(4, 16, 2):
        C(pk("add", 192, 192, X + 2 * i), pk("add", 194, 194, X + 2 * i + 2))
    more()
    C(pk("add", 192, 192, 194), "v_add_f32 v192, v192, v193")
    C(wave_red([192], [194], swaps=half))
    more()
    C("v_mul_f32 v192, s48, v192", "v_mov_b32 v193, v192")
    C([pk("add", X + 2 * i, X + 2 * i, 192) for i in range(16)])
    C(split_bf16(80, 81, 192, 194, True), "v_mov_b64 v[82:83], v[80:81]")
    more()
    C(pk("mul", 192, X, X), pk("mul", 194, X + 2, X + 2))
    for i in range(2, 16, 2):
        C(pk("fma", 192, X + 2 * i, X + 2 * i, 192), pk("fma", 194, X + 2 * i + 2, X + 2 * i + 2, 194))
    more()
    C(pk("add", 192, 192, 194), "v_add_f32 v192, v192, v193")
    C(wave_red([192], [194], swaps=half))
    more()
    C("v_mov_b32 v196, s49", "v_fma_f32 v196, -v192, s48, v196", "v_rsq_f32 v196, v196", "s_nop 0",
      "v_mul_f32 v84, s50, v196", "v_mov_b32 v197, v196")
    C([pk("mul", X + 2 * i, X + 2 * i, 196) for i in range(16)])
    more()
    C(pk("add", 192, X, X + 2), pk("mul", 194, X, X), pk("fma", 194, X + 2, X + 2, 194))
    for i in range(2, 16):
        C(pk("add", 192, 192, X + 2 * i), pk("fma", 194, X + 2 * i, X + 2 * i, 194))
        if i % 8 == 7:
            more()
    C("v_add_f32 v192, v192, v193", "v_add_f32 v193, v194, v195")
    C(wave_red([192, 193], [194, 195], swaps=half))
    more()
    C("v_mul_f32 v192, s48, v192", "v_mul_f32 v193, s48, v193", "v_fma_f32 v193, -v192, v192, -v193",
      "v_max_f32 v193, 0, v193", "v_add_f32 v193, s49, v193", "v_rsq_f32 v196, v193", "s_nop 0",
      f"v_mul_f32 v196, {f32(HS)}, v196", "v_mul_f32 v198, v192, v196", "v_mov_b32 v197, v196", "v_mov_b32 v199, v198")
    for t in range(4):
        C([pk("fma", 200 + 2 * i, X + 8 * t + 2 * i, 196, 198) for i in range(4)])
        C([f"v_cvt_pk_bf16_f32 {v(RAW + 4 * t + i)}, {v(200 + 2 * i)}, {v(201 + 2 * i)}" for i in range(4)])
        C(Op(f"ds_write_b128 v135, {v(RAW + 4 * t, 4)} offset:{512 * t}", "hw"))
        if t & 1:
            more()
    C(fill)
    D.stamp(3, 4)
    D.stamp(8, 8)


def gen_main(C):
    D = Diag(C, 0)
    C.label(NAME + "_kernel")
    C("s_cmp_ge_u32 s2, 256", "s_cbranch_scc1 L_end")
    for m in (1, 4, 5, 8):
        D.stamp(0, m)
    C(f"s_mov_b32 {s(S_FB)}, 0")
    C.label("L_restart")
    C(f"s_load_dwordx2 {s(P_X, 2)}, s[0:1], {KA_X}",
      f"s_load_dwordx2 {s(P_WQ, 2)}, s[0:1], {KA_WQ}", f"s_load_dwordx2 {s(P_WS, 2)}, s[0:1], {KA_WS}",
      f"s_load_dwordx4 {s(P_K, 4)}, s[0:1], {KA_K}", f"s_load_dwordx4 {s(P_W1, 4)}, s[0:1], {KA_W1}",
      f"s_load_dwordx2 {s(P_WO, 2)}, s[0:1], {KA_WO}", f"s_load_dwordx2 {s(P_W2, 2)}, s[0:1], {KA_W2}",
      f"s_load_dwordx2 {s(P_B2, 2)}, s[0:1], {KA_B2}",
      f"s_load_dwordx2 {s(P_OUT, 2)}, s[0:1], {KA_OUT}", f"s_load_dwordx2 {s(P_DBG, 2)}, s[0:1], {KA_DBG}")
    if OPT["pfm"] == 0:
        C(f"v_lshlrev_b32 {v(V_PF)}, 5, v0")
    else:
        nb = 5 - OPT["pfm"] % 2 if OPT["pfm"] < 3 else 4
        C(f"v_bfe_u32 v1, v0, {nb}, {6 - nb}", "v_lshlrev_b32 v1, 28, v1", "v_lshrrev_b32 v2, 6, v0",
          "v_lshl_add_u32 v1, v2, 11, v1", f"v_and_b32 v2, {(1 << nb) - 1}, v0",
          f"v_lshl_add_u32 {v(V_PF)}, v2, {11 - nb}, v1")
    C(code_srd(SR_PF, "L_early_code", "L_attn_last", "a"))
    C(f"s_bfe_u32 {s(S_PFC)}, s2, 0x20003", f"s_add_u32 {s(S_PFC)}, {s(S_PFC)}, 1",
      f"s_lshl_b32 {s(S_PFC)}, {s(S_PFC)}, 13")
    if OPT["pf"]:
        C(f"buffer_load_dword v59, {v(V_PF)}, {s(SR_PF, 4)}, 0 offen")
        if OPT["cpos"] < 0:
            C(f"buffer_load_dword v59, {v(V_PF)}, {s(SR_PF, 4)}, {s(S_PFC)} offen")
    C("v_and_b32 v1, 63, v0", "v_lshrrev_b32 v2, 6, v0", "v_lshrrev_b32 v3, 4, v1",
      f"v_readfirstlane_b32 {s(S_W)}, v2", "v_and_b32 v2, 15, v1", "v_lshlrev_b32 v1, 4, v1",
      f"s_lshl_b32 {s(S_W)}, {s(S_W)}, 12", f"s_lshl_b32 {s(S_W2)}, {s(S_W)}, 1")
    C("v_lshrrev_b32 v132, 5, v0", "v_lshrrev_b32 v136, 2, v132", "v_lshlrev_b32 v136, 4, v136",
      "v_and_b32 v134, 3, v132", "v_add_u32 v136, v136, v134", "v_and_b32 v134, 31, v0",
      "v_lshlrev_b32 v134, 4, v134", "v_lshl_add_u32 v133, v136, 11, v134")
    C("s_lshr_b32 s42, s2, 2", "s_and_b32 s43, s2, 3", "s_lshl_b32 s42, s42, 3", "s_add_u32 s42, s42, s43",
      "s_lshl_b32 s49, s42, 13")
    C("s_and_b32 s46, s2, 31", "s_lshr_b32 s47, s2, 5", f"s_lshl_b32 {s(S_SW)}, s47, 20",
      f"s_sub_u32 {s(S_SW)}, {s(S_SW)}, {WQSTEP}", f"s_lshl_b32 {s(S_XB)}, s47, 8", f"s_sub_u32 {s(S_XB)}, {s(S_XB)}, 128",
      "s_lshl_b32 s47, s47, 2", f"s_lshr_b32 s48, {s(S_W)}, 12", "s_add_u32 s47, s47, s48")
    C(wq_dma_offsets(62), x_dma_offsets(62))
    C("s_waitcnt lgkmcnt(0)")
    D.stamp(1, 8)
    C(srd(SR_LX, P_X, "s49", 40960))
    lnx = [Op(f"buffer_load_dwordx4 {v((100 if OPT['noln'] else 144 + 4 * t), 4)}, v133, {s(SR_LX, 4)}, 0 offen offset:{512 * t}", "x")
           for t in range(4)]
    if not OPT["noln"]:
        C(lnx)
    D.stamp(2, 8)
    C("s_lshl_b32 s48, s46, 8", f"s_sub_u32 s49, {8 * MB}, s48", srd(SR_W, P_WQ, "s48", "s49"))
    C("s_lshl_b32 s48, s47, 17", srd(SR_ACT, P_X, "s48", 131072))

    st = []

    def grp(setup, ops, earliest, post=None):
        for i, o in enumerate(ops):
            st.append((setup if i == 0 else [], o, earliest, post if i == len(ops) - 1 else None))

    def gW(e):
        grp([set_m0(VBASE + (e & 3) * 16384),
             [f"s_add_u32 {s(S_SW)}, {s(S_SW)}, {WQSTEP}", f"s_and_b32 {s(S_SW)}, {s(S_SW)}, {8 * MB - 1}"]],
            [dma(V_OW + i, SR_W, S_SW, i, ("QW", e)) for i in range(4)], 1 if e == 3 else 2 * e - 7)

    def gX(e, h):
        prev = 13 if e == 15 else e - 3
        so = [f"s_add_u32 {s(S_SA)}, {s(S_XB)}, 65536"] if h else [
            f"s_add_u32 {s(S_XB)}, {s(S_XB)}, 128", f"s_and_b32 {s(S_XB)}, {s(S_XB)}, 2047"]
        grp([f"s_add_u32 m0, {s(S_W2)}, {x_slot(e) + 4096 * h}", so],
            [dma(V_XO4 + i, SR_ACT, S_SA if h else S_XB, i, ("QX", e, h)) for i in range(4)],
            max(2 * prev - 1 + h, 0) if prev >= 0 else -9)

    def gT(ops, earliest):
        grp([ops[0]], ops[1:5], earliest, ops[5])
    gW(0); gX(0, 0); gX(0, 1)
    for e in range(1, 15):
        gX(e, 0); gW(e); gX(e, 1)
    gW(15); gX(15, 0); gX(15, 1)
    for ops, t in ((k_dma(0), 25), (k_dma(1), 26), (v_dma(0), 27), (k_dma(2), 29), (v_dma(1), 29), (k_dma(3), 30),
                   (v_dma(2), 31)):
        gT(ops, t)
    for n in range(OPT["qpre"]):
        setup, o, _, _ = st.pop(0)
        C(setup, o)
    fill = [[x[0], x[1]] for x in st[:OPT["qpro"]]]
    assert all(x[2] < 0 for x in st[:OPT["qpro"]])
    del st[:OPT["qpro"]]
    t0 = V_NEGM
    D.stamp(3, 8)
    C("s_branch L_early_code", ".p2align 12", "L_early_code:", "; region a")
    D.stamp(4, 8)
    C(q_read_addrs(V_QA, t0), x_read_addrs(t0))
    C(f"v_lshrrev_b32 {v(t0)}, 1, v2", f"v_lshrrev_b32 {v(t0 + 1)}, 1, v3",
      f"v_cmp_eq_u32 vcc, {v(t0)}, {v(t0 + 1)}", f"v_mov_b32 {v(t0)}, 0x3f803f80", f"v_and_b32 {v(t0 + 1)}, 1, v2")
    C([f"v_cndmask_b32 {v(V_ONE + i)}, 0, {v(t0)}, vcc" for i in range(4)])
    C(f"v_mul_u32_u24 {v(t0 + 1)}, 0xaaaa, {v(t0 + 1)}", f"v_add_u32 {v(V_IDX)}, 0x4444, {v(t0 + 1)}")
    C([f"v_mov_b64 {v(V_CS + 2 * i, 2)}, 0" for i in range(4)])
    C(srd(SR_LO, P_WS, 0, 48 * MB), srd(SR_DBG, P_DBG, 0, 256))
    first_wave = [f"s_or_b32 s48, s2, {s(S_W)}", f"s_or_b32 s48, s48, {s(S_FB)}"]
    if OPT["go"]:
        C(first_wave, "s_cbranch_scc0 L_clear", "L_clear_ret:")
    C("v_lshl_add_u32 v135, v132, 11, v134", f"v_add_u32 v135, {LN_ST}, v135")
    C("v_bfe_u32 v96, v0, 2, 2", "v_lshlrev_b32 v96, 11, v96", "v_lshl_add_u32 v96, v132, 6, v96",
      "v_bfe_u32 v141, v0, 4, 1", "v_lshl_add_u32 v96, v141, 3, v96", "v_and_b32 v140, 3, v0",
      "v_lshl_add_u32 v96, v140, 4, v96", f"v_add_u32 v96, {LN_ST}, v96")
    C("v_lshlrev_b32 v85, 17, v132", "v_lshl_add_u32 v85, v141, 10, v85", "v_lshl_add_u32 v85, v2, 4, v85")
    C("s_lshl_b32 s48, s42, 2", "v_add_u32 v136, s48, v136", "v_min_u32 v134, 1, v134", "v_lshlrev_b32 v134, 30, v134",
      "v_lshl_add_u32 v86, v136, 4, v134", "v_lshl_add_u32 v87, v136, 2, v134")
    C("s_lshr_b32 s42, s2, 2", "s_lshl_b32 s42, s42, 11", "s_lshl_b32 s43, s43, 8", "s_add_u32 s43, s43, s42",
      f"s_add_u32 s43, s43, {WS_HF}", "v_add_u32 v85, s43, v85")
    C(fill[:OPT["qmid"]])
    del fill[:OPT["qmid"]]
    D.stamp(5, 8)
    if OPT["warm"] & 1:
        C(warm_call("a", s(S_W)))
    C(fill[:OPT["qmid2"]])
    del fill[:OPT["qmid2"]]
    D.stamp(6, 8)
    if OPT["pf"] and OPT["cpos"] >= 0:
        fill.insert(OPT["cpos"], [f"buffer_load_dword v59, {v(V_PF)}, {s(SR_PF, 4)}, {s(S_PFC)} offen"])
    if OPT["noln"]:
        C(fill, lnx, Op("ds_write_b128 v135, v[144:147]", "hw"), "v_mov_b64 v[80:81], 0", "v_mov_b64 v[82:83], 0",
          f"v_mov_b32 v84, {f32(20 * QSCALE)}")
    else:
        ln_compute(C, D, fill)
    if OPT["go"]:
        assert OPT["cpos"] < 0
        C(first_wave, "s_cbranch_scc0 L_open", "L_open_ret:")
    C(Wait(vm=[("QW", 0), ("QX", 0, 1)]), x_reads(0, 0), x_reads(0, 1), Wait(lg=["hw"]), "s_barrier")
    D.stamp(4, 4)
    first = [Op(x.text, ("Q0", m >> 2)) for m, x in enumerate(q_reads(0))]
    C(first)
    hrd = [f"ds_read_b64_tr_b16 {v(64 + 2 * t, 2)}, v96 offset:{8192 * (t & 1) + 512 * (t >> 1)}" for t in range(8)]
    bg = ["v_lshrrev_b32 v88, 4, v0", f"v_or_b32 v88, {s(S_FB)}, v88", "v_min_u32 v88, 1, v88",
          "v_lshlrev_b32 v88, 30, v88", "v_lshl_add_u32 v88, v0, 2, v88", "v_mov_b32 v89, 0",
          f"v_or_b32 v95, {s(S_FB)}, v0", "v_lshlrev_b32 v95, 8, v95", "v_min_u32 v97, 1, v95", "v_lshlrev_b32 v97, 30, v97", f"v_mov_b32 {v(V_ONEI)}, 1",
          "v_min_u32 v94, 1, v3", "v_lshlrev_b32 v94, 30, v94", "v_lshl_add_u32 v94, v2, 4, v94"]
    bg += ["s_lshl_b32 s48, s46, 19"] + srd(SR_K, P_K, "s48", 524288) + srd(SR_V, P_V, "s48", 524288)
    bg += ["s_lshl_b32 s48, s47, 19", "s_lshl_b32 s49, s46, 13", "s_add_u32 s48, s48, s49",
           f"s_add_u32 s48, s48, {WS_OF}"] + srd(SR_ST, P_WS, "s48", 262144 + 8192)
    bg += ["s_mul_i32 s48, s2, 57344"] + srd(SR_PF + 4, P_W1, "s48", 57344)
    bg += [f"s_mov_b32 {s(S_PF)}, 0", f"s_mov_b32 {s(S_CNT)}, 7"]
    bg += v_read_addrs(V_VA, t0)
    bg += [f"v_xor_b32 {v(t0)}, v2, v3", f"v_lshlrev_b32 {v(t0)}, 4, {v(t0)}", f"v_lshl_add_u32 {v(t0)}, v2, 8, {v(t0)}",
           f"s_lshr_b32 s48, {s(S_W)}, 6", f"v_xor_b32 {v(t0)}, s48, {v(t0)}"]
    bg += [f"v_xor_b32 {v(V_KA + ks)}, {ks * 64}, {v(t0)}" for ks in range(4)]
    bgc = []
    for h in range(2):
        d = V_CS + 4 * h
        bgc += [f"v_add_f32 {v(d)}, {v(d)}, {v(d + 1)}", f"v_add_f32 {v(d + 2)}, {v(d + 2)}, {v(d + 3)}",
                f"v_add_f32 {v(d)}, {v(d)}, {v(d + 2)}"] + split_bf16(90 + 2 * h, 91 + 2 * h, d, d + 1, False)
    bgc += ["s_lshl_b32 s42, s46, 13", f"s_add_u32 s42, s42, {WS_CS}", f"s_lshr_b32 s48, {s(S_W)}, 1",
            "s_add_u32 s42, s42, s48", "s_lshr_b32 s48, s2, 6", "s_lshl_b32 s48, s48, 8", "s_bfe_u32 s49, s2, 0x10005",
            "s_lshl_b32 s49, s49, 3", "s_add_u32 s48, s48, s49", "s_add_u32 s51, s42, s48"]
    bgc += [Op(f"buffer_store_dwordx2 {v(90 + 2 * h, 2)}, v94, {s(SR_LO, 4)}, s51 offen offset:{1024 * h} sc1", "pub")
            for h in range(2)]
    bgc += [f"v_lshlrev_b32 {v(t0)}, 8, v3", f"v_add_u32 {v(t0)}, {s(S_W)}, {v(t0)}", f"v_xor_b32 {v(t0 + 1)}, v2, v3"]
    for i in range(4):
        bgc += [f"v_xor_b32 {v(t0 + 2)}, {4 * i}, {v(t0 + 1)}", f"v_lshl_add_u32 {v(V_OK + i)}, {v(t0 + 2)}, 4, {v(t0)}"]
    bgc += [f"v_lshlrev_b32 {v(t0 + 1)}, 1, v3", f"v_xor_b32 {v(t0 + 1)}, {v(t0 + 1)}, v2"]
    for i in range(2):
        bgc += [f"v_xor_b32 {v(t0 + 2)}, {8 * (i & 1)}, {v(t0 + 1)}",
                f"v_lshl_add_u32 {v(V_OV + i)}, {v(t0 + 2)}, 4, {v(t0)}"]
    bgc += [f"v_mov_b32 {v(V_L + i)}, 0" for i in range(8)]
    bgc += [f"v_accvgpr_write_b32 {a(A_O + i)}, 0" for i in range(48, 128)]
    bgc += [f"v_lshrrev_b32 {v(V_FOFF)}, 2, {v(V_LANE16)}"] * (1 - OPT["go"]) + ["v_lshlrev_b32 v62, 4, v2", "v_lshlrev_b32 v63, 2, v2"]
    hst = [[f"s_mov_b32 {s(S_SW)}, {t * MB}",
            Op(f"buffer_store_dwordx4 {v(64 + 4 * t, 4)}, v85, {s(SR_LO, 4)}, {s(S_SW)} offen sc1", ("hs",)), None]
           for t in range(4)]
    pub = [["s_nop 0", Op(f"buffer_store_dwordx4 v[80:83], v86, {s(SR_LO, 4)}, 0 offen sc1", "pub"), None],
            [f"s_mov_b32 s50, {WS_RS}", Op(f"buffer_store_dword v84, v87, {s(SR_LO, 4)}, s50 offen sc1", "pub"), None],
            [["s_lshl_b32 s50, s2, 6", f"s_add_u32 s50, s50, {WS_FLAG}"],
             Op(f"buffer_store_dword v89, v88, {s(SR_LO, 4)}, s50 offen sc1", "pub"), None]]
    corr = [[f"s_xor_b32 s50, s42, {(b >> 1) * 2048}",
             Op(f"buffer_load_dwordx4 {a(A_CA + 4 * b, 4)}, {v(V_LANE16)}, {s(SR_LO, 4)}, s50 offen "
                f"offset:{(b & 1) * 1024} sc1", "corr"), None] for b in range(8)]
    corr += [["s_lshl_b32 s50, s47, 10",
              Op(f"buffer_load_dwordx4 {a(A_CB + 4 * q, 4)}, v62, {s(SR_LO, 4)}, s50 offen offset:{256 * q} sc1", "corr"),
              None] for q in range(4)]
    corr += [[["s_lshl_b32 s50, s47, 8", f"s_add_u32 s50, s50, {WS_RS}"],
              Op(f"buffer_load_dword {v(V_NEGM + 4 * q + 2)}, v63, {s(SR_LO, 4)}, s50 offen offset:{64 * q} sc1", "corr"),
              None] for q in range(4)]
    bg1 = ["s_mul_i32 s48, s2, 57344"] + srd(SR_PF + 8, P_W2, "s48", 57344)
    bg1 += ["s_lshl_b32 s48, s2, 15"] + srd(SR_PF + 12, P_WO, "s48", 32768)
    bg2 = srd(SR_ACT, P_WS, WS_FLAG, FL_SIZE)
    bg2 += fill_srd() + ["s_lshl_b32 s48, s47, 5", "s_add_u32 s48, s48, s46", f"s_mul_i32 {s(S_SA)}, s48, 12288",
                         f"s_add_u32 {s(S_W2)}, {s(S_SA)}, 10240", f"s_lshl_b32 {s(S_XB)}, s48, 13",
                         f"s_add_u32 {s(S_XB)}, {s(S_XB)}, {12 * MB}"]
    bg2 += w_dma_offsets(V_OW, 7168, 62, 48) + code_srd(SR_PF, "L_attn_last", "L_code_end", "b")
    bg2 += [f"s_bfe_u32 {s(S_PFC)}, s2, 0x40003", f"s_lshl_b32 {s(S_PFC)}, {s(S_PFC)}, 13"]
    bg2 += ["s_lshr_b32 s48, s2, 3", f"s_or_b32 s48, s48, {s(S_W)}", f"s_or_b32 s48, s48, {s(S_FB)}",
            "s_min_u32 s48, s48, 1", "s_lshl_b32 s48, s48, 20", f"v_lshl_add_u32 v31, {v(V_LANE16)}, 16, s48",
            "v_mov_b32 v30, 1", "v_mov_b32 v62, 0", "v_lshlrev_b32 v63, 12, v95", f"s_movk_i32 s50, {FL_T}", "s_and_b32 s51, s2, 7",
            "s_lshl_b32 s51, s51, 7", f"s_add_u32 s51, s51, {FL_T + 128}"]
    C(Wait(lg=[("Q0", 0)]))
    D.stamp(1)
    D.stamp(5, 4)
    D.stamp(9, 8)
    C("; ---- Q projection (32 steps) followed by Q packing and the first two score units")
    C.label("L_q_code")
    tg = [g for g in range(24) if g % 3 != 2]
    P0, PB, CH = OPT["pub0"], OPT["pubb"], OPT["chk"]
    pre2 = {}
    for j in range(32):
        pre, valu, ng = {}, {}, 48 if j >= 30 else 32
        reads = q_reads(j + 1) if j < 31 else k_reads(0, A_KF)
        if j == 0:
            for g, x in zip([g for g in range(28) if g not in (14, 17, 20, 23)], hrd + reads):
                add(pre, g, x)
            for k in (1, 2, 3):
                add(pre, 8 * k - 2, Wait(lg=[("Q0", k)]))
        else:
            for g, x in zip(tg, reads):
                add(pre, g, x)
        if j < 30:
            add(pre, 13, Wait(vm=[("QX", j // 2 + 1, j & 1)]))
            for g, x in zip((14, 17, 20, 23), x_reads(j // 2 + 1, j & 1)):
                add(pre, g, x)
        if j in (0, 2):
            for h in range(2):
                valu[7 + 8 * h] = [f"v_smfmac_f32_16x16x64_bf16 {v(V_CS + 4 * h, 4)}, {v(V_ONE, 4)}, "
                                   f"{a(A_WF[0] + 8 * h, 8)}, {v(V_IDX)}"]
        mine = []
        if j >= P0 and pub:
            mine += [([x[0]], x[1], 0, x[2]) for x in pub[:1]]
            del pub[:1]
        if j >= 25 and hst:
            assert not any(x[1].tag[0] == "QW" for x in st)
            mine += [([x[0]], x[1], 0, x[2]) for x in hst[:1]]
            del hst[:1]
        if j > CH and corr:
            mine += [([x[0]], x[1], 0, x[2]) for x in corr[:4]]
            del corr[:4]
        lim = min(10, OPT["qrate"] + (len(mine) if j > CH else 0))
        while st and st[0][2] <= j and len(mine) < lim:
            mine.append(st.pop(0))
        for n, (setup, o, _, post) in enumerate(mine):
            g = 2 + (n * (ng - 2)) // max(len(mine), 1)
            assert n == 0 or g - len(setup) > 2 + ((n - 1) * (ng - 2)) // len(mine)
            for k, x in enumerate(setup):
                if x != "s_nop 0":
                    pre.setdefault(g - len(setup) + k, []).insert(0, x)
            add(pre, g, o)
            if post:
                pre.setdefault(g + 1, []).insert(0, post)
        if j == 31:
            add(pre, ng - 1, Wait(lg=[("KR", 0)]))
        elif j & 1:
            add(pre, 31, Wait(vm=["corr"] if j == 29 else [], lg=["*"]))
        else:
            need = [("QW", j // 2 + 1)] if j < 30 else [("K", 0)]
            if j == PB:
                assert C.vm.count("pub") == 5
                need += ["pub"] + ["go"] * OPT["go"]
            add(pre, ng - 1, Wait(vm=need, lg=["*"]), "s_barrier")
        if j == PB + 1:
            if OPT["go"]:
                add(pre, 20, f"v_cmp_eq_u32 vcc, 0, {v(V_FLG)}")
                add(pre, 24, ["s_cmp_lg_u64 vcc, 0", "s_cbranch_scc1 L_spin_go", "L_spin_go_ret:"])
                add(pre, 26, f"v_lshlrev_b32 {v(V_FOFF)}, 7, v2")
                add(pre, 27, ["s_and_b32 s50, s2, 15", "s_lshl_b32 s50, s50, 7"])
                add(pre, 28, f"s_add_u32 s50, s50, {WS_FLAG + FL_A}")
                add(pre, 30, f"buffer_atomic_add {v(V_ONEI)}, v97, {s(SR_LO, 4)}, s50 offen sc1")
            else:
                add(pre, 28, ["s_and_b32 s50, s2, 63", "s_lshl_b32 s50, s50, 2"])
                add(pre, 30, f"buffer_atomic_add {v(V_ONEI)}, v95, {s(SR_DBG, 4)}, s50 offen sc1")
        if j == PB - 3 and OPT["go"]:
            add(pre, 30, Op(f"buffer_load_dword {v(V_FLG)}, v89, {s(SR_DBG, 4)}, 0 offen sc1", "go"))
        if j in (9, 19) and OPT["pf"]:
            add(pre, 0, f"buffer_load_dword v59, {v(V_PF)}, {s(SR_PF, 4)}, {s(S_PFC)} offen")
        if j == CH - 4:
            if OPT["go"]:
                add(pre, 29, f"s_mov_b32 s51, {WS_FLAG + FL_A}")
                add(pre, 30, Op(f"buffer_load_dword {v(V_FLG)}, {v(V_FOFF)}, {s(SR_LO, 4)}, s51 offen sc1", "fh"))
            else:
                add(pre, 30, Op(f"buffer_load_dword {v(V_FLG)}, {v(V_FOFF)}, {s(SR_DBG, 4)}, 0 offen sc1", "fh"))
        if j == 3:
            bg = bg + bgc
        if j == CH:
            assert not bg
            add(pre, 24, Wait(vm=["fh"]))
            add(pre, 25, f"v_cmp_gt_u32 vcc, {16 if OPT['go'] else 4}, {v(V_FLG)}")
            add(pre, 29, ["s_cmp_lg_u64 vcc, 0", "s_cbranch_scc1 L_spin_h", "L_spin_h_ret:"])
        if j == 24:
            add(pre, 30, [f"s_mov_b32 {s(S_SK)}, 0", f"s_mov_b32 {s(S_SV)}, 0"])
        if j == 29:
            assert not corr and not hst and not bg
            bg = bg1
        if j == 27:
            assert not bg and not any(x[1].tag[0] in ("QX", "QW") for x in st + mine)
            bg = bg2
        if j in (0, 2, 4, 6, 8, 12, 16, 20, 24, 28):
            D.stamp((0, 2, 4, 6, 8, 12, 16, 20, 24, 28).index(j), 6)
        if j in (4, 8, 16, 24):
            D.stamp(6 + (4, 8, 16, 24).index(j), 4)
        if j < 30:
            C.weave(q_mfmas(j), pre, valu, bg)
        else:
            pre2.update({g + 48 * (j - 30): x for g, x in pre.items()})
    assert not bg and not st
    D.stamp(2)
    pre = pre2
    for g, x in enumerate(k_reads(1, A_VF)):
        add(pre, 96 + g, x)
    add(pre, 112, Wait(vm=[("K", 1), ("V", 0), ("hs",)], lg=[("KR", 1)]), "s_barrier")
    add(pre, 114, ["s_and_b32 s48, s2, 63", "s_lshl_b32 s48, s48, 2", f"s_add_u32 s48, s48, {FL_H}"])
    add(pre, 116, f"buffer_atomic_add v30, v63, {s(SR_ACT, 4)}, s48 offen sc1")
    kd = k_dma(4)
    add(pre, 121, kd[0])
    add(pre, 122, kd[1])
    add(pre, 126, kd[2])
    for i in range(4):
        add(pre, 120 + i, f"v_mov_b32 {v(V_QA + i)}, -1")
    add(pre, 146, fill_store(SR_W, s(S_XB), 0))
    for g, x in enumerate(k_reads(2, A_KF)):
        add(pre, 129 + 2 * g, x)
    bg = []
    for j in (30, 31):
        for n, (bl, q) in enumerate(q_order(j)):
            b = 4 * (j & 1) + bl
            src, F = V_ACC + (b * 4 + q) * 4, V_Q + (q * 4 + (b >> 1)) * 4 + 2 * (b & 1)
            bg.append(("at", 48 * (j - 30) + 3 * n + 7))
            bg += [f"v_mul_f32 {v(src + i)}, {v(src + i)}, {v(V_NEGM + 4 * q + 2)}" for i in range(4)]
            bg += [f"v_cvt_pk_bf16_f32 {v(F + i)}, {v(src + 2 * i)}, {v(src + 2 * i + 1)}" for i in range(2)]
    zero = []
    valu = {100 + 8 * i + 3: [f"v_mfma_f32_32x32x16_bf16 {a(A_O + 16 * i, 16)}, {v(V_L, 4)}, {v(V_L, 4)}, 0"]
            for i in range(3)}
    for u in range(2):
        for q in range(4):
            bg += zero[:6]
            del zero[:6]
            bg.append(("at", 96 + 32 * u + 8 * q + 14))
            bg += max_ops(u, q, u == 0)
    n0 = len(C.A.lines)
    C.weave(q_mfmas(30) + q_mfmas(31) + qk_mfmas(0, A_KF, True, True) + qk_mfmas(1, A_VF, True, True), pre, valu, bg,
            cap=lambda g: 3 if OPT["qc0"] <= g < OPT["qc1"] else 2)
    check_order(C.A.lines[n0:])
    C(v_reads(0, A_VF)[:4])
    C(nops(4))
    C.drain(bg)
    C(wave_red([V_NEGM + 4 * q for q in range(4)], [V_NEGM + 4 * q + 1 for q in range(4)], "v_max_f32", False))
    C(f"s_mov_b32 s48, {f32(-OPT['bias'])}", f"s_cmp_lg_u32 {s(S_FB)}, 0", "s_cbranch_scc1 L_fb_hook")
    C.label("L_fb_ret")
    for q in range(4):
        C(f"v_sub_f32 {v(V_NEGM + 4 * q)}, s48, {v(V_NEGM + 4 * q)}")
    for q in range(4):
        C(f"v_mov_b32 {v(V_NEGM + 4 * q + 1)}, {v(V_NEGM + 4 * q)}")
    for q in range(4):
        C(f"v_mov_b64 {v(V_NEGM + 4 * q + 2, 2)}, {v(V_NEGM + 4 * q, 2)}")
    for u in range(2):
        for k in range(16):
            C(pk("add", V_S[u] + 2 * k, V_S[u] + 2 * k, V_NEGM + 4 * ((k >> 1) & 3)))
    C([x if x else "s_nop 0" for x in sm_seq(0, 0, 4) + sm_seq(1, 0, 2)])
    C(Wait(lg=[("KR", 2)]))
    D.stamp(3)
    D.stamp(8, 5)
    C("s_branch L_attn_entry")
    sim = C.clone_dry()
    sim.record = {}
    for n in range(28):
        epoch(sim, n, False, n == 0)
    C.label("L_hook")
    C(f"s_cmp_eq_u32 {s(S_CNT)}, 2", "s_cbranch_scc1 L_hook_b", f"s_cmp_eq_u32 {s(S_CNT)}, 1",
      "s_cbranch_scc1 L_hook_c")
    C.A(f"buffer_atomic_add v30, v31, {s(SR_ACT, 4)}, s50 offen sc0 sc1", "s_branch L_hook_ret")
    C.label("L_hook_b")
    C.A("v_add_u32 v30, 1, v30", f"buffer_store_dword v30, v31, {s(SR_ACT, 4)}, s51 offen sc1", "s_branch L_hook_ret")
    C.label("L_hook_c")
    if OPT["warm"] & 2:
        C(warm_call("b", s(S_W)))
    C.A(f"v_lshrrev_b32 v31, 2, {v(V_LANE16)}", f"s_movk_i32 s50, {FL_H}",
        f"buffer_load_dword v63, v62, {s(SR_ACT, 4)}, s51 offen sc1",
        f"buffer_load_dword v30, v31, {s(SR_ACT, 4)}, s50 offen sc1", "s_branch L_hook_ret")
    C(".p2align 6")
    C.label("L_attn_loop")
    C.fixed = sim.record
    for n in range(4, 8):
        epoch(C, n, True)
    C.fixed = None
    C.vm, C.lg = sim.vm, sim.lg
    C.label("L_attn_last")
    C("; region b")
    C(nops(1) * OPT["pad1"])
    bg = [f"v_readfirstlane_b32 {s(S_RANK)}, v63", "v_cmp_gt_u32 vcc, 4, v30", None,
          ["s_cmp_lg_u64 vcc, 0", f"s_cselect_b32 {s(S_RANK)}, 0, {s(S_RANK)}"],
          [f"s_cmp_eq_u32 {s(S_RANK)}, 0", "s_cbranch_scc1 L_spin_r", "L_spin_r_ret:"],
          f"s_sub_u32 {s(S_RANK)}, {s(S_RANK)}, 1" if OPT["rank"] else f"s_mov_b32 {s(S_RANK)}, s2",
          f"s_and_b32 {s(S_RANK)}, {s(S_RANK)}, 7"]
    bg += mlp1_ids() + [kh1("s44"), "s_lshl_b32 s48, s49, 18", "s_lshl_b32 s49, s44, 12",
                        "s_add_u32 s48, s48, s49", f"s_add_u32 s48, s48, {WS_HF}", f"s_and_b32 s49, s51, {262144 - 4096}"]
    bg += srd(SR_ACT, P_WS, "s48", "s49")
    bg += ["s_lshl_b32 s50, s50, 8", f"s_mul_i32 s48, s44, {W1STEP}", "s_add_u32 s48, s48, s50",
           f"s_sub_u32 s49, {2048 * 7168}, s48", "s_and_b32 s49, s49, s51"]
    bg += srd(SR_K, P_W1, "s48", "s49")
    bg += ["s_lshl_b32 s44, s44, 7", "s_add_u32 s48, s50, s44", "s_and_b32 s49, s51, 128"] + srd(SR_W, P_B1, "s48", "s49")
    bg += [f"v_mov_b32 {v(V_OK + i)}, {v(V_OW + i)}" for i in range(4)]
    bg += [f"s_mov_b32 {s(S_SW)}, 0", "v_lshlrev_b32 v62, 3, v3", "s_xor_b32 s44, s44, 128"]
    for n in range(28, 31):
        epoch(C, n, False, False, bg)
    D.stamp(4)
    D.stamp(9, 5)
    mf = pv_mfmas(61, A_VF)
    mf = mf[:8] + [l_mfma(61, 0)] + mf[8:24] + [l_mfma(61, 1)] + mf[24:]
    m2 = pv_mfmas(62, A_KF, True)
    mf += m2[:8] + [l_mfma(62, 0)] + m2[8:16] + [l_mfma(62, 1)] + m2[16:]
    m3 = pv_mfmas(63, A_VF)
    mf += m3[:2] + [l_mfma(63, 0)] + m3[2:4] + [l_mfma(63, 1)] + m3[4:]
    pre = {}
    for g, x in enumerate(v_reads(62, A_KF)):
        add(pre, 2 * g + 1 if g < 12 else 12 + g, x)
    add(pre, 33, Wait(lg=[("VR", 62)]))
    for g, x in enumerate(v_reads(63, A_VF)):
        add(pre, 35 + 2 * g if g < 10 else 45 + g, x)
    add(pre, 67, Wait(vm=[("W", 0), ("GX", 0), "b1"], lg=[("VR", 63)]), "s_barrier")
    for b in range(4):
        add(pre, 1 + 2 * b, Op(f"buffer_load_dwordx2 {v(V_B1 + 2 * b, 2)}, v62, {s(SR_W, 4)}, 0 offen offset:{32 * b}", "b1"))
    for g, (setup, o) in zip(range(11, 100, 6), g_act(2, 0) + g_act(2, 1) + g_w(5)):
        for k, x in enumerate(setup):
            pre.setdefault(g - len(setup) + k, []).insert(0, x)
        add(pre, g, o)
    for g, x in enumerate(g_reads(0)):
        add(pre, 80 + g, x)
    add(pre, 101, Wait(lg=[("GT", 0)]))
    bg = sm_seq(63, 0, 4) + [("at", 61)]
    for b in range(8):
        bg += [f"v_xor_b32 {v(V_VA + b)}, s44, {v(V_VA + b)}", f"v_subrev_u32 {v(V_WA0 + b)}, {VBASE}, {v(V_VA + b)}"]
    bg.append(("at", 68))
    for b in range(4):
        d = g_acc(4 + b, 3)
        for i in range(2):
            bg += [f"v_lshlrev_b32 {v(d + 2 * i)}, 16, {v(V_B1 + 2 * b + i)}",
                   f"v_and_b32 {v(d + 2 * i + 1)}, 0xffff0000, {v(V_B1 + 2 * b + i)}"]
        bg += [f"v_mul_f32 {v(d + i)}, {f32(HS)}, {v(d + i)}" for i in range(4)]
    n0 = len(C.A.lines)
    C.weave(mf, pre, {}, bg, cap=lambda g: 3 if g < OPT["tcap"] else 2)
    assert not bg, len(bg)
    check_order(C.A.lines[n0:])
    D.stamp(5)
    T = 16
    bg = [("at", 2)] + [f"v_add_f32 {v(V_L + 2 * q)}, {v(V_L + 2 * q)}, {v(V_L + 2 * q + 1)}" for q in range(4)]
    bg += wave_red([V_L + 2 * q for q in range(4)], [V_L + 2 * q + 1 for q in range(4)], dpp=False)
    n_vote = len(bg)
    bg += [f"v_accvgpr_read_b32 {v(T + i)}, {a(A_O + 4 * (i >> 1) + 17 * (i & 1))}" for i in range(8)]
    bg += [f"v_max_f32_e64 {v(T + 2 * q)}, abs({v(T + 2 * q)}), abs({v(T + 2 * q + 1)})" for q in range(4)]
    bg += [f"s_mov_b32 s48, {f32(OPT['thresh'])}", f"s_mov_b32 s49, {1 << 19}",
           f"v_min3_u32 {v(T)}, {v(T)}, {v(T + 2)}, {v(T + 4)}", f"v_min_u32 {v(T)}, {v(T)}, {v(T + 6)}",
           f"v_add_f32 v63, {v(V_L)}, {v(V_L + 2)}", f"v_add_f32 v62, {v(V_L + 4)}, {v(V_L + 6)}",
           f"v_cmp_gt_u32 s[50:51], s49, {v(T)}",
           "v_add_f32 v62, v62, v63", "v_cmp_nge_f32 vcc, s48, v62", f"v_mov_b32 v63, {s(S_W)}",
           "v_lshrrev_b32 v63, 10, v63", f"v_add_u32 v63, {VOTE}, v63",
           ["s_or_b64 vcc, vcc, s[50:51]", f"s_cselect_b32 s48, 1, {OPT['force_fb']}"], "v_mov_b32 v62, s48",
           Op("ds_write_b32 v63, v62", "vote")]
    bg += [f"v_mov_b32 v63, {VOTE}"]
    vote = []
    if OPT["vlate"]:
        vote, bg = bg[n_vote:], bg[:n_vote]
    bg += [f"v_rcp_f32 {v(V_L + 2 * q + 1)}, {v(V_L + 2 * q)}" for q in range(4)]
    n = 0
    for q in range(4):
        for p in range(4):
            t = (12, 20)[n & 1]
            if n == OPT["vlate"] and n:
                bg += vote
            bg.append(("step", n * OPT["opace"] // 10))
            for hb, z in ((0, 4), (1, 16)):
                bg += [f"v_accvgpr_read_b32 {v(z + i)}, {a(A_O + ((2 * p + hb) * 4 + q) * 4 + i)}" for i in range(4)]
                bg += [f"v_mul_f32 {v(z + i)}, {v(z + i)}, {v(V_L + 2 * q + 1)}" for i in range(4)]
                bg += [f"v_cvt_pk_bf16_f32 {v(t + 8 + 2 * hb + i)}, {v(z + 2 * i)}, {v(z + 2 * i + 1)}" for i in range(2)]
            bg += [f"s_mov_b32 s49, {(q >> 1) * 262144 + (p >> 1) * 4096}",
                   Op(f"buffer_store_dwordx4 {v(t + 8, 4)}, {v(V_LANE16)}, {s(SR_ST, 4)}, s49 offen "
                      f"offset:{(p & 1) * 2048 + (q & 1) * 1024}" + OSC[OPT["ost"]], "O")]
            n += 1
    bg += srd(SR_FLAG, P_WS, WS_FLAG, FL_SIZE)
    bg += [f"v_lshlrev_b32 {v(V_L0)}, 16, {v(V_LANE16)}", f"v_mov_b32 {v(V_ONEI)}, 1",
           f"s_lshl_b32 {s(S_FO)}, s47, 5", f"s_add_u32 {s(S_FO)}, {s(S_FO)}, s46", f"s_lshl_b32 {s(S_FO)}, {s(S_FO)}, 2",
           f"s_xor_b32 s16, {s(S_FO)}, 32", f"s_lshl_b32 s17, {s(S_FO)}, 11", f"s_add_u32 s17, s17, {12 * MB}",
           "s_xor_b32 s18, s17, 65536"]
    bg += [f"v_add_u32 {v(V_EA + b)}, {EBASE - VBASE}, {v(V_VA + b)}" for b in range(8)]
    isM = f"s_bitcmp1_b32 {s(S_PAIR)}, 2"
    fin = [f"s_lshl_b32 s48, {s(S_RANK)}, 2",
           f"s_lshr_b32 {s(S_PAIR)}, {OPT['tbl']}, s48",
           [isM, f"s_cselect_b32 {s(S_ROLE)}, -1, 0"]]
    fin += mlp1_ids() + [f"s_mul_i32 s48, s49, {2 * 229376}", "s_lshl_b32 s46, s50, 13", "s_add_u32 s48, s48, s46",
                         kh1("s47"), "s_lshl_b32 s46, s47, 12", "s_add_u32 s48, s48, s46",
                         f"s_add_u32 s48, s48, {WS_UF}", f"s_and_b32 s46, s51, {229376 + 4096}"]
    fin += srd(SR_UST, P_WS, "s48", "s46")
    fin += [f"s_lshl_b32 {s(S_FU)}, s49, 1", f"s_add_u32 {s(S_FU)}, {s(S_FU)}, s47", f"s_lshl_b32 {s(S_FU)}, {s(S_FU)}, 5",
            f"s_add_u32 {s(S_FU)}, {s(S_FU)}, s50", f"s_lshl_b32 {s(S_FU)}, {s(S_FU)}, 2",
            f"s_add_u32 {s(S_FU)}, {s(S_FU)}, {FL_U}", "s_andn2_b32 s48, 0x100000, s51",
            f"s_or_b32 {s(S_FU)}, {s(S_FU)}, s48", f"v_xor_b32 v58, s44, {v(V_WA0)}"]
    fin += [f"s_and_b32 {s(S_KH)}, {s(S_PAIR)}, 1", f"s_bfe_u32 s51, {s(S_PAIR)}, 0x10001",
            "s_lshl_b32 s48, s51, 3", "s_lshr_b32 s49, s2, 5", "s_add_u32 s48, s48, s49", "s_bfe_u32 s49, s2, 0x30003",
            [isM, "s_cselect_b32 s46, s48, s49"],
            "s_lshl_b32 s48, s51, 2", "s_lshr_b32 s49, s2, 6", "s_add_u32 s48, s48, s49", "s_bfe_u32 s49, s2, 0x20003",
            [isM, "s_cselect_b32 s47, s49, s48"], "s_lshl_b32 s47, s47, 2", f"s_lshr_b32 s48, {s(S_W)}, 12",
            "s_add_u32 s47, s47, s48"]
    if OPT["msame"]:
        fin += [f"s_and_b32 s48, {s(S_PAIR)}, 3", "s_lshl_b32 s48, s48, 2", "s_lshr_b32 s49, s2, 6",
                "s_add_u32 s48, s48, s49", [isM, "s_cselect_b32 s46, s48, s46"], "s_bfe_u32 s48, s2, 0x10005",
                [isM, f"s_cselect_b32 {s(S_KH)}, s48, {s(S_KH)}"]]
    fin += ["s_movk_i32 s50, 0x800", [isM, "s_cselect_b32 s50, 4096, s50"], f"s_mov_b32 {s(S_WSTEP)}, {64 * 2048}",
            [isM, f"s_cmov_b32 {s(S_WSTEP)}, {128 * 4096}"],
            [isM, f"s_cselect_b32 s44, 1, {32 + OPT['osplit'] // 2}"], f"s_mul_i32 s44, s44, {s(S_KH)}",
            [isM, f"s_cselect_b64 {s(SR_W, 2)}, {s(P_W2, 2)}, {s(P_WO, 2)}"],
            "s_mul_i32 s48, s50, s44", "s_lshl_b32 s48, s48, 6", "s_lshl_b32 s49, s46, 8",
            "s_add_u32 s48, s48, s49", f"s_mov_b32 s51, {8 * MB}", [isM, f"s_cselect_b32 s49, {3584 * 4096}, s51"],
            "s_sub_u32 s49, s49, s48"] + srd(SR_W, SR_W, "s48", "s49") + w_dma_offsets(V_OW, "s50", 62, 48)
    fin += ["s_lshl_b32 s50, s47, 19", f"s_add_u32 s50, s50, {WS_OF}", f"s_mul_i32 s48, s47, {2 * 229376}",
            f"s_add_u32 s48, s48, {WS_UF}", [isM, "s_cselect_b32 s48, s48, s50"], "s_lshl_b32 s49, s44, 12",
            "s_add_u32 s48, s48, s49", "s_sub_u32 s49, 524288, s49", f"s_andn2_b32 s49, s49, {s(S_ROLE)}"]
    fin += srd(SR_ACT2, P_WS, "s48", "s49")
    fin += ["s_lshl_b32 s51, s46, 1", f"s_add_u32 s51, s51, {s(S_KH)}",
            "s_lshr_b32 s48, s47, 1", [isM, "s_cselect_b32 s48, s46, s48"], f"s_lshl_b32 {s(S_FO)}, s48, 8",
            f"v_lshrrev_b32 {v(V_FOFF)}, 2, {v(V_LANE16)}"] + srd(SR_ST, P_WS, WS_S, 20 * MB)
    fin += [f"v_lshlrev_b32 {v(V_XO)}, 11, v2", f"v_lshl_add_u32 {v(V_XO)}, v3, 4, {v(V_XO)}"]
    fin += ["v_lshrrev_b32 v57, 2, v2", "v_and_b32 v62, 1, v3", "v_lshl_add_u32 v62, v62, 2, v57",
            "v_lshl_add_u32 v57, v3, 2, v57", "v_lshlrev_b32 v57, 8, v57", "v_lshlrev_b32 v62, 1, v62",
            "v_and_b32 v63, 3, v2", "v_xor_b32 v62, v62, v63", "v_lshl_add_u32 v57, v62, 4, v57",
            f"v_bfi_b32 v57, {s(S_ROLE)}, v58, v57", f"s_xor_b32 s48, {s(S_KH)}, {s(S_ROLE)}",
            "s_and_b32 s48, s48, 1", "s_lshl_b32 s48, s48, 7", "v_xor_b32 v57, s48, v57", "v_lshlrev_b32 v62, 1, v2"]
    late = ["s_lshl_b32 s48, s51, 7", f"s_and_b32 s48, s48, {s(S_ROLE)}", f"s_and_b32 s49, 128, {s(S_ROLE)}"]
    late += srd(SR_ACT, P_B2, "s48", "s49")
    late += [Op(f"buffer_load_ushort {v(58 + b)}, v62, {s(SR_ACT, 4)}, 0 offen offset:{32 * b}", "b2") for b in range(4)]
    OPERM = (2, 1, 3, 0) if OPT["oord"] else (1, 3, 2, 0)
    mid = []
    for b in range(8):
        mid += [[f"s_movk_i32 s48, {OPERM[b >> 1] * 64 + (b & 1) * 8}", isM, f"s_cmovk_i32 s48, {b * 32}"],
                f"v_xor_b32 {v(V_FA + b)}, s48, v57", f"v_add_u32 {v(V_FA + 8 + b)}, {VBASE}, {v(V_FA + b)}"]
    AY, GI = 36, 64
    sel = ["v_and_b32 v4, 1, v2", "v_lshlrev_b32 v4, 4, v4", "v_mov_b32 v5, 0x3f80", "v_lshlrev_b32 v4, v4, v5",
           "v_bfe_u32 v5, v2, 1, 1", "v_lshrrev_b32 v6, 2, v2", "v_xor_b32 v6, v6, v3", "v_lshl_add_u32 v6, v6, 2, v5"]
    for r in range(2):
        sel += [f"v_cmp_eq_u32 vcc, {r}, v6", f"v_mov_b32 {v(AY + 2 + r)}, 0", f"v_mov_b32 {v(AY + 4 + r)}, 0",
                f"v_cndmask_b32 {v(AY + r)}, 0, v4, vcc", f"v_cndmask_b32 {v(AY + 6 + r)}, 0, v4, vcc"]
    last = [f"s_lshl_b32 {s(S_FO)}, s47, 1", f"s_add_u32 {s(S_FO)}, {s(S_FO)}, {s(S_KH)}",
            f"s_lshl_b32 {s(S_FO)}, {s(S_FO)}, 7", f"s_add_u32 {s(S_FO)}, {s(S_FO)}, {FL_U}",
            f"v_and_b32 {v(V_FOFF)}, 0x7c, {v(V_FOFF)}", f"v_min_u32 v63, {4 * OPT['nf'] - 4}, {v(V_FOFF)}",
            f"v_min_u32 {v(V_FOFF)}, 108, {v(V_FOFF)}", f"s_mov_b32 s48, {f32(-LOG2E)}", Wait(vm=["b2"])]
    for b in range(4):
        last += [f"v_lshlrev_b32 {v(58 + b)}, 16, {v(58 + b)}"]
        last += [f"v_mul_f32 {v(f_acc(4 + b, 3, True) + i)}, s48, {v(58 + b)}" for i in range(4)]

    def inbox(n):
        return ([f"s_add_u32 s19, s17, {(n >> 2) * 4096}"] if n & 3 == 0 else [],
                Op(f"buffer_load_dwordx4 {v(GI + 4 * n, 4)}, {v(V_LANE16)}, {s(SR_ST, 4)}, s19 offen "
                   f"offset:{(n & 3) * 1024} sc1", ("in", n >> 2)))

    def fw(e):
        x = f_w(e, 64)
        x[0] = ([x[0][0][0], f"s_add_u32 {s(S_SW)}, {s(S_SW)}, {s(S_WSTEP)}" if e else f"s_mov_b32 {s(S_SW)}, 0"], x[0][1])
        return x
    groups = [(14 if e >= 14 else max(2 * e - 6, 0), min(2 * e - 1, 23), g_act(e, h)) for e in range(3, 16) for h in range(2)]
    groups += [(t, min(2 * e - 2, 22) - 0.5, g_w(e))
               for e, t in ((6, 0), (7, 5 + 2 * bool(OPT['vlate'])), (10, 5), (11, 7), (12, 9), (13, 11), (14, 13), (15, 15))]
    rates = str(OPT["grate"])
    plan = greedy(groups, range(23), lambda i: int(rates[i]))
    print("MLP1 loads per step", [len(x) for x in plan.values()], file=sys.stderr)
    plan.update({23: fw(0), 24: fw(1), 25: fw(2) + fw(3), 30: [inbox(n) for n in range(4)],
                 31: [] if OPT["insplit"] else [inbox(n) for n in range(4, 8)]})
    plan.update({26 + k: f_act(k >> 1, k & 1, 64, 262144) for k in range(4)})
    fl_at = None
    for j in range(32):
        extra = []
        bg[:] = [(("at", 99) if x[1] > j else ("at", 0)) + (x[1],) if isinstance(x, tuple) and x[0] == "step"
                 else ("at", 99 if x[2] > j else 0, x[2]) if isinstance(x, tuple) and len(x) == 3 else x for x in bg]
        VS = 2 * bool(OPT["vlate"])
        if j == 3 + VS:
            assert "vote" in C.lg
            extra = [(2, Op("ds_read_b128 v[32:35], v63", "voter"))]
        if j == 4 + VS:
            extra = [(3, "v_or3_b32 v32, v32, v33, v34"), (4, "v_or_b32 v32, v32, v35"),
                     (6, "v_readfirstlane_b32 s48, v32"),
                     (8, [f"s_andn2_b32 s48, s48, {s(S_FB)}", "s_cbranch_scc1 L_fallback"])]
        if j == 14:
            assert C.vm.count("O") == 16
        if j == 15:
            assert fl_at is not None or not bg
        if fl_at is None and not bg and "O" not in C.vm[-OPT["odelay"]:]:
            fl_at = j
            extra = [(0, Wait(vm=["O"])), (1, flag_store(S_FO))]
            bg = [("at", 2)] + fin
        if j == 17:
            extra = [(0, Op(f"buffer_load_dword {v(V_FLG)}, {v(V_L0)}, {s(SR_FLAG, 4)}, s16 offen sc1", "fp"))]
        if j == 19:
            assert fl_at < 17
            bg = bg + sel
        if j == 20:
            assert not any("s48" in str(x) for x in bg)
            extra = [(24, Wait(vm=["fp"])), (25, f"v_readfirstlane_b32 s48, {v(V_FLG)}"),
                     (28, ["s_cmp_eq_u32 s48, 0", "s_cbranch_scc1 L_spin_p", "L_spin_p_ret:"])]
        if j == 21:
            assert not bg
            extra = [(30, Op(f"buffer_load_dword {v(V_FLG)}, {v(V_FOFF)}, {s(SR_FLAG, 4)}, {s(S_FO)} offen sc1", "fo"))]
        if j == 22 and OPT["warm"] & 4:
            extra.append((26, warm_call2("o", "m", s(S_W), isM)))
        if j == 23:
            assert not bg
            bg = late + mid
        if j == 25:
            extra = [(24, Wait(vm=["fo"])), (25, f"v_cmp_eq_u32 vcc, 0, {v(V_FLG)}"),
                     (29, ["s_cmp_lg_u64 vcc, 0", "s_cbranch_scc1 L_spin_o", "L_spin_o_ret:"])]
        if 26 <= j < 30:
            assert not bg
            for k in range(2):
                n, t = 2 * (j - 26) + k, 96 + 4 * k
                bg += [("at", 16 * k)]
                bg += [f"v_cvt_pk_bf16_f32 {v(t + i)}, {v(192 + 8 * n + 2 * i)}, {v(193 + 8 * n + 2 * i)}" for i in range(4)]
                bg += [f"v_min_u32 {v(t + i)}, -2, {v(t + i)}" for i in range(4)]
                bg += [f"s_add_u32 s19, s18, {(n >> 2) * 4096}",
                       f"buffer_store_dwordx4 {v(t, 4)}, {v(V_LANE16)}, {s(SR_ST, 4)}, s19 offen offset:{(n & 3) * 1024} sc1"]
        if j == 30:
            assert not bg
            bg = last
        if j == 2 and not OPT["warm"] & 8:
            C("; region -")
        if j == 27:
            C("; region b")
        if j % 4 == 0:
            D.stamp(j // 4, 2)
        g_step(C, j, plan.get(j, []), extra, bg, 3 if j < OPT["ocap"] else 2)
    assert not bg
    print("O flag stored in step", fl_at, file=sys.stderr)
    D.stamp(6)
    D.stamp(8, 2)
    D.stamp(0, 7)
    C(f"s_mov_b32 s48, {f32(GC0 / HS)}", "s_mov_b32 s49, s48", f"s_mov_b32 s50, {f32(-HS / LOG2E)}",
      "s_mov_b32 s51, s50", "s_mov_b32 s44, 229376", f"s_mov_b32 {s(S_SPIN)}, {SPIN}")

    def take(nm, lo, hi):
        C(Wait(vm=[("in", (hi - 1) >> 2)]))
        C.label(f"L_in{nm}_check")
        C(f"v_max_u32 v6, {v(GI + 4 * lo)}, {v(GI + 4 * lo + 1)}",
          [f"v_max3_u32 v6, {v(GI + k)}, {v(GI + k + 1)}, v6" for k in range(4 * lo + 2, 4 * hi, 2)],
          "v_cmp_eq_u32 vcc, -1, v6", "s_nop 1", "s_cmp_lg_u64 vcc, 0", f"s_cbranch_scc1 L_in{nm}_late")
        C.label(f"L_in{nm}_ok")
        C([mfma(v(V_ACC + 8 * n + 4 * hb, 4), v(AY + 4 * hb, 4), v(GI + 4 * n, 4), v(V_ACC + 8 * n + 4 * hb, 4))
           for n in range(lo, hi) for hb in range(2)], "s_nop 1")
    halves = (("a", 0, 4), ("b", 4, 8)) if OPT["insplit"] else (("a", 0, 8),)
    if OPT["insplit"]:
        C([list(inbox(n)) for n in range(4, 8)])
    C(Op(f"buffer_load_dword {v(V_FLG)}, v63, {s(SR_FLAG, 4)}, {s(S_FO)} offen sc1", "fu"))
    take(*halves[0])

    def gelu(p, fill):
        for n in (2 * p, 2 * p + 1):
            t = 96 + (n & 1) * 12
            src = [V_ACC + 8 * n + 2 * i for i in range(4)]
            for k, grp in enumerate((
                    [pk("fma", t + 2 * i, src[i], src[i], "s[48:49]") for i in range(4)],
                    [pk("mul", t + 2 * i, t + 2 * i, src[i]) for i in range(4)],
                    [f"v_exp_f32 {v(t + i)}, {v(t + i)}" for i in range(8)],
                    [pk("fma", t + 2 * i, t + 2 * i, "s[50:51]", "s[50:51]") for i in range(4)],
                    [f"v_rcp_f32 {v(t + i)}, {v(t + i)}" for i in range(8)],
                    [pk("mul", t + 2 * i, t + 2 * i, src[i]) for i in range(4)],
                    [f"v_cvt_pk_bf16_f32 {v(t + 8 + i)}, {v(t + 2 * i)}, {v(t + 2 * i + 1)}" for i in range(4)])):
                C(grp)
                if fill and k in (0, 2, 3, 4):
                    C(fill.pop(0))
            C(Op(f"buffer_store_dwordx4 {v(t + 8, 4)}, {v(V_LANE16)}, {s(SR_UST, 4)}, {'s44' if n & 2 else '0'} offen "
                 f"offset:{(n >> 2) * 2048 + (n & 1) * 1024} sc1", "U"))
    gelu(0, None)
    gelu(1, None)
    if OPT["insplit"]:
        take(*halves[1])
    C(isM, "s_cbranch_scc1 L_mlp2")
    vm0, lg0 = list(C.vm), list(C.lg)
    C("; region o", "; ---- output projection role")
    gelu(2, None)
    gelu(3, None)
    D.stamp(7)
    C(Wait(vm=[("FX", 0)], lg=["*"]))
    AY, XP, GP, OWN, OTH, XW, TT, OUT = 36, 64, 80, 224, 128, 160, 192, 200
    S_U, S_G = 12, 15

    def setup(ops):
        out = []
        out += ops + [f"s_mul_i32 {s(S_G)}, s48, 393216", "s_lshl_b32 s50, s49, 10", f"s_add_u32 {s(S_G)}, {s(S_G)}, s50",
                      "s_lshl_b32 s48, s48, 17", "s_lshl_b32 s49, s49, 6", "s_add_u32 s48, s48, s49",
                      f"s_sub_u32 s49, {4 * MB}, s48"]
        return out + srd(SR_X, P_X, "s48", "s49") + srd(SR_V, P_OUT, "s48", "s49")

    def publish(n, src, u, row):
        t = (8, 12, 44, 48)[n & 3]
        return ([f"v_cvt_pk_bf16_f32 {v(t + i)}, {v(src + 2 * i)}, {v(src + 2 * i + 1)}" for i in range(4)]
                + [f"v_min_u32 {v(t + i)}, -2, {v(t + i)}" for i in range(4)]
                + [f"s_add_u32 s46, {s(S_U + u)}, {row * 32768}",
                   f"buffer_store_dwordx4 {v(t, 4)}, {v(V_LANE16)}, {s(SR_ST, 4)}, s46 offen sc1"])

    def get(buf, n):
        if buf == "x":
            return ([f"s_mov_b32 s47, {n * 32768}"],
                    f"buffer_load_dwordx4 {v(XP + 4 * n, 4)}, {v(V_XO)}, {s(SR_X, 4)}, s47 offen")
        return ([f"s_add_u32 s47, {s(S_G)}, {buf * 131072 + n * 32768}"],
                f"buffer_load_dwordx4 {v(GP + 16 * buf + 4 * n, 4)}, {v(V_LANE16)}, {s(SR_ST, 4)}, s47 offen sc1")

    def closing(nq, mlp2, plan, units, order, counts):
        bg, w0, nw = [], nq - 2 * win_of(nq), len(f_window(nq))
        seq = [(k, n) for k in order for n in range(4)]
        sched, cnt = {}, str(counts)[1:]
        for r, c_ in zip(range(nw - len(cnt), nw), cnt):
            sched[r], seq = seq[:int(c_)], seq[int(c_):]
        assert not seq
        np_ = 0
        for i in range(nq - TAIL, w0 + nw):
            r = i - w0
            for g, src, u, row in units(r):
                bg += [("at", g)] + publish(np_, src, u, row)
                np_ += 1
            if r in (-1, 1, nw - nw // 4):
                D.stamp(4 + (-1, 1, nw - nw // 4).index(r), 7)
            f_step(C, i, nq, mlp2, list(plan.get(i, [])) + [get(*x) for x in sched.get(r, [])], (), bg,
                   3 if mlp2 and r > 0 and (win_of(nq) < 4 or OPT['mord'] < 0 and r == 4) else 2)
            assert not bg, (r, len(bg))
        assert np_ == 12

    def finish(nm, mlp2):
        D.stamp(8)
        D.stamp(7, 7)
        C(f"s_mov_b32 s48, {f32(-LOG2E)}", f"s_mov_b32 {s(S_SPIN)}, {SPIN}")
        C.label(f"L_{nm}_check")
        C("s_waitcnt vmcnt(0)")
        for b in range(3):
            g = GP + 16 * b
            C(f"v_max_u32 {v(4 + b)}, {v(g)}, {v(g + 1)}",
              [f"v_max3_u32 {v(4 + b)}, {v(g + k)}, {v(g + k + 1)}, {v(4 + b)}" for k in range(2, 16, 2)])
        C("v_max3_u32 v7, v4, v5, v6", "v_cmp_eq_u32 vcc, -1, v7", "s_nop 1", "s_cmp_lg_u64 vcc, 0",
          f"s_cbranch_scc1 L_{nm}_late")
        C.label(f"L_{nm}_ok")
        D.stamp(8, 7)
        Y, S_ = (OWN, OTH) if mlp2 else (OTH, OWN)

        def sel(d, src, q, first):
            return mfma(v(d, 4), v(AY + 4 * q, 4), v(src, 4), "0" if first else v(d, 4))

        def own(n):
            return [sel(OWN + 8 * n + 4 * q, GP + 32 + 4 * n, q, False) for q in range(2)]

        def oth(n):
            return [sel(OTH + 8 * n + 4 * q, GP + 16 * k + 4 * n, q, k == 0) for q in range(2) for k in range(2)]
        fy, fs = (own, oth) if mlp2 else (oth, own)
        mf = fy(0) + fy(1)
        lead = len(mf)
        for n in range(4):
            mf += fs(n) + [sel(XW + 8 * n + 4 * q, XP + 4 * n, q, True) for q in range(2)] + (fy(n + 2) if n < 2 else [])
        bg = [("at", len(fy(0)) + 7)]
        for n in range(4):
            y = Y + 8 * n
            bg += [f"v_exp_f32 {v(TT + i)}, {v(y + i)}" for i in range(8)]
            bg += [f"v_fma_f32 {v(TT + i)}, {v(TT + i)}, s48, s48" for i in range(8)]
            bg += [f"v_rcp_f32 {v(TT + i)}, {v(TT + i)}" for i in range(8)]
            bg += [f"v_mul_f32 {v(y + i)}, {v(TT + i)}, {v(y + i)}" for i in range(8)]
            bg += [f"v_fma_f32 {v(y + i)}, {v(S_ + 8 * n + i)}, {v(y + i)}, {v(XW + 8 * n + i)}" for i in range(8)]
            bg += [f"v_cvt_pk_bf16_f32 {v(OUT + 4 * n + i)}, {v(y + 2 * i)}, {v(y + 2 * i + 1)}" for i in range(4)]
            bg += [f"s_mov_b32 s46, {n * 32768}",
                   f"buffer_store_dwordx4 {v(OUT + 4 * n, 4)}, {v(V_XO)}, {s(SR_V, 4)}, s46 offen" + OSC[OPT["osc"]]]
        n0 = len(C.A.lines)
        C.weave(mf, {}, {}, bg, OPT["fcap"])
        C.drain(bg)
        check_after(C.A.lines[n0:])

    def refetch(nm):
        C.label(f"L_{nm}_late")
        C(f"s_sub_u32 {s(S_SPIN)}, {s(S_SPIN)}, 1", f"s_cbranch_scc1 L_{nm}_ok")
        if OPT["probe"]:
            C(f"v_max3_u32 v7, {v(GP)}, {v(GP + 16)}, {v(GP + 32)}", "v_min_u32 v8, 2, v3", "v_cmp_eq_u32 vcc, -1, v7",
              "v_lshlrev_b32 v8, 17, v8", "s_nop 0", "s_cmp_lg_u64 vcc, 0", f"s_cbranch_scc0 L_{nm}_near")
            C.label(f"L_{nm}_probe")
            C(f"buffer_load_dword v7, v8, {s(SR_ST, 4)}, {s(S_G)} offen sc1",
              f"s_sub_u32 {s(S_SPIN)}, {s(S_SPIN)}, 1", f"s_cbranch_scc1 L_{nm}_ok", "s_waitcnt vmcnt(0)",
              "v_cmp_eq_u32 vcc, -1, v7", "s_nop 1", "s_cmp_lg_u64 vcc, 0", f"s_cbranch_scc1 L_{nm}_probe")
            C.label(f"L_{nm}_near")
        for b in range(3):
            C(f"v_cmp_eq_u32 vcc, -1, {v(4 + b)}", "s_nop 1", "s_cmp_lg_u64 vcc, 0", f"s_cbranch_scc0 L_{nm}_has{b}")
            C([list(get(b, n)) for n in range(4)])
            C.label(f"L_{nm}_has{b}")
        C(f"s_branch L_{nm}_check")
    ops = ["s_mul_i32 s48, s47, 393216", "s_lshl_b32 s49, s46, 12", "s_add_u32 s48, s48, s49",
           f"s_lshl_b32 s49, {s(S_KH)}, 11", f"s_lshl_b32 s50, {s(S_KH)}, 17"]
    for u in range(3):
        ops += [f"s_xor_b32 s51, s49, {OPERM[u] * 1024}", "s_add_u32 s51, s51, s48",
                f"s_add_u32 {s(S_U + u)}, s51, {'s50' if OPERM[u] & 1 else 262144}"]
    ops += ["s_mov_b32 s48, s47", "s_lshl_b32 s49, s46, 1", f"s_add_u32 s49, s49, {s(S_KH)}", "s_lshl_b32 s49, s49, 1"]
    plan, _ = f_body(C, "oproj", 64, False, setup(ops), D)
    closing(64, False, plan,
            lambda r: [(k * 4 * win_of(64), f_acc(r // 2 * 2 - 2, 2 * (r & 1) + k, False), r // 2 - 1, 2 * (r & 1) + k)
                       for k in range(2)] if r >= 2 else [],
            ("x", 2, 0, 1) if OPT["oord"] else ("x", 0, 1, 2), OPT["ogets"])
    finish("o", False)
    C("s_waitcnt vmcnt(0) lgkmcnt(0)", "s_branch L_done" if OPT["diag"] else "s_endpgm")
    refetch("o")
    C("; region m", ".p2align 12")
    C.label("L_hook_mlp2")
    C("s_waitcnt vmcnt(24)", f"v_cmp_eq_u32 vcc, 0, {v(V_FLG)}", f"s_cmp_eq_u32 {s(S_CNT)}, {(52 - TAIL) // 8}",
      "s_cselect_b32 s48, 0x7ff, -1", f"s_cmp_eq_u32 {s(S_CNT)}, {(52 - TAIL) // 8 - 1}",
      "s_cmov_b32 s48, 0x7fff", "s_or_b32 s49, vcc_lo, vcc_hi", "s_and_b32 s49, s48, s49",
      "s_cbranch_scc0 L_hook_mlp2_ret")
    C("s_branch L_poll_more")
    C.vm, C.lg = vm0, lg0
    C.label("L_mlp2")
    USZ = 2 * 229376 - 4096
    C(Wait(vm=["fu"]), f"v_cmp_eq_u32 vcc, 0, {v(V_FLG)}", "s_nop 1",
      "s_cmp_lg_u64 vcc, 0", f"s_cselect_b32 {s(SR_ACT2 + 2)}, 0, {USZ}")
    fu2 = Op(f"buffer_load_dword {v(V_FLG)}, v63, {s(SR_FLAG, 4)}, {s(S_FO)} offen sc1", "fu2")

    def u_loads():
        return [st_ + [o] for e in range(2) for h in range(2) for st_, o in f_act(e, h, 56, 229376)]
    fill = u_loads()
    if OPT["fu2"] == 1:
        C(fu2)
    gelu(2, fill)
    if OPT["fu2"] == 2:
        C(fu2)
    gelu(3, fill)
    assert not fill
    n_fu2 = len(C.vm) - 1 - C.vm.index("fu2") if OPT["fu2"] else 0
    C(f"s_cmp_eq_u32 {s(SR_ACT2 + 2)}, 0", "s_cbranch_scc1 L_u_late")
    C.label("L_u_late_ret")
    u_order = C.vm[-20 - (OPT['fu2'] == 2):]
    C(Wait(vm=[("FX", 0)], lg=["*"]))
    D.stamp(7)
    ops = ["s_lshl_b32 s48, s46, 1", f"s_add_u32 s48, s48, {s(S_KH)}", "s_lshl_b32 s49, s47, 11",
           f"s_lshl_b32 s50, {s(S_KH)}, 17", "s_xor_b32 s51, s48, 1", "s_mul_i32 s51, s51, 393216",
           "s_add_u32 s51, s51, s49", f"s_add_u32 {s(S_U)}, s51, s50", f"s_add_u32 {s(S_U + 2)}, s51, {262144 + 1024}",
           "s_mul_i32 s51, s48, 393216", "s_add_u32 s51, s51, s49", f"s_add_u32 {s(S_U + 1)}, s51, s50",
           "s_lshl_b32 s49, s47, 1", "s_add_u32 s49, s49, 1"]
    plan, _ = f_body(C, "mlp2", 56, True, setup(ops), D)

    def m_units(r):
        if not 1 <= r <= len(f_window(56)) - 4:
            return []
        b, qs = f_window(56)[r - 1]
        return [(2 + q, f_acc(b, q, True), 2 if q else b >> 2, b & 3) for q in qs[::2]]
    closing(56, True, plan, m_units, ("x", 0, 1, 2), OPT["mgets"])
    finish("m", True)
    C.label("L_done")
    C("s_waitcnt vmcnt(0) lgkmcnt(0)")
    D.stamp(9)
    D.stamp(9, 2)
    D.stamp(9, 7)
    D.flush(10)
    C.label("L_end")
    C("s_endpgm")
    refetch("m")
    C("; region -")
    for nm, lo, hi in halves:
        C.label(f"L_in{nm}_late")
        C(f"s_sub_u32 {s(S_SPIN)}, {s(S_SPIN)}, 1", f"s_cbranch_scc1 L_in{nm}_ok",
          [list(inbox(n)) for n in range(lo, hi)], "s_waitcnt vmcnt(0)", f"s_branch L_in{nm}_check")
    C.label("L_spin_p")
    C(f"s_mov_b32 {s(S_SPIN)}, {SPIN}")
    C.label("L_poll_p")
    C(f"buffer_load_dword {v(V_FLG)}, {v(V_L0)}, {s(SR_FLAG, 4)}, s16 offen sc1", "s_waitcnt vmcnt(0)",
      f"v_readfirstlane_b32 s48, {v(V_FLG)}", f"s_sub_u32 {s(S_SPIN)}, {s(S_SPIN)}, 1", "s_cbranch_scc1 L_spin_p_ret",
      "s_cmp_eq_u32 s48, 0", "s_cbranch_scc1 L_poll_p", "s_branch L_spin_p_ret")
    C.label("L_spin_r")
    C(f"s_mov_b32 {s(S_SPIN)}, {SPIN}")
    C.label("L_poll_r")
    C(f"buffer_load_dword v63, v62, {s(SR_ACT, 4)}, s51 offen sc1",
      f"buffer_load_dword v30, v31, {s(SR_ACT, 4)}, s50 offen sc1", "s_waitcnt vmcnt(0)",
      f"v_readfirstlane_b32 {s(S_RANK)}, v63", "v_cmp_gt_u32 vcc, 4, v30", "s_nop 1", "s_cmp_lg_u64 vcc, 0",
      f"s_cselect_b32 {s(S_RANK)}, 0, {s(S_RANK)}", f"s_sub_u32 {s(S_SPIN)}, {s(S_SPIN)}, 1",
      "s_cbranch_scc1 L_spin_r_ret", f"s_cmp_eq_u32 {s(S_RANK)}, 0", "s_cbranch_scc1 L_poll_r",
      "s_branch L_spin_r_ret")
    C.label("L_u_late")
    if OPT["fu2"]:
        C(f"s_waitcnt vmcnt({n_fu2})", f"v_cmp_eq_u32 vcc, 0, {v(V_FLG)}", "s_nop 1", "s_cmp_lg_u64 vcc, 0",
          "s_cbranch_scc0 L_u_go")
    C("s_waitcnt vmcnt(0)", flag_store(S_FU), f"v_mov_b32 v62, {v(V_FOFF)}", f"v_mov_b32 {v(V_FOFF)}, v63")
    poll(C, "u", S_FO)
    C(f"v_mov_b32 {v(V_FOFF)}, v62", "L_u_go:", f"s_mov_b32 {s(SR_ACT2 + 2)}, {USZ}")
    fill = u_loads()
    for tag in u_order:
        C(f"buffer_load_dword v57, {v(V_L0)}, {s(SR_FLAG, 4)}, 0 offen" if tag in ("U", "fu2") else fill.pop(0))
    assert not fill
    C("s_branch L_u_late_ret")
    C.label("L_poll_more")
    C(f"s_mov_b32 {s(S_SPIN)}, {SPIN}")
    C.label("L_poll_u2")
    C(f"buffer_load_dword {v(V_FLG)}, {v(V_FOFF)}, {s(SR_FLAG, 4)}, {s(S_FO)} offen sc1",
      f"s_sub_u32 {s(S_SPIN)}, {s(S_SPIN)}, 1", "s_cbranch_scc1 L_hook_mlp2_ret", "s_waitcnt vmcnt(0)",
      f"v_cmp_eq_u32 vcc, 0, {v(V_FLG)}", "s_nop 1", "s_or_b32 s49, vcc_lo, vcc_hi", "s_and_b32 s49, s48, s49",
      "s_cbranch_scc1 L_poll_u2", "s_branch L_hook_mlp2_ret")
    if OPT["nf"] < 7:
        C.label("L_poll_head")
        C(f"s_mov_b32 {s(S_SPIN)}, {SPIN}")
        C.label("L_poll_u3")
        C(f"buffer_load_dword {v(V_FLG)}, {v(V_FOFF)}, {s(SR_FLAG, 4)}, {s(S_FO)} offen sc1",
          f"s_sub_u32 {s(S_SPIN)}, {s(S_SPIN)}, 1", "s_cbranch_scc1 L_poll_head_ret", "s_waitcnt vmcnt(0)",
          f"v_cmp_eq_u32 vcc, 0, {v(V_FLG)}", "s_nop 1", "s_or_b32 s44, vcc_lo, vcc_hi", "s_and_b32 s44, 0x7f, s44",
          "s_cbranch_scc1 L_poll_u3", "s_branch L_poll_head_ret")
    C("; region -")
    C.label("L_spin_o")
    poll(C, "o", S_FO)
    C("s_branch L_spin_o_ret")
    C.label("L_spin_h")
    if OPT["go"]:
        poll(C, "h", 51, SR_LO, 16)
        C("s_branch L_spin_h_ret")
        C.label("L_spin_go")
        C(f"v_mov_b32 {v(V_FOFF)}, 0")
        poll(C, "go", None, SR_DBG)
        C("s_branch L_spin_go_ret")
        C.label("L_clear")
        C("v_mov_b64 v[128:129], 0", "v_mov_b64 v[130:131], 0", f"s_mov_b32 s48, {WS_FLAG + FL_A}")
        C([f"buffer_store_dwordx4 v[128:131], {v(V_LANE16)}, {s(SR_LO, 4)}, s48 offen offset:{1024 * i} sc1"
           for i in range(2)])
        C("s_branch L_clear_ret")
        C.label("L_open")
        C("v_mov_b32 v128, 1", f"v_lshlrev_b32 v129, 4, {v(V_LANE16)}", f"s_waitcnt vmcnt({OPT['qpro']})",
          f"buffer_store_dword v128, v129, {s(SR_DBG, 4)}, 0 offen sc1", "s_branch L_open_ret")
    else:
        poll(C, "h", None, SR_DBG, 4)
        C("s_branch L_spin_h_ret")
    C.label("L_fallback")
    C(f"s_mov_b32 {s(S_FB)}, 1", "s_waitcnt vmcnt(0) lgkmcnt(0)", "s_barrier", "s_nop 7", "s_branch L_restart")
    C.label("L_fb_hook")
    C("v_lshlrev_b32 v63, 4, v0", "s_lshl_b32 s48, s2, 12", f"s_add_u32 s48, s48, {WS_MX}",
      srd(SR_W, P_WS, "s48", 4096), f"s_cmp_eq_u32 {s(S_FB)}, 1", "s_cbranch_scc1 L_fb_scan")
    C(f"buffer_load_dwordx4 v[248:251], v63, {s(SR_W, 4)}, 0 offen sc1", "s_waitcnt vmcnt(0)")
    C([f"v_mov_b32 {v(V_NEGM + 4 * q)}, {v(248 + q)}" for q in range(4)])
    C(fill_srd(), "s_mov_b32 s48, 0", "s_branch L_fb_ret")
    C.label("L_fb_scan")
    C(f"s_mov_b32 {s(S_SK)}, 0", f"s_mov_b32 {s(S_CNT)}, 32")
    C.label("L_fb_loop")
    C("s_waitcnt vmcnt(0) lgkmcnt(0)", "s_barrier")
    ops = k_dma(0)
    C(ops[0], "s_nop 0", ops[1:], "s_waitcnt vmcnt(0)", "s_barrier")
    C(k_reads(0, A_KF), "s_waitcnt lgkmcnt(0)", k_reads(1, A_VF), "s_waitcnt lgkmcnt(0)")
    C(qk_mfmas(0, A_KF, True), qk_mfmas(1, A_VF, True), "s_nop 7")
    for u in range(2):
        for q in range(4):
            C(max_ops(u, q, False))
    C(f"s_sub_u32 {s(S_CNT)}, {s(S_CNT)}, 1", f"s_cmp_lg_u32 {s(S_CNT)}, 0", "s_cbranch_scc1 L_fb_loop")
    C(wave_red([V_NEGM + 4 * q for q in range(4)], [V_NEGM + 4 * q + 1 for q in range(4)], "v_max_f32", False))
    C([f"v_mov_b32 {v(248 + q)}, {v(V_NEGM + 4 * q)}" for q in range(4)])
    C(f"buffer_store_dwordx4 v[248:251], v63, {s(SR_W, 4)}, 0 offen sc1", f"s_mov_b32 {s(S_FB)}, 3",
      "s_waitcnt vmcnt(0)", "s_barrier",
      "s_branch L_restart")
    C.label("L_code_end")


def check_order(lines):
    from asmlib import I
    ins = [I(x) for x in lines if not x.endswith(":") and not x.startswith(".")]
    mf = [i for i, x in enumerate(ins) if x.is_mfma]
    for i, x in enumerate(ins):
        if x.op.startswith("v_cvt_pk"):
            r = next(iter(x.w))
            g = sum(1 for m in mf if m < i) - 1
            first = min(k for k, m in enumerate(mf) if r in ins[m].r)
            assert g < first, ("P63 late", x.text, g, first)
            for src in x.r:
                over = [k for k, y in enumerate(ins) if src in y.w and (y.op == "v_mov_b32" or y.text.endswith(", 0"))]
                assert all(k > i for k in over), ("source overwritten early", x.text)
        if x.op == "v_subrev_u32":
            assert sum(1 for m in mf if m < i) - 1 < 80
        if x.op == "v_accvgpr_write_b32":
            assert not any(m > i and x.w & ins[m].r for m in mf), x.text


def check_after(lines):
    from asmlib import I
    ins = [I(x) for x in lines if not x.endswith(":") and not x.startswith((".", ";"))]
    for i, x in enumerate(ins):
        if x.is_valu:
            assert not any(y.is_mfma and y.w & (x.r | x.w) for y in ins[i:]), x.text


def kd(name, nfv, acc):
    return f""".p2align 6
.amdhsa_kernel {name}
  .amdhsa_next_free_vgpr {nfv}
  .amdhsa_next_free_sgpr 102
  .amdhsa_accum_offset {acc}
  .amdhsa_group_segment_fixed_size 0
  .amdhsa_float_denorm_mode_32 {OPT["denorm"]}
  .amdhsa_kernarg_size 104
  .amdhsa_user_sgpr_count 2
  .amdhsa_user_sgpr_kernarg_segment_ptr 1
  .amdhsa_system_sgpr_workgroup_id_x 1
.end_amdhsa_kernel
"""


DOC = """;
;  1. Layer norms of 8 rows per workgroup: mean / rstd and h = LN(LN(x)) (stored as MFMA fragments) are published.
;  2. Q projection on raw x: q = rstd * c * (x @ wq - mean * colsum(wq)); the mean term is one extra MFMA step.
"""


def main():
    head = [l for l in open(f"cdna_kernels/{NAME}.s.ref").read().split("\n") if l.startswith(";")]
    head = [l for l in head if "@launch" not in l and "Override launch" not in l and "grid=ceil" not in l]
    out = "\n".join(head) + "\n"
    out += f"; @launch grid=(256,1,1) block=(256,1,1) lds={MAIN_LDS}\n"
    out += DOC
    out += '.amdgcn_target "amdgcn-amd-amdhsa--gfx950"\n.text\n'
    name = NAME + "_kernel"
    C = Ctx(Asm())
    gen_main(C)
    on = "".join(g for bit, g in ((1, "a"), (2, "b"), (4, "om")) if OPT["warm"] & bit)
    C.A.lines = [("; region -" if x.startswith("; region") and x.split()[2][0] not in on else x) for x in C.A.lines]
    lab = {"L_attn_loop": "a", "L_attn_entry": "a", "L_hook": "a",
           "L_hook_mlp2": "m", "L_u_late": "m"}
    C.A.lines, cnt = insert_stubs(C.A.lines, {k: [g] for k, g in lab.items() if g in on})
    print("warm-up stubs:", cnt, file=sys.stderr)
    pr = check_hazards(C.A.lines)
    for p in pr[:40]:
        print("HAZARD", p, file=sys.stderr)
    bad = len(pr)
    out += f".globl {name}\n.p2align 8\n.type {name},@function\n" + C.A.text()
    out += '.section .rodata,"a"\n' + kd(name, 512, 256)
    open(sys.argv[1], "w").write(out)
    print("hazards:", bad, file=sys.stderr)


main()
```
